```python
import torch

def _softmax(x, axis=-1):
    return torch.softmax(x, dim=axis)
def _gelu(x):
    return torch.nn.functional.gelu(x, approximate="tanh")
def _silu(x):
    return torch.nn.functional.silu(x)
def _sigmoid(x):
    return torch.sigmoid(x)
def _layernorm(x, axis=-1, eps=1e-5):
    m = x.mean(dim=axis, keepdim=True)
    v = x.var(dim=axis, keepdim=True, unbiased=False)
    return (x - m) / torch.sqrt(v + eps)
def _scatter_add(tgt, idx, src, axis=0):
    return tgt.clone().index_add_(axis, idx, src)
def _segment_sum(src, seg, n):
    out = torch.zeros((n,) + src.shape[1:], dtype=src.dtype)
    return out.index_add_(0, seg, src)
def _pad(x, pw):
    flat = tuple(v for pair in reversed(pw) for v in pair)
    return torch.nn.functional.pad(x, flat)

kernel_name = 'interleave_layers__linear_kernel_hedgehog__sliding_block__prompt'

def setup_inputs():

    _w = (lambda a: (lambda t: t.to(torch.bfloat16) if t.is_floating_point() else t)(torch.as_tensor(a)))
    def _A_setup():
        B, S, D, H = 1, 2048, 448, 16
        Dh = D // H
        return {
            "x": _w((lambda *s: torch.randn(*s, dtype=torch.bfloat16) * 0.05)(B, S, D)),
            "wqkv": _w((lambda *s: torch.randn(*s, dtype=torch.bfloat16) * 0.4)(D, 3 * D)),
            "w_phi": _w((lambda *s: torch.randn(*s, dtype=torch.bfloat16) * 0.4)(H, Dh, Dh) * (Dh ** -0.5)),
            "wo": _w((lambda *s: torch.randn(*s, dtype=torch.bfloat16) * 0.05)(D, D)),
        }
    _A_in = _A_setup()

    def _B_setup():
        B, S, D = 1, 2048, 448
        return {
            "x": _w((lambda *s: torch.randn(*s, dtype=torch.bfloat16) * 0.05)(B, S, D)),
            "wqkv": _w((lambda *s: torch.randn(*s, dtype=torch.bfloat16) * 0.1)(D, 3 * D)),
            "wo": _w((lambda *s: torch.randn(*s, dtype=torch.bfloat16) * 0.05)(D, D)),
        }
    _B_in = _B_setup()

    return {
        "A_x": _A_in["x"],
        "A_wqkv": _A_in["wqkv"],
        "A_w_phi": _A_in["w_phi"],
        "A_wo": _A_in["wo"],
        "B_x": _B_in["x"],
        "B_wqkv": _B_in["wqkv"],
        "B_wo": _B_in["wo"],
    }

def reference(A_x, A_wqkv, A_w_phi, A_wo, B_x, B_wqkv, B_wo):
    def _A_ref(x, wqkv, w_phi, wo):
        B, S, D = x.shape
        H = 16; Dh = D // H
        qkv = (lambda x, *d: x.permute(*d))((x @ wqkv).reshape(B, S, 3, H, Dh), 2, 0, 3, 1, 4)
        q, k, v = qkv[0], qkv[1], qkv[2]
        pq = torch.einsum("bhsd,hdf->bhsf", q, w_phi)
        pk = torch.einsum("bhsd,hdf->bhsf", k, w_phi)
        phi_q = torch.concatenate([_softmax(pq, axis=-1), _softmax(-pq, axis=-1)], axis=-1)
        phi_k = torch.concatenate([_softmax(pk, axis=-1), _softmax(-pk, axis=-1)], axis=-1)
        kv = torch.einsum("bhsf,bhsd->bhfd", phi_k, v)
        z  = torch.einsum("bhsf->bhf", phi_k)
        num = torch.einsum("bhqf,bhfd->bhqd", phi_q, kv)
        den = torch.einsum("bhqf,bhf->bhq", phi_q, z)[..., None] + 1e-6
        o = num / den
        return (lambda x, *d: x.permute(*d))(o, 0, 2, 1, 3).reshape(B, S, D) @ wo

    def _B_ref(x, wqkv, wo):
        B, S, D = x.shape
        H = 16; Dh = D // H; W = 256
        qkv = (lambda x, *d: x.permute(*d))((x @ wqkv).reshape(B, S, 3, H, Dh), 2, 0, 3, 1, 4)
        q, k, v = qkv[0], qkv[1], qkv[2]
        scores = torch.einsum("bhqd,bhkd->bhqk", q, k) * (Dh ** -0.5)
        idx = torch.arange(S)
        mask = (idx[:, None] - idx[None, :] >= 0) & (idx[:, None] - idx[None, :] < W)
        scores = torch.where(mask[None, None], scores, -1e9)
        p = _softmax(scores, axis=-1)
        o = torch.einsum("bhqk,bhkd->bhqd", p, v)
        return (lambda x, *d: x.permute(*d))(o, 0, 2, 1, 3).reshape(B, S, D) @ wo

    x = A_x
    x = x + _A_ref(_layernorm(x, axis=-1), A_wqkv, A_w_phi, A_wo)
    x = x + _B_ref(_layernorm(x, axis=-1), B_wqkv, B_wo)
    x = x + _A_ref(_layernorm(x, axis=-1), A_wqkv, A_w_phi, A_wo)
    x = x + _B_ref(_layernorm(x, axis=-1), B_wqkv, B_wo)
    return x
```

```python
import re

_REG = re.compile(r'^(-?)(?:\|)?([vas])(?:(\d+)|\[(\d+):(\d+)\])(?:\|)?$')

def regs_of(op):
    if not isinstance(op, str):
        return set()
    op = op.strip()
    if op.startswith('abs(') or op.startswith('-abs('):
        op = op[op.index('(')+1:-1]
    m = _REG.match(op)
    if m:
        kind = m.group(2)
        if m.group(3) is not None:
            return {(kind, int(m.group(3)))}
        return {(kind, i) for i in range(int(m.group(4)), int(m.group(5))+1)}
    if op == 'vcc':
        return {('s', 106), ('s', 107)}
    if op == 'vcc_lo':
        return {('s', 106)}
    if op == 'vcc_hi':
        return {('s', 107)}
    if op == 'exec':
        return {('s', 126), ('s', 127)}
    if op == 'exec_lo':
        return {('s', 126)}
    if op == 'exec_hi':
        return {('s', 127)}
    if op == 'm0':
        return {('s', 124)}
    return set()

def v(i, n=1):
    return f'v{i}' if n == 1 else f'v[{i}:{i+n-1}]'
def a(i, n=1):
    return f'a{i}' if n == 1 else f'a[{i}:{i+n-1}]'
def s(i, n=1):
    return f's{i}' if n == 1 else f's[{i}:{i+n-1}]'

TRANS = ('v_exp_f32', 'v_log_f32', 'v_rcp_f32', 'v_rsq_f32', 'v_sqrt_f32', 'v_sin_f32', 'v_cos_f32', 'v_rcp_iflag_f32')

class Ins:
    __slots__ = ('op', 'ops', 'mods', 'cls', 'w', 'r', 'passes', 'srcc', 'srcab', 'text', 'states', 'sdata')
    def __init__(self, op, ops, mods):
        self.op, self.ops, self.mods = op, ops, mods
        self.passes = 0
        self.srcc = set(); self.srcab = set(); self.sdata = set()
        self.states = 1
        base = op
        for suf in ('_e32', '_e64', '_dpp', '_sdwa'):
            if base.endswith(suf):
                base = base[:-len(suf)]
        R = [regs_of(o) for o in ops]
        w = set(); r = set()
        if base.startswith('v_mfma'):
            self.cls = 'mfma'
            self.passes = 8 if '32x32' in base else 4
            w = R[0]; self.srcab = R[1] | R[2]; self.srcc = R[3]; r = R[1] | R[2] | R[3]
        elif base.startswith('v_'):
            self.cls = 'valu'
            if base in TRANS: self.cls = 'trans'
            if base.startswith('v_dot'): self.cls = 'dot'
            if base.startswith('v_permlane'):
                self.cls = 'perm'
                w = R[0] | R[1]; r = R[0] | R[1]
            elif base in ('v_readfirstlane_b32', 'v_readlane_b32'):
                self.cls = 'rdlane'
                w = R[0]; r = set().union(*R[1:])
            elif base in ('v_add_co_u32', 'v_sub_co_u32', 'v_addc_co_u32', 'v_subb_co_u32', 'v_div_scale_f32', 'v_mad_u64_u32'):
                w = R[0] | R[1]; r = set().union(*R[2:])
            elif base == 'v_nop':
                pass
            else:
                w = R[0]; r = set().union(*R[1:]) if len(R) > 1 else set()
                if base.startswith('v_fmac') or base.startswith('v_dot2c') or base.startswith('v_pk_fmac') or base == 'v_writelane_b32':
                    r |= R[0]
                if base.startswith('v_cmpx'):
                    w |= regs_of('exec')
                if base == 'v_cndmask_b32' and len(ops) == 3:
                    r |= regs_of('vcc')
            if 'dpp' in op or 'row_' in mods or 'quad_perm' in mods:
                self.cls = 'dpp'
        elif base.startswith('ds_'):
            self.cls = 'ds'
            if base.startswith('ds_read') or base.startswith('ds_bpermute') or base.startswith('ds_permute') or base.startswith('ds_swizzle') or 'rtn' in base:
                w = R[0]; r = set().union(*R[1:])
            else:
                r = set().union(*R)
        elif base.startswith('buffer_') or base.startswith('global_'):
            self.cls = 'vmem'
            islds = re.search(r'\blds\b', mods) is not None or '_lds_' in base
            if base in ('buffer_wbl2', 'buffer_inv'):
                pass
            elif islds:
                r = set().union(*R) | regs_of('m0')
                self.cls = 'dma'
            elif '_load' in base:
                w = R[0]; r = set().union(*R[1:])
                if 'd16' in base: r |= R[0]
            elif '_store' in base:
                r = set().union(*R)
                if base.endswith('x4') or base.endswith('x3'):
                    self.sdata = R[0] if base.startswith('buffer_') else R[1]
            elif '_atomic' in base:
                r = set().union(*R)
                if 'sc0' in mods: w = R[0]
        elif base.startswith('s_'):
            self.cls = 'salu'
            if base == 's_nop':
                self.states = int(ops[0]) + 1
            elif base.startswith('s_cmp') or base.startswith('s_cbranch') or base in ('s_branch', 's_waitcnt', 's_barrier', 's_endpgm', 's_setprio', 's_sleep', 's_bitcmp0_b32', 's_bitcmp1_b32', 's_setreg_b32'):
                r = set().union(*R) if R else set()
            else:
                w = R[0] if R else set(); r = set().union(*R[1:]) if len(R) > 1 else set()
                if 'saveexec' in base:
                    w |= regs_of('exec'); r |= regs_of('exec')
                if base.startswith('s_load') or base.startswith('s_memtime') or base.startswith('s_memrealtime') or base.startswith('s_buffer_load'):
                    self.cls = 'smem'
        else:
            raise ValueError('unknown op ' + op)
        self.w, self.r = w, r
        t = op + (' ' + ', '.join(str(o) for o in ops) if ops else '')
        if mods: t += ' ' + mods
        self.text = t

VALUISH = ('valu', 'trans', 'dot', 'perm', 'rdlane', 'dpp')

def need(p, c):
    n = 0
    pv = {x for x in p.w if x[0] in 'va'}
    ps = {x for x in p.w if x[0] == 's'}
    if p.cls == 'mfma':
        big = p.passes == 8
        if c.cls == 'mfma':
            if pv & c.srcab: n = max(n, 12 if big else 8)
            if pv & c.srcc:
                if not (pv == c.srcc and p.passes == c.passes): n = max(n, 10 if big else 6)
            elif pv & c.w: n = max(n, 12 if big else 8)
        elif c.cls in VALUISH:
            if pv & (c.r | c.w): n = max(n, 12 if big else 8)
            if p.srcc & c.w: n = max(n, 7 if big else 3)
        elif c.cls in ('ds', 'vmem', 'dma'):
            if pv & (c.r | c.w): n = max(n, 12 if big else 8)
            if p.srcc & c.w: n = max(n, 7 if big else 3)
    if p.cls in VALUISH:
        if c.cls == 'mfma' and pv & c.r: n = max(n, 2)
        if c.cls == 'mfma' and ps & regs_of('exec'): n = max(n, 4)
        if c.cls in ('vmem', 'dma') and ps & c.r: n = max(n, 5)
        if c.cls in VALUISH and ps & c.r: n = max(n, 4 if c.cls == 'rdlane' else 2)
        if c.cls == 'rdlane' and pv & c.r: n = max(n, 1)
        if c.cls in ('perm', 'dpp') and pv & c.r: n = max(n, 2)
        if p.cls == 'trans' and c.cls in VALUISH + ('mfma',) and c.cls != 'trans' and pv & c.r: n = max(n, 1)
        if p.cls == 'trans' and c.cls in ('ds', 'vmem') and pv & c.r: n = max(n, 1)
        if p.cls == 'dot' and pv & (c.r | c.w):
            if c.cls == 'dot' and c.op == p.op:
                ab = regs_of(c.ops[1]) | regs_of(c.ops[2])
                if pv & ab: n = max(n, 3)
            else:
                n = max(n, 3)
        if c.cls == 'salu' and ps & c.r: n = max(n, 1)
    if p.sdata and p.sdata & c.w:
        n = max(n, 2 if c.cls in VALUISH + ('mfma',) else 1)
    if p.cls == 'salu' and ('s', 124) in p.w and c.cls == 'dma': n = max(n, 1)
    return n

class Asm:
    def __init__(self):
        self.items = []
        self.nlabel = 0
    def raw(self, text):
        self.items.append(text)
    def label(self, name):
        self.items.append(('label', name))
    def newlabel(self, base='L'):
        self.nlabel += 1
        return f'{base}_{self.nlabel}'
    def c(self, text):
        self.items.append('    ; ' + text)
    def __call__(self, op, *ops, m=''):
        self.items.append(Ins(op, list(ops), m))
    def __getattr__(self, op):
        if op.startswith(('v_', 's_', 'ds_', 'buffer_', 'global_')):
            return lambda *ops, m='': self(op, *ops, m=m)
        raise AttributeError(op)
    def align(self, p=3):
        self.items.append(('align', p))
    def finish(self):
        out = []
        hist = []
        nins = 0
        for it in self.items:
            if isinstance(it, str):
                out.append(it); continue
            if isinstance(it, tuple):
                if it[0] == 'label': out.append(it[1] + ':')
                elif it[0] == 'align': out.append(f'.p2align {it[1]}')
                continue
            pad = 0
            isbr = it.op.startswith('s_cbranch') or it.op == 's_branch'
            for p, d in hist:
                if isbr:
                    worst = 0
                    if p.cls == 'mfma': worst = 12 if p.passes == 8 else 8
                    elif p.cls in VALUISH:
                        worst = 5 if any(x[0] == 's' for x in p.w) else (3 if p.cls == 'dot' else 2)
                    elif p.sdata: worst = 2
                    elif p.cls == 'salu' and ('s', 124) in p.w: worst = 1
                    pad = max(pad, worst - 1 - d)
                pad = max(pad, need(p, it) - d)
            while pad > 0:
                k = min(pad, 16)
                out.append(f'    s_nop {k-1}')
                hist = [(p, d + k) for p, d in hist]
                pad -= k; nins += 1
            out.append('    ' + it.text)
            nins += 1
            hist = [(p, d + it.states) for p, d in hist if d + it.states < 14]
            hist.append((it, 0))
        self.nins = nins
        return '\n'.join(out) + '\n'
```

```python
import sys, math, struct
from asmlib import *

NAME = "interleave_layers__linear_kernel_hedgehog__sliding_block__prompt"

def f32(x):
    return '0x%08x' % struct.unpack('<I', struct.pack('<f', x))[0]

MB = 1 << 20
XB = [0*MB, 2*MB, 4*MB]
OB = [6*MB, 8*MB, 10*MB, 12*MB]
KVP = {0: 14*MB, 2: 15*MB}
KVH = {1: 16*MB, 3: 20*MB}
TS_BASE = 24*MB
WS_BYTES = 25*MB

SEG = 28672
L_WK, L_WV, L_WQ = 0, SEG, 2*SEG
L_KVL = 3*SEG
L_PHI = L_KVL
PHI_SIGN = 32*264
L_VOWN = L_KVL + 17408
L_KVF = L_VOWN + 8192
L_CS = L_KVF + 4096
L_GATH = L_KVL
L_STG = L_KVL + 49152
LDS_BYTES = L_STG + 4*7168
L_RINV = L_KVL + 49152 - 512
assert LDS_BYTES == 163840

S_WS, S_AX, S_WA, S_WB, S_WPHI, S_WOA, S_WOB, S_OUT, S_DBG, S_CODE = 8, 12, 16, 20, 24, 28, 32, 36, 40, 44
sR, sH, sW, sTT, sCG, sMODE, sXCC, sTRY = 48, 49, 50, 51, 52, 53, 54, 55
sXT, sOT_P, sOT_C, sXT_P, sKVP_P, sKVP_C, sKVH_P, sKVH_C = 56, 57, 58, 59, 60, 61, 62, 63
sT0, sT1, sT2, sT3, sT4, sT5 = 64, 65, 66, 67, 68, 69
sM28 = 70
sTMIN = 72
sWOQ = 73
sLDSW = 74
sSTGW = 75
sTS = 76
sTSO = 78
sERR = 79
sC0, sC1, sC2, sC3 = 80, 81, 82, 83
sP0 = 84

vLANE, vL16, vWRD0, vWRD1, vWDMA, vODMA, vOTR, vXST, vSST, vSLD = 0, 1, 2, 3, 4, 5, 6, 7, 8, 9
vPHW, vPHR, vRVW, vRVR, vKVL, vOUT, vG1, vG2, vG3, vHFM, vBIG, vII, vNEG1, vGW = 10, 11, 12, 13, 14, 15, 16, 17, 18, 19, 20, 21, 22, 23
vWPHI = 24
vXRES = 32
vCS = 48
vT = 54
vMB, vRINV = 54, 56
vAK, vAV, vAQ = 64, 80, 96
vWF = 112
vXF = 144
vS = 112

BIGF = 3.0e38
LOG2E = 1.4426950408889634
MAXTRY = 20000

class Gen:
    def __init__(self, ts=False, force_slow=False, nlayers=4):
        self.k = Asm()
        self.ts = ts
        self.force_slow = force_slow
        self.nlayers = nlayers
        self.nts = 0

    def stamp(self, name):
        if not self.ts: return
        k = self.k
        k.c(f'stamp {self.nts}: {name}')
        k.s_memrealtime(s(sTS, 2)) if False else k.s_memtime(s(sTS, 2))
        k.s_waitcnt('lgkmcnt(0)')
        k.v_mov_b32(v(63), s(sTS))
        k.s_mov_b64('exec', 1)
        k.buffer_store_dword(v(63), v(vLANE), s(S_WS, 4), s(sTSO), m=f'offen offset:{4*self.nts}')
        k.s_mov_b64('exec', -1)
        self.tsnames = getattr(self, 'tsnames', []) + [name]
        self.nts += 1

    def srd(self, d, b, n):
        k = self.k
        k.s_mov_b32(s(d), s(b)); k.s_and_b32(s(d+1), s(b+1), '0xffff')
        k.s_mov_b32(s(d+2), n); k.s_mov_b32(s(d+3), '0x20000')

    def ws_ld(self, dst, voff, sbase, off, n=4, flags='sc1'):
        k = self.k
        op = {1: 'buffer_load_dword', 2: 'buffer_load_dwordx2', 4: 'buffer_load_dwordx4'}[n]
        so = s(sbase)
        hi = off & ~0xfff
        if hi:
            if getattr(self, '_hi', None) != (sbase, hi):
                k.s_add_u32(s(sT5), s(sbase), hi); self._hi = (sbase, hi)
            so = s(sT5)
        k(op, v(dst, n), v(voff), s(S_WS, 4), so, m=f'offen offset:{off & 0xfff} {flags}'.strip())

    def ws_st(self, src, voff, sbase, off, n=4, flags=''):
        k = self.k
        op = {1: 'buffer_store_dword', 2: 'buffer_store_dwordx2', 4: 'buffer_store_dwordx4'}[n]
        so = s(sbase)
        hi = off & ~0xfff
        if hi:
            if getattr(self, '_hi', None) != (sbase, hi):
                k.s_add_u32(s(sT5), s(sbase), hi); self._hi = (sbase, hi)
            so = s(sT5)
        k(op, v(src, n), v(voff), s(S_WS, 4), so, m=f'offen offset:{off & 0xfff} {flags}'.strip())

    def nohi(self):
        self._hi = None

    def local_stores(self, fn):
        k = self.k
        ls, ld = k.newlabel('Lslow'), k.newlabel('Ldone')
        k.s_cmp_eq_u32(s(sMODE), 0)
        k.s_cbranch_scc1(ls)
        self.nohi(); fn('')
        k.s_branch(ld)
        k.label(ls)
        self.nohi(); fn('sc1')
        k.label(ld)
        self.nohi()

    def poll(self, issue, regs, code):
        k = self.k
        lp, lo = k.newlabel('Lpoll'), k.newlabel('Lok')
        k.s_mov_b32(s(sTRY), 0)
        k.label(lp)
        self.nohi(); issue(); self.nohi()
        k.s_waitcnt('vmcnt(0)')
        t = vT + 8
        regs = list(regs)
        k.v_max_u32(v(t), v(regs[0]), v(regs[1]))
        k.v_max_u32(v(t+1), v(regs[2]), v(regs[3]))
        rest = regs[4:]
        i = 0
        while rest:
            tt = t + (i & 1)
            if len(rest) >= 2:
                k.v_max3_u32(v(tt), v(rest[0]), v(rest[1]), v(tt)); rest = rest[2:]
            else:
                k.v_max_u32(v(tt), v(rest[0]), v(tt)); rest = rest[1:]
            i += 1
        k.v_max_u32(v(t), v(t), v(t+1))
        k.v_cmp_eq_u32('vcc', -1, v(t))
        k.s_cmp_eq_u64('vcc', 0)
        k.s_cbranch_scc1(lo)
        k.s_add_u32(s(sTRY), s(sTRY), 1)
        k.s_cmp_lt_u32(s(sTRY), MAXTRY)
        k.s_cbranch_scc1(lp)
        k.s_or_b32(s(sERR), s(sERR), code)
        k.label(lo)

    def xhalf(self, op, dst, t):
        k = self.k
        k.v_mov_b32(v(t), v(dst))
        k.v_permlane32_swap_b32(v(dst), v(t))
        k(op, v(dst), v(dst), v(t))

    def rbf(self, dst, src):
        k = self.k
        k.v_cvt_pk_bf16_f32(v(dst), v(src), v(src))
        k.v_and_b32(v(dst), '0xffff0000', v(dst))

    def prologue(self):
        k = self.k
        k.label('Lstart')
        k.s_cmp_ge_u32(s(2), 256)
        k.s_cbranch_scc1('Lend')
        k.s_load_dwordx16(s(64, 16), s(0, 2), 0)
        k.s_load_dwordx4(s(80, 4), s(0, 2), 64)
        k.s_getpc_b64(s(4, 2))
        k.label('Lpc')
        k.s_and_b32(s(3), s(2), 7)
        k.s_lshr_b32(s(6), s(2), 3)
        k.s_lshr_b32(s(7), s(6), 4)
        k.s_lshl_b32(s(3), s(3), 1)
        k.s_add_u32(s(sR), s(3), s(7))
        k.s_and_b32(s(sH), s(6), 15)
        k.v_lshrrev_b32(v(1), 6, v(0))
        k.v_lshlrev_b32(v(2), 4, v(0))
        k.v_readfirstlane_b32(s(sW), v(1))
        k.v_and_b32(v(vLANE), 63, v(0))
        k.s_sub_u32(s(4), s(4), 'Lpc-Lstart'); k.s_subb_u32(s(5), s(5), 0)
        k.s_mov_b32(s(S_CODE), s(4)); k.s_and_b32(s(S_CODE+1), s(5), '0xffff')
        k.s_mov_b32(s(S_CODE+2), 'Lcode_end-Lstart'); k.s_mov_b32(s(S_CODE+3), '0x20000')
        k.s_lshl_b32(s(3), s(6), 12)
        k.buffer_load_dwordx4(v(240, 4), v(2), s(S_CODE, 4), s(3), m='offen')
        k.s_getreg_b32(s(sXCC), 'hwreg(HW_REG_XCC_ID)')
        k.s_and_b32(s(sXCC), s(sXCC), 15)
        k.s_lshr_b32(s(3), s(sH), 2)
        k.s_lshl_b32(s(sTT), s(sR), 2)
        k.s_add_u32(s(sTT), s(sTT), s(3))
        k.s_and_b32(s(sCG), s(sH), 3)
        k.v_lshlrev_b32(v(vL16), 4, v(vLANE))
        k.v_mov_b32(v(vNEG1), -1)
        k.s_waitcnt('lgkmcnt(0)')
        self.srd(S_AX, 64, 1835008); self.srd(S_WA, 66, 1204224); self.srd(S_WPHI, 68, 25088)
        self.srd(S_WOA, 70, 401408); self.srd(S_WB, 74, 1204224); self.srd(S_WOB, 76, 401408)
        self.srd(S_OUT, 78, 1835008); self.srd(S_DBG, 80, 256); self.srd(S_WS, 82, WS_BYTES)
        k.s_mov_b32(s(sERR), 0)
        k.s_mov_b32(s(sMODE), 0)
        k.s_lshl_b32(s(sT0), s(sR), 2); k.s_add_u32(s(sT0), s(sT0), s(sW))
        k.s_lshl_b32(s(sXT), s(sT0), 15)
        k.s_lshl_b32(s(sT1), s(sH), 11); k.s_add_u32(s(sOT_P), s(sXT), s(sT1))
        k.s_lshl_b32(s(sXT_P), s(sTT), 15)
        k.s_lshl_b32(s(sT1), s(sW), 13); k.s_add_u32(s(sOT_C), s(sXT_P), s(sT1))
        k.s_lshl_b32(s(sT1), s(sH), 16)
        k.s_lshl_b32(s(sT2), s(sR), 12); k.s_add_u32(s(sKVP_P), s(sT1), s(sT2))
        k.s_lshl_b32(s(sT2), s(sW), 11); k.s_add_u32(s(sKVP_P), s(sKVP_P), s(sT2))
        k.s_lshl_b32(s(sT2), s(sW), 10); k.s_add_u32(s(sKVP_C), s(sT1), s(sT2))
        k.s_mov_b32(s(sLDSW), s(sT2))
        k.s_lshl_b32(s(sT1), s(sH), 18)
        k.s_lshl_b32(s(sT2), s(sT0), 12); k.s_add_u32(s(sKVH_P), s(sT1), s(sT2))
        k.s_lshl_b32(s(sT2), s(sR), 2); k.s_lshl_b32(s(sT3), s(sW), 1); k.s_add_u32(s(sT2), s(sT2), s(sT3))
        k.s_sub_u32(s(sT2), s(sT2), 8); k.s_lshl_b32(s(sT2), s(sT2), 12); k.s_add_u32(s(sKVH_C), s(sT1), s(sT2))
        k.s_sub_i32(s(sTMIN), 8, s(sT0)); k.s_max_i32(s(sTMIN), s(sTMIN), 0)
        k.s_mul_i32(s(sSTGW), s(sW), 7168); k.s_add_u32(s(sSTGW), s(sSTGW), L_STG)
        if self.ts:
            k.s_lshl_b32(s(sT1), s(2), 2); k.s_add_u32(s(sT1), s(sT1), s(sW)); k.s_lshl_b32(s(sT1), s(sT1), 8)
            k.s_add_u32(s(sTSO), s(sT1), TS_BASE)
        self.stamp('start')
        for i in range(4): k.v_mov_b32(v(236+i), -1)
        self.nohi()
        k.s_add_u32(s(sT1), s(sOT_P), OB[0])
        self.ws_st(236, vL16, sT1, 0, flags='sc1'); self.ws_st(236, vL16, sT1, 1024, flags='sc1')
        l1 = k.newlabel('Lr')
        k.s_cmp_ge_u32(s(sW), 2); k.s_cbranch_scc1(l1)
        for L in (0, 2):
            k.s_add_u32(s(sT1), s(sKVP_P), KVP[L])
            self.ws_st(236, vL16, sT1, 0, flags='sc1'); self.ws_st(236, vL16, sT1, 1024, flags='sc1')
        k.label(l1)
        n, hf, r4, ch, c4 = 60, 61, 62, 63, 59
        k.v_and_b32(v(n), 31, v(vLANE))
        k.v_lshrrev_b32(v(hf), 5, v(vLANE))
        k.v_bfe_u32(v(r4), v(vLANE), 2, 2)
        k.v_bfe_u32(v(ch), v(vLANE), 4, 1)
        k.v_and_b32(v(c4), 3, v(vLANE))
        k.v_lshrrev_b32(v(58), 2, v(vLANE))
        k.v_mul_u32_u24(v(vWDMA), 2688, v(58))
        k.s_mul_i32(s(sT1), s(sH), 56)
        k.v_lshl_add_u32(v(57), v(c4), 4, s(sT1))
        k.v_add_u32(v(vWDMA), v(vWDMA), v(57))
        self.w_dma(0, (1, 2, 0))
        k.s_lshl_b32(s(sT1), s(sT0), 5)
        k.v_add_u32(v(57), s(sT1), v(n))
        k.v_mul_u32_u24(v(57), 896, v(57))
        k.v_lshl_add_u32(v(57), v(hf), 4, v(57))
        for st in range(28):
            k.buffer_load_dwordx4(v(vXF+4*st, 4), v(57), s(S_AX, 4), 0, m=f'offen offset:{32*st}')
        k.v_mul_u32_u24(v(vODMA), 896, v(58))
        k.s_mul_i32(s(sT1), s(sCG), 224); k.s_mul_i32(s(sT2), s(sW), 56); k.s_add_u32(s(sT1), s(sT1), s(sT2))
        k.v_lshl_add_u32(v(57), v(c4), 4, s(sT1))
        k.v_add_u32(v(vODMA), v(vODMA), v(57))
        k.v_lshlrev_b32(v(57), 5, v(ch))
        k.v_lshl_add_u32(v(57), v(c4), 3, v(57))
        k.v_lshl_add_u32(v(56), v(hf), 3, v(r4))
        k.v_lshl_add_u32(v(vWRD0), v(56), 6, v(57))
        k.v_add_u32(v(vWRD1), L_WQ, v(vWRD0))
        k.v_lshl_add_u32(v(56), v(hf), 2, v(r4))
        k.v_lshl_add_u32(v(vOTR), v(56), 6, v(57))
        k.v_add_u32(v(vOTR), s(sSTGW), v(vOTR))
        k.v_mul_u32_u24(v(56), 264, v(hf))
        k.v_lshl_add_u32(v(56), v(r4), 6, v(56))
        k.s_and_b32(s(sT1), s(sW), 1); k.s_mul_i32(s(sT1), s(sT1), PHI_SIGN); k.s_add_u32(s(sT1), s(sT1), L_PHI)
        k.v_add3_u32(v(vPHR), v(56), v(57), s(sT1))
        k.v_lshrrev_b32(v(56), 2, v(n))
        k.s_lshl_b32(s(sT1), s(sW), 3)
        k.v_add_u32(v(56), s(sT1), v(56))
        k.v_mul_u32_u24(v(56), 264, v(56))
        k.v_lshl_add_u32(v(56), v(c4), 6, v(56))
        k.v_lshl_add_u32(v(56), v(hf), 3, v(56))
        k.v_add_u32(v(vPHW), L_PHI, v(56))
        k.s_lshl_b32(s(sT1), s(sW), 7); k.s_add_u32(s(sT1), s(sT1), L_RINV)
        k.v_lshl_add_u32(v(vRVW), v(n), 2, s(sT1))
        k.v_lshl_add_u32(v(vRVR), v(hf), 4, s(sT1))
        k.s_lshl_b32(s(sT1), s(sW), 12); k.s_add_u32(s(sT1), s(sT1), L_KVL)
        k.v_add_u32(v(vKVL), s(sT1), v(vL16))
        k.s_lshl_b32(s(sT1), s(sW), 13); k.s_add_u32(s(sT1), s(sT1), L_GATH)
        k.v_add_u32(v(vGW), s(sT1), v(vL16))
        for i, reg in ((1, vG1), (2, vG2), (3, vG3)):
            k.s_add_u32(s(sT1), s(sW), i); k.s_and_b32(s(sT1), s(sT1), 3); k.s_lshl_b32(s(sT1), s(sT1), 13)
            k.s_add_u32(s(sT1), s(sT1), L_GATH)
            k.v_add_u32(v(reg), s(sT1), v(vL16))
        k.s_mul_i32(s(sT1), s(sCG), 28); k.s_mul_i32(s(sT2), s(sW), 7); k.s_add_u32(s(sT1), s(sT1), s(sT2))
        k.v_add_u32(v(56), s(sT1), v(hf))
        k.v_lshrrev_b32(v(55), 1, v(56)); k.v_lshlrev_b32(v(55), 9, v(55))
        k.v_and_b32(v(56), 1, v(56)); k.v_lshl_add_u32(v(55), v(56), 3, v(55))
        k.v_lshl_add_u32(v(vXST), v(n), 4, v(55))
        k.s_lshl_b32(s(sT1), s(sCG), 2); k.s_add_u32(s(sT1), s(sT1), s(sW)); k.s_lshl_b32(s(sT1), s(sT1), 3)
        k.s_add_u32(s(sT1), s(sT1), 28672)
        k.v_lshl_add_u32(v(vSST), v(n), 7, s(sT1))
        k.v_lshlrev_b32(v(56), 6, v(hf)); k.v_lshl_add_u32(v(56), v(n), 7, v(56))
        k.v_add_u32(v(vSLD), 28672, v(56))
        k.s_lshl_b32(s(sT1), s(sTT), 5)
        k.v_add_u32(v(56), s(sT1), v(n)); k.v_mul_u32_u24(v(56), 896, v(56))
        k.s_mul_i32(s(sT1), s(sCG), 224); k.s_mul_i32(s(sT2), s(sW), 56); k.s_add_u32(s(sT1), s(sT1), s(sT2))
        k.v_lshl_add_u32(v(56), v(hf), 3, v(56))
        k.v_add_u32(v(vOUT), s(sT1), v(56))
        k.v_cmp_eq_u32('vcc', 0, v(hf))
        k.v_mov_b32(v(56), 1.0); k.v_mov_b32(v(55), f32(BIGF))
        k.v_cndmask_b32(v(vHFM), 0, v(56), 'vcc')
        k.v_mov_b32(v(56), 0)
        k.v_cndmask_b32(v(vBIG), v(55), v(56), 'vcc')
        k.v_lshlrev_b32(v(56), 2, v(hf)); k.v_sub_u32(v(vII), v(n), v(56))
        k.v_cmp_eq_u32(s(sM28, 2), 28, v(n))
        for q in range(4):
            k.buffer_load_dwordx2(v(112+2*q, 2), v(vOUT), s(S_AX, 4), 0, m=f'offen offset:{16*q}')
        k.v_mul_u32_u24(v(56), 224, v(hf))
        k.v_lshl_add_u32(v(56), v(n), 1, v(56))
        k.s_mul_i32(s(sT1), s(sH), 1568)
        k.v_add_u32(v(56), s(sT1), v(56))
        k.v_mov_b32(v(55), 0x100000)
        k.v_cmp_gt_u32('vcc', 28, v(n))
        k.v_cndmask_b32(v(56), v(55), v(56), 'vcc')
        k.v_cmp_eq_u32('vcc', 0, v(hf))
        k.v_cndmask_b32(v(55), v(55), v(56), 'vcc')
        for j in range(2):
            for i in range(8):
                d = 16*j + 8*(i >> 2) + (i & 3)
                reg = (120 if (i & 1) else vWPHI) + 4*j + (i >> 1)
                addr = 55 if d >= 24 else 56
                k.buffer_load_ushort(v(reg), v(addr), s(S_WPHI, 4), 0, m=f'offen offset:{d*56}')

    def w_dma(self, typ, segs):
        k = self.k
        srd = S_WA if typ == 0 else S_WB
        k.s_mul_i32(s(sT3), s(sW), 16*2688)
        for g in segs:
            lbase = {0: L_WQ, 1: L_WK, 2: L_WV}[g]
            for ii in range(7):
                k.s_add_u32('m0', s(sLDSW), lbase + ii*4096)
                k.s_add_u32(s(sT4), s(sT3), g*896 + ii*4*16*2688)
                k.buffer_load_dwordx4(v(vWDMA), s(srd, 4), s(sT4), m='offen lds')

    def wo_issue(self, typ, i):
        k = self.k
        srd = S_WOA if typ == 0 else S_WOB
        k.s_add_u32(s(sT3), s(sW), i); k.s_and_b32(s(sT3), s(sT3), 3); k.s_mul_i32(s(sT3), s(sT3), 112*896)
        for ii in range(7):
            k.s_add_u32('m0', s(sSTGW), ii*1024)
            k.s_add_u32(s(sT4), s(sT3), ii*16*896)
            k.buffer_load_dwordx4(v(vODMA), s(srd, 4), s(sT4), m='offen lds')

    def wo_consume(self, typ, i):
        k = self.k
        for hh in range(4):
            for j in range(2):
                for jj in range(2):
                    reg = typ*128 + i*32 + (hh*2+j)*4 + jj*2
                    k.ds_read_b64_tr_b16(a(reg, 2), v(vOTR), m=f'offset:{(28*hh+16*j+8*jj)*64}')
            if hh == 1: k.s_waitcnt('lgkmcnt(0)')
        k.s_waitcnt('lgkmcnt(0)')
        k.s_mov_b32('exec_lo', 0)
        for hh in range(4):
            reg = typ*128 + i*32 + (hh*2+1)*4 + 2
            k.v_accvgpr_write_b32(a(reg), 0); k.v_accvgpr_write_b32(a(reg+1), 0)
        k.s_mov_b32('exec_lo', -1)

    def colsum(self, typ):
        k = self.k
        acc = 54
        ones = 57
        k.v_mov_b32(v(ones), '0x3f803f80')
        for g in range(3): k.v_mov_b32(v(acc+g), 0)
        k.s_mul_i32(s(sT1), s(sW), 7168)
        k.v_add_u32(v(58), s(sT1), v(vWRD0)); k.v_add_u32(v(59), s(sT1), v(vWRD1))
        for g, (base, off) in enumerate(((59, 0), (58, L_WK), (58, L_WV))):
            for st in range(7):
                for j in range(2):
                    k.ds_read_b64_tr_b16(v(64 + st*4 + 2*j, 2), v(base), m=f'offset:{off + st*1024 + j*256}')
            k.s_waitcnt('lgkmcnt(0)')
            for i in range(28):
                k.v_dot2_f32_bf16(v(acc+g), v(64+i), v(ones), v(acc+g))
        k.s_mul_i32(s(sT1), s(sW), 768); k.s_add_u32(s(sT1), s(sT1), L_CS)
        k.v_lshl_add_u32(v(58), v(vLANE), 2, s(sT1))
        for g in range(3): k.ds_write_b32(v(58), v(acc+g), m=f'offset:{g*256}')
        k.s_waitcnt('lgkmcnt(0)')
        k.s_barrier()
        k.v_lshlrev_b32(v(58), 2, v(vLANE))
        k.v_add_u32(v(58), L_CS, v(58))
        for g in range(3):
            for ww in range(4):
                k.ds_read_b32(v(64 + g*4 + ww), v(58), m=f'offset:{ww*768 + g*256}')
        k.s_waitcnt('lgkmcnt(0)')
        for g in range(3):
            b = 64 + g*4
            k.v_add_f32(v(b), v(b), v(b+1)); k.v_add_f32(v(b+2), v(b+2), v(b+3)); k.v_add_f32(v(b), v(b), v(b+2))
            self.xhalf('v_add_f32', b, b+1)
            k.v_sub_f32(v(b), 0, v(b))
            self.rbf(b+1, b)
            k.v_sub_f32(v(b+2), v(b), v(b+1))
            k.v_cvt_pk_bf16_f32(v(b+3), v(b+1), v(b+2))
            k.v_cmp_eq_f32('vcc', 0, v(vHFM))
            k.v_mov_b32(v(b), 0)
            k.v_cndmask_b32(v(vCS + 3*typ + g), v(b+3), v(b), 'vcc')
        k.s_barrier()

    def stats_finish(self, s1, s2):
        k = self.k
        t = 58
        self.xhalf('v_add_f32', s1, t); self.xhalf('v_add_f32', s2, t)
        k.v_mul_f32(v(s1), f32(1.0/448), v(s1))
        k.v_mul_f32(v(s2), f32(1.0/448), v(s2))
        k.v_fma_f32(v(s2), '-'+v(s1), v(s1), v(s2))
        k.v_max_f32(v(s2), 0, v(s2))
        k.v_cvt_pk_bf16_f32(v(vMB), v(s1), v(s1))
        self.rbf(s2, s2)
        k.v_add_f32(v(s2), f32(1e-5), v(s2))
        self.rbf(s2, s2)
        k.v_sqrt_f32(v(s2), v(s2))
        self.rbf(s2, s2)
        k.v_rcp_f32(v(vRINV), v(s2))
        k.ds_write_b32(v(vRVW), v(vRINV))

    def load_x(self, L):
        k = self.k
        if L == 0:
            k.s_waitcnt('vmcnt(0)')
            k.s_barrier()
            lf = k.newlabel('Lf')
            k.s_cmp_lg_u32(s(sW), 0); k.s_cbranch_scc1(lf)
            k.s_lshl_b32(s(sT1), s(sR), 4); k.s_add_u32(s(sT1), s(sT1), s(sH))
            k.s_add_u32(s(sT2), s(sXCC), 1)
            k.v_mov_b32(v(58), s(sT2))
            k.s_mov_b64('exec', 1)
            k.buffer_store_byte(v(58), v(vLANE), s(S_DBG, 4), s(sT1), m='offen sc1')
            k.s_mov_b64('exec', -1)
            k.label(lf)
            for i in range(8):
                k.v_lshlrev_b32(v(vXRES+2*i), 16, v(112+i)); k.v_and_b32(v(vXRES+2*i+1), '0xffff0000', v(112+i))
            for i in range(8): k.v_lshl_or_b32(v(vWPHI+i), v(120+i), 16, v(vWPHI+i))
            self.stamp('x0 loaded')
            self.colsum(0)
            ones = 57
            k.v_mov_b32(v(ones), '0x3f803f80')
            for i in range(4): k.v_mov_b32(v(60+i), 0)
            for i in range(112):
                k.v_dot2_f32_bf16(v(60+(i & 1)), v(vXF+i), v(ones), v(60+(i & 1)))
                k.v_dot2_f32_bf16(v(62+(i & 1)), v(vXF+i), v(vXF+i), v(62+(i & 1)))
            k.v_add_f32(v(60), v(60), v(61)); k.v_add_f32(v(61), v(62), v(63))
            self.stats_finish(60, 61)
        else:
            k.s_add_u32(s(sT1), s(sXT), XB[L-1])
            def issue():
                for i in range(4): self.ws_ld(112+4*i, vSLD, sT1, 16*i)
                for st in range(28): self.ws_ld(vXF+4*st, vL16, sT1, 1024*st)
            self.poll(issue, list(range(112, 128)) + list(range(vXF, vXF+112)), 1 << (4*L))
            self.stamp(f'L{L} x loaded')
            for i in range(3, 0, -1):
                pass
            k.v_pk_add_f32(v(112, 2), v(112, 2), v(114, 2)); k.v_pk_add_f32(v(116, 2), v(116, 2), v(118, 2))
            k.v_pk_add_f32(v(120, 2), v(120, 2), v(122, 2)); k.v_pk_add_f32(v(124, 2), v(124, 2), v(126, 2))
            k.v_pk_add_f32(v(112, 2), v(112, 2), v(116, 2)); k.v_pk_add_f32(v(120, 2), v(120, 2), v(124, 2))
            k.v_pk_add_f32(v(60, 2), v(112, 2), v(120, 2))
            self.stats_finish(60, 61)

    def mean_step(self, acc, csreg, swap):
        k = self.k
        xm, wm = 120, 124
        k.v_mov_b32(v(xm), v(vMB)); k.v_mov_b32(v(wm), v(csreg))
        for i in range(1, 4):
            k.v_mov_b32(v(xm+i), 0); k.v_mov_b32(v(wm+i), 0)
        if swap: k.v_mfma_f32_32x32x16_bf16(v(acc, 16), v(xm, 4), v(wm, 4), v(acc, 16))
        else:    k.v_mfma_f32_32x32x16_bf16(v(acc, 16), v(wm, 4), v(xm, 4), v(acc, 16))

    def gemm_kv(self, typ):
        k = self.k
        D = 3
        def rd(st):
            b = vWF + (st % 4)*8
            for g, off in ((0, L_WK), (1, L_WV)):
                for j in range(2):
                    k.ds_read_b64_tr_b16(v(b + 4*g + 2*j, 2), v(vWRD0), m=f'offset:{off + st*1024 + j*256}')
        k.s_waitcnt('lgkmcnt(0)')
        for st in range(D): rd(st)
        for st in range(28):
            rem = min(D-1, 27-st)
            k.s_waitcnt(f'lgkmcnt({4*rem})')
            b = vWF + (st % 4)*8
            x = v(vXF+4*st, 4)
            k.v_mfma_f32_32x32x16_bf16(v(vAK, 16), v(b, 4), x, v(vAK, 16) if st else 0)
            k.v_mfma_f32_32x32x16_bf16(v(vAV, 16), x, v(b+4, 4), v(vAV, 16) if st else 0)
            if st + D < 28: rd(st + D)
        self.mean_step(vAK, vCS+3*typ+1, False)
        self.mean_step(vAV, vCS+3*typ+2, True)

    def gemm_q(self, typ):
        k = self.k
        D = 6
        def rd(st):
            b = vWF + (st % 8)*4
            for j in range(2):
                k.ds_read_b64_tr_b16(v(b + 2*j, 2), v(vWRD1), m=f'offset:{st*1024 + j*256}')
        k.s_waitcnt('lgkmcnt(0)')
        for st in range(D): rd(st)
        for st in range(28):
            rem = min(D-1, 27-st)
            k.s_waitcnt(f'lgkmcnt({2*rem})')
            b = vWF + (st % 8)*4
            k.v_mfma_f32_32x32x16_bf16(v(vAQ, 16), v(b, 4), v(vXF+4*st, 4), v(vAQ, 16) if st else 0)
            if st + D < 28: rd(st + D)
        self.mean_step(vAQ, vCS+3*typ+0, False)

    def scale_pack(self, acc, mul_lo, mul_hi=None):
        k = self.k
        for i in range(8):
            mreg = mul_hi if (mul_hi is not None and i >= 6) else mul_lo
            assert mreg % 2 == 0
            k.v_pk_mul_f32(v(acc+2*i, 2), v(acc+2*i, 2), v(mreg, 2), m='op_sel_hi:[1,0]')
        for i in range(8):
            k.v_cvt_pk_bf16_f32(v(acc+i), v(acc+2*i), v(acc+2*i+1))

    def epi_v(self):
        k = self.k
        rv = 128
        for q in range(4):
            k.ds_read_b128(v(rv+4*q, 4), v(vRVR), m=f'offset:{32*q}')
        k.s_waitcnt('lgkmcnt(0)')
        for i in range(8):
            k.v_pk_mul_f32(v(vAV+2*i, 2), v(vAV+2*i, 2), v(rv+2*i, 2))
        for i in range(8):
            k.v_cvt_pk_bf16_f32(v(vAV+i), v(vAV+2*i), v(vAV+2*i+1))
        k.s_mov_b64('exec', s(sM28, 2))
        for i in range(8): k.v_mov_b32(v(vAV+i), '0x3f803f80')
        k.s_mov_b64('exec', -1)

    def sanitize(self, base, n):
        for i in range(n):
            self.k.v_min_u32(v(base+i), -2, v(base+i))

    def feature(self, frag, P, E):
        k = self.k
        k.v_mfma_f32_32x32x16_bf16(v(P, 16), v(vWPHI, 4), v(frag, 4), 0)
        k.v_mfma_f32_32x32x16_bf16(v(P, 16), v(vWPHI+4, 4), v(frag+4, 4), v(P, 16))
        mx, mn, t0, t1 = 58, 60, 62, 63
        c = 57
        k.v_mov_b32(v(c), f32(LOG2E))
        k.v_max3_f32(v(mx), v(P), v(P+1), v(P+2)); k.v_min3_f32(v(mn), v(P), v(P+1), v(P+2))
        for i in range(3, 11, 2):
            k.v_max3_f32(v(mx), v(P+i), v(P+i+1), v(mx)); k.v_min3_f32(v(mn), v(P+i), v(P+i+1), v(mn))
        k.v_max3_f32(v(t0), v(P+12), v(P+13), v(P+14)); k.v_min3_f32(v(t1), v(P+12), v(P+13), v(P+14))
        k.v_max_f32(v(t0), v(t0), v(P+15)); k.v_min_f32(v(t1), v(t1), v(P+15))
        k.v_sub_f32(v(t0), v(t0), v(vBIG)); k.v_add_f32(v(t1), v(t1), v(vBIG))
        k.v_max3_f32(v(mx), v(P+11), v(t0), v(mx)); k.v_min3_f32(v(mn), v(P+11), v(t1), v(mn))
        self.xhalf('v_max_f32', mx, t0); self.xhalf('v_min_f32', mn, t0)
        k.v_mul_f32(v(mx), v(c), v(mx)); k.v_mul_f32(v(mn), v(c), v(mn))
        k.v_add_f32(v(mx+1), v(mx), v(vBIG)); k.v_sub_f32(v(mn+1), v(mn), v(vBIG))
        for i in range(16):
            o = 1 if i >= 12 else 0
            k.v_fma_f32(v(E+i), '-'+v(P+i), v(c), v(mn+o))
            k.v_fma_f32(v(P+i), v(P+i), v(c), '-'+v(mx+o))
        for i in range(16):
            k.v_exp_f32(v(E+i), v(E+i)); k.v_exp_f32(v(P+i), v(P+i))
        for X, sm in ((P, mx), (E, mn)):
            k.v_pk_add_f32(v(sm, 2), v(X, 2), v(X+2, 2))
            for i in range(4, 16, 2): k.v_pk_add_f32(v(sm, 2), v(sm, 2), v(X+i, 2))
            k.v_add_f32(v(sm), v(sm), v(sm+1))
            self.xhalf('v_add_f32', sm, t0)
            k.v_rcp_f32(v(sm), v(sm))
        self.scale_pack(P, mx); self.scale_pack(E, mn)

    def resets(self, L):
        k = self.k
        z = 124
        for i in range(4): k.v_mov_b32(v(z+i), -1)
        self.nohi()
        if L < 3:
            k.s_add_u32(s(sT1), s(sXT_P), XB[L])
            for q in range(3): self.ws_st(z, vXST, sT1, 512*q, n=2, flags='sc1')
            k.s_mov_b32('exec_hi', 0)
            self.ws_st(z, vXST, sT1, 512*3, n=2, flags='sc1')
            self.ws_st(z, vSST, sT1, 0, n=2, flags='sc1')
            k.s_mov_b32('exec_hi', -1)
            k.s_add_u32(s(sT1), s(sOT_P), OB[L+1])
            self.ws_st(z, vL16, sT1, 0, flags='sc1'); self.ws_st(z, vL16, sT1, 1024, flags='sc1')

    def flags_check(self):
        k = self.k
        lp, lo = k.newlabel('Lfp'), k.newlabel('Lfo')
        k.v_lshlrev_b32(v(58), 2, v(vLANE))
        k.s_mov_b32(s(sTRY), 0)
        k.s_mov_b32(s(sC0), '0x7f7f7f7f'); k.s_mov_b32(s(sC1), '0x80808080')
        k.label(lp)
        k.buffer_load_dword(v(59), v(58), s(S_DBG, 4), 0, m='offen sc1')
        k.s_waitcnt('vmcnt(0)')
        k.v_add_u32(v(60), s(sC0), v(59)); k.v_and_b32(v(60), s(sC1), v(60))
        k.v_cmp_ne_u32('vcc', s(sC1), v(60))
        k.s_cmp_eq_u64('vcc', 0)
        k.s_cbranch_scc1(lo)
        k.s_add_u32(s(sTRY), s(sTRY), 1)
        k.s_cmp_lt_u32(s(sTRY), MAXTRY)
        k.s_cbranch_scc1(lp)
        k.s_or_b32(s(sERR), s(sERR), 1 << 30)
        k.label(lo)
        k.s_add_u32(s(sT1), s(sXCC), 1); k.s_mul_i32(s(sT1), s(sT1), '0x01010101')
        k.v_cmp_eq_u32('vcc', s(sT1), v(59))
        k.s_lshl_b32(s(sT2), s(sR), 2)
        k.s_lshr_b64(s(sP0, 2), 'vcc', s(sT2))
        k.s_and_b32(s(sT1), s(sP0), 15)
        k.s_cmp_eq_u32(s(sT1), 15)
        k.s_cselect_b32(s(sMODE), 0 if self.force_slow else 1, 0)

    def o_tail(self, L, acc, eps):
        k = self.k
        d0, d1 = 58, 60
        k.v_mov_b32(v(d0), v(acc+12)); k.v_mov_b32(v(d1), v(acc+12))
        k.v_permlane32_swap_b32(v(d0), v(d1))
        if eps: k.v_add_f32(v(d1), f32(1e-6), v(d1))
        k.v_rcp_f32(v(d1), v(d1))
        self.scale_pack(acc, d1)
        self.sanitize(acc, 8)
        k.s_add_u32(s(sT1), s(sOT_P), OB[L])
        def st(fl):
            self.ws_st(acc, vL16, sT1, 0, flags=fl); self.ws_st(acc+4, vL16, sT1, 1024, flags=fl)
        self.local_stores(st)

    def layer_A(self, L):
        k = self.k
        self.gemm_kv(0)
        self.stamp(f'L{L} kv gemm')
        self.scale_pack(vAK, vRINV)
        self.epi_v()
        k.s_barrier()
        k.s_lshl_b32(s(sT1), s(sW), 11); k.s_add_u32(s(sT1), s(sT1), L_VOWN)
        k.v_add_u32(v(55), s(sT1), v(vL16))
        k.ds_write_b128(v(55), v(vAV, 4)); k.ds_write_b128(v(55), v(vAV+4, 4), m='offset:1024')
        P, E = 112, 128
        self.feature(vAK, P, E)
        for sg, X in ((0, P), (1, E)):
            for q in range(4):
                k.ds_write_b64(v(vPHW), v(X+2*q, 2), m=f'offset:{sg*PHI_SIGN + q*16}')
        for i in range(4): k.v_mov_b32(v(120+i), -1)
        self.nohi()
        k.s_add_u32(s(sT1), s(sKVH_P), KVH[L+1])
        for i in range(4): self.ws_st(120, vL16, sT1, 1024*i, flags='sc1')
        k.s_waitcnt('vmcnt(0) lgkmcnt(0)')
        k.s_barrier()
        self.stamp(f'L{L} phi_k')
        lq = k.newlabel('Lq')
        k.s_cmp_ge_u32(s(sW), 2); k.s_cbranch_scc1(lq)
        k.v_add_u32(v(55), L_VOWN, v(vL16))
        A0, B0, ACC = 112, 64, 96
        for u in range(4):
            for j in range(2):
                idx = u*2 + j
                for jj in range(2):
                    k.ds_read_b64_tr_b16(v(A0+4*idx+2*jj, 2), v(vPHR), m=f'offset:{(u*8+4*j+2*jj)*264}')
                k.ds_read_b128(v(B0+4*idx, 4), v(55), m=f'offset:{u*2048+j*1024}')
            if u == 1 or u == 3:
                k.s_waitcnt('lgkmcnt(0)')
        for idx in range(8):
            k.v_mfma_f32_32x32x16_bf16(v(ACC, 16), v(A0+4*idx, 4), v(B0+4*idx, 4), v(ACC, 16) if idx else 0)
        for i in range(8): k.v_cvt_pk_bf16_f32(v(64+i), v(ACC+2*i), v(ACC+2*i+1))
        self.sanitize(64, 8)
        self.nohi()
        k.s_add_u32(s(sT1), s(sKVP_P), KVP[L])
        self.ws_st(64, vL16, sT1, 0, flags='sc1'); self.ws_st(68, vL16, sT1, 1024, flags='sc1')
        k.label(lq)
        self.stamp(f'L{L} kvp pub')
        self.resets(L)
        self.gemm_q(0)
        self.scale_pack(vAQ, vRINV)
        PQ, EQ = 64, 80
        self.feature(vAQ, PQ, EQ)
        self.stamp(f'L{L} phi_q')
        if L == 0: self.flags_check()
        G = 144
        k.s_add_u32(s(sT1), s(sKVP_C), KVP[L])
        def issue():
            for p in range(16): self.ws_ld(G+4*p, vL16, sT1, 4096*p)
        self.poll(issue, range(G, G+64), 2 << (4*L))
        self.stamp(f'L{L} kvp got')
        SUM = 112
        k.v_mov_b32(v(56), '0x3f80'); k.v_mov_b32(v(57), 1.0)
        for i in range(8): k.v_mov_b32(v(SUM+i), 0)
        for p in range(16):
            for i in range(4):
                k.v_dot2_f32_bf16(v(SUM+2*i), v(G+4*p+i), v(56), v(SUM+2*i))
                k.v_dot2_f32_bf16(v(SUM+2*i+1), v(G+4*p+i), v(57), v(SUM+2*i+1))
        for i in range(4): k.v_cvt_pk_bf16_f32(v(120+i), v(SUM+2*i), v(SUM+2*i+1))
        k.s_add_u32(s(sT1), s(sLDSW), L_KVF)
        k.v_add_u32(v(55), s(sT1), v(vL16))
        k.ds_write_b128(v(55), v(120, 4))
        k.s_waitcnt('lgkmcnt(0)')
        k.s_barrier()
        k.v_add_u32(v(55), L_KVF, v(vL16))
        for i in range(4): k.ds_read_b128(v(128+4*i, 4), v(55), m=f'offset:{1024*i}')
        k.s_waitcnt('lgkmcnt(0)')
        ACC = 96
        for i, B in enumerate((PQ, PQ+4, EQ, EQ+4)):
            k.v_mfma_f32_32x32x16_bf16(v(ACC, 16), v(128+4*i, 4), v(B, 4), v(ACC, 16) if i else 0)
        self.o_tail(L, ACC, True)
        self.stamp(f'L{L} o pub')

    def layer_B(self, L):
        k = self.k
        self.gemm_kv(1)
        self.stamp(f'L{L} kv gemm')
        self.scale_pack(vAK, vRINV)
        self.epi_v()
        self.sanitize(vAK, 8); self.sanitize(vAV, 8)
        self.nohi()
        k.s_add_u32(s(sT1), s(sKVH_P), KVH[L])
        for i, rg in enumerate((vAK, vAK+4, vAV, vAV+4)):
            self.ws_st(rg, vL16, sT1, 1024*i, flags='sc1')
        k.s_barrier()
        for i, rg in enumerate((vAK, vAK+4, vAV, vAV+4)):
            k.ds_write_b128(v(vKVL), v(rg, 4), m=f'offset:{8*4096 + 1024*i}')
        self.stamp(f'L{L} kvh pub')
        self.resets(L)
        self.gemm_q(1)
        k.v_mul_f32(v(58), f32(28**-0.5 * LOG2E), v(vRINV))
        k.v_mul_f32(v(60), v(58), v(vHFM))
        self.scale_pack(vAQ, 58, 60)
        self.stamp(f'L{L} q')
        G = 144
        lz, lw = k.newlabel('Lz'), k.newlabel('Lw')
        k.s_lshl_b32(s(sT1), s(sR), 1); k.s_add_u32(s(sT1), s(sT1), s(sW))
        k.s_cmp_lt_u32(s(sT1), 4); k.s_cbranch_scc1(lz)
        k.s_add_u32(s(sT1), s(sKVH_C), KVH[L])
        def issue():
            for i in range(8): self.ws_ld(G+4*i, vL16, sT1, 1024*i)
        self.poll(issue, range(G, G+32), 2 << (4*L))
        k.s_branch(lw)
        k.label(lz)
        for i in range(32): k.v_mov_b32(v(G+i), 0)
        k.s_waitcnt('vmcnt(0)')
        k.label(lw)
        for i in range(8): k.ds_write_b128(v(vGW), v(G+4*i, 4), m=f'offset:{1024*i}')
        k.s_waitcnt('lgkmcnt(0)')
        k.s_barrier()
        self.stamp(f'L{L} halo got')
        KB = 64
        def rdk(t):
            b = KB + (t % 4)*8
            k.ds_read_b128(v(b, 4), v(vKVL), m=f'offset:{t*4096}')
            k.ds_read_b128(v(b+4, 4), v(vKVL), m=f'offset:{t*4096+1024}')
        for t in range(3): rdk(t)
        for t in range(9):
            k.s_waitcnt(f'lgkmcnt({2*min(2, 8-t)})')
            b = KB + (t % 4)*8
            k.v_mfma_f32_32x32x16_bf16(v(vS+16*t, 16), v(b, 4), v(vAQ, 4), 0)
            k.v_mfma_f32_32x32x16_bf16(v(vS+16*t, 16), v(b+4, 4), v(vAQ+4, 4), v(vS+16*t, 16))
            if t + 3 < 9: rdk(t + 3)
        lf = k.newlabel('Lfix')
        k.s_cmp_eq_u32(s(sTMIN), 0); k.s_cbranch_scc1(lf)
        for t in range(8):
            k.s_cmp_le_u32(s(sTMIN), t); k.s_cbranch_scc1(lf)
            for i in range(16): k.v_mov_b32(v(vS+16*t+i), f32(-BIGF))
        k.label(lf)
        k.v_mov_b32(v(57), f32(-BIGF))
        for r in range(16):
            j0 = (r & 3) + 8*(r >> 2)
            k.v_cmp_le_i32('vcc', j0, v(vII))
            k.v_cndmask_b32(v(vS+128+r), v(57), v(vS+128+r), 'vcc')
            k.v_cndmask_b32(v(vS+r), v(vS+r), v(57), 'vcc')
        mx = 58
        k.v_max3_f32(v(mx), v(vS), v(vS+1), v(vS+2)); k.v_max3_f32(v(mx+1), v(vS+3), v(vS+4), v(vS+5))
        for i in range(6, 144, 2):
            k.v_max3_f32(v(mx + ((i >> 1) & 1)), v(vS+i), v(vS+i+1), v(mx + ((i >> 1) & 1)))
        k.v_max_f32(v(mx), v(mx), v(mx+1))
        self.xhalf('v_max_f32', mx, 60)
        k.v_sub_f32(v(mx), 0, v(mx))
        ACC = 96
        def rdv(t):
            b = KB + (t % 4)*8
            k.ds_read_b128(v(b, 4), v(vKVL), m=f'offset:{t*4096+2048}')
            k.ds_read_b128(v(b+4, 4), v(vKVL), m=f'offset:{t*4096+3072}')
        for t in range(3): rdv(t)
        for t in range(9):
            S = vS + 16*t
            for i in range(8): k.v_pk_add_f32(v(S+2*i, 2), v(S+2*i, 2), v(mx, 2), m='op_sel_hi:[1,0]')
            for i in range(16): k.v_exp_f32(v(S+i), v(S+i))
            for i in range(8): k.v_cvt_pk_bf16_f32(v(S+i), v(S+2*i), v(S+2*i+1))
            k.s_waitcnt(f'lgkmcnt({2*min(2, 8-t)})')
            b = KB + (t % 4)*8
            k.v_mfma_f32_32x32x16_bf16(v(ACC, 16), v(b, 4), v(S, 4), v(ACC, 16) if t else 0)
            k.v_mfma_f32_32x32x16_bf16(v(ACC, 16), v(b+4, 4), v(S+4, 4), v(ACC, 16))
            if t + 3 < 9: rdv(t + 3)
        self.o_tail(L, ACC, False)
        self.stamp(f'L{L} o pub')

    def outproj(self, L):
        k = self.k
        typ = L & 1
        G = 144
        k.s_add_u32(s(sT1), s(sOT_C), OB[L])
        def issue():
            for i in range(8): self.ws_ld(G+4*i, vL16, sT1, 1024*i)
        self.poll(issue, range(G, G+32), 4 << (4*L))
        self.stamp(f'L{L} o got')
        k.s_barrier()
        for i in range(8): k.ds_write_b128(v(vGW), v(G+4*i, 4), m=f'offset:{1024*i}')
        for i in range(8):
            k.v_mfma_f32_32x32x16_bf16(v(vXRES, 16), a(typ*128+4*i, 4), v(G+4*i, 4), v(vXRES, 16))
        k.s_waitcnt('lgkmcnt(0)')
        k.s_barrier()
        def breg(f): return (64 if f < 8 else 176 - 32) + 4*f
        def rdo(f): k.ds_read_b128(v(breg(f), 4), v((vG1, vG2, vG3)[f >> 3]), m=f'offset:{1024*(f & 7)}')
        D = 12
        for f in range(D): rdo(f)
        for f in range(24):
            k.s_waitcnt(f'lgkmcnt({min(D-1, 23-f)})')
            k.v_mfma_f32_32x32x16_bf16(v(vXRES, 16), a(typ*128+32+4*f, 4), v(breg(f), 4), v(vXRES, 16))
            if f + D < 24: rdo(f + D)
        PK = 112
        for i in range(8): k.v_cvt_pk_bf16_f32(v(PK+i), v(vXRES+2*i), v(vXRES+2*i+1))
        if L == self.nlayers - 1:
            for q in range(3):
                k.buffer_store_dwordx2(v(PK+2*q, 2), v(vOUT), s(S_OUT, 4), 0, m=f'offen offset:{16*q}')
            k.s_mov_b32('exec_hi', 0)
            k.buffer_store_dwordx2(v(PK+6, 2), v(vOUT), s(S_OUT, 4), 0, m='offen offset:48')
            k.s_mov_b32('exec_hi', -1)
            self.stamp(f'L{L} out')
            return
        self.sanitize(PK, 8)
        for i in range(8):
            k.v_lshlrev_b32(v(vXRES+2*i), 16, v(PK+i)); k.v_and_b32(v(vXRES+2*i+1), '0xffff0000', v(PK+i))
        s1, s2, t1, t2 = 120, 122, 124, 126
        X = vXRES
        k.v_pk_add_f32(v(s1, 2), v(X, 2), v(X+2, 2)); k.v_pk_mul_f32(v(s2, 2), v(X, 2), v(X, 2))
        k.v_pk_fma_f32(v(s2, 2), v(X+2, 2), v(X+2, 2), v(s2, 2))
        for i in range(4, 12, 2):
            k.v_pk_add_f32(v(s1, 2), v(s1, 2), v(X+i, 2)); k.v_pk_fma_f32(v(s2, 2), v(X+i, 2), v(X+i, 2), v(s2, 2))
        k.v_pk_add_f32(v(t1, 2), v(X+12, 2), v(X+14, 2)); k.v_pk_mul_f32(v(t2, 2), v(X+12, 2), v(X+12, 2))
        k.v_pk_fma_f32(v(t2, 2), v(X+14, 2), v(X+14, 2), v(t2, 2))
        k.v_add_f32(v(s1), v(s1), v(s1+1)); k.v_add_f32(v(s2), v(s2), v(s2+1))
        k.v_add_f32(v(t1), v(t1), v(t1+1)); k.v_add_f32(v(t2), v(t2), v(t2+1))
        k.v_cmp_eq_f32('vcc', 0, v(vHFM))
        k.v_mov_b32(v(t1+1), 0)
        k.v_cndmask_b32(v(t1), v(t1), v(t1+1), 'vcc'); k.v_cndmask_b32(v(t2), v(t2), v(t1+1), 'vcc')
        k.v_add_f32(v(s1), v(s1), v(t1)); k.v_add_f32(v(s1+1), v(s2), v(t2))
        self.xhalf('v_add_f32', s1, t1); self.xhalf('v_add_f32', s1+1, t1)
        self.sanitize(s1, 2)
        k.s_add_u32(s(sT1), s(sXT_P), XB[L])
        def st(fl):
            for q in range(3): self.ws_st(PK+2*q, vXST, sT1, 512*q, n=2, flags=fl)
            k.s_mov_b32('exec_hi', 0)
            self.ws_st(PK+6, vXST, sT1, 512*3, n=2, flags=fl)
            self.ws_st(s1, vSST, sT1, 0, n=2, flags=fl)
            k.s_mov_b32('exec_hi', -1)
        self.local_stores(st)
        self.stamp(f'L{L} x pub')

    def build(self):
        k = self.k
        self.prologue()
        for L in range(self.nlayers):
            self.load_x(L)
            if L == 0:
                for typ in range(2):
                    for i in range(4):
                        self.wo_issue(typ, i)
                        k.s_waitcnt('vmcnt(0)')
                        self.wo_consume(typ, i)
                self.stamp('wo staged')
            if L & 1: self.layer_B(L)
            else: self.layer_A(L)
            if L + 1 < self.nlayers:
                self.w_dma((L+1) & 1, (1, 2, 0))
            self.outproj(L)
            if L == 0 and self.nlayers > 1:
                k.s_barrier()
                self.colsum(1)
        if self.ts:
            k.v_mov_b32(v(63), s(sERR))
            k.s_mov_b64('exec', 1)
            k.buffer_store_dword(v(63), v(vLANE), s(S_WS, 4), s(sTSO), m='offen offset:252')
            k.v_mov_b32(v(63), s(sMODE))
            k.buffer_store_dword(v(63), v(vLANE), s(S_WS, 4), s(sTSO), m='offen offset:248')
        k.label('Lend')
        k.s_endpgm()
        k.label('Lcode_end')
        body = k.finish()
        hdr = open('cdna_kernels/' + NAME + '.s.ref').read().split('; Override launch')[0]
        return hdr + f"""; Generated by gen/gen.py (persistent kernel, 256 workgroups x 4 waves).
; @launch grid=(256,1,1) block=(256,1,1) lds={LDS_BYTES}
.amdgcn_target "amdgcn-amd-amdhsa--gfx950"
.text
.globl {NAME}_kernel
.p2align 8
.type {NAME}_kernel,@function
{NAME}_kernel:
{body}.section .rodata,"a"
.p2align 6
.amdhsa_kernel {NAME}_kernel
  .amdhsa_next_free_vgpr 512
  .amdhsa_next_free_sgpr 102
  .amdhsa_accum_offset 256
  .amdhsa_group_segment_fixed_size 0
  .amdhsa_kernarg_size 80
  .amdhsa_user_sgpr_count 2
  .amdhsa_user_sgpr_kernarg_segment_ptr 1
  .amdhsa_system_sgpr_workgroup_id_x 1
.end_amdhsa_kernel
"""

if __name__ == '__main__':
    import argparse
    ap = argparse.ArgumentParser()
    ap.add_argument('-o', default='cdna_kernels/' + NAME + '.s')
    ap.add_argument('--ts', action='store_true')
    ap.add_argument('--slow', action='store_true')
    ap.add_argument('--layers', type=int, default=4)
    args = ap.parse_args()
    g = Gen(ts=args.ts, force_slow=args.slow, nlayers=args.layers)
    src = g.build()
    open(args.o, 'w').write(src)
    if args.ts:
        open(args.o + '.tsnames', 'w').write('\n'.join(g.tsnames))
    print('instructions', g.k.nins, 'bytes of source', len(src))
```

```python
import sys, math, struct
from asmlib import *

NAME = "interleave_layers__linear_kernel_hedgehog__sliding_block__prompt"

def f32(x):
    return '0x%08x' % struct.unpack('<I', struct.pack('<f', x))[0]

MB = 1 << 20
XB = [0*MB, 2*MB, 4*MB]
OB = [6*MB, 8*MB, 10*MB, 12*MB]
KVP = {0: 14*MB, 2: 15*MB}
KVH = {1: 16*MB, 3: 20*MB}
TS_BASE = 24*MB
FLG = 24*MB + 768*1024
KVR = {0: 24*MB + 512*1024, 2: 24*MB + 576*1024}
WPK = [25*MB, 25*MB + 16*86016]
OPK = 28*MB
WS_BYTES = 29*MB

SEG = 28672
L_WK, L_WV, L_WQ = 0, SEG, 2*SEG
L_KVL = 3*SEG
L_PHI = L_KVL
PHI_SIGN = 32*264
L_VOWN = L_KVL + 17408
L_KVF = L_KVL + 25600
L_CS1 = L_KVL + 29696
L_RINV = L_KVL + 32768
L_GATH = L_KVL + 45056
L_ST = L_KVL
L_CS0 = L_KVL + 65536
L_RINV0 = L_KVL + 69632
LDS_BYTES = 163840
assert L_GATH + 32768 == LDS_BYTES

S_WS, S_AX, S_WA, S_WB, S_WPHI, S_WOA, S_WOB, S_OUT, S_DBG, S_CODE = 8, 12, 16, 20, 24, 28, 32, 36, 40, 44
sR, sH, sW, sTT, sCG, sMODE, sXCC, sTRY = 48, 49, 50, 51, 52, 53, 54, 55
sXT, sOT_P, sOT_C, sXT_P, sKVP_P, sKVP_C, sKVH_P, sKVH_C = 56, 57, 58, 59, 60, 61, 62, 63
sT0, sT1, sT2, sT3, sT4, sT5 = 64, 65, 66, 67, 68, 69
sM28 = 70
sTMIN = 72
sWPKH = 73
sLDSW = 74
sSTW = 75
sTS = 76
sTSO = 78
sERR = 79
sB0, sB1 = 80, 81
sC0, sC1 = 82, 83
sP0 = 84
sOPKC = 86
sOM = 87
sT6, sT7 = 88, 89
sSLOT = 94
sE0, sE1 = 4, 5

vLANE, vL16, vWRD0, vWRD1, vWQ, vNEGB, vHW, vXST, vSST, vSLD = 0, 1, 2, 3, 4, 5, 6, 7, 8, 9
vPHW, vPHR, vRVW, vRVR, vKVL, vOUT, vG1, vG2, vG3, vHFM, vBIG, vII, vVOW, vGW = 10, 11, 12, 13, 14, 15, 16, 17, 18, 19, 20, 21, 22, 23
vWPHI = 24
vXRES = 32
vCS = 48
vMB, vRINV = 54, 56
vT = 54
vAK, vAV, vAQ = 64, 80, 96
vWF = 112
vXF = 144
vS = 112

BIGF = 3.0e38
LOG2E = 1.4426950408889634
MAXTRY = 20000
MFMA = 'v_mfma_f32_32x32x16_bf16'

class Gen:
    def __init__(self, ts=False, force_slow=False, nlayers=4, alias=True):
        if alias:
            XB[2] = XB[0]; OB[2] = OB[0]; OB[3] = OB[1]
        self.k = Asm()
        self.ts = ts
        self.force_slow = force_slow
        self.nlayers = nlayers
        self.nts = 0
        self.bg = []
        self._hi = None
        self.lq = []; self.vq = []
        self.cold = []

    def stamp(self, name):
        if not self.ts: return
        k = self.k
        k.c(f'stamp {self.nts}: {name}')
        k.s_memtime(s(sTS, 2))
        k.s_waitcnt('lgkmcnt(0)')
        k.v_writelane_b32(v(vNEGB), s(sTS), self.nts)
        self.tsnames = getattr(self, 'tsnames', []) + [name]
        self.nts += 1

    def tick(self, n=1):
        for _ in range(n):
            if self.bg: self.bg.pop(0)()

    def drain(self):
        while self.bg: self.bg.pop(0)()

    def ltag(self, tag, n=1):
        self.lq += [tag]*n
    def lwait(self, tag=None):
        if tag is None:
            self.k.s_waitcnt('lgkmcnt(0)'); self.lq = []; return
        if tag not in self.lq: return
        idx = len(self.lq) - 1 - self.lq[::-1].index(tag)
        n = len(self.lq) - 1 - idx
        self.k.s_waitcnt(f'lgkmcnt({min(n, 15)})')
        self.lq = self.lq[idx+1:]
    def vtag(self, tag, n=1):
        self.vq += [tag]*n
    def vwait(self, tag=None):
        if tag is None:
            self.k.s_waitcnt('vmcnt(0)'); self.vq = []; return
        if tag not in self.vq: return
        idx = len(self.vq) - 1 - self.vq[::-1].index(tag)
        n = len(self.vq) - 1 - idx
        assert n <= 63
        self.k.s_waitcnt(f'vmcnt({n})')
        self.vq = self.vq[idx+1:]

    def mfma(self, d, a_, b_, c):
        self.k(MFMA, v(d, 16), a_, b_, c)

    def srd(self, d, b, n):
        k = self.k
        k.s_mov_b32(s(d), s(b)); k.s_and_b32(s(d+1), s(b+1), '0xffff')
        k.s_mov_b32(s(d+2), n); k.s_mov_b32(s(d+3), '0x20000')

    def _so(self, sbase, off):
        hi = off & ~0xfff
        if not hi: return s(sbase)
        if self._hi != (sbase, hi):
            self.k.s_add_u32(s(sT5), s(sbase), hi); self._hi = (sbase, hi)
        return s(sT5)

    def ws_ld(self, dst, voff, sbase, off, n=4, flags='sc1'):
        op = {1: 'buffer_load_dword', 2: 'buffer_load_dwordx2', 4: 'buffer_load_dwordx4'}[n]
        so = self._so(sbase, off)
        self.k(op, v(dst, n), v(voff), s(S_WS, 4), so, m=f'offen offset:{off & 0xfff} {flags}'.strip())

    def ws_st(self, src, voff, sbase, off, n=4, flags=''):
        op = {1: 'buffer_store_dword', 2: 'buffer_store_dwordx2', 4: 'buffer_store_dwordx4'}[n]
        so = self._so(sbase, off)
        self.k(op, v(src, n), v(voff), s(S_WS, 4), so, m=f'offen offset:{off & 0xfff} {flags}'.strip())

    def nohi(self):
        self._hi = None

    def local_stores(self, fn):
        k = self.k
        ls, ld = k.newlabel('Lslow'), k.newlabel('Ldone')
        k.s_cmp_eq_u32(s(sMODE), 0)
        k.s_cbranch_scc1(ls)
        self.nohi(); fn('')
        k.label(ld)
        self.nohi()
        def cold():
            k.label(ls)
            self.nohi(); fn('sc1'); self.nohi()
            k.s_branch(ld)
        self.cold.append(cold)

    def check(self, regs):
        k = self.k
        t = 62
        regs = list(regs)
        k.v_max3_u32(v(t), v(regs[0]), v(regs[1]), v(regs[2]))
        rest = regs[3:]
        while rest:
            if len(rest) >= 2:
                k.v_max3_u32(v(t), v(rest[0]), v(rest[1]), v(t)); rest = rest[2:]
            else:
                k.v_max_u32(v(t), v(rest[0]), v(t)); rest = rest[1:]
        k.v_cmp_eq_u32('vcc', -1, v(t))
        k.s_cmp_eq_u64('vcc', 0)

    def poll(self, issue, regs, code, first_wait=None, sleep=0):
        k = self.k
        lp, lo = k.newlabel('Lpoll'), k.newlabel('Lok')
        def loop():
            k.s_mov_b32(s(sTRY), 0)
            l2, l3 = k.newlabel('Lp2'), k.newlabel('Lp3')
            k.s_branch(l3) if sleep else None
            k.label(l2)
            if sleep: k.s_sleep(sleep)
            k.label(l3)
            self.nohi(); issue(); self.nohi()
            k.s_add_u32(s(sTRY), s(sTRY), 1)
            k.s_cmp_ge_u32(s(sTRY), MAXTRY)
            k.s_cselect_b32(s(sT6), code, 0)
            k.s_or_b32(s(sERR), s(sERR), s(sT6))
            k.s_waitcnt('vmcnt(0)')
            self.check(regs)
            k.s_cselect_b32(s(sT7), 1, s(sT6))
            k.s_cmp_eq_u32(s(sT7), 0)
            k.s_cbranch_scc1(l2)
        if first_wait is None:
            loop()
        else:
            k.s_waitcnt(f'vmcnt({first_wait})')
            self.check(regs)
            k.s_cbranch_scc0(lp)
            k.label(lo)
            def cold():
                k.label(lp)
                if self.ts: k.s_add_u32(s(sERR), s(sERR), 1 << 16)
                loop()
                k.s_branch(lo)
            self.cold.append(cold)

    def xhalf(self, op, dst, t):
        k = self.k
        k.v_mov_b32(v(t), v(dst))
        k.v_permlane32_swap_b32(v(dst), v(t))
        k(op, v(dst), v(dst), v(t))

    def rbf(self, dst, src):
        k = self.k
        k.v_cvt_pk_bf16_f32(v(dst), v(src), v(src))
        k.v_and_b32(v(dst), '0xffff0000', v(dst))

    def prologue(self):
        k = self.k
        k.label('Lstart')
        k.s_load_dwordx16(s(64, 16), s(0, 2), 0)
        k.s_load_dwordx4(s(80, 4), s(0, 2), 64)
        k.s_getpc_b64(s(4, 2))
        k.label('Lpc')
        k.s_memrealtime(s(90, 2))
        if self.ts: k.s_memtime(s(92, 2))
        k.s_cmp_ge_u32(s(2), 256)
        k.s_cbranch_scc1('Lend')
        k.s_lshr_b32(s(6), s(2), 3)
        k.s_sub_u32(s(S_CODE), s(4), 'Lpc-Lstart'); k.s_subb_u32(s(5), s(5), 0)
        k.s_and_b32(s(S_CODE+1), s(5), '0xffff')
        k.s_mov_b32(s(S_CODE+2), 'Lcode_end-Lstart'); k.s_mov_b32(s(S_CODE+3), '0x20000')
        k.v_lshrrev_b32(v(1), 6, v(0))
        k.v_and_b32(v(vLANE), 63, v(0))
        k.v_readfirstlane_b32(s(sW), v(1))
        k.s_lshl_b32(s(3), s(6), 11)
        k.v_lshlrev_b32(v(2), 5, v(vLANE))
        lcp = k.newlabel('Lcp')
        k.s_cmp_lg_u32(s(sW), 3); k.s_cbranch_scc1(lcp)
        k.buffer_load_dword(v(240), v(2), s(S_CODE, 4), s(3), m='offen')
        k.label(lcp)
        k.s_and_b32(s(sH), s(6), 15)
        k.s_and_b32(s(3), s(2), 7)
        k.s_lshr_b32(s(7), s(6), 4)
        k.s_lshl_b32(s(3), s(3), 1)
        k.s_add_u32(s(sR), s(3), s(7))
        n, hf, r4, ch, c4, l2 = 60, 61, 62, 63, 59, 58
        k.v_and_b32(v(c4), 3, v(vLANE))
        k.v_lshrrev_b32(v(l2), 2, v(vLANE))
        vODMA, vPDMA = 97, 98
        k.v_mul_u32_u24(v(vPDMA), 2688, v(l2))
        k.v_lshl_add_u32(v(vPDMA), v(c4), 4, v(vPDMA))
        k.v_mul_u32_u24(v(vODMA), 896, v(l2))
        k.v_lshl_add_u32(v(vODMA), v(c4), 4, v(vODMA))
        k.v_mul_u32_u24(v(96), 56, v(l2))
        k.v_lshl_add_u32(v(96), v(c4), 4, v(96))
        k.v_lshlrev_b32(v(vL16), 4, v(vLANE))
        k.s_lshl_b32(s(sOM), s(sR), 2); k.s_add_u32(s(sOM), s(sOM), s(sW))
        sRHO, sPH, sPD = 101, 100, 95
        k.s_lshl_b32(s(sRHO), s(sR), 4); k.s_add_u32(s(sRHO), s(sRHO), s(sH))
        k.s_and_b32(s(sPH), s(sRHO), 3); k.s_lshl_b32(s(sPH), s(sPH), 2); k.s_add_u32(s(sPH), s(sPH), s(sW))
        k.s_waitcnt('lgkmcnt(0)')
        self.srd(S_DBG, 80, 256)
        lep = k.newlabel('Lep')
        k.s_add_u32(s(3), s(2), s(sW)); k.s_cmp_lg_u32(s(3), 0); k.s_cbranch_scc1(lep)
        k.s_andn2_b32(s(3), s(90), 15); k.s_or_b32(s(4), s(91), 0x40000000)
        k.v_mov_b32(v(56), s(3)); k.v_mov_b32(v(57), s(4))
        k.s_mov_b64('exec', 1)
        k.buffer_store_dwordx2(v(56, 2), v(vLANE), s(S_DBG, 4), 0, m='offen sc1')
        k.s_mov_b64('exec', -1)
        k.label(lep)
        self.srd(S_WA, 66, 1204224); self.srd(S_WB, 74, 1204224)
        self.srd(S_WOA, 70, 401408); self.srd(S_WOB, 76, 401408)
        self.srd(S_AX, 64, 1835008); self.srd(S_WPHI, 68, 25088)
        self.srd(S_OUT, 78, 1835008); self.srd(S_WS, 82, WS_BYTES)
        k.s_lshl_b32(s(sLDSW), s(sW), 10)
        k.s_lshl_b32(s(sSTW), s(sW), 14); k.s_add_u32(s(sSTW), s(sSTW), L_ST)
        self.vq = []
        sPS = 97
        k.s_lshr_b32(s(sT1), s(sRHO), 2)
        k.s_cmp_ge_u32(s(sT1), 28); k.s_cselect_b32(s(sT2), 1, 0)
        k.s_cmp_ge_u32(s(sT1), 56); k.s_cselect_b32(s(sT2), 2, s(sT2))
        k.s_mul_i32(s(sT3), s(sT2), 28); k.s_sub_u32(s(sT3), s(sT1), s(sT3)); k.s_mul_i32(s(sT3), s(sT3), 16*2688)
        k.s_add_u32(s(sT2), s(sT2), 1); k.s_cmp_eq_u32(s(sT2), 3); k.s_cselect_b32(s(sT2), 0, s(sT2))
        k.s_mul_i32(s(sT2), s(sT2), 896); k.s_add_u32(s(sT3), s(sT3), s(sT2))
        k.s_mul_i32(s(sT0), s(sPH), 56); k.s_add_u32(s(sPS), s(sT3), s(sT0))
        k.s_add_u32('m0', s(sSTW), 0)
        k.buffer_load_dwordx4(v(vPDMA), s(S_WA, 4), s(sPS), m='offen lds')
        k.s_mul_i32(s(sT2), s(sPH), 86016); k.s_lshl_b32(s(sT3), s(sT1), 10); k.s_add_u32(s(sPD), s(sT2), s(sT3))
        k.s_add_u32(s(sPD), s(sPD), WPK[0])
        k.s_add_u32(s(sT3), s(sT1), 8); k.s_mul_i32(s(sT3), s(sT3), 16*2688); k.s_add_u32(s(sPS+1), s(sT3), s(sT0))
        k.s_add_u32(s(sPD+1), s(sPD), 65536)
        k.s_sub_u32(s(sT1), s(sRHO), 80)
        k.s_lshr_b32(s(sT2), s(sT1), 3); k.s_bfe_u32(s(sT1), s(sT1), 2 | (1 << 16))
        k.s_mul_i32(s(sT3), s(sT2), 28*896); k.s_add_u32(s(sT0), s(sT0), s(sT3)); k.s_mul_i32(s(sT3), s(sT1), 16*896); k.s_add_u32(s(sT0), s(sT0), s(sT3))
        k.s_lshl_b32(s(sT3), s(sPH), 15); k.s_lshl_b32(s(sT2), s(sT2), 11); k.s_add_u32(s(sT3), s(sT3), s(sT2))
        k.s_lshl_b32(s(sT1), s(sT1), 10); k.s_add_u32(s(sT3), s(sT3), s(sT1)); k.s_add_u32(s(sT3), s(sT3), OPK)
        k.s_cmp_ge_u32(s(sRHO), 208); k.s_cselect_b32(s(sT3), 0x7000000, s(sT3))
        k.s_cmp_ge_u32(s(sRHO), 80); k.s_cselect_b32(s(sPS+1), s(sT0), s(sPS+1)); k.s_cselect_b32(s(sPD+1), s(sT3), s(sPD+1))
        def pack_dma1(typ, slot):
            la, lb = k.newlabel('La'), k.newlabel('Lb')
            k.s_add_u32('m0', s(sSTW), slot*1024)
            k.s_cmp_ge_u32(s(sRHO), 80); k.s_cbranch_scc1(la)
            k.buffer_load_dwordx4(v(vPDMA), s(S_WB if typ else S_WA, 4), s(sPS+1), m='offen lds')
            k.s_branch(lb)
            k.label(la)
            k.buffer_load_dwordx4(v(vODMA), s(S_WOB if typ else S_WOA, 4), s(sPS+1), m='offen lds')
            k.label(lb)
        pack_dma1(0, 1)
        self.vtag('pack', 2)
        k.s_add_u32('m0', s(sSTW), 2*1024)
        k.buffer_load_dwordx4(v(vPDMA), s(S_WB, 4), s(sPS), m='offen lds')
        pack_dma1(1, 3)
        self.vtag('packb', 2)
        k.s_mul_i32(s(sT1), s(sH), 1568)
        k.s_add_u32('m0', s(sSTW), 5*1024)
        k.buffer_load_dwordx4(v(96), s(S_WPHI, 4), s(sT1), m='offen lds')
        k.s_add_u32(s(sT1), s(sT1), 16*56)
        k.s_add_u32('m0', s(sSTW), 6*1024)
        k.buffer_load_dwordx4(v(96), s(S_WPHI, 4), s(sT1), m='offen lds')
        self.vtag('phi', 2)
        if self.ts:
            k.s_lshl_b32(s(sT1), s(2), 2); k.s_add_u32(s(sT1), s(sT1), s(sW)); k.s_lshl_b32(s(sT1), s(sT1), 8)
            k.s_add_u32(s(sTSO), s(sT1), TS_BASE)
            k.v_mov_b32(v(vNEGB), 0)
        self.stamp('pack issued')
        vX0, vBW0, vBW1, vBR = 101, 102, 103, 104
        vPK8, vPK4 = 99, 100
        k.v_lshrrev_b32(v(56), 3, v(vLANE))
        k.s_lshl_b32(s(sT1), s(sOM), 5)
        k.v_add_u32(v(55), s(sT1), v(56)); k.v_mul_u32_u24(v(vX0), 896, v(55))
        k.v_and_b32(v(55), 7, v(vLANE))
        k.v_lshl_add_u32(v(vX0), v(55), 4, v(vX0))
        sC0_ = 99
        k.s_and_b32(s(sT1), s(sR), 1); k.s_mul_i32(s(sT1), s(sT1), 3); k.s_add_u32(s(sC0_), s(sH), s(sT1))
        k.s_cmp_ge_u32(s(sC0_), 7); k.s_cselect_b32(s(sT1), 7, 0); k.s_cmp_ge_u32(s(sC0_), 14); k.s_cselect_b32(s(sT1), 14, s(sT1))
        k.s_sub_u32(s(sC0_), s(sC0_), s(sT1))
        def line(dst, i):
            k.s_add_u32(s(dst), s(sC0_), i)
            k.s_cmp_ge_u32(s(dst), 7); k.s_cselect_b32(s(sT5), 7, 0); k.s_sub_u32(s(dst), s(dst), s(sT5))
        def wdma(segs, ii):
            line(sT4, ii)
            k.s_lshl_b32(s(sT4), s(sT4), 12)
            k.s_add_u32(s(sT4), s(sT4), s(sWPKH))
            for g in segs:
                k.s_add_u32('m0', s(sLDSW), g*SEG + ii*4096)
                k.s_add_u32(s(sT5), s(sT4), WPK[0] + g*SEG)
                k.buffer_load_dwordx4(v(vL16), s(S_WS, 4), s(sT5), m='offen sc1 lds')
                self.vtag('wq' if g == 2 else f'w{ii}')
        def xload(c):
            line(sT0, c)
            k.s_lshl_b32(s(sT0), s(sT0), 7)
            for g in range(4):
                if g: k.s_add_u32(s(sT0), s(sT0), 8*896)
                k.buffer_load_dwordx4(v(vXF+4*(4*c+g), 4), v(vX0), s(S_AX, 4), s(sT0), m='offen')
            self.vtag(f'x{c}', 4)
        def bounce(c):
            buf = (c & 1)*4096
            for g in range(4):
                k.ds_write_b128(v(vBW1 if g & 1 else vBW0), v(vXF+4*(4*c+g), 4), m=f'offset:{buf + g*1024}')
            for sp in range(4):
                k.ds_read_b128(v(vXF+4*(4*c+sp), 4), v(vBR+sp), m=f'offset:{buf}')
            self.ltag(f'b{c}', 8)
        ones = 57
        def xstat(c):
            for i in range(16):
                x = vXF + 16*c + i
                k.v_dot2_f32_bf16(v(60), v(x), v(ones), v(60))
                k.v_dot2_f32_bf16(v(61), v(x), v(x), v(61))
        def st1(reg, sb, add, off=0, tag='st'):
            so = sb
            if add:
                k.s_add_u32(s(sT2), s(sb), add); so = sT2
            k.buffer_store_dwordx4(v(reg, 4), v(vL16), s(S_WS, 4), s(so), m=f'offen offset:{off} sc1')
            self.vtag(tag)
        self.setup2()
        xload(0)
        self.stamp('setup2')
        k.v_mov_b32(v(ones), '0x3f803f80')
        for i in range(4): k.v_mov_b32(v(60+i), 0)
        vPK1a, vPK1b = 110, 111
        k.s_cmp_ge_u32(s(sRHO), 80); k.s_cselect_b64('vcc', -1, 0); k.s_cselect_b32(s(sT1), 2, 1); k.s_lshl_b32(s(sT1), s(sT1), 8)
        k.v_cndmask_b32(v(vPK1a), v(vPK8), v(vPK4), 'vcc')
        k.v_add_u32(v(vPK1b), s(sT1), v(vPK1a))
        sPADM = 7
        k.s_sub_u32(s(sT1), s(sRHO), 80); k.s_bitcmp1_b32(s(sT1), 2); k.s_cselect_b32(s(sPADM), -1, 0)
        k.s_cmp_ge_u32(s(sRHO), 80); k.s_cselect_b32(s(sPADM), s(sPADM), 0)
        def pack_out(typ, slot, P, dadd):
            for j in range(2):
                k.ds_read_b64_tr_b16(v(P+2*j, 2), v(vPK8), m=f'offset:{slot*1024 + j*256}')
            k.ds_read_b64_tr_b16(v(P+4, 2), v(vPK1a), m=f'offset:{slot*1024 + 1024}')
            k.ds_read_b64_tr_b16(v(P+6, 2), v(vPK1b), m=f'offset:{slot*1024 + 1024}')
            k.s_waitcnt('lgkmcnt(2)')
            st1(P, sPD, dadd[0])
            k.s_waitcnt('lgkmcnt(0)')
            k.s_mov_b32('exec_lo', 0); k.s_mov_b32('exec_hi', s(sPADM))
            k.v_mov_b32(v(P+6), 0); k.v_mov_b32(v(P+7), 0)
            k.s_mov_b64('exec', -1)
            if typ:
                k.s_mov_b32(s(sT3), dadd[0]); k.s_cmp_ge_u32(s(sRHO), 80); k.s_cselect_b32(s(sT3), dadd[1], s(sT3))
                k.s_add_u32(s(sPD+1), s(sPD+1), s(sT3))
            st1(P+4, sPD+1, 0)
        self.vwait('pack')
        self.stamp('pack in')
        pack_out(0, 0, 64, (0, 0))
        EP = 80
        k.v_mov_b32(v(EP+2), 0)
        k.buffer_load_dwordx2(v(EP, 2), v(EP+2), s(S_DBG, 4), 0, m='offen sc1'); self.vtag('ep')
        self.stamp('pack out')
        xload(1)
        self.vwait('x0')
        self.lq = []
        bounce(0)
        for j in range(2):
            for jj in range(2):
                k.ds_read_b64_tr_b16(v(vWPHI+4*j+2*jj, 2), v(vPK4), m=f'offset:{5120 + j*1024 + jj*512}')
        xload(2)
        self.lwait()
        k.s_mov_b32('exec_lo', 0)
        k.v_mov_b32(v(vWPHI+6), 0); k.v_mov_b32(v(vWPHI+7), 0)
        k.s_mov_b64('exec', s(sP0, 2))
        for i in range(8): k.v_mov_b32(v(vWPHI+i), 0)
        k.s_mov_b64('exec', -1)
        xstat(0)
        self.vwait('ep')
        self.tag_get(EP)
        k.s_barrier()
        self.stamp('acked')
        self.flag_post(0, EP)
        xload(3)
        for c in range(1, 8):
            if c < 7:
                self.vwait(f'x{c}')
                if c >= 2: self.lwait(f'b{c-1}')
                bounce(c)
                if c + 3 < 7: xload(c+3)
            if c == 6: self.flag_issue(0, 64)
            if c >= 2:
                self.lwait(f'b{c-1}')
                xstat(c-1)
        self.stats_finish(60, 61)
        self.stamp('x0 done')
        self.flag_wait(0, 64)
        self.stamp('flags')
        for ii in range(7): wdma((0, 1), ii)
        k.s_mul_i32(s(sT1), s(sW), 768); k.s_add_u32(s(sT1), s(sT1), L_CS0)
        k.v_lshl_add_u32(v(55), v(vLANE), 2, s(sT1))
        pack_out(1, 2, 64, (WPK[1] - WPK[0], 524288))
        for i in range(4): k.v_mov_b32(v(108+i), -1)
        k.s_lshl_b32(s(97), s(sR), 12); k.s_add_u32(s(97), s(97), s(sKVP_C))
        k.s_lshl_b32(s(98), s(sH), 12); k.s_add_u32(s(98), s(98), s(sLDSW))
        k.s_lshl_b32(s(sT3), s(sR), 16); k.s_add_u32(s(98), s(98), s(sT3))
        k.s_mov_b32(s(sT3), 0x7000000); k.s_cmp_lt_u32(s(sR), 2); k.s_cselect_b32(s(sT3), KVR[0], s(sT3)); k.s_add_u32(s(98), s(98), s(sT3))
        k.v_add_u32(v(99), s(sLDSW), v(vL16))
        def cspiece(ii, R):
            self.vwait(f'w{ii}')
            k.ds_read_b128(v(R, 4), v(99), m=f'offset:{L_WK + ii*4096}')
            k.ds_read_b128(v(R+4, 4), v(99), m=f'offset:{L_WV + ii*4096}')
        def csdot(R):
            for i in range(4):
                k.v_dot2_f32_bf16(v(62), v(R+i), v(ones), v(62)); k.v_dot2_f32_bf16(v(63), v(R+4+i), v(ones), v(63))
        D = 3
        def rdw(st):
            b = vWF + (st % 4)*8
            k.ds_read_b128(v(b, 4), v(vL16), m=f'offset:{L_WK + st*1024}')
            k.ds_read_b128(v(b+4, 4), v(vL16), m=f'offset:{L_WV + st*1024}')
            self.ltag(f'w{st}', 2)
        def gemm(s0, s1, extra, fill=None):
            for st in range(s0, s1):
                self.lwait(f'w{st}')
                b = vWF + (st % 4)*8
                x = v(vXF+4*st, 4)
                self.mfma(vAK, v(b, 4), x, v(vAK, 16) if st else 0)
                for _ in range(3):
                    if fill and st >= s0 + 3: fill.pop(0)()
                self.mfma(vAV, x, v(b+4, 4), v(vAV, 16) if st else 0)
                if st + D < s1: rdw(st + D)
                if extra: extra.pop(0)()
        nop = lambda: None
        self.stamp('W issued')
        for ii in range(4):
            cspiece(ii, vWF + 8*ii)
            if ii >= 1:
                k.s_waitcnt('lgkmcnt(2)'); csdot(vWF + 8*(ii-1))
        k.s_barrier()
        k.s_waitcnt('lgkmcnt(0)')
        self.stamp('W half1')
        self.lq = []
        for st in range(D): rdw(st)
        csdot(vWF + 24)
        def tch():
            self.touch_half(OPK, 16384); self.vtag('bg')
        def rob():
            k.s_add_u32(s(sT1), s(sOT_P), OB[0])
            def st(fl):
                self.ws_st(108, vL16, sT1, 0, flags=fl); self.ws_st(108, vL16, sT1, 1024, flags=fl)
            self.local_stores(st); self.vtag('st', 2)
        def resid():
            for q in range(4):
                k.buffer_load_dwordx2(v(vXRES+8+2*q, 2), v(vOUT), s(S_AX, 4), 0, m=f'offen offset:{16*q}')
            self.vtag('res', 4)
        gemm(0, 16, [nop]*8 + [tch, nop, lambda: st1(108, 97, KVP[0]), nop, lambda: st1(108, 98, 0), nop, lambda: wdma((2,), 0)])
        for ii in range(4, 7): cspiece(ii, vWF + 8*(ii-4))
        k.s_waitcnt('lgkmcnt(0)')
        for ii in range(3): csdot(vWF + 8*ii)
        k.ds_write_b32(v(55), v(62), m='offset:256'); k.ds_write_b32(v(55), v(63), m='offset:512')
        k.s_waitcnt('lgkmcnt(0)')
        k.s_barrier()
        self.stamp('W kv')
        self.lq = []
        fin = self.colsum_fin(L_CS0, 0, (1, 2), base=96, defer=True)
        for st in range(16, 16+D): rdw(st)
        ex = [rob]
        for ii in range(1, 7): ex += [lambda ii=ii: wdma((2,), ii), nop]
        ex = ex[:11] + [lambda: (wdma((2,), 6), resid())]
        gemm(16, 28, ex, fin)
        while fin: fin.pop(0)()
        self.bg_wo(0)
        self.mean_steps(0)

    def tag_get(self, EP):
        k = self.k
        lfe, lfe2, lfe3 = k.newlabel('Lfe'), k.newlabel('Lfe'), k.newlabel('Lfe')
        k.s_mov_b32(s(sTRY), 0)
        k.label(lfe2)
        k.v_readfirstlane_b32(s(sE0), v(EP)); k.v_readfirstlane_b32(s(sE1), v(EP+1))
        k.s_cmp_eq_u32(s(sE1), 0); k.s_cbranch_scc1(lfe)
        k.label(lfe3)
        def cold():
            k.label(lfe)
            k.s_sleep(2)
            k.buffer_load_dwordx2(v(EP, 2), v(EP+2), s(S_DBG, 4), 0, m='offen sc1')
            k.s_add_u32(s(sTRY), s(sTRY), 1)
            k.s_waitcnt('vmcnt(0)')
            k.s_cmp_lt_u32(s(sTRY), MAXTRY); k.s_cbranch_scc1(lfe2)
            k.s_or_b32(s(sERR), s(sERR), 1 << 29)
            k.s_branch(lfe3)
        self.cold.append(cold)
        k.s_or_b32(s(sE0), s(sE0), s(sXCC))

    def flag_post(self, stage, EP):
        k = self.k
        lfx = k.newlabel('Lfx')
        k.s_cmp_lg_u32(s(sW), 3); k.s_cbranch_scc1(lfx)
        k.v_mov_b32(v(EP), s(sE0)); k.v_mov_b32(v(EP+1), s(sE1))
        k.s_lshl_b32(s(3), s(101), 3); k.s_add_u32(s(3), s(3), FLG + 2048*stage)
        k.s_mov_b64('exec', 1)
        k.buffer_store_dwordx2(v(EP, 2), v(vLANE), s(S_WS, 4), s(3), m='offen sc1')
        k.s_mov_b64('exec', -1)
        k.label(lfx)

    def flag_issue(self, stage, F):
        k = self.k
        k.v_lshlrev_b32(v(F+8), 5, v(vLANE))
        k.s_mov_b32(s(3), FLG + 2048*stage)
        k.buffer_load_dwordx4(v(F, 4), v(F+8), s(S_WS, 4), s(3), m='offen sc1')
        k.buffer_load_dwordx4(v(F+4, 4), v(F+8), s(S_WS, 4), s(3), m='offen offset:16 sc1')
        self.vtag('flg', 2)

    def flag_wait(self, stage, F):
        k = self.k
        lp, lr, lgo = k.newlabel('Lfp'), k.newlabel('Lfr'), k.newlabel('Lgo')
        k.s_mov_b32(s(sTRY), 0)
        self.vwait('flg')
        k.label(lp)
        for i in range(4):
            k.v_xor_b32(v(F+2*i), s(sE0), v(F+2*i)); k.v_xor_b32(v(F+2*i+1), s(sE1), v(F+2*i+1))
        k.v_or3_b32(v(F), v(F), v(F+2), v(F+4)); k.v_or_b32(v(F), v(F), v(F+6))
        k.v_or3_b32(v(F+1), v(F+1), v(F+3), v(F+5)); k.v_or_b32(v(F+1), v(F+1), v(F+7))
        k.v_and_b32(v(F+2), -16, v(F)); k.v_or_b32(v(F+2), v(F+2), v(F+1))
        k.v_cmp_ne_u32('vcc', 0, v(F+2))
        k.s_cmp_eq_u64('vcc', 0)
        k.s_cbranch_scc0(lr)
        k.label(lgo)
        def cold():
            k.label(lr)
            k.s_add_u32(s(sTRY), s(sTRY), 1)
            k.s_cmp_ge_u32(s(sTRY), MAXTRY); k.s_cselect_b32(s(sT6), 1 << 30, 0); k.s_or_b32(s(sERR), s(sERR), s(sT6))
            k.s_cmp_lg_u32(s(sT6), 0); k.s_cbranch_scc1(lgo)
            if self.ts: k.s_add_u32(s(sERR), s(sERR), 1 << 24)
            k.s_sleep(4)
            k.s_mov_b32(s(3), FLG + 2048*stage)
            k.buffer_load_dwordx4(v(F, 4), v(F+8), s(S_WS, 4), s(3), m='offen sc1')
            k.buffer_load_dwordx4(v(F+4, 4), v(F+8), s(S_WS, 4), s(3), m='offen offset:16 sc1')
            k.s_waitcnt('vmcnt(0)')
            k.s_branch(lp)
        self.cold.append(cold)
        if stage == 0:
            k.v_cmp_eq_u32('vcc', 0, v(F))
            k.s_lshl_b32(s(3), s(sR), 2)
            k.s_lshr_b64(s(sP0, 2), 'vcc', s(3))
            k.s_and_b32(s(3), s(sP0), 15)
            k.s_cmp_eq_u32(s(3), 15)
            k.s_cselect_b32(s(sMODE), 0 if self.force_slow else 1, 0)

    def setup2(self):
        k = self.k
        n, hf, r4, ch, c4, l2 = 60, 61, 62, 63, 59, 58
        k.s_getreg_b32(s(sXCC), 'hwreg(HW_REG_XCC_ID)')
        k.s_and_b32(s(sXCC), s(sXCC), 15)
        k.s_mov_b32(s(sSLOT), s(6))
        k.s_lshr_b32(s(3), s(sH), 2)
        k.s_lshl_b32(s(sTT), s(sR), 2)
        k.s_add_u32(s(sTT), s(sTT), s(3))
        k.s_and_b32(s(sCG), s(sH), 3)
        k.s_mov_b32(s(sERR), 0)
        k.s_mov_b32(s(sMODE), 0)
        k.s_lshl_b32(s(sXT), s(sOM), 15)
        k.s_lshl_b32(s(sT1), s(sH), 11); k.s_add_u32(s(sOT_P), s(sXT), s(sT1))
        k.s_lshl_b32(s(sXT_P), s(sTT), 15)
        k.s_lshl_b32(s(sT1), s(sW), 13); k.s_add_u32(s(sOT_C), s(sXT_P), s(sT1))
        k.s_lshl_b32(s(sT1), s(sH), 16)
        k.s_lshl_b32(s(sT2), s(sR), 12); k.s_add_u32(s(sKVP_P), s(sT1), s(sT2))
        k.s_lshl_b32(s(sT2), s(sW), 11); k.s_add_u32(s(sKVP_P), s(sKVP_P), s(sT2))
        k.s_add_u32(s(sKVP_C), s(sT1), s(sLDSW))
        k.s_lshl_b32(s(sT1), s(sH), 18)
        k.s_lshl_b32(s(sT2), s(sOM), 12); k.s_add_u32(s(sKVH_P), s(sT1), s(sT2))
        k.s_add_u32(s(sT2), s(sOM), s(sW))
        k.s_sub_u32(s(sT2), s(sT2), 8); k.s_lshl_b32(s(sT2), s(sT2), 12); k.s_add_u32(s(sKVH_C), s(sT1), s(sT2))
        k.s_sub_i32(s(sTMIN), 8, s(sOM)); k.s_max_i32(s(sTMIN), s(sTMIN), 0)
        k.s_mul_i32(s(sWPKH), s(sH), 86016); k.s_add_u32(s(sWPKH), s(sWPKH), s(sLDSW))
        k.s_lshl_b32(s(sT1), s(sCG), 2); k.s_add_u32(s(sT1), s(sT1), s(sW)); k.s_lshl_b32(s(sOPKC), s(sT1), 15)
        k.v_and_b32(v(n), 31, v(vLANE))
        k.v_lshrrev_b32(v(hf), 5, v(vLANE))
        k.v_bfe_u32(v(r4), v(vLANE), 2, 2)
        k.v_bfe_u32(v(ch), v(vLANE), 4, 1)
        vX0, vBW0, vBW1, vBR = 101, 102, 103, 104
        k.v_lshrrev_b32(v(56), 3, v(vLANE))
        k.v_and_b32(v(55), 7, v(vLANE))
        k.v_lshrrev_b32(v(57), 4, v(vLANE))
        k.v_xor_b32(v(55), v(55), v(57))
        k.s_add_u32(s(sT1), s(sSTW), 7168)
        k.v_lshl_add_u32(v(56), v(56), 7, s(sT1))
        k.v_lshl_add_u32(v(vBW0), v(55), 4, v(56))
        k.v_xor_b32(v(vBW1), 64, v(vBW0))
        k.v_bfe_u32(v(55), v(n), 1, 3)
        k.v_xor_b32(v(55), v(55), v(hf))
        k.v_lshl_add_u32(v(56), v(n), 7, s(sT1))
        k.v_lshl_add_u32(v(vBR), v(55), 4, v(56))
        for sp in range(1, 4): k.v_xor_b32(v(vBR+sp), 32*sp, v(vBR))
        k.v_lshlrev_b32(v(57), 5, v(ch))
        k.v_lshl_add_u32(v(57), v(c4), 3, v(57))
        k.v_lshl_add_u32(v(56), v(hf), 3, v(r4))
        k.v_lshl_add_u32(v(vWRD0), v(56), 6, v(57))
        k.v_add_u32(v(vWRD1), L_WQ, v(vWRD0))
        k.v_add_u32(v(vWQ), L_WQ, v(vL16))
        vPK8, vPK4 = 99, 100
        k.v_add_u32(v(vPK8), s(sSTW), v(vWRD0))
        k.v_lshl_add_u32(v(56), v(hf), 2, v(r4))
        k.v_lshl_add_u32(v(vPK4), v(56), 6, v(57))
        k.v_add_u32(v(vPK4), s(sSTW), v(vPK4))
        k.v_mul_u32_u24(v(56), 264, v(hf))
        k.v_lshl_add_u32(v(56), v(r4), 6, v(56))
        k.s_and_b32(s(sT1), s(sW), 1); k.s_mul_i32(s(sT1), s(sT1), PHI_SIGN); k.s_add_u32(s(sT1), s(sT1), L_PHI)
        k.v_add3_u32(v(vPHR), v(56), v(57), s(sT1))
        k.v_lshrrev_b32(v(56), 2, v(n))
        k.s_lshl_b32(s(sT1), s(sW), 3)
        k.v_add_u32(v(56), s(sT1), v(56))
        k.v_mul_u32_u24(v(56), 264, v(56))
        k.v_lshl_add_u32(v(56), v(c4), 6, v(56))
        k.v_lshl_add_u32(v(56), v(hf), 3, v(56))
        k.v_add_u32(v(vPHW), L_PHI, v(56))
        k.s_lshl_b32(s(sT1), s(sW), 7); k.s_add_u32(s(sT1), s(sT1), L_RINV0)
        k.v_lshl_add_u32(v(vRVW), v(n), 2, s(sT1))
        k.v_lshl_add_u32(v(vRVR), v(hf), 4, s(sT1))
        k.s_lshl_b32(s(sT1), s(sW), 12); k.s_add_u32(s(sT1), s(sT1), L_KVL)
        k.v_add_u32(v(vKVL), s(sT1), v(vL16))
        k.s_lshl_b32(s(sT1), s(sW), 13); k.s_add_u32(s(sT1), s(sT1), L_KVL)
        k.v_add_u32(v(vHW), s(sT1), v(vL16))
        k.s_lshl_b32(s(sT1), s(sW), 11); k.s_add_u32(s(sT1), s(sT1), L_VOWN)
        k.v_add_u32(v(vVOW), s(sT1), v(vL16))
        for i, reg in ((0, vGW), (1, vG1), (2, vG2), (3, vG3)):
            k.s_add_u32(s(sT1), s(sW), i); k.s_and_b32(s(sT1), s(sT1), 3); k.s_lshl_b32(s(sT1), s(sT1), 13)
            k.s_sub_u32(s(sT1), L_GATH + 3*8192, s(sT1))
            k.v_add_u32(v(reg), s(sT1), v(vL16))
        k.s_mul_i32(s(sT1), s(sCG), 28); k.s_mul_i32(s(sT2), s(sW), 7); k.s_add_u32(s(sT1), s(sT1), s(sT2))
        k.v_add_u32(v(56), s(sT1), v(hf))
        k.v_lshrrev_b32(v(55), 1, v(56)); k.v_lshlrev_b32(v(55), 9, v(55))
        k.v_and_b32(v(56), 1, v(56)); k.v_lshl_add_u32(v(55), v(56), 3, v(55))
        k.v_lshl_add_u32(v(vXST), v(n), 4, v(55))
        k.s_lshl_b32(s(sT1), s(sCG), 2); k.s_add_u32(s(sT1), s(sT1), s(sW))
        k.s_bfe_u32(s(sT2), s(sT1), 1 | (2 << 16)); k.s_lshl_b32(s(sT2), s(sT2), 10)
        k.s_lshr_b32(s(sT3), s(sT1), 3); k.s_lshl_b32(s(sT3), s(sT3), 9); k.s_add_u32(s(sT2), s(sT2), s(sT3))
        k.s_and_b32(s(sT3), s(sT1), 1); k.s_lshl_b32(s(sT3), s(sT3), 3); k.s_add_u32(s(sT2), s(sT2), s(sT3))
        k.s_add_u32(s(sT2), s(sT2), 28672)
        k.v_lshl_add_u32(v(vSST), v(n), 4, s(sT2))
        k.v_and_b32(v(56), 15, v(vLANE)); k.v_mul_u32_u24(v(56), 7, v(56)); k.v_add_u32(v(56), 6, v(56))
        k.v_lshrrev_b32(v(55), 1, v(56)); k.v_lshlrev_b32(v(55), 9, v(55))
        k.v_and_b32(v(56), 1, v(56)); k.v_lshl_add_u32(v(55), v(56), 3, v(55))
        k.v_lshrrev_b32(v(56), 4, v(vLANE)); k.v_lshl_add_u32(v(55), v(56), 7, v(55))
        k.v_add_u32(v(vSLD), 112, v(55))
        k.s_lshl_b32(s(sT1), s(sTT), 5)
        k.v_add_u32(v(56), s(sT1), v(n)); k.v_mul_u32_u24(v(56), 896, v(56))
        k.s_mul_i32(s(sT1), s(sCG), 224); k.s_mul_i32(s(sT2), s(sW), 56); k.s_add_u32(s(sT1), s(sT1), s(sT2))
        k.v_lshl_add_u32(v(56), v(hf), 3, v(56))
        k.v_add_u32(v(vOUT), s(sT1), v(56))
        k.v_cmp_eq_u32('vcc', 0, v(hf))
        k.v_mov_b32(v(56), 1.0); k.v_mov_b32(v(55), f32(BIGF))
        k.v_cndmask_b32(v(vHFM), 0, v(56), 'vcc')
        k.v_mov_b32(v(56), 0)
        k.v_cndmask_b32(v(vBIG), v(55), v(56), 'vcc')
        k.v_lshlrev_b32(v(56), 2, v(hf)); k.v_sub_u32(v(vII), v(n), v(56))
        k.v_cmp_eq_u32(s(sM28, 2), 28, v(n))
        k.v_cmp_le_u32(s(sP0, 2), 28, v(n))

    def bg_wpk(self, typ, lo, hi):
        k = self.k
        for i in range(hi - lo):
            def f(i=i):
                k.s_bitcmp1_b32(s(sR), 0)
                k.s_cselect_b32(s(sB0), hi-1-i, lo+i)
                k.s_lshl_b32(s(sB0), s(sB0), 12)
                k.s_add_u32('m0', s(sLDSW), s(sB0))
                k.s_add_u32(s(sB0), s(sB0), s(sWPKH))
                k.s_add_u32(s(sB0), s(sB0), WPK[typ])
                k.buffer_load_dwordx4(v(vL16), s(S_WS, 4), s(sB0), m='offen sc1 lds')
            self.bg.append(f)

    def bg_wo(self, typ, q0=0, q1=4):
        k = self.k
        for i in range(q0, q1):
            for f_ in range(8):
                def f(i=i, f_=f_):
                    if f_ == 0 or f_ == 4:
                        k.s_add_u32(s(sB1), s(sW), i); k.s_and_b32(s(sB1), s(sB1), 3); k.s_lshl_b32(s(sB1), s(sB1), 13)
                        k.s_add_u32(s(sB1), s(sB1), s(sOPKC)); k.s_add_u32(s(sB1), s(sB1), OPK + typ*524288 + f_*1024)
                    k.buffer_load_dwordx4(a(typ*128 + i*32 + f_*4, 4), v(vL16), s(S_WS, 4), s(sB1), m=f'offen offset:{(f_ & 3)*1024} sc1')
                    self.vtag('bg')
                f.wo = True
                self.bg.append(f)

    def touch(self, base, share, ninstr, w0=0):
        k = self.k
        k.s_mul_i32(s(sB0), s(sSLOT), share); k.s_add_u32(s(sB0), s(sB0), base - w0*ninstr*8192)
        k.s_mul_i32(s(sB1), s(sW), ninstr*8192); k.s_add_u32(s(sB0), s(sB0), s(sB1))
        k.v_lshlrev_b32(v(59), 7, v(vLANE))
        for i in range(ninstr):
            k.buffer_load_dword(a(255), v(59), s(S_WS, 4), s(sB0), m='offen sc1')
            if i + 1 < ninstr: k.s_add_u32(s(sB0), s(sB0), 8192)

    def touch_half(self, base, share):
        k = self.k
        k.s_mul_i32(s(sB0), s(sSLOT), share); k.s_add_u32(s(sB0), s(sB0), base)
        k.s_lshl_b32(s(sB1), s(sW), 12); k.s_add_u32(s(sB0), s(sB0), s(sB1))
        k.v_lshlrev_b32(v(59), 6, v(vLANE))
        k.buffer_load_dword(a(255), v(59), s(S_WS, 4), s(sB0), m='offen sc1')

    def colsum_part(self, lcs, segs, raw, sreg=sT1, base=64):
        k = self.k
        ones = 57
        k.v_mov_b32(v(ones), '0x3f803f80')
        k.v_add_u32(v(58), s(sLDSW), v(vWRD0 if raw else vL16)); k.v_add_u32(v(59), s(sLDSW), v(vWRD1 if raw else vWQ))
        k.s_mul_i32(s(sreg), s(sW), 768); k.s_add_u32(s(sreg), s(sreg), lcs)
        k.v_lshl_add_u32(v(55), v(vLANE), 2, s(sreg))
        for g in segs:
            ab, off = ((59, 0), (58, L_WK), (58, L_WV))[g]
            for st in range(7):
                if raw:
                    for j in range(2):
                        k.ds_read_b64_tr_b16(v(base + st*4 + 2*j, 2), v(ab), m=f'offset:{off + st*4096 + j*256}')
                else:
                    k.ds_read_b128(v(base + st*4, 4), v(ab), m=f'offset:{off + st*4096}')
            k.v_mov_b32(v(61), 0)
            k.s_waitcnt('lgkmcnt(0)')
            for i in range(28):
                k.v_dot2_f32_bf16(v(61), v(base+i), v(ones), v(61))
            k.ds_write_b32(v(55), v(61), m=f'offset:{g*256}')

    def colsum_fin(self, lcs, typ, segs, base=64, defer=False):
        k = self.k
        k.v_lshlrev_b32(v(58), 2, v(vLANE))
        k.v_add_u32(v(58), lcs, v(58))
        for g in segs:
            for ww in range(4):
                k.ds_read_b32(v(base + g*4 + ww), v(58), m=f'offset:{ww*768 + g*256}')
        ops = []
        for g in segs:
            b = base + g*4
            ops += [lambda b=b: k.v_add_f32(v(b), v(b), v(b+1)), lambda b=b: k.v_add_f32(v(b+2), v(b+2), v(b+3)),
                    lambda b=b: k.v_add_f32(v(b), v(b), v(b+2)), lambda b=b: k.v_mov_b32(v(b+1), v(b)),
                    lambda b=b: k.v_permlane32_swap_b32(v(b), v(b+1)), lambda b=b: k.v_add_f32(v(b), v(b), v(b+1)),
                    lambda b=b: k.v_mul_f32(v(b), '-'+v(b), v(vHFM), m='') if False else k.v_mul_f32(v(b), v(b), v(vHFM)),
                    lambda b=b: k.v_sub_f32(v(b), 0, v(b)), lambda b=b: self.rbf(b+1, b),
                    lambda b=b: k.v_sub_f32(v(b+2), v(b), v(b+1)),
                    lambda b=b, g=g: k.v_cvt_pk_bf16_f32(v(vCS + 3*typ + g), v(b+1), v(b+2))]
        if defer:
            self.ltag('cs', 4*len(segs))
            return ops
        k.s_waitcnt('lgkmcnt(0)')
        for f in ops: f()

    def stats_finish(self, s1, s2):
        k = self.k
        t = 58
        self.xhalf('v_add_f32', s1, t); self.xhalf('v_add_f32', s2, t)
        k.v_mul_f32(v(s1), f32(1.0/448), v(s1))
        k.v_mul_f32(v(s2), f32(1.0/448), v(s2))
        k.v_fma_f32(v(s2), '-'+v(s1), v(s1), v(s2))
        k.v_max_f32(v(s2), 0, v(s2))
        k.v_cvt_pk_bf16_f32(v(vMB), v(s1), v(s1))
        self.rbf(s2, s2)
        k.v_add_f32(v(s2), f32(1e-5), v(s2))
        self.rbf(s2, s2)
        k.v_sqrt_f32(v(s2), v(s2))
        self.rbf(s2, s2)
        k.v_rcp_f32(v(vRINV), v(s2))
        k.ds_write_b32(v(vRVW), v(vRINV))

    def mean_steps(self, typ):
        k = self.k
        xm, wk, wv = 112, 116, 120
        k.v_mov_b32(v(xm), v(vMB)); k.v_mov_b32(v(wk), v(vCS+3*typ+1)); k.v_mov_b32(v(wv), v(vCS+3*typ+2))
        for i in range(1, 4):
            k.v_mov_b32(v(xm+i), 0); k.v_mov_b32(v(wk+i), 0); k.v_mov_b32(v(wv+i), 0)
        self.mfma(vAK, v(wk, 4), v(xm, 4), v(vAK, 16))
        self.mfma(vAV, v(xm, 4), v(wv, 4), v(vAV, 16))
        for q in range(4):
            k.ds_read_b128(v(128+4*q, 4), v(vRVR), m=f'offset:{32*q}')

    def stats_ops(self, ST):
        k = self.k
        s1, s2, t = 60, 61, 58
        ops = [
            lambda: k.v_pk_add_f32(v(ST, 2), v(ST, 2), v(ST+2, 2)), lambda: k.v_pk_add_f32(v(ST+4, 2), v(ST+4, 2), v(ST+6, 2)),
            lambda: k.v_pk_add_f32(v(ST+8, 2), v(ST+8, 2), v(ST+10, 2)), lambda: k.v_pk_add_f32(v(ST+12, 2), v(ST+12, 2), v(ST+14, 2)),
            lambda: k.v_pk_add_f32(v(ST, 2), v(ST, 2), v(ST+4, 2)), lambda: k.v_pk_add_f32(v(ST+8, 2), v(ST+8, 2), v(ST+12, 2)),
            lambda: k.v_pk_add_f32(v(s1, 2), v(ST, 2), v(ST+8, 2)),
            lambda: k.v_mov_b32(v(t), v(s1)), lambda: k.v_mov_b32(v(t+1), v(s2)),
            lambda: k.v_permlane32_swap_b32(v(s1), v(t)), lambda: k.v_permlane32_swap_b32(v(s2), v(t+1)),
            lambda: k.v_add_f32(v(s1), v(s1), v(t)), lambda: k.v_add_f32(v(s2), v(s2), v(t+1)),
            lambda: k.v_mul_f32(v(s1), f32(1.0/448), v(s1)), lambda: k.v_mul_f32(v(s2), f32(1.0/448), v(s2)),
            lambda: k.v_fma_f32(v(s2), '-'+v(s1), v(s1), v(s2)),
            lambda: k.v_max_f32(v(s2), 0, v(s2)),
            lambda: k.v_cvt_pk_bf16_f32(v(vMB), v(s1), v(s1)),
            lambda: self.rbf(s2, s2),
            lambda: k.v_add_f32(v(s2), f32(1e-5), v(s2)),
            lambda: self.rbf(s2, s2),
            lambda: k.v_sqrt_f32(v(s2), v(s2)),
            lambda: self.rbf(s2, s2),
            lambda: k.v_rcp_f32(v(vRINV), v(s2)),
        ]
        return ops

    def load_gemm_kv(self, L):
        k = self.k
        typ = L & 1
        assert not self.bg
        ST = 96
        CH = 63
        SPOS = 18
        k.s_add_u32(s(sT1), s(sXT), XB[L-1])
        def pre():
            self.ws_ld(60, vSLD, sT1, 0, n=2)
        self.poll(pre, (60, 61, 61), 1 << (4*L))
        self.stamp(f'L{L} x seen')
        AH = 10
        seq = []
        for st in range(28):
            if st == SPOS: seq += [('st', ST+4*i, 28672 + 1024*i) for i in range(4)]
            seq.append((f'x{st}', vXF+4*st, 1024*st))
        def ld(i):
            tag, reg, off = seq[i]
            self.ws_ld(reg, vL16, sT1, off); self.vtag(tag)
        if L == 1: AH = 22
        if L <= 2:
            self.nohi(); self.vq = []
            if L == 1:
                for i in range(8): ld(i)
                self.colsum_part(L_CS1, (1,), raw=False, sreg=sT2)
                for i in range(8, 15): ld(i)
                self.colsum_part(L_CS1, (2,), raw=False, sreg=sT2)
                for i in range(15, AH): ld(i)
                k.s_waitcnt('lgkmcnt(0)')
            else:
                for i in range(AH): ld(i)
            k.s_barrier()
            if L == 1: self.colsum_fin(L_CS1, 1, (1, 2))
        k.s_mov_b32(s(sTRY), 0)
        lg, lg2, lok = k.newlabel('Lg'), k.newlabel('Lg'), k.newlabel('Lgok')
        D = 3
        def rd(st):
            b = vWF + (st % 4)*8
            k.ds_read_b128(v(b, 4), v(vL16), m=f'offset:{L_WK + st*1024}')
            k.ds_read_b128(v(b+4, 4), v(vL16), m=f'offset:{L_WV + st*1024}')
            self.ltag(f'w{st}', 2)
        if L <= 2: k.s_branch(lg2)
        k.label(lg)
        self.nohi(); self.vq = []
        for i in range(AH): ld(i)
        k.label(lg2)
        self.nohi()
        nxt = AH
        self.lq = []
        for st in range(D): rd(st)
        k.v_mov_b32(v(CH), 0)
        fill = []
        for st in range(28):
            self.vwait(f'x{st}')
            self.lwait(f'w{st}')
            b = vWF + (st % 4)*8
            xr = vXF + 4*st
            x = v(xr, 4)
            self.mfma(vAK, v(b, 4), x, v(vAK, 16) if st else 0)
            k.v_max3_u32(v(CH), v(xr), v(xr+1), v(CH)); k.v_max3_u32(v(CH), v(xr+2), v(xr+3), v(CH))
            for _ in range(2):
                if fill: fill.pop(0)()
            self.mfma(vAV, x, v(b+4, 4), v(vAV, 16) if st else 0)
            if st + D < 28: rd(st + D)
            for _ in range(2 if st < 8 else 1):
                if nxt < len(seq): ld(nxt); nxt += 1
            for _ in range(3):
                if fill: fill.pop(0)()
            if st == SPOS:
                fill += [lambda i=i: k.v_max3_u32(v(CH), v(ST+2*i), v(ST+2*i+1), v(CH)) for i in range(8)] + self.stats_ops(ST)
        while fill: fill.pop(0)()
        k.ds_write_b32(v(vRVW), v(vRINV))
        k.v_cmp_eq_u32('vcc', -1, v(CH))
        k.s_cmp_eq_u64('vcc', 0)
        k.s_cbranch_scc1(lok)
        k.s_add_u32(s(sTRY), s(sTRY), 1)
        if self.ts: k.s_add_u32(s(sERR), s(sERR), 1 << 20)
        k.s_cmp_lt_u32(s(sTRY), MAXTRY//8)
        k.s_cbranch_scc1(lg)
        k.s_or_b32(s(sERR), s(sERR), 8 << (4*L))
        k.s_waitcnt('vmcnt(0)')
        k.label(lok)
        self.vq = []; self.lq = []
        self.mean_steps(typ)

    def gemm_q(self, typ, raw, every=2):
        k = self.k
        D = 6
        per = 2 if raw else 1
        def rd(st):
            b = vWF + (st % 8)*4
            if raw:
                for j in range(2):
                    k.ds_read_b64_tr_b16(v(b + 2*j, 2), v(vWRD1), m=f'offset:{st*1024 + j*256}')
            else:
                k.ds_read_b128(v(b, 4), v(vWQ), m=f'offset:{st*1024}')
        k.s_waitcnt('lgkmcnt(0)')
        for st in range(D): rd(st)
        for st in range(28):
            rem = min(D-1, 27-st)
            k.s_waitcnt(f'lgkmcnt({per*rem})')
            b = vWF + (st % 8)*4
            self.mfma(vAQ, v(b, 4), v(vXF+4*st, 4), v(vAQ, 16) if st else 0)
            if st + D < 28: rd(st + D)
            if st % every == every - 1: self.tick()
        xm, wm = 112, 116
        k.v_mov_b32(v(xm), v(vMB)); k.v_mov_b32(v(wm), v(vCS+3*typ))
        for i in range(1, 4):
            k.v_mov_b32(v(xm+i), 0); k.v_mov_b32(v(wm+i), 0)
        self.mfma(vAQ, v(wm, 4), v(xm, 4), v(vAQ, 16))

    def scale_pack(self, acc, mul_lo, mul_hi=None):
        k = self.k
        for i in range(8):
            mreg = mul_hi if (mul_hi is not None and i >= 6) else mul_lo
            assert mreg % 2 == 0
            k.v_pk_mul_f32(v(acc+2*i, 2), v(acc+2*i, 2), v(mreg, 2), m='op_sel_hi:[1,0]')
        for i in range(8):
            k.v_cvt_pk_bf16_f32(v(acc+i), v(acc+2*i), v(acc+2*i+1))

    def epi_v(self):
        k = self.k
        rv = 128
        k.s_waitcnt('lgkmcnt(0)')
        for i in range(8):
            k.v_pk_mul_f32(v(vAV+2*i, 2), v(vAV+2*i, 2), v(rv+2*i, 2))
        for i in range(8):
            k.v_cvt_pk_bf16_f32(v(vAV+i), v(vAV+2*i), v(vAV+2*i+1))
        k.s_mov_b64('exec', s(sM28, 2))
        for i in range(8): k.v_mov_b32(v(vAV+i), '0x3f803f80')
        k.s_mov_b64('exec', -1)

    def sanitize(self, base, n):
        for i in range(n):
            self.k.v_min_u32(v(base+i), -2, v(base+i))

    def feature_mfma(self, frag, P):
        self.mfma(P, v(vWPHI, 4), v(frag, 4), 0)
        self.mfma(P, v(vWPHI+4, 4), v(frag+4, 4), v(P, 16))

    def feature(self, P, E, every=1, n=1):
        k = self.k
        cnt = [0]
        def tk():
            cnt[0] += 1
            if cnt[0] % every == 0: self.tick(n)
        mx, mn, t0, t1 = 58, 60, 62, 63
        c = 57
        k.v_mov_b32(v(c), f32(LOG2E))
        k.v_max3_f32(v(mx), v(P), v(P+1), v(P+2)); k.v_min3_f32(v(mn), v(P), v(P+1), v(P+2))
        for i in range(3, 11, 2):
            k.v_max3_f32(v(mx), v(P+i), v(P+i+1), v(mx)); k.v_min3_f32(v(mn), v(P+i), v(P+i+1), v(mn))
        k.v_max3_f32(v(t0), v(P+12), v(P+13), v(P+14)); k.v_min3_f32(v(t1), v(P+12), v(P+13), v(P+14))
        k.v_max_f32(v(t0), v(t0), v(P+15)); k.v_min_f32(v(t1), v(t1), v(P+15))
        k.v_sub_f32(v(t0), v(t0), v(vBIG)); k.v_add_f32(v(t1), v(t1), v(vBIG))
        k.v_max3_f32(v(mx), v(P+11), v(t0), v(mx)); k.v_min3_f32(v(mn), v(P+11), v(t1), v(mn))
        tk()
        k.v_mov_b32(v(t0), v(mx)); k.v_mov_b32(v(t1), v(mn))
        k.v_permlane32_swap_b32(v(mx), v(t0)); k.v_permlane32_swap_b32(v(mn), v(t1))
        k.v_max_f32(v(mx), v(mx), v(t0)); k.v_min_f32(v(mn), v(mn), v(t1))
        k.v_mul_f32(v(mx), v(c), v(mx)); k.v_mul_f32(v(mn), v(c), v(mn))
        k.v_add_f32(v(mx+1), v(mx), v(vBIG)); k.v_sub_f32(v(mn+1), v(mn), v(vBIG))
        for i in range(16):
            o = 1 if i >= 12 else 0
            k.v_fma_f32(v(E+i), '-'+v(P+i), v(c), v(mn+o))
            k.v_fma_f32(v(P+i), v(P+i), v(c), '-'+v(mx+o))
            if i % 8 == 7: tk()
        for i in range(16):
            k.v_exp_f32(v(E+i), v(E+i)); k.v_exp_f32(v(P+i), v(P+i))
            if i % 4 == 3: tk()
        for X, sm in ((P, mx), (E, mn)):
            k.v_pk_add_f32(v(sm, 2), v(X, 2), v(X+2, 2))
            for i in range(4, 16, 2): k.v_pk_add_f32(v(sm, 2), v(sm, 2), v(X+i, 2))
            k.v_add_f32(v(sm), v(sm), v(sm+1))
        tk()
        k.v_mov_b32(v(t0), v(mx)); k.v_mov_b32(v(t1), v(mn))
        k.v_permlane32_swap_b32(v(mx), v(t0)); k.v_permlane32_swap_b32(v(mn), v(t1))
        k.v_add_f32(v(mx), v(mx), v(t0)); k.v_add_f32(v(mn), v(mn), v(t1))
        k.v_rcp_f32(v(mx), v(mx)); k.v_rcp_f32(v(mn), v(mn))
        self.scale_pack(P, mx); tk(); self.scale_pack(E, mn); tk()

    def resets(self, L):
        k = self.k
        if L >= 3: return
        z = 124
        for i in range(4): k.v_mov_b32(v(z+i), -1)
        k.s_add_u32(s(sT1), s(sOT_P), XB[L])
        k.s_add_u32(s(sT2), s(sOT_P), OB[L+1])
        def st(fl):
            self.ws_st(z, vL16, sT1, 0, flags=fl); self.ws_st(z, vL16, sT1, 1024, flags=fl)
            self.ws_st(z, vL16, sT2, 0, flags=fl); self.ws_st(z, vL16, sT2, 1024, flags=fl)
        self.local_stores(st)

    def bg_reset_kvh3(self):
        k = self.k
        z = 108
        def f0():
            for i in range(4): k.v_mov_b32(v(z+i), -1)
        for i in range(4):
            def f(i=i):
                k.s_add_u32(s(sB0), s(sKVH_P), KVH[3])
                k.buffer_store_dwordx4(v(z, 4), v(vL16), s(S_WS, 4), s(sB0), m=f'offen offset:{1024*i} sc1')
            self.bg.append(f)
        return f0

    def o_tail(self, L, acc, eps):
        k = self.k
        d0, d1 = 58, 60
        k.v_mov_b32(v(d0), v(acc+12)); k.v_mov_b32(v(d1), v(acc+12))
        k.s_add_u32(s(sT1), s(sOT_P), OB[L])
        k.v_permlane32_swap_b32(v(d0), v(d1))
        if eps: k.v_add_f32(v(d1), f32(1e-6), v(d1))
        k.v_rcp_f32(v(d1), v(d1))
        self.scale_pack(acc, d1)
        self.sanitize(acc, 8)
        def st(fl):
            self.ws_st(acc, vL16, sT1, 0, flags=fl); self.ws_st(acc+4, vL16, sT1, 1024, flags=fl)
        self.local_stores(st)

    def layer_A(self, L):
        k = self.k
        self.stamp(f'L{L} kv gemm')
        self.scale_pack(vAK, vRINV)
        P, E = 112, 128
        self.feature_mfma(vAK, P)
        self.tick(2)
        self.epi_v()
        self.tick(2)
        k.s_barrier()
        if L != 0: self.bg_wpk(1, 0, 14)
        k.ds_write_b128(v(vVOW), v(vAV, 4)); k.ds_write_b128(v(vVOW), v(vAV+4, 4), m='offset:1024')
        self.feature(P, E, every=(1 if L == 0 else 2), n=(2 if L == 0 else 1))
        for sg, X in ((0, P), (1, E)):
            for q in range(4):
                k.ds_write_b64(v(vPHW), v(X+2*q, 2), m=f'offset:{sg*PHI_SIGN + q*16}')
        if L == 0:
            self.vwait('res')
            self.colsum_part(L_CS0, (0,), raw=False, sreg=sT3)
        k.s_waitcnt('lgkmcnt(0)')
        k.s_barrier()
        self.stamp(f'L{L} phi_k')
        if L == 0: self.flag_post(1, 92)
        lq = k.newlabel('Lq')
        k.s_cmp_ge_u32(s(sW), 2); k.s_cbranch_scc1(lq)
        A0, ACC = 112, 96
        B0 = [64, 68, 72, 76, 80, 84, 88, 60]
        k.v_add_u32(v(55), L_VOWN, v(vL16))
        def rdkv(idx):
            u, j = idx >> 1, idx & 1
            for jj in range(2):
                k.ds_read_b64_tr_b16(v(A0+4*idx+2*jj, 2), v(vPHR), m=f'offset:{(u*8+4*j+2*jj)*264}')
            k.ds_read_b128(v(B0[idx], 4), v(55), m=f'offset:{u*2048+j*1024}')
        for idx in range(5): rdkv(idx)
        k.s_add_u32(s(sT1), s(sKVP_P), KVP[L])
        for idx in range(8):
            k.s_waitcnt(f'lgkmcnt({3*min(4, 7-idx)})')
            self.mfma(ACC, v(A0+4*idx, 4), v(B0[idx], 4), v(ACC, 16) if idx else 0)
            if idx + 5 < 8: rdkv(idx + 5)
        for i in range(8): k.v_cvt_pk_bf16_f32(v(64+i), v(ACC+2*i), v(ACC+2*i+1))
        self.sanitize(64, 8)
        self.nohi()
        self.ws_st(64, vL16, sT1, 0, flags='sc1'); self.ws_st(68, vL16, sT1, 1024, flags='sc1')
        k.label(lq)
        self.stamp(f'L{L} kvp pub')
        if L == 0:
            self.colsum_fin(L_CS0, 0, (0,), base=72)
            for i in range(8):
                k.v_lshlrev_b32(v(vXRES+2*i), 16, v(vXRES+8+i)); k.v_and_b32(v(vXRES+2*i+1), '0xffff0000', v(vXRES+8+i))
            k.v_add_u32(v(vRVW), L_RINV - L_RINV0, v(vRVW)); k.v_add_u32(v(vRVR), L_RINV - L_RINV0, v(vRVR))
            for i in range(4): k.v_mov_b32(v(84+i), -1)
            def rs(sb, add, off):
                def f():
                    k.s_add_u32(s(sB0), s(sb), add)
                    k.buffer_store_dwordx4(v(84, 4), v(vL16), s(S_WS, 4), s(sB0), m=f'offen offset:{off} sc1')
                return f
            self.bg = [rs(97, KVP[2], 0)] + [rs(sKVH_P, KVH[1], 1024*i) for i in range(4)] + self.bg
        self.resets(L)
        self.gemm_q(0, raw=False, every=(2 if L == 0 else 3))
        if L != 0: self.drain()
        if L == 0:
            self.vq = []
            self.flag_issue(1, 160)
        self.scale_pack(vAQ, vRINV)
        PQ, EQ = 64, 80
        self.feature_mfma(vAQ, PQ)
        self.stamp(f'L{L} q gemm')
        if L == 0:
            self.flag_wait(1, 160)
            self.stamp('flags2')
        G = 144
        k.s_lshl_b32(s(sT1), s(sH), 16); k.s_lshl_b32(s(sT2), s(sOM), 6); k.s_add_u32(s(sT1), s(sT1), s(sT2))
        k.s_add_u32(s(sT1), s(sT1), KVP[L])
        k.v_lshrrev_b32(v(59), 2, v(vLANE)); k.v_lshlrev_b32(v(59), 12, v(59))
        k.v_and_b32(v(58), 3, v(vLANE)); k.v_lshl_add_u32(v(59), v(58), 4, v(59))
        k.v_lshrrev_b32(v(60), 4, v(vLANE)); k.v_lshlrev_b32(v(60), 2, v(60)); k.v_lshl_add_u32(v(G+8), v(58), 4, v(60))
        k.v_mov_b32(v(G+10), '0x3f80'); k.v_mov_b32(v(G+11), 1.0)
        k.v_mov_b32(v(G+4), 0); k.v_mov_b32(v(G+5), 0)
        self.poll(lambda: self.ws_ld(G, 59, sT1, 0), range(G, G+4), 2 << (4*L), sleep=1)
        self.stamp(f'L{L} kvp got')
        k.v_permlane32_swap_b32(v(G), v(G+2)); k.v_permlane32_swap_b32(v(G+1), v(G+3))
        k.v_permlane16_swap_b32(v(G), v(G+1)); k.v_permlane16_swap_b32(v(G+2), v(G+3))
        for i in range(4):
            k.v_dot2_f32_bf16(v(G+4), v(G+i), v(G+10), v(G+4)); k.v_dot2_f32_bf16(v(G+5), v(G+i), v(G+11), v(G+5))
        k.s_lshl_b32(s(sT1), s(sH), 12); k.s_add_u32(s(sT1), s(sT1), KVR[L]); k.s_add_u32(s(sT2), s(sT2), s(sT1))
        for rot in (4, 8):
            for i in (4, 5):
                k.v_add_f32_dpp(v(G+i), v(G+i), v(G+i), m=f'row_ror:{rot} row_mask:0xf bank_mask:0xf')
        k.v_cvt_pk_bf16_f32(v(G+4), v(G+4), v(G+5))
        self.sanitize(G+4, 1)
        k.s_mov_b32('exec_lo', 0x000f000f); k.s_mov_b32('exec_hi', 0x000f000f)
        k.buffer_store_dword(v(G+4), v(G+8), s(S_WS, 4), s(sT2), m='offen sc1')
        k.s_mov_b64('exec', -1)
        self.stamp(f'L{L} kvr pub')
        k.s_barrier()
        if L == 0:
            self.bg_wpk(1, 0, 14)
            self.tick(2)
        self.feature(PQ, EQ, every=2)
        self.stamp(f'L{L} phi_q')
        def issue():
            for i in range(4): self.ws_ld(128+4*i, vL16, sT1, 1024*i)
        self.poll(issue, range(128, 144), 2 << (4*L), sleep=1)
        self.stamp(f'L{L} kvr got')
        ACC = 96
        for i, B in enumerate((PQ, PQ+4, EQ, EQ+4)):
            self.mfma(ACC, v(128+4*i, 4), v(B, 4), v(ACC, 16) if i else 0)
        self.o_tail(L, ACC, True)
        self.stamp(f'L{L} o pub')

    def layer_B(self, L):
        k = self.k
        self.stamp(f'L{L} kv gemm')
        self.nohi()
        k.s_add_u32(s(sT1), s(sKVH_P), KVH[L])
        self.scale_pack(vAK, vRINV)
        self.sanitize(vAK, 8)
        for i, rg in enumerate((vAK, vAK+4)): self.ws_st(rg, vL16, sT1, 1024*i, flags='sc1')
        self.epi_v()
        self.sanitize(vAV, 8)
        for i, rg in enumerate((vAV, vAV+4)): self.ws_st(rg, vL16, sT1, 2048+1024*i, flags='sc1')
        self.stamp(f'L{L} kvh pub')
        self.resets(L)
        if L == 1:
            self.colsum_part(L_CS0, (0,), raw=False, sreg=sT2, base=112)
            k.s_waitcnt('lgkmcnt(0)')
        k.s_barrier()
        if L == 1: self.colsum_fin(L_CS0, 1, (0,), base=112)
        for i, rg in enumerate((vAK, vAK+4, vAV, vAV+4)):
            k.ds_write_b128(v(vKVL), v(rg, 4), m=f'offset:{8*4096 + 1024*i}')
        if L == 1:
            self.bg_wo(1, 0, 1)
        self.gemm_q(1, raw=False)
        self.drain()
        G = 144
        lz, lw = k.newlabel('Lz'), k.newlabel('Lw')
        k.s_lshl_b32(s(sT1), s(sR), 1); k.s_add_u32(s(sT1), s(sT1), s(sW))
        k.s_add_u32(s(sT2), s(sKVH_C), KVH[L])
        k.s_cmp_lt_u32(s(sT1), 4); k.s_cselect_b32(s(sT1), 0x7000000, s(sT2))
        def issue():
            for i in range(8): self.ws_ld(G+4*i, vL16, sT1, 1024*i)
        self.nohi(); issue(); self.nohi()
        k.v_mul_f32(v(58), f32(28**-0.5 * LOG2E), v(vRINV))
        k.v_mul_f32(v(60), v(58), v(vHFM))
        self.scale_pack(vAQ, 58, 60)
        NEG = 57
        M = 88
        S8 = vS + 128
        k.v_mov_b32(v(NEG), f32(-BIGF))
        k.v_mov_b32(v(60), 0xffff); k.v_mov_b32(v(61), '0xffff0000')
        for r in range(0, 16, 2):
            k.v_cmp_le_i32(s(sC0, 2), (r & 3) + 8*(r >> 2), v(vII))
            k.v_cmp_le_i32(s(sP0, 2), ((r+1) & 3) + 8*((r+1) >> 2), v(vII))
            k.v_cndmask_b32(v(S8+r), v(NEG), 0, s(sC0, 2)); k.v_cndmask_b32(v(S8+r+1), v(NEG), 0, s(sP0, 2))
            k.v_cndmask_b32(v(vS+r), 0, v(NEG), s(sC0, 2)); k.v_cndmask_b32(v(vS+r+1), 0, v(NEG), s(sP0, 2))
            k.v_cndmask_b32(v(62), 0, v(60), s(sC0, 2)); k.v_cndmask_b32(v(63), 0, v(61), s(sP0, 2))
            k.v_or_b32(v(M + r//2), v(62), v(63))
        self.mfma(S8, v(vAK, 4), v(vAQ, 4), v(S8, 16))
        self.mfma(S8, v(vAK+4, 4), v(vAQ+4, 4), v(S8, 16))
        mx = 58
        k.v_mov_b32(v(mx), f32(-BIGF)); k.v_mov_b32(v(mx+1), f32(-BIGF))
        self.stamp(f'L{L} q')
        self.poll(issue, range(G, G+32), 2 << (4*L), first_wait=0, sleep=2)
        for i in range(8): k.ds_write_b128(v(vHW), v(G+4*i, 4), m=f'offset:{1024*i}')
        k.s_waitcnt('lgkmcnt(0)')
        k.s_barrier()
        self.stamp(f'L{L} halo got')
        if L == 1:
            self.bg_wpk(0, 0, 21)
            late = self.bg[8:]; self.bg = self.bg[:8]
            self.bg_wo(1, 1, 4)
            self.bg += late
        KB = 64
        def kb(t): return KB + (t % 3)*8
        def rdk(t):
            k.ds_read_b128(v(kb(t), 4), v(vKVL), m=f'offset:{t*4096}')
            k.ds_read_b128(v(kb(t)+4, 4), v(vKVL), m=f'offset:{t*4096+1024}')
            self.ltag(f'k{t}', 2)
        def rdv(t):
            k.ds_read_b128(v(kb(t), 4), v(vKVL), m=f'offset:{t*4096+2048}')
            k.ds_read_b128(v(kb(t)+4, 4), v(vKVL), m=f'offset:{t*4096+3072}')
            self.ltag(f'v{t}', 2)
        def maxtile(S):
            return [lambda i=i: k.v_max3_f32(v(mx + ((i >> 1) & 1)), v(S+i), v(S+i+1), v(mx + ((i >> 1) & 1))) for i in range(0, 16, 2)]
        def merge():
            return [lambda r=r: k.v_max_f32(v(vS+r), v(vS+r), v(S8+r)) for r in range(16)]
        self.lq = []
        for t in range(3): rdk(t)
        lslow, ljoin = k.newlabel('Lsl'), k.newlabel('Ljn')
        k.s_cmp_lg_u32(s(sTMIN), 0); k.s_cbranch_scc1(lslow)
        lq0 = list(self.lq)
        def smfma(fast):
            for t in range(8):
                self.lwait(f'k{t}')
                self.mfma(vS+16*t, v(kb(t), 4), v(vAQ, 4), v(vS, 16) if t == 0 else 0)
                for _ in range(6):
                    if fast: fast.pop(0)()
                self.mfma(vS+16*t, v(kb(t)+4, 4), v(vAQ+4, 4), v(vS+16*t, 16))
                if t + 3 < 8: rdk(t + 3)
                if fast is not None:
                    for _ in range(5):
                        if fast: fast.pop(0)()
                    if t == 1: fast += merge() + maxtile(vS)
                    if t >= 2: fast += maxtile(vS + 16*(t-1))
        fast = []
        smfma(fast)
        for t in range(3): rdv(t)
        lq1 = list(self.lq)
        fast += maxtile(vS + 16*7)
        while fast: fast.pop(0)()
        k.label(ljoin)
        def cold():
            k.label(lslow)
            self.lq = list(lq0)
            smfma(None)
            for t in range(3): rdv(t)
            lf = k.newlabel('Lfix')
            for t in range(8):
                k.s_cmp_le_u32(s(sTMIN), t); k.s_cbranch_scc1(lf)
                for i in range(16): k.v_mov_b32(v(vS+16*t+i), v(NEG))
            k.label(lf)
            for f in merge(): f()
            for t in range(8):
                for f in maxtile(vS + 16*t): f()
            k.s_branch(ljoin)
        self.cold.append(cold)
        self.lq = lq1
        V8 = S8 + 8
        P8 = S8
        k.ds_read_b128(v(V8, 4), v(vKVL), m=f'offset:{8*4096+2048}')
        k.ds_read_b128(v(V8+4, 4), v(vKVL), m=f'offset:{8*4096+3072}')
        self.ltag('v8', 2)
        k.v_max_f32(v(mx), v(mx), v(mx+1))
        self.xhalf('v_max_f32', mx, 60)
        k.v_sub_f32(v(mx), 0, v(mx))
        ACC = 96
        pend = []
        nt = 4 if L == 1 else 2
        for t in range(8):
            S = vS + 16*t
            for i in range(8): k.v_pk_add_f32(v(S+2*i, 2), v(S+2*i, 2), v(mx, 2), m='op_sel_hi:[1,0]')
            for i in range(16):
                k.v_exp_f32(v(S+i), v(S+i))
                if i % 4 == 1 and pend: pend.pop(0)()
                if i % 4 == 3: self.tick()
            for i in range(8): k.v_cvt_pk_bf16_f32(v(S+i), v(S+2*i), v(S+2*i+1))
            if t == 0:
                for i in range(8):
                    k.v_and_b32(v(P8+i), v(S+i), v(M+i)); k.v_xor_b32(v(S+i), v(S+i), v(P8+i))
            def m1(t=t, S=S):
                self.lwait(f'v{t}')
                self.mfma(ACC, v(kb(t), 4), v(S, 4), v(ACC, 16) if t else 0)
            def m2(t=t, S=S):
                self.mfma(ACC, v(kb(t)+4, 4), v(S+4, 4), v(ACC, 16))
                if t + 3 < 8: rdv(t + 3)
            pend += [m1, m2]
            if t == 0:
                def m3():
                    self.lwait('v8')
                    self.mfma(ACC, v(V8, 4), v(P8, 4), v(ACC, 16))
                pend += [m3, lambda: self.mfma(ACC, v(V8+4, 4), v(P8+4, 4), v(ACC, 16))]
        while pend: pend.pop(0)()
        self.o_tail(L, ACC, False)
        self.stamp(f'L{L} o pub')

    def outproj(self, L):
        k = self.k
        typ = L & 1
        G = 144
        assert not any(getattr(f, 'wo', False) for f in self.bg)
        k.s_add_u32(s(sT1), s(sOT_C), OB[L])
        def issue():
            for i in range(8): self.ws_ld(G+4*i, vL16, sT1, 1024*i)
        self.poll(issue, range(G, G+32), 4 << (4*L))
        self.stamp(f'L{L} o got')
        for i in range(8): k.ds_write_b128(v(vGW), v(G+4*i, 4), m=f'offset:{1024*i}')
        if L == 0:
            self.touch_half(OPK + 524288, 16384)
            self.bg_wpk(1, 14, 21)
        if L == 2: self.bg_wpk(1, 14, 21)
        if L == 1 and self.nlayers > 3: self.bg_reset_kvh3()()
        for i in range(4):
            self.mfma(vXRES, a(typ*128+4*i, 4), v(G+4*i, 4), v(vXRES, 16))
        k.s_waitcnt('lgkmcnt(0)')
        k.s_barrier()
        def breg(f): return (64 if f < 8 else 176 - 32) + 4*f
        def rdo(f): k.ds_read_b128(v(breg(f), 4), v((vG1, vG2, vG3)[f >> 3]), m=f'offset:{1024*(f & 7)}')
        D = 12
        for i in range(4, 8):
            for f in range(3*(i-4), 3*(i-4)+3): rdo(f)
            self.mfma(vXRES, a(typ*128+4*i, 4), v(G+4*i, 4), v(vXRES, 16))
        for f in range(24):
            k.s_waitcnt(f'lgkmcnt({min(D-1, 23-f)})')
            self.mfma(vXRES, a(typ*128+32+4*f, 4), v(breg(f), 4), v(vXRES, 16))
            if f + D < 24: rdo(f + D)
            if f % 2 == 0: self.tick()
        PK = 112
        for i in range(8): k.v_cvt_pk_bf16_f32(v(PK+i), v(vXRES+2*i), v(vXRES+2*i+1))
        if L == self.nlayers - 1:
            for q in range(3):
                k.buffer_store_dwordx2(v(PK+2*q, 2), v(vOUT), s(S_OUT, 4), 0, m=f'offen offset:{16*q}')
            k.s_mov_b32('exec_hi', 0)
            k.buffer_store_dwordx2(v(PK+6, 2), v(vOUT), s(S_OUT, 4), 0, m='offen offset:48')
            k.s_mov_b32('exec_hi', -1)
            self.stamp(f'L{L} out')
            return
        self.sanitize(PK, 8)
        k.s_add_u32(s(sT1), s(sXT_P), XB[L])
        def st(fl):
            for q in range(3): self.ws_st(PK+2*q, vXST, sT1, 512*q, n=2, flags=fl)
            k.s_mov_b32('exec_hi', 0)
            self.ws_st(PK+6, vXST, sT1, 512*3, n=2, flags=fl)
            k.s_mov_b32('exec_hi', -1)
        self.local_stores(st)
        for i in range(8):
            k.v_lshlrev_b32(v(vXRES+2*i), 16, v(PK+i)); k.v_and_b32(v(vXRES+2*i+1), '0xffff0000', v(PK+i))
        s1, s2, t1, t2 = 120, 122, 124, 126
        X = vXRES
        k.v_pk_add_f32(v(s1, 2), v(X, 2), v(X+2, 2)); k.v_pk_mul_f32(v(s2, 2), v(X, 2), v(X, 2))
        k.v_pk_fma_f32(v(s2, 2), v(X+2, 2), v(X+2, 2), v(s2, 2))
        for i in range(4, 12, 2):
            k.v_pk_add_f32(v(s1, 2), v(s1, 2), v(X+i, 2)); k.v_pk_fma_f32(v(s2, 2), v(X+i, 2), v(X+i, 2), v(s2, 2))
        k.v_pk_add_f32(v(t1, 2), v(X+12, 2), v(X+14, 2)); k.v_pk_mul_f32(v(t2, 2), v(X+12, 2), v(X+12, 2))
        k.v_pk_fma_f32(v(t2, 2), v(X+14, 2), v(X+14, 2), v(t2, 2))
        k.v_add_f32(v(s1), v(s1), v(s1+1)); k.v_add_f32(v(s2), v(s2), v(s2+1))
        k.v_add_f32(v(t1), v(t1), v(t1+1)); k.v_add_f32(v(t2), v(t2), v(t2+1))
        k.s_mov_b32('exec_hi', 0)
        k.v_add_f32(v(s1), v(s1), v(t1)); k.v_add_f32(v(s2), v(s2), v(t2))
        k.s_mov_b32('exec_hi', -1)
        k.v_mov_b32(v(t1), v(s1)); k.v_mov_b32(v(t2), v(s2))
        k.v_permlane32_swap_b32(v(s1), v(t1)); k.v_permlane32_swap_b32(v(s2), v(t2))
        k.v_add_f32(v(s1), v(s1), v(t1)); k.v_add_f32(v(s1+1), v(s2), v(t2))
        self.sanitize(s1, 2)
        def st2(fl):
            k.s_mov_b32('exec_hi', 0)
            self.ws_st(s1, vSST, sT1, 0, n=2, flags=fl)
            k.s_mov_b32('exec_hi', -1)
        self.local_stores(st2)
        self.drain()
        self.stamp(f'L{L} x pub')

    def build(self):
        k = self.k
        self.prologue()
        for L in range(self.nlayers):
            if L > 0: self.load_gemm_kv(L)
            if L & 1: self.layer_B(L)
            else: self.layer_A(L)
            self.outproj(L)
        if self.ts:
            k.s_memrealtime(s(sTS, 2)); k.s_waitcnt('lgkmcnt(0)')
            k.v_writelane_b32(v(vNEGB), s(90), 59); k.v_writelane_b32(v(vNEGB), s(sTS), 60); k.v_writelane_b32(v(vNEGB), s(92), 61)
            k.v_writelane_b32(v(vNEGB), s(sERR), 63)
            k.v_writelane_b32(v(vNEGB), s(sMODE), 62)
            k.v_lshlrev_b32(v(60), 2, v(vLANE))
            k.buffer_store_dword(v(vNEGB), v(60), s(S_WS, 4), s(sTSO), m='offen')
        k.label('Lend')
        k.s_endpgm()
        while self.cold: self.cold.pop(0)()
        k.label('Lcode_end')
        body = k.finish()
        hdr = open('cdna_kernels/' + NAME + '.s.ref').read().split('; Override launch')[0]
        return hdr + f"""; Generated by gen/gen.py (persistent kernel, 256 workgroups x 4 waves).
; @launch grid=(256,1,1) block=(256,1,1) lds={LDS_BYTES}
.amdgcn_target "amdgcn-amd-amdhsa--gfx950"
.text
.globl {NAME}_kernel
.p2align 8
.type {NAME}_kernel,@function
{NAME}_kernel:
{body}.section .rodata,"a"
.p2align 6
.amdhsa_kernel {NAME}_kernel
  .amdhsa_next_free_vgpr 512
  .amdhsa_next_free_sgpr 102
  .amdhsa_accum_offset 256
  .amdhsa_group_segment_fixed_size 0
  .amdhsa_kernarg_size 80
  .amdhsa_user_sgpr_count 2
  .amdhsa_user_sgpr_kernarg_segment_ptr 1
  .amdhsa_system_sgpr_workgroup_id_x 1
.end_amdhsa_kernel
"""

if __name__ == '__main__':
    import argparse
    ap = argparse.ArgumentParser()
    ap.add_argument('-o', default='cdna_kernels/' + NAME + '.s')
    ap.add_argument('--ts', action='store_true')
    ap.add_argument('--slow', action='store_true')
    ap.add_argument('--noalias', action='store_true')
    ap.add_argument('--layers', type=int, default=4)
    args = ap.parse_args()
    g = Gen(ts=args.ts, force_slow=args.slow, nlayers=args.layers, alias=not args.noalias)
    src = g.build()
    open(args.o, 'w').write(src)
    if args.ts:
        open(args.o + '.tsnames', 'w').write('\n'.join(g.tsnames))
    print('instructions', g.k.nins, 'bytes of source', len(src))
```

```python
import re

_REG = re.compile(r'^(-?)(?:\|)?([vas])(?:(\d+)|\[(\d+):(\d+)\])(?:\|)?$')

def regs_of(op):
    if not isinstance(op, str):
        return set()
    op = op.strip()
    if op.startswith('abs(') or op.startswith('-abs('):
        op = op[op.index('(')+1:-1]
    m = _REG.match(op)
    if m:
        kind = m.group(2)
        if m.group(3) is not None:
            return {(kind, int(m.group(3)))}
        return {(kind, i) for i in range(int(m.group(4)), int(m.group(5))+1)}
    if op == 'vcc':
        return {('s', 106), ('s', 107)}
    if op == 'vcc_lo':
        return {('s', 106)}
    if op == 'vcc_hi':
        return {('s', 107)}
    if op == 'exec':
        return {('s', 126), ('s', 127)}
    if op == 'exec_lo':
        return {('s', 126)}
    if op == 'exec_hi':
        return {('s', 127)}
    if op == 'm0':
        return {('s', 124)}
    return set()

def v(i, n=1):
    return f'v{i}' if n == 1 else f'v[{i}:{i+n-1}]'
def a(i, n=1):
    return f'a{i}' if n == 1 else f'a[{i}:{i+n-1}]'
def s(i, n=1):
    return f's{i}' if n == 1 else f's[{i}:{i+n-1}]'

TRANS = ('v_exp_f32', 'v_log_f32', 'v_rcp_f32', 'v_rsq_f32', 'v_sqrt_f32', 'v_sin_f32', 'v_cos_f32', 'v_rcp_iflag_f32')

class Ins:
    __slots__ = ('op', 'ops', 'mods', 'cls', 'w', 'r', 'passes', 'srcc', 'srcab', 'text', 'states', 'sdata')
    def __init__(self, op, ops, mods):
        self.op, self.ops, self.mods = op, ops, mods
        self.passes = 0
        self.srcc = set(); self.srcab = set(); self.sdata = set()
        self.states = 1
        base = op
        for suf in ('_e32', '_e64', '_dpp', '_sdwa'):
            if base.endswith(suf):
                base = base[:-len(suf)]
        R = [regs_of(o) for o in ops]
        w = set(); r = set()
        if base.startswith('v_mfma'):
            self.cls = 'mfma'
            self.passes = 8 if '32x32' in base else 4
            w = R[0]; self.srcab = R[1] | R[2]; self.srcc = R[3]; r = R[1] | R[2] | R[3]
        elif base.startswith('v_'):
            self.cls = 'valu'
            if base in TRANS: self.cls = 'trans'
            if base.startswith('v_dot'): self.cls = 'dot'
            if base.startswith('v_permlane'):
                self.cls = 'perm'
                w = R[0] | R[1]; r = R[0] | R[1]
            elif base in ('v_readfirstlane_b32', 'v_readlane_b32'):
                self.cls = 'rdlane'
                w = R[0]; r = set().union(*R[1:])
            elif base in ('v_add_co_u32', 'v_sub_co_u32', 'v_addc_co_u32', 'v_subb_co_u32', 'v_div_scale_f32', 'v_mad_u64_u32'):
                w = R[0] | R[1]; r = set().union(*R[2:])
            elif base == 'v_nop':
                pass
            else:
                w = R[0]; r = set().union(*R[1:]) if len(R) > 1 else set()
                if base.startswith('v_fmac') or base.startswith('v_dot2c') or base.startswith('v_pk_fmac') or base == 'v_writelane_b32':
                    r |= R[0]
                if base.startswith('v_cmpx'):
                    w |= regs_of('exec')
                if base == 'v_cndmask_b32' and len(ops) == 3:
                    r |= regs_of('vcc')
            if 'dpp' in op or 'row_' in mods or 'quad_perm' in mods:
                self.cls = 'dpp'
        elif base.startswith('ds_'):
            self.cls = 'ds'
            if base.startswith('ds_read') or base.startswith('ds_bpermute') or base.startswith('ds_permute') or base.startswith('ds_swizzle') or 'rtn' in base:
                w = R[0]; r = set().union(*R[1:])
            else:
                r = set().union(*R)
        elif base.startswith('buffer_') or base.startswith('global_'):
            self.cls = 'vmem'
            islds = re.search(r'\blds\b', mods) is not None or '_lds_' in base
            if base in ('buffer_wbl2', 'buffer_inv'):
                pass
            elif islds:
                r = set().union(*R) | regs_of('m0')
                self.cls = 'dma'
            elif '_load' in base:
                w = R[0]; r = set().union(*R[1:])
                if 'd16' in base: r |= R[0]
            elif '_store' in base:
                r = set().union(*R)
                if base.endswith('x4') or base.endswith('x3'):
                    self.sdata = R[0] if base.startswith('buffer_') else R[1]
            elif '_atomic' in base:
                r = set().union(*R)
                if 'sc0' in mods: w = R[0]
        elif base.startswith('s_'):
            self.cls = 'salu'
            if base == 's_nop':
                self.states = int(ops[0]) + 1
            elif base.startswith('s_cmp') or base.startswith('s_cbranch') or base in ('s_branch', 's_waitcnt', 's_barrier', 's_endpgm', 's_setprio', 's_sleep', 's_bitcmp0_b32', 's_bitcmp1_b32', 's_setreg_b32'):
                r = set().union(*R) if R else set()
            else:
                w = R[0] if R else set(); r = set().union(*R[1:]) if len(R) > 1 else set()
                if 'saveexec' in base:
                    w |= regs_of('exec'); r |= regs_of('exec')
                if base.startswith('s_load') or base.startswith('s_memtime') or base.startswith('s_memrealtime') or base.startswith('s_buffer_load'):
                    self.cls = 'smem'
        else:
            raise ValueError('unknown op ' + op)
        self.w, self.r = w, r
        t = op + (' ' + ', '.join(str(o) for o in ops) if ops else '')
        if mods: t += ' ' + mods
        self.text = t

VALUISH = ('valu', 'trans', 'dot', 'perm', 'rdlane', 'dpp')

def need(p, c):
    n = 0
    pv = {x for x in p.w if x[0] in 'va'}
    ps = {x for x in p.w if x[0] == 's'}
    if p.cls == 'mfma':
        big = p.passes == 8
        if c.cls == 'mfma':
            if pv & c.srcab: n = max(n, 12 if big else 8)
            if pv & c.srcc:
                if not (pv == c.srcc and p.passes == c.passes): n = max(n, 10 if big else 6)
            elif pv & c.w: n = max(n, 12 if big else 8)
        elif c.cls in VALUISH:
            if pv & (c.r | c.w): n = max(n, 12 if big else 8)
            if p.srcc & c.w: n = max(n, 7 if big else 3)
        elif c.cls in ('ds', 'vmem', 'dma'):
            if pv & (c.r | c.w): n = max(n, 12 if big else 8)
            if p.srcc & c.w: n = max(n, 7 if big else 3)
    if p.cls in VALUISH:
        if c.cls == 'mfma' and pv & c.r: n = max(n, 2)
        if c.cls == 'mfma' and ps & regs_of('exec'): n = max(n, 4)
        if c.cls in ('vmem', 'dma') and ps & c.r: n = max(n, 5)
        if c.cls in VALUISH and ps & c.r: n = max(n, 4 if c.cls == 'rdlane' else 2)
        if c.cls == 'rdlane' and pv & c.r: n = max(n, 1)
        if c.cls in ('perm', 'dpp') and pv & c.r: n = max(n, 2)
        if p.cls == 'trans' and c.cls in VALUISH + ('mfma',) and c.cls != 'trans' and pv & c.r: n = max(n, 1)
        if p.cls == 'trans' and c.cls in ('ds', 'vmem') and pv & c.r: n = max(n, 1)
        if p.cls == 'dot' and pv & (c.r | c.w):
            if c.cls == 'dot' and c.op == p.op:
                ab = regs_of(c.ops[1]) | regs_of(c.ops[2])
                if pv & ab: n = max(n, 3)
            else:
                n = max(n, 3)
        if c.cls == 'salu' and ps & c.r: n = max(n, 1)
    if p.sdata and p.sdata & c.w:
        n = max(n, 2 if c.cls in VALUISH + ('mfma',) else 1)
    if p.cls == 'salu' and ('s', 124) in p.w and c.cls == 'dma': n = max(n, 1)
    return n

class Asm:
    def __init__(self):
        self.items = []
        self.nlabel = 0
        self.est = 0; self.shadow = 0; self.xlo = self.xhi = True
        self.hook = None; self.inhook = False; self.hook_ok = False
    def raw(self, text):
        self.items.append(text)
    def label(self, name):
        self.items.append(('label', name))
    def newlabel(self, base='L'):
        self.nlabel += 1
        return f'{base}_{self.nlabel}'
    def c(self, text):
        self.items.append('    ; ' + text)
    def __call__(self, op, *ops, m=''):
        it = Ins(op, list(ops), m)
        self.items.append(it)
        if it.cls == 'mfma':
            self.est += 8 + self.shadow; self.shadow = 24
        else:
            c = 8 if it.cls == 'trans' else 4
            self.est += c; self.shadow = max(0, self.shadow - c)
        if it.cls == 'salu' and ops and ops[0] in ('exec', 'exec_lo', 'exec_hi'):
            full = (op.startswith('s_mov') and ops[1] == -1)
            if ops[0] in ('exec', 'exec_lo'): self.xlo = full
            if ops[0] in ('exec', 'exec_hi'): self.xhi = full
        if self.hook and not self.inhook and it.cls in ('mfma', 'valu', 'trans') and self.hook_ok and self.xlo and self.xhi and not op.startswith('v_cmp'):
            self.inhook = True
            self.hook()
            self.inhook = False
    def __getattr__(self, op):
        if op.startswith(('v_', 's_', 'ds_', 'buffer_', 'global_')):
            return lambda *ops, m='': self(op, *ops, m=m)
        raise AttributeError(op)
    def align(self, p=3):
        self.items.append(('align', p))
    def finish(self):
        out = []
        hist = []
        nins = 0
        for it in self.items:
            if isinstance(it, str):
                out.append(it); continue
            if isinstance(it, tuple):
                if it[0] == 'label': out.append(it[1] + ':')
                elif it[0] == 'align': out.append(f'.p2align {it[1]}')
                continue
            pad = 0
            isbr = it.op.startswith('s_cbranch') or it.op == 's_branch'
            for p, d in hist:
                if isbr:
                    worst = 0
                    if p.cls == 'mfma': worst = 12 if p.passes == 8 else 8
                    elif p.cls in VALUISH:
                        worst = 5 if any(x[0] == 's' for x in p.w) else (3 if p.cls == 'dot' else 2)
                    elif p.sdata: worst = 2
                    elif p.cls == 'salu' and ('s', 124) in p.w: worst = 1
                    pad = max(pad, worst - 1 - d)
                pad = max(pad, need(p, it) - d)
            while pad > 0:
                k = min(pad, 16)
                out.append(f'    s_nop {k-1}')
                hist = [(p, d + k) for p, d in hist]
                pad -= k; nins += 1
            out.append('    ' + it.text)
            nins += 1
            hist = [(p, d + it.states) for p, d in hist if d + it.states < 14]
            hist.append((it, 0))
        self.nins = nins
        return '\n'.join(out) + '\n'
```

```python
import sys, math, struct
from asmlib import *

NAME = "interleave_layers__linear_kernel_hedgehog__sliding_block__prompt"

def f32(x):
    return '0x%08x' % struct.unpack('<I', struct.pack('<f', x))[0]

MB = 1 << 20
XB = [0*MB, 2*MB, 4*MB]
OB = [6*MB, 8*MB, 10*MB, 12*MB]
KVP = {0: 14*MB, 2: 15*MB}
KVH = {1: 16*MB, 3: 20*MB}
TS_BASE = 24*MB
FLG = 24*MB + 768*1024
KVR = {0: 24*MB + 512*1024, 2: 24*MB + 576*1024}
WPK = [25*MB, 25*MB + 16*86016]
OPK = 28*MB
WS_BYTES = 29*MB

SEG = 28672
L_WK, L_WV, L_WQ = 0, SEG, 2*SEG
L_KVL = 3*SEG
L_PHI = L_KVL
PHI_SIGN = 32*264
L_VOWN = L_KVL + 17408
L_KVF = L_KVL + 25600
L_CS1 = L_KVL + 29696
L_RINV = L_KVL + 32768
L_GATH = L_KVL + 45056
L_ST = 114688
L_CS0 = L_KVL + 65536
L_RINV0 = L_KVL + 69632
LDS_BYTES = 163840
assert L_GATH + 32768 == LDS_BYTES

S_WS, S_AX, S_WA, S_WB, S_WPHI, S_WOA, S_WOB, S_OUT, S_DBG, S_CODE = 8, 12, 16, 20, 24, 28, 32, 36, 40, 44
sR, sH, sW, sTT, sCG, sMODE, sXCC, sTRY = 48, 49, 50, 51, 52, 53, 54, 55
sXT, sOT_P, sOT_C, sXT_P, sKVP_P, sKVP_C, sKVH_P, sKVH_C = 56, 57, 58, 59, 60, 61, 62, 63
sT0, sT1, sT2, sT3, sT4, sT5 = 64, 65, 66, 67, 68, 69
sM28 = 70
sTMIN = 72
sWPKH = 73
sLDSW = 74
sSTW = 75
sTS = 76
sTSO = 78
sERR = 79
sB0, sB1 = 80, 81
sC0, sC1 = 82, 83
sP0 = 84
sOPKC = 86
sOM = 87
sT6, sT7 = 88, 89
sSLOT = 94
sE0, sE1 = 4, 5

vLANE, vL16, vWRD0, vWRD1, vWQ, vNEGB, vHW, vXST, vSST, vSLD = 0, 1, 2, 3, 4, 5, 6, 7, 8, 9
vPHW, vPHR, vRVW, vRVR, vKVL, vOUT, vG1, vG2, vG3, vHFM, vBIG, vII, vVOW, vGW = 10, 11, 12, 13, 14, 15, 16, 17, 18, 19, 20, 21, 22, 23
vWPHI = 24
vXRES = 32
vCS = 48
vMB, vRINV = 54, 56
vT = 54
vAK, vAV, vAQ = 64, 80, 96
vWF = 112
vXF = 144
vS = 112

BIGF = 3.0e38
LOG2E = 1.4426950408889634
MAXTRY = 20000
MFMA = 'v_mfma_f32_32x32x16_bf16'

class Gen:
    def __init__(self, ts=False, force_slow=False, nlayers=4, alias=True, tlb=False, hk=14, hv=24, gmiss=250, ghit=90, opt={}):
        self.tlb = tlb
        self.opt = opt
        self.gmiss, self.ghit = gmiss, ghit
        self.hk, self.hv = hk, hv
        if alias:
            XB[2] = XB[0]; OB[2] = OB[0]; OB[3] = OB[1]
        self.k = Asm()
        self.ts = ts
        self.force_slow = force_slow
        self.nlayers = nlayers
        self.nts = 0
        self.bg = []; self.bg_log = []
        self._hi = None
        self.lq = []; self.vq = []
        self.cold = []

    def stamp(self, name):
        if not self.ts: return
        k = self.k
        k.c(f'stamp {self.nts}: {name}')
        k.s_memtime(s(sTS, 2))
        k.s_waitcnt('lgkmcnt(0)')
        k.v_writelane_b32(v(vNEGB), s(sTS), self.nts)
        self.tsnames = getattr(self, 'tsnames', []) + [name]
        self.nts += 1

    def tick(self, n=1):
        pass

    def _hook(self):
        if self.bg and self.k.est >= self.bg_next:
            f = self.bg.pop(0)
            f()
            self.bg_log.append(f)
            self.bg_next = self.k.est + getattr(f, 'gap', 90)

    def bgon(self, delay=0):
        self.k.hook = self._hook; self.k.hook_ok = True
        self.bg_next = max(getattr(self, 'bg_next', 0), self.k.est + delay)

    def bgoff(self):
        self.k.hook_ok = False

    def burst(self, n):
        for _ in range(n):
            if self.bg:
                f = self.bg.pop(0); f(); self.bg_log.append(f)
        self.bg_next = self.k.est + 200

    def drain(self):
        while self.bg: self.bg.pop(0)()

    def ltag(self, tag, n=1):
        self.lq += [tag]*n
    def lwait(self, tag=None):
        if tag is None:
            self.k.s_waitcnt('lgkmcnt(0)'); self.lq = []; return
        if tag not in self.lq: return
        idx = len(self.lq) - 1 - self.lq[::-1].index(tag)
        n = len(self.lq) - 1 - idx
        self.k.s_waitcnt(f'lgkmcnt({min(n, 15)})')
        self.lq = self.lq[idx+1:]
    def vtag(self, tag, n=1):
        self.vq += [tag]*n
    def vwait(self, tag=None):
        if tag is None:
            self.k.s_waitcnt('vmcnt(0)'); self.vq = []; return
        if tag not in self.vq: return
        idx = len(self.vq) - 1 - self.vq[::-1].index(tag)
        n = len(self.vq) - 1 - idx
        assert n <= 63
        self.k.s_waitcnt(f'vmcnt({n})')
        self.vq = self.vq[idx+1:]

    def mfma(self, d, a_, b_, c):
        self.k(MFMA, v(d, 16), a_, b_, c)

    def srd(self, d, b, n):
        k = self.k
        k.s_mov_b32(s(d), s(b)); k.s_and_b32(s(d+1), s(b+1), '0xffff')
        k.s_mov_b32(s(d+2), n); k.s_mov_b32(s(d+3), '0x20000')

    def _so(self, sbase, off):
        hi = off & ~0xfff
        if not hi: return s(sbase)
        if self._hi != (sbase, hi):
            self.k.s_add_u32(s(sT5), s(sbase), hi); self._hi = (sbase, hi)
        return s(sT5)

    def ws_ld(self, dst, voff, sbase, off, n=4, flags='sc1'):
        op = {1: 'buffer_load_dword', 2: 'buffer_load_dwordx2', 4: 'buffer_load_dwordx4'}[n]
        so = self._so(sbase, off)
        self.k(op, v(dst, n), v(voff), s(S_WS, 4), so, m=f'offen offset:{off & 0xfff} {flags}'.strip())

    def ws_st(self, src, voff, sbase, off, n=4, flags=''):
        op = {1: 'buffer_store_dword', 2: 'buffer_store_dwordx2', 4: 'buffer_store_dwordx4'}[n]
        so = self._so(sbase, off)
        self.k(op, v(src, n), v(voff), s(S_WS, 4), so, m=f'offen offset:{off & 0xfff} {flags}'.strip())

    def nohi(self):
        self._hi = None

    def local_stores(self, fn):
        k = self.k
        ls, ld = k.newlabel('Lslow'), k.newlabel('Ldone')
        k.s_cmp_eq_u32(s(sMODE), 0)
        k.s_cbranch_scc1(ls)
        self.nohi(); fn('')
        k.label(ld)
        self.nohi()
        def cold():
            k.label(ls)
            self.nohi(); fn('sc1'); self.nohi()
            k.s_branch(ld)
        self.cold.append(cold)

    def check(self, regs):
        k = self.k
        t = 62
        regs = list(regs)
        k.v_max3_u32(v(t), v(regs[0]), v(regs[1]), v(regs[2]))
        rest = regs[3:]
        while rest:
            if len(rest) >= 2:
                k.v_max3_u32(v(t), v(rest[0]), v(rest[1]), v(t)); rest = rest[2:]
            else:
                k.v_max_u32(v(t), v(rest[0]), v(t)); rest = rest[1:]
        k.v_cmp_eq_u32('vcc', -1, v(t))
        k.s_cmp_eq_u64('vcc', 0)

    def poll(self, issue, regs, code, first_wait=None, sleep=0):
        k = self.k
        lp, lo = k.newlabel('Lpoll'), k.newlabel('Lok')
        def loop():
            k.s_mov_b32(s(sTRY), 0)
            l2, l3 = k.newlabel('Lp2'), k.newlabel('Lp3')
            k.s_branch(l3) if sleep else None
            k.label(l2)
            if sleep: k.s_sleep(sleep)
            k.label(l3)
            self.nohi(); issue(); self.nohi()
            k.s_add_u32(s(sTRY), s(sTRY), 1)
            k.s_cmp_ge_u32(s(sTRY), MAXTRY)
            k.s_cselect_b32(s(sT6), code, 0)
            k.s_or_b32(s(sERR), s(sERR), s(sT6))
            k.s_waitcnt('vmcnt(0)')
            self.check(regs)
            k.s_cselect_b32(s(sT7), 1, s(sT6))
            k.s_cmp_eq_u32(s(sT7), 0)
            k.s_cbranch_scc1(l2)
        if first_wait is None:
            loop()
        else:
            k.s_waitcnt(f'vmcnt({first_wait})')
            self.check(regs)
            k.s_cbranch_scc0(lp)
            k.label(lo)
            def cold():
                k.label(lp)
                if self.ts: k.s_add_u32(s(sERR), s(sERR), 1 << 16)
                loop()
                k.s_branch(lo)
            self.cold.append(cold)

    def xhalf(self, op, dst, t):
        k = self.k
        k.v_mov_b32(v(t), v(dst))
        k.v_permlane32_swap_b32(v(dst), v(t))
        k(op, v(dst), v(dst), v(t))

    def rbf(self, dst, src):
        k = self.k
        k.v_cvt_pk_bf16_f32(v(dst), v(src), v(src))
        k.v_and_b32(v(dst), '0xffff0000', v(dst))

    def prologue(self):
        k = self.k
        k.label('Lstart')
        k.s_load_dwordx16(s(64, 16), s(0, 2), 0)
        k.s_load_dwordx4(s(80, 4), s(0, 2), 64)
        k.s_getpc_b64(s(4, 2))
        k.label('Lpc')
        k.s_memrealtime(s(90, 2))
        if self.ts: k.s_memtime(s(92, 2))
        k.s_cmp_ge_u32(s(2), 256)
        k.s_cbranch_scc1('Lend')
        k.s_lshr_b32(s(6), s(2), 3)
        k.s_sub_u32(s(S_CODE), s(4), 'Lpc-Lstart'); k.s_subb_u32(s(5), s(5), 0)
        k.s_and_b32(s(S_CODE+1), s(5), '0xffff')
        k.s_mov_b32(s(S_CODE+2), 'Lcode_end-Lstart'); k.s_mov_b32(s(S_CODE+3), '0x20000')
        k.v_lshrrev_b32(v(1), 6, v(0))
        k.v_and_b32(v(vLANE), 63, v(0))
        k.v_readfirstlane_b32(s(sW), v(1))
        k.s_lshl_b32(s(3), s(6), 11)
        k.v_lshlrev_b32(v(2), 5, v(vLANE))
        lcp = k.newlabel('Lcp')
        k.s_cmp_lg_u32(s(sW), 3); k.s_cbranch_scc1(lcp)
        k.buffer_load_dword(v(240), v(2), s(S_CODE, 4), s(3), m='offen')
        k.label(lcp)
        k.s_and_b32(s(sH), s(6), 15)
        k.s_and_b32(s(3), s(2), 7)
        k.s_lshr_b32(s(7), s(6), 4)
        k.s_lshl_b32(s(3), s(3), 1)
        k.s_add_u32(s(sR), s(3), s(7))
        n, hf, r4, ch, c4, l2 = 60, 61, 62, 63, 59, 58
        k.v_and_b32(v(c4), 3, v(vLANE))
        k.v_lshrrev_b32(v(l2), 2, v(vLANE))
        vODMA, vPDMA = 97, 98
        k.v_mul_u32_u24(v(vPDMA), 2688, v(l2))
        k.v_lshl_add_u32(v(vPDMA), v(c4), 4, v(vPDMA))
        k.v_mul_u32_u24(v(vODMA), 896, v(l2))
        k.v_lshl_add_u32(v(vODMA), v(c4), 4, v(vODMA))
        k.v_mul_u32_u24(v(96), 56, v(l2))
        k.v_lshl_add_u32(v(96), v(c4), 4, v(96))
        k.v_lshlrev_b32(v(vL16), 4, v(vLANE))
        k.s_lshl_b32(s(sOM), s(sR), 2); k.s_add_u32(s(sOM), s(sOM), s(sW))
        sRHO, sPH, sPD = 101, 100, 95
        k.s_lshl_b32(s(sRHO), s(sR), 4); k.s_add_u32(s(sRHO), s(sRHO), s(sH))
        k.s_and_b32(s(sPH), s(sRHO), 3); k.s_lshl_b32(s(sPH), s(sPH), 2); k.s_add_u32(s(sPH), s(sPH), s(sW))
        k.s_waitcnt('lgkmcnt(0)')
        self.srd(S_DBG, 80, 256)
        lep = k.newlabel('Lep')
        k.s_add_u32(s(3), s(2), s(sW)); k.s_cmp_lg_u32(s(3), 0); k.s_cbranch_scc1(lep)
        k.s_andn2_b32(s(3), s(90), 15); k.s_or_b32(s(4), s(91), 0x40000000)
        k.v_mov_b32(v(56), s(3)); k.v_mov_b32(v(57), s(4))
        k.s_mov_b64('exec', 1)
        k.buffer_store_dwordx2(v(56, 2), v(vLANE), s(S_DBG, 4), 0, m='offen sc1')
        k.s_mov_b64('exec', -1)
        k.label(lep)
        self.srd(S_WA, 66, 1204224); self.srd(S_WB, 74, 1204224)
        self.srd(S_WOA, 70, 401408); self.srd(S_WOB, 76, 401408)
        self.srd(S_AX, 64, 1835008); self.srd(S_WPHI, 68, 25088)
        self.srd(S_OUT, 78, 1835008); self.srd(S_WS, 82, WS_BYTES)
        k.s_lshl_b32(s(sLDSW), s(sW), 10)
        k.s_mul_i32(s(sSTW), s(sW), 7168); k.s_add_u32(s(sSTW), s(sSTW), L_ST)
        self.vq = []
        sPS = 97
        k.s_lshr_b32(s(sT1), s(sRHO), 2)
        k.s_cmp_ge_u32(s(sT1), 28); k.s_cselect_b32(s(sT2), 1, 0)
        k.s_cmp_ge_u32(s(sT1), 56); k.s_cselect_b32(s(sT2), 2, s(sT2))
        k.s_mul_i32(s(sT3), s(sT2), 28); k.s_sub_u32(s(sT3), s(sT1), s(sT3)); k.s_mul_i32(s(sT3), s(sT3), 16*2688)
        k.s_add_u32(s(sT2), s(sT2), 1); k.s_cmp_eq_u32(s(sT2), 3); k.s_cselect_b32(s(sT2), 0, s(sT2))
        k.s_mul_i32(s(sT2), s(sT2), 896); k.s_add_u32(s(sT3), s(sT3), s(sT2))
        k.s_mul_i32(s(sT0), s(sPH), 56); k.s_add_u32(s(sPS), s(sT3), s(sT0))
        k.s_add_u32('m0', s(sSTW), 0)
        k.buffer_load_dwordx4(v(vPDMA), s(S_WA, 4), s(sPS), m='offen lds')
        k.s_mul_i32(s(sT2), s(sPH), 86016); k.s_lshl_b32(s(sT3), s(sT1), 10); k.s_add_u32(s(sPD), s(sT2), s(sT3))
        k.s_add_u32(s(sPD), s(sPD), WPK[0])
        k.s_add_u32(s(sT3), s(sT1), 8); k.s_mul_i32(s(sT3), s(sT3), 16*2688); k.s_add_u32(s(sPS+1), s(sT3), s(sT0))
        k.s_add_u32(s(sPD+1), s(sPD), 65536)
        k.s_sub_u32(s(sT1), s(sRHO), 80)
        k.s_lshr_b32(s(sT2), s(sT1), 3); k.s_bfe_u32(s(sT1), s(sT1), 2 | (1 << 16))
        k.s_mul_i32(s(sT3), s(sT2), 28*896); k.s_add_u32(s(sT0), s(sT0), s(sT3)); k.s_mul_i32(s(sT3), s(sT1), 16*896); k.s_add_u32(s(sT0), s(sT0), s(sT3))
        k.s_lshl_b32(s(sT3), s(sPH), 15); k.s_lshl_b32(s(sT2), s(sT2), 11); k.s_add_u32(s(sT3), s(sT3), s(sT2))
        k.s_lshl_b32(s(sT1), s(sT1), 10); k.s_add_u32(s(sT3), s(sT3), s(sT1)); k.s_add_u32(s(sT3), s(sT3), OPK)
        k.s_cmp_ge_u32(s(sRHO), 208); k.s_cselect_b32(s(sT3), 0x7000000, s(sT3))
        k.s_cmp_ge_u32(s(sRHO), 80); k.s_cselect_b32(s(sPS+1), s(sT0), s(sPS+1)); k.s_cselect_b32(s(sPD+1), s(sT3), s(sPD+1))
        def pack_dma1(typ, slot):
            la, lb = k.newlabel('La'), k.newlabel('Lb')
            k.s_add_u32('m0', s(sSTW), slot*1024)
            k.s_cmp_ge_u32(s(sRHO), 80); k.s_cbranch_scc1(la)
            k.buffer_load_dwordx4(v(vPDMA), s(S_WB if typ else S_WA, 4), s(sPS+1), m='offen lds')
            k.s_branch(lb)
            k.label(la)
            k.buffer_load_dwordx4(v(vODMA), s(S_WOB if typ else S_WOA, 4), s(sPS+1), m='offen lds')
            k.label(lb)
        pack_dma1(0, 1)
        self.vtag('pack', 2)
        def packb_dma():
            k.s_add_u32('m0', s(sSTW), 2*1024)
            k.buffer_load_dwordx4(v(vPDMA), s(S_WB, 4), s(sPS), m='offen lds')
            pack_dma1(1, 3)
            self.vtag('packb', 2)
        k.s_mul_i32(s(sT1), s(sH), 1568)
        k.s_add_u32('m0', s(sSTW), 5*1024)
        k.buffer_load_dwordx4(v(96), s(S_WPHI, 4), s(sT1), m='offen lds')
        k.s_add_u32(s(sT1), s(sT1), 16*56)
        k.s_add_u32('m0', s(sSTW), 6*1024)
        k.buffer_load_dwordx4(v(96), s(S_WPHI, 4), s(sT1), m='offen lds')
        self.vtag('phi', 2)
        if self.tlb:
            k.v_lshlrev_b32(v(2), 20, v(vLANE))
            k.s_lshl_b32(s(sT1), s(2), 7)
            k.s_mov_b32('exec_hi', 0)
            k.buffer_load_dword(a(255), v(2), s(S_WS, 4), s(sT1), m='offen')
            k.buffer_load_dword(a(254), v(2), s(S_OUT, 4), s(sT1), m='offen')
            k.s_mov_b32('exec_hi', -1)
            self.vtag('tlb', 2)
        if self.ts:
            k.s_lshl_b32(s(sT1), s(2), 2); k.s_add_u32(s(sT1), s(sT1), s(sW)); k.s_lshl_b32(s(sT1), s(sT1), 8)
            k.s_add_u32(s(sTSO), s(sT1), TS_BASE)
            k.v_mov_b32(v(vNEGB), 0)
        self.stamp('pack issued')
        vX0, vBW0, vBW1, vBR = 101, 102, 103, 104
        vPK8, vPK4 = 99, 100
        k.v_lshrrev_b32(v(56), 3, v(vLANE))
        k.s_lshl_b32(s(sT1), s(sOM), 5)
        k.v_add_u32(v(55), s(sT1), v(56)); k.v_mul_u32_u24(v(vX0), 896, v(55))
        k.v_and_b32(v(55), 7, v(vLANE))
        k.v_lshrrev_b32(v(56), 4, v(vLANE)); k.v_xor_b32(v(55), v(55), v(56))
        k.v_lshl_add_u32(v(vX0), v(55), 4, v(vX0))
        k.v_xor_b32(v(vBW0), 64, v(vX0))
        sC0_ = 99
        k.s_and_b32(s(sT1), s(sR), 1); k.s_mul_i32(s(sT1), s(sT1), 3); k.s_add_u32(s(sC0_), s(sH), s(sT1))
        k.s_cmp_ge_u32(s(sC0_), 7); k.s_cselect_b32(s(sT1), 7, 0); k.s_cmp_ge_u32(s(sC0_), 14); k.s_cselect_b32(s(sT1), 14, s(sT1))
        k.s_sub_u32(s(sC0_), s(sC0_), s(sT1))
        def line(dst, i):
            k.s_add_u32(s(dst), s(sC0_), i)
            k.s_cmp_ge_u32(s(dst), 7); k.s_cselect_b32(s(sT5), 7, 0); k.s_sub_u32(s(dst), s(dst), s(sT5))
        def wdma(segs, ii):
            line(sT4, ii)
            k.s_lshl_b32(s(sT4), s(sT4), 12)
            k.s_add_u32(s(sT4), s(sT4), s(sWPKH))
            for g in segs:
                k.s_add_u32('m0', s(sLDSW), g*SEG + ii*4096)
                k.s_add_u32(s(sT5), s(sT4), WPK[0] + g*SEG)
                k.buffer_load_dwordx4(v(vL16), s(S_WS, 4), s(sT5), m='offen sc1 lds')
                self.vtag('wq' if g == 2 else f'w{ii}')
        def xload(c):
            line(sT0, c)
            k.s_lshl_b32(s(sT0), s(sT0), 7)
            for g in range(4):
                if g: k.s_add_u32(s(sT0), s(sT0), 8*896)
                k.s_add_u32('m0', s(sLDSW), (4*c+g)*4096)
                k.buffer_load_dwordx4(v(vBW0 if g & 1 else vX0), s(S_AX, 4), s(sT0), m='offen lds')
            self.vtag(f'x{c}', 4)
        def xread(c):
            for sp in range(4):
                k.ds_read_b128(v(vXF+4*(4*c+sp), 4), v((vBR if c < 4 else 84)+sp), m=f'offset:{(c & 3)*16384}')
            self.ltag(f'b{c}', 4)
        ones = 57
        def xstat(c):
            for i in range(16):
                x = vXF + 16*c + i
                k.v_dot2_f32_bf16(v(60), v(x), v(ones), v(60))
                k.v_dot2_f32_bf16(v(61), v(x), v(x), v(61))
        def st1(reg, sb, add, off=0, tag='st'):
            so = sb
            if add:
                k.s_add_u32(s(sT2), s(sb), add); so = sT2
            k.buffer_store_dwordx4(v(reg, 4), v(vL16), s(S_WS, 4), s(so), m=f'offen offset:{off} sc1')
            self.vtag(tag)
        xload(0)
        self.setup2()
        self.stamp('setup2')
        k.v_mov_b32(v(ones), '0x3f803f80')
        for i in range(4): k.v_mov_b32(v(60+i), 0)
        vPK1a, vPK1b = 110, 111
        k.s_cmp_ge_u32(s(sRHO), 80); k.s_cselect_b64('vcc', -1, 0); k.s_cselect_b32(s(sT1), 2, 1); k.s_lshl_b32(s(sT1), s(sT1), 8)
        k.v_cndmask_b32(v(vPK1a), v(vPK8), v(vPK4), 'vcc')
        k.v_add_u32(v(vPK1b), s(sT1), v(vPK1a))
        sPADM = 7
        k.s_sub_u32(s(sT1), s(sRHO), 80); k.s_bitcmp1_b32(s(sT1), 2); k.s_cselect_b32(s(sPADM), -1, 0)
        k.s_cmp_ge_u32(s(sRHO), 80); k.s_cselect_b32(s(sPADM), s(sPADM), 0)
        def pack_out(typ, slot, P, dadd):
            for j in range(2):
                k.ds_read_b64_tr_b16(v(P+2*j, 2), v(vPK8), m=f'offset:{slot*1024 + j*256}')
            k.ds_read_b64_tr_b16(v(P+4, 2), v(vPK1a), m=f'offset:{slot*1024 + 1024}')
            k.ds_read_b64_tr_b16(v(P+6, 2), v(vPK1b), m=f'offset:{slot*1024 + 1024}')
            k.s_waitcnt('lgkmcnt(2)')
            st1(P, sPD, dadd[0])
            k.s_waitcnt('lgkmcnt(0)')
            k.s_mov_b32('exec_lo', 0); k.s_mov_b32('exec_hi', s(sPADM))
            k.v_mov_b32(v(P+6), 0); k.v_mov_b32(v(P+7), 0)
            k.s_mov_b64('exec', -1)
            if typ:
                k.s_mov_b32(s(sT3), dadd[0]); k.s_cmp_ge_u32(s(sRHO), 80); k.s_cselect_b32(s(sT3), dadd[1], s(sT3))
                k.s_add_u32(s(sPD+1), s(sPD+1), s(sT3))
            st1(P+4, sPD+1, 0)
        self.vwait('pack')
        self.stamp('pack in')
        pack_out(0, 0, 64, (0, 0))
        EP = 80
        k.v_mov_b32(v(EP+2), 0)
        k.buffer_load_dwordx2(v(EP, 2), v(EP+2), s(S_DBG, 4), 0, m='offen sc1'); self.vtag('ep')
        self.stamp('pack out')
        packb_dma()
        xload(1); xload(2)
        self.vwait('x0')
        self.lq = []
        xread(0)
        for j in range(2):
            for jj in range(2):
                k.ds_read_b64_tr_b16(v(vWPHI+4*j+2*jj, 2), v(vPK4), m=f'offset:{5120 + j*1024 + jj*512}')
        self.lwait()
        k.s_mov_b32('exec_lo', 0)
        k.v_mov_b32(v(vWPHI+6), 0); k.v_mov_b32(v(vWPHI+7), 0)
        k.s_mov_b64('exec', s(sP0, 2))
        for i in range(8): k.v_mov_b32(v(vWPHI+i), 0)
        k.s_mov_b64('exec', -1)
        xstat(0)
        self.vwait('ep')
        self.tag_get(EP)
        k.s_barrier()
        self.stamp('acked')
        self.flag_post(0, EP)
        self.vwait('packb')
        pack_out(1, 2, 64, (WPK[1] - WPK[0], 524288))
        for i in range(4): k.v_mov_b32(v(108+i), -1)
        k.s_lshl_b32(s(97), s(sR), 12); k.s_add_u32(s(97), s(97), s(sKVP_C))
        k.s_lshl_b32(s(98), s(sH), 12); k.s_add_u32(s(98), s(98), s(sLDSW))
        k.s_lshl_b32(s(sT3), s(sR), 16); k.s_add_u32(s(98), s(98), s(sT3))
        k.s_mov_b32(s(sT3), 0x7000000); k.s_cmp_lt_u32(s(sR), 2); k.s_cselect_b32(s(sT3), KVR[0], s(sT3)); k.s_add_u32(s(98), s(98), s(sT3))
        st1(108, 97, KVP[0]); st1(108, 98, 0)
        for c in range(3, 7): xload(c)
        for c in range(1, 7):
            if c == 3: self.quad_issue(72)
            self.vwait(f'x{c}')
            xread(c)
            if 2 <= c <= 4:
                self.lwait(f'b{c-1}')
                xstat(c-1)
        self.lwait()
        self.stamp('x0 done')
        self.quad_wait(72)
        self.stamp('flags')
        for ii in range(7):
            wdma((0, 1), ii)
            if ii == 3: self.flag_issue(0, 32)
            if ii in (2, 4, 6): xstat(3 + ii//2)
        self.stats_finish(60, 61)
        k.s_mul_i32(s(sT1), s(sW), 768); k.s_add_u32(s(sT1), s(sT1), L_CS0)
        k.v_lshl_add_u32(v(55), v(vLANE), 2, s(sT1))
        k.v_add_u32(v(99), s(sLDSW), v(vL16))
        def cspiece(ii, R):
            self.vwait(f'w{ii}')
            k.ds_read_b128(v(R, 4), v(99), m=f'offset:{L_WK + ii*4096}')
            k.ds_read_b128(v(R+4, 4), v(99), m=f'offset:{L_WV + ii*4096}')
        def csdot(R):
            for i in range(4):
                k.v_dot2_f32_bf16(v(62), v(R+i), v(ones), v(62)); k.v_dot2_f32_bf16(v(63), v(R+4+i), v(ones), v(63))
        D = 3
        def rdw(st):
            b = vWF + (st % 4)*8
            k.ds_read_b128(v(b, 4), v(vL16), m=f'offset:{L_WK + st*1024}')
            k.ds_read_b128(v(b+4, 4), v(vL16), m=f'offset:{L_WV + st*1024}')
            self.ltag(f'w{st}', 2)
        def gemm(s0, s1, extra, fill=None):
            for st in range(s0, s1):
                self.lwait(f'w{st}')
                b = vWF + (st % 4)*8
                x = v(vXF+4*st, 4)
                self.mfma(vAK, v(b, 4), x, v(vAK, 16) if st else 0)
                for _ in range(3):
                    if fill and st >= s0 + 3: fill.pop(0)()
                self.mfma(vAV, x, v(b+4, 4), v(vAV, 16) if st else 0)
                if st + D < s1: rdw(st + D)
                if extra: extra.pop(0)()
        nop = lambda: None
        self.stamp('W issued')
        for ii in range(4):
            cspiece(ii, vWF + 8*ii)
            if ii >= 1:
                k.s_waitcnt('lgkmcnt(2)'); csdot(vWF + 8*(ii-1))
        k.s_barrier()
        self.flag_post(1, 96)
        self.flag_wait(0, 32)
        self.touch_half(OPK, 16384); self.vtag('bg')
        k.s_waitcnt('lgkmcnt(0)')
        self.stamp('W half1')
        self.lq = []
        for st in range(D): rdw(st)
        csdot(vWF + 24)
        def rob():
            k.s_add_u32(s(sT1), s(sOT_P), OB[0])
            def st(fl):
                self.ws_st(108, vL16, sT1, 0, flags=fl); self.ws_st(108, vL16, sT1, 1024, flags=fl)
            self.local_stores(st); self.vtag('st', 2)
        def resid():
            for q in range(4):
                k.buffer_load_dwordx2(v(vXRES+8+2*q, 2), v(vOUT), s(S_AX, 4), 0, m=f'offen offset:{16*q}')
            self.vtag('res', 4)
        ex = [nop, nop]
        for ii in range(7): ex += [lambda ii=ii: wdma((2,), ii), nop]
        gemm(0, 16, ex)
        rob()
        for ii in range(4, 7): cspiece(ii, vWF + 8*(ii-4))
        resid()
        k.s_waitcnt('lgkmcnt(0)')
        for ii in range(3): csdot(vWF + 8*ii)
        k.ds_write_b32(v(55), v(62), m='offset:256'); k.ds_write_b32(v(55), v(63), m='offset:512')
        k.s_waitcnt('lgkmcnt(0)')
        k.s_barrier()
        self.stamp('W kv')
        self.lq = []
        fin = self.colsum_fin(L_CS0, 0, (1, 2), base=96, defer=True)
        for st in range(16, 16+D): rdw(st)
        self.bg_wo(0)
        self.bgon()
        gemm(16, 28, [], fin)
        while fin: fin.pop(0)()
        self.bgoff()
        self.flag_issue(1, 96)
        self.bgon()
        self.mean_steps(0)

    def tag_get(self, EP):
        k = self.k
        lfe, lfe2, lfe3 = k.newlabel('Lfe'), k.newlabel('Lfe'), k.newlabel('Lfe')
        k.s_mov_b32(s(sTRY), 0)
        k.label(lfe2)
        k.v_readfirstlane_b32(s(sE0), v(EP)); k.v_readfirstlane_b32(s(sE1), v(EP+1))
        k.s_cmp_eq_u32(s(sE1), 0); k.s_cbranch_scc1(lfe)
        k.label(lfe3)
        def cold():
            k.label(lfe)
            k.s_sleep(2)
            k.buffer_load_dwordx2(v(EP, 2), v(EP+2), s(S_DBG, 4), 0, m='offen sc1')
            k.s_add_u32(s(sTRY), s(sTRY), 1)
            k.s_waitcnt('vmcnt(0)')
            k.s_cmp_lt_u32(s(sTRY), MAXTRY); k.s_cbranch_scc1(lfe2)
            k.s_or_b32(s(sERR), s(sERR), 1 << 29)
            k.s_branch(lfe3)
        self.cold.append(cold)
        k.s_or_b32(s(sE0), s(sE0), s(sXCC))

    def flag_post(self, stage, EP):
        k = self.k
        lfx = k.newlabel('Lfx')
        k.s_cmp_lg_u32(s(sW), 3); k.s_cbranch_scc1(lfx)
        k.v_mov_b32(v(EP), s(sE0)); k.v_mov_b32(v(EP+1), s(sE1))
        k.s_and_b32(s(3), s(101), 3); k.s_lshl_b32(s(3), s(3), 9); k.s_lshr_b32(s(6), s(101), 2); k.s_lshl_b32(s(6), s(6), 3)
        k.s_add_u32(s(3), s(3), s(6)); k.s_add_u32(s(3), s(3), FLG + 2048*stage)
        k.s_mov_b64('exec', 1)
        k.buffer_store_dwordx2(v(EP, 2), v(vLANE), s(S_WS, 4), s(3), m='offen sc1')
        k.s_mov_b64('exec', -1)
        k.label(lfx)

    def quad_issue(self, F):
        k = self.k
        k.v_lshlrev_b32(v(F+2), 3, v(vLANE))
        k.s_lshr_b32(s(6), s(sH), 2); k.s_lshl_b32(s(6), s(6), 9); k.s_add_u32(s(6), s(6), FLG)
        k.buffer_load_dwordx2(v(F, 2), v(F+2), s(S_WS, 4), s(6), m='offen sc1')
        self.vtag('quad')

    def quad_wait(self, F):
        k = self.k
        lp, lr, lgo = k.newlabel('Lqp'), k.newlabel('Lqr'), k.newlabel('Lqo')
        k.s_mov_b32(s(sTRY), 0)
        self.vwait('quad')
        k.label(lp)
        k.v_xor_b32(v(F), s(sE0), v(F)); k.v_xor_b32(v(F+1), s(sE1), v(F+1))
        k.v_and_b32(v(F), -16, v(F)); k.v_or_b32(v(F), v(F), v(F+1))
        k.v_cmp_ne_u32('vcc', 0, v(F))
        k.s_cmp_eq_u64('vcc', 0)
        k.s_cbranch_scc0(lr)
        k.label(lgo)
        def cold():
            k.label(lr)
            k.s_add_u32(s(sTRY), s(sTRY), 1)
            k.s_cmp_ge_u32(s(sTRY), MAXTRY); k.s_cselect_b32(s(sT6), 1 << 28, 0); k.s_or_b32(s(sERR), s(sERR), s(sT6))
            k.s_cmp_lg_u32(s(sT6), 0); k.s_cbranch_scc1(lgo)
            if self.ts: k.s_add_u32(s(sERR), s(sERR), 1 << 24)
            k.s_sleep(4)
            k.buffer_load_dwordx2(v(F, 2), v(F+2), s(S_WS, 4), s(6), m='offen sc1')
            k.s_waitcnt('vmcnt(0)')
            k.s_branch(lp)
        self.cold.append(cold)

    def flag_issue(self, stage, F):
        k = self.k
        k.v_lshlrev_b32(v(F+8), 5, v(vLANE))
        k.s_mov_b32(s(3), FLG + 2048*stage)
        k.buffer_load_dwordx4(v(F, 4), v(F+8), s(S_WS, 4), s(3), m='offen sc1')
        k.buffer_load_dwordx4(v(F+4, 4), v(F+8), s(S_WS, 4), s(3), m='offen offset:16 sc1')
        self.vtag('flg', 2)

    def flag_wait(self, stage, F):
        k = self.k
        lp, lr, lgo = k.newlabel('Lfp'), k.newlabel('Lfr'), k.newlabel('Lgo')
        k.s_mov_b32(s(sTRY), 0)
        self.vwait('flg')
        k.label(lp)
        for i in range(4):
            k.v_xor_b32(v(F+2*i), s(sE0), v(F+2*i)); k.v_xor_b32(v(F+2*i+1), s(sE1), v(F+2*i+1))
        k.v_or3_b32(v(F), v(F), v(F+2), v(F+4)); k.v_or_b32(v(F), v(F), v(F+6))
        k.v_or3_b32(v(F+1), v(F+1), v(F+3), v(F+5)); k.v_or_b32(v(F+1), v(F+1), v(F+7))
        k.v_and_b32(v(F+2), -16, v(F)); k.v_or_b32(v(F+2), v(F+2), v(F+1))
        k.v_cmp_ne_u32('vcc', 0, v(F+2))
        k.s_cmp_eq_u64('vcc', 0)
        k.s_cbranch_scc0(lr)
        k.label(lgo)
        def cold():
            k.label(lr)
            k.s_add_u32(s(sTRY), s(sTRY), 1)
            k.s_cmp_ge_u32(s(sTRY), MAXTRY); k.s_cselect_b32(s(sT6), 1 << 30, 0); k.s_or_b32(s(sERR), s(sERR), s(sT6))
            k.s_cmp_lg_u32(s(sT6), 0); k.s_cbranch_scc1(lgo)
            if self.ts: k.s_add_u32(s(sERR), s(sERR), 1 << 24)
            k.s_sleep(4)
            k.s_mov_b32(s(3), FLG + 2048*stage)
            k.buffer_load_dwordx4(v(F, 4), v(F+8), s(S_WS, 4), s(3), m='offen sc1')
            k.buffer_load_dwordx4(v(F+4, 4), v(F+8), s(S_WS, 4), s(3), m='offen offset:16 sc1')
            k.s_waitcnt('vmcnt(0)')
            k.s_branch(lp)
        self.cold.append(cold)
        if stage == 0:
            k.v_cmp_eq_u32('vcc', 0, v(F))
            k.s_lshr_b64(s(sP0, 2), 'vcc', s(sR))
            k.s_and_b32(s(3), s(sP0), s(sP0+1))
            k.s_and_b32(s(3), s(3), 0x10001)
            k.s_cmp_eq_u32(s(3), 0x10001)
            k.s_cselect_b32(s(sMODE), 0 if self.force_slow else 1, 0)

    def setup2(self):
        k = self.k
        n, hf, r4, ch, c4, l2 = 60, 61, 62, 63, 59, 58
        k.s_getreg_b32(s(sXCC), 'hwreg(HW_REG_XCC_ID)')
        k.s_and_b32(s(sXCC), s(sXCC), 15)
        k.s_mov_b32(s(sSLOT), s(6))
        k.s_lshr_b32(s(3), s(sH), 2)
        k.s_lshl_b32(s(sTT), s(sR), 2)
        k.s_add_u32(s(sTT), s(sTT), s(3))
        k.s_and_b32(s(sCG), s(sH), 3)
        k.s_mov_b32(s(sERR), 0)
        k.s_mov_b32(s(sMODE), 0)
        k.s_lshl_b32(s(sXT), s(sOM), 15)
        k.s_lshl_b32(s(sT1), s(sH), 11); k.s_add_u32(s(sOT_P), s(sXT), s(sT1))
        k.s_lshl_b32(s(sXT_P), s(sTT), 15)
        k.s_lshl_b32(s(sT1), s(sW), 13); k.s_add_u32(s(sOT_C), s(sXT_P), s(sT1))
        k.s_lshl_b32(s(sT1), s(sH), 16)
        k.s_lshl_b32(s(sT2), s(sR), 12); k.s_add_u32(s(sKVP_P), s(sT1), s(sT2))
        k.s_lshl_b32(s(sT2), s(sW), 11); k.s_add_u32(s(sKVP_P), s(sKVP_P), s(sT2))
        k.s_add_u32(s(sKVP_C), s(sT1), s(sLDSW))
        k.s_lshl_b32(s(sT1), s(sH), 18)
        k.s_lshl_b32(s(sT2), s(sOM), 12); k.s_add_u32(s(sKVH_P), s(sT1), s(sT2))
        k.s_add_u32(s(sT2), s(sOM), s(sW))
        k.s_sub_u32(s(sT2), s(sT2), 8); k.s_lshl_b32(s(sT2), s(sT2), 12); k.s_add_u32(s(sKVH_C), s(sT1), s(sT2))
        k.s_sub_i32(s(sTMIN), 8, s(sOM)); k.s_max_i32(s(sTMIN), s(sTMIN), 0)
        k.s_mul_i32(s(sWPKH), s(sH), 86016); k.s_add_u32(s(sWPKH), s(sWPKH), s(sLDSW))
        k.s_lshl_b32(s(sT1), s(sCG), 2); k.s_add_u32(s(sT1), s(sT1), s(sW)); k.s_lshl_b32(s(sOPKC), s(sT1), 15)
        k.v_and_b32(v(n), 31, v(vLANE))
        k.v_lshrrev_b32(v(hf), 5, v(vLANE))
        k.v_bfe_u32(v(r4), v(vLANE), 2, 2)
        k.v_bfe_u32(v(ch), v(vLANE), 4, 1)
        vX0, vBW0, vBW1, vBR = 101, 102, 103, 104
        k.v_bfe_u32(v(55), v(n), 1, 3)
        k.v_xor_b32(v(55), v(55), v(hf))
        k.v_and_b32(v(56), 7, v(n)); k.v_lshl_add_u32(v(56), v(56), 7, s(sLDSW))
        k.v_lshrrev_b32(v(57), 3, v(n)); k.v_lshl_add_u32(v(56), v(57), 12, v(56))
        k.v_lshl_add_u32(v(vBR), v(55), 4, v(56))
        for sp in range(1, 4): k.v_xor_b32(v(vBR+sp), 32*sp, v(vBR))
        for sp in range(4): k.v_add_u32(v(84+sp), 65536, v(vBR+sp))
        k.v_lshlrev_b32(v(57), 5, v(ch))
        k.v_lshl_add_u32(v(57), v(c4), 3, v(57))
        k.v_lshl_add_u32(v(56), v(hf), 3, v(r4))
        k.v_lshl_add_u32(v(vWRD0), v(56), 6, v(57))
        k.v_add_u32(v(vWRD1), L_WQ, v(vWRD0))
        k.v_add_u32(v(vWQ), L_WQ, v(vL16))
        vPK8, vPK4 = 99, 100
        k.v_add_u32(v(vPK8), s(sSTW), v(vWRD0))
        k.v_lshl_add_u32(v(56), v(hf), 2, v(r4))
        k.v_lshl_add_u32(v(vPK4), v(56), 6, v(57))
        k.v_add_u32(v(vPK4), s(sSTW), v(vPK4))
        k.v_mul_u32_u24(v(56), 264, v(hf))
        k.v_lshl_add_u32(v(56), v(r4), 6, v(56))
        k.s_and_b32(s(sT1), s(sW), 1); k.s_mul_i32(s(sT1), s(sT1), PHI_SIGN); k.s_add_u32(s(sT1), s(sT1), L_PHI)
        k.v_add3_u32(v(vPHR), v(56), v(57), s(sT1))
        k.v_lshrrev_b32(v(56), 2, v(n))
        k.s_lshl_b32(s(sT1), s(sW), 3)
        k.v_add_u32(v(56), s(sT1), v(56))
        k.v_mul_u32_u24(v(56), 264, v(56))
        k.v_lshl_add_u32(v(56), v(c4), 6, v(56))
        k.v_lshl_add_u32(v(56), v(hf), 3, v(56))
        k.v_add_u32(v(vPHW), L_PHI, v(56))
        k.s_lshl_b32(s(sT1), s(sW), 7); k.s_add_u32(s(sT1), s(sT1), L_RINV0)
        k.v_lshl_add_u32(v(vRVW), v(n), 2, s(sT1))
        k.v_lshl_add_u32(v(vRVR), v(hf), 4, s(sT1))
        k.s_lshl_b32(s(sT1), s(sW), 12); k.s_add_u32(s(sT1), s(sT1), L_KVL)
        k.v_add_u32(v(vKVL), s(sT1), v(vL16))
        k.s_lshl_b32(s(sT1), s(sW), 13); k.s_add_u32(s(sT1), s(sT1), L_KVL)
        k.v_add_u32(v(vHW), s(sT1), v(vL16))
        k.s_lshl_b32(s(sT1), s(sW), 11); k.s_add_u32(s(sT1), s(sT1), L_VOWN)
        k.v_add_u32(v(vVOW), s(sT1), v(vL16))
        for i, reg in ((0, vGW), (1, vG1), (2, vG2), (3, vG3)):
            k.s_add_u32(s(sT1), s(sW), i); k.s_and_b32(s(sT1), s(sT1), 3); k.s_lshl_b32(s(sT1), s(sT1), 13)
            k.s_sub_u32(s(sT1), L_GATH + 3*8192, s(sT1))
            k.v_add_u32(v(reg), s(sT1), v(vL16))
        k.s_mul_i32(s(sT1), s(sCG), 28); k.s_mul_i32(s(sT2), s(sW), 7); k.s_add_u32(s(sT1), s(sT1), s(sT2))
        k.v_add_u32(v(56), s(sT1), v(hf))
        k.v_lshrrev_b32(v(55), 1, v(56)); k.v_lshlrev_b32(v(55), 9, v(55))
        k.v_and_b32(v(56), 1, v(56)); k.v_lshl_add_u32(v(55), v(56), 3, v(55))
        k.v_lshl_add_u32(v(vXST), v(n), 4, v(55))
        k.s_lshl_b32(s(sT1), s(sCG), 2); k.s_add_u32(s(sT1), s(sT1), s(sW))
        k.s_bfe_u32(s(sT2), s(sT1), 1 | (2 << 16)); k.s_lshl_b32(s(sT2), s(sT2), 10)
        k.s_lshr_b32(s(sT3), s(sT1), 3); k.s_lshl_b32(s(sT3), s(sT3), 9); k.s_add_u32(s(sT2), s(sT2), s(sT3))
        k.s_and_b32(s(sT3), s(sT1), 1); k.s_lshl_b32(s(sT3), s(sT3), 3); k.s_add_u32(s(sT2), s(sT2), s(sT3))
        k.s_add_u32(s(sT2), s(sT2), 28672)
        k.v_lshl_add_u32(v(vSST), v(n), 4, s(sT2))
        k.v_and_b32(v(56), 15, v(vLANE)); k.v_mul_u32_u24(v(56), 7, v(56)); k.v_add_u32(v(56), 6, v(56))
        k.v_lshrrev_b32(v(55), 1, v(56)); k.v_lshlrev_b32(v(55), 9, v(55))
        k.v_and_b32(v(56), 1, v(56)); k.v_lshl_add_u32(v(55), v(56), 3, v(55))
        k.v_lshrrev_b32(v(56), 4, v(vLANE)); k.v_lshl_add_u32(v(55), v(56), 7, v(55))
        k.v_add_u32(v(vSLD), 112, v(55))
        k.s_lshl_b32(s(sT1), s(sTT), 5)
        k.v_add_u32(v(56), s(sT1), v(n)); k.v_mul_u32_u24(v(56), 896, v(56))
        k.s_mul_i32(s(sT1), s(sCG), 224); k.s_mul_i32(s(sT2), s(sW), 56); k.s_add_u32(s(sT1), s(sT1), s(sT2))
        k.v_lshl_add_u32(v(56), v(hf), 3, v(56))
        k.v_add_u32(v(vOUT), s(sT1), v(56))
        k.v_cmp_eq_u32('vcc', 0, v(hf))
        k.v_mov_b32(v(56), 1.0); k.v_mov_b32(v(55), f32(BIGF))
        k.v_cndmask_b32(v(vHFM), 0, v(56), 'vcc')
        k.v_mov_b32(v(56), 0)
        k.v_cndmask_b32(v(vBIG), v(55), v(56), 'vcc')
        k.v_lshlrev_b32(v(56), 2, v(hf)); k.v_sub_u32(v(vII), v(n), v(56))
        k.v_cmp_eq_u32(s(sM28, 2), 28, v(n))
        k.v_cmp_le_u32(s(sP0, 2), 28, v(n))

    def bg_wpk(self, typ, lo, hi):
        k = self.k
        for i in range(hi - lo):
            def f(i=i):
                k.s_bitcmp1_b32(s(sR), 0)
                k.s_cselect_b32(s(sB0), hi-1-i, lo+i)
                k.s_lshl_b32(s(sB0), s(sB0), 12)
                k.s_add_u32('m0', s(sLDSW), s(sB0))
                k.s_add_u32(s(sB0), s(sB0), s(sWPKH))
                k.s_add_u32(s(sB0), s(sB0), WPK[typ])
                k.buffer_load_dwordx4(v(vL16), s(S_WS, 4), s(sB0), m='offen sc1 lds')
                self.vtag('bg')
            f.gap = self.gmiss if 2*i < hi - lo else self.ghit
            self.bg.append(f)

    def bg_wo(self, typ, q0=0, q1=4):
        k = self.k
        for i in range(q0, q1):
            for f_ in range(8):
                def f(i=i, f_=f_):
                    if f_ == 0 or f_ == 4:
                        k.s_add_u32(s(sB1), s(sW), i); k.s_and_b32(s(sB1), s(sB1), 3); k.s_lshl_b32(s(sB1), s(sB1), 13)
                        k.s_add_u32(s(sB1), s(sB1), s(sOPKC)); k.s_add_u32(s(sB1), s(sB1), OPK + typ*524288 + f_*1024)
                    k.buffer_load_dwordx4(a(typ*128 + i*32 + f_*4, 4), v(vL16), s(S_WS, 4), s(sB1), m=f'offen offset:{(f_ & 3)*1024} sc1')
                    self.vtag('bg')
                f.wo = True; f.gap = self.ghit
                self.bg.append(f)

    def touch(self, base, share, ninstr, w0=0):
        k = self.k
        k.s_mul_i32(s(sB0), s(sSLOT), share); k.s_add_u32(s(sB0), s(sB0), base - w0*ninstr*8192)
        k.s_mul_i32(s(sB1), s(sW), ninstr*8192); k.s_add_u32(s(sB0), s(sB0), s(sB1))
        k.v_lshlrev_b32(v(59), 7, v(vLANE))
        for i in range(ninstr):
            k.buffer_load_dword(a(255), v(59), s(S_WS, 4), s(sB0), m='offen sc1')
            if i + 1 < ninstr: k.s_add_u32(s(sB0), s(sB0), 8192)

    def touch_half(self, base, share):
        k = self.k
        k.s_mul_i32(s(sB0), s(sSLOT), share); k.s_add_u32(s(sB0), s(sB0), base)
        k.s_lshl_b32(s(sB1), s(sW), 12); k.s_add_u32(s(sB0), s(sB0), s(sB1))
        k.v_lshlrev_b32(v(59), 6, v(vLANE))
        k.buffer_load_dword(a(255), v(59), s(S_WS, 4), s(sB0), m='offen sc1')

    def colsum_part(self, lcs, segs, raw, sreg=sT1, base=64):
        k = self.k
        ones = 57
        k.v_mov_b32(v(ones), '0x3f803f80')
        k.v_add_u32(v(58), s(sLDSW), v(vWRD0 if raw else vL16)); k.v_add_u32(v(59), s(sLDSW), v(vWRD1 if raw else vWQ))
        k.s_mul_i32(s(sreg), s(sW), 768); k.s_add_u32(s(sreg), s(sreg), lcs)
        k.v_lshl_add_u32(v(55), v(vLANE), 2, s(sreg))
        for g in segs:
            ab, off = ((59, 0), (58, L_WK), (58, L_WV))[g]
            for st in range(7):
                if raw:
                    for j in range(2):
                        k.ds_read_b64_tr_b16(v(base + st*4 + 2*j, 2), v(ab), m=f'offset:{off + st*4096 + j*256}')
                else:
                    k.ds_read_b128(v(base + st*4, 4), v(ab), m=f'offset:{off + st*4096}')
            k.v_mov_b32(v(61), 0)
            k.s_waitcnt('lgkmcnt(0)')
            for i in range(28):
                k.v_dot2_f32_bf16(v(61), v(base+i), v(ones), v(61))
            k.ds_write_b32(v(55), v(61), m=f'offset:{g*256}')

    def colsum_fin(self, lcs, typ, segs, base=64, defer=False):
        k = self.k
        k.v_lshlrev_b32(v(58), 2, v(vLANE))
        k.v_add_u32(v(58), lcs, v(58))
        for g in segs:
            for ww in range(4):
                k.ds_read_b32(v(base + g*4 + ww), v(58), m=f'offset:{ww*768 + g*256}')
        ops = []
        for g in segs:
            b = base + g*4
            ops += [lambda b=b: k.v_add_f32(v(b), v(b), v(b+1)), lambda b=b: k.v_add_f32(v(b+2), v(b+2), v(b+3)),
                    lambda b=b: k.v_add_f32(v(b), v(b), v(b+2)), lambda b=b: k.v_mov_b32(v(b+1), v(b)),
                    lambda b=b: k.v_permlane32_swap_b32(v(b), v(b+1)), lambda b=b: k.v_add_f32(v(b), v(b), v(b+1)),
                    lambda b=b: k.v_mul_f32(v(b), '-'+v(b), v(vHFM), m='') if False else k.v_mul_f32(v(b), v(b), v(vHFM)),
                    lambda b=b: k.v_sub_f32(v(b), 0, v(b)), lambda b=b: self.rbf(b+1, b),
                    lambda b=b: k.v_sub_f32(v(b+2), v(b), v(b+1)),
                    lambda b=b, g=g: k.v_cvt_pk_bf16_f32(v(vCS + 3*typ + g), v(b+1), v(b+2))]
        if defer:
            self.ltag('cs', 4*len(segs))
            return ops
        k.s_waitcnt('lgkmcnt(0)')
        for f in ops: f()

    def stats_finish(self, s1, s2):
        k = self.k
        t = 58
        self.xhalf('v_add_f32', s1, t); self.xhalf('v_add_f32', s2, t)
        k.v_mul_f32(v(s1), f32(1.0/448), v(s1))
        k.v_mul_f32(v(s2), f32(1.0/448), v(s2))
        k.v_fma_f32(v(s2), '-'+v(s1), v(s1), v(s2))
        k.v_max_f32(v(s2), 0, v(s2))
        k.v_cvt_pk_bf16_f32(v(vMB), v(s1), v(s1))
        self.rbf(s2, s2)
        k.v_add_f32(v(s2), f32(1e-5), v(s2))
        self.rbf(s2, s2)
        k.v_sqrt_f32(v(s2), v(s2))
        self.rbf(s2, s2)
        k.v_rcp_f32(v(vRINV), v(s2))
        k.ds_write_b32(v(vRVW), v(vRINV))

    def mean_steps(self, typ):
        k = self.k
        xm, wk, wv = 112, 116, 120
        k.v_mov_b32(v(xm), v(vMB)); k.v_mov_b32(v(wk), v(vCS+3*typ+1)); k.v_mov_b32(v(wv), v(vCS+3*typ+2))
        for i in range(1, 4):
            k.v_mov_b32(v(xm+i), 0); k.v_mov_b32(v(wk+i), 0); k.v_mov_b32(v(wv+i), 0)
        self.mfma(vAK, v(wk, 4), v(xm, 4), v(vAK, 16))
        self.mfma(vAV, v(xm, 4), v(wv, 4), v(vAV, 16))
        for q in range(4):
            k.ds_read_b128(v(128+4*q, 4), v(vRVR), m=f'offset:{32*q}')

    def stats_ops(self, ST):
        k = self.k
        s1, s2, t = 60, 61, 58
        ops = [
            lambda: k.v_pk_add_f32(v(ST, 2), v(ST, 2), v(ST+2, 2)), lambda: k.v_pk_add_f32(v(ST+4, 2), v(ST+4, 2), v(ST+6, 2)),
            lambda: k.v_pk_add_f32(v(ST+8, 2), v(ST+8, 2), v(ST+10, 2)), lambda: k.v_pk_add_f32(v(ST+12, 2), v(ST+12, 2), v(ST+14, 2)),
            lambda: k.v_pk_add_f32(v(ST, 2), v(ST, 2), v(ST+4, 2)), lambda: k.v_pk_add_f32(v(ST+8, 2), v(ST+8, 2), v(ST+12, 2)),
            lambda: k.v_pk_add_f32(v(s1, 2), v(ST, 2), v(ST+8, 2)),
            lambda: k.v_mov_b32(v(t), v(s1)), lambda: k.v_mov_b32(v(t+1), v(s2)),
            lambda: k.v_permlane32_swap_b32(v(s1), v(t)), lambda: k.v_permlane32_swap_b32(v(s2), v(t+1)),
            lambda: k.v_add_f32(v(s1), v(s1), v(t)), lambda: k.v_add_f32(v(s2), v(s2), v(t+1)),
            lambda: k.v_mul_f32(v(s1), f32(1.0/448), v(s1)), lambda: k.v_mul_f32(v(s2), f32(1.0/448), v(s2)),
            lambda: k.v_fma_f32(v(s2), '-'+v(s1), v(s1), v(s2)),
            lambda: k.v_max_f32(v(s2), 0, v(s2)),
            lambda: k.v_cvt_pk_bf16_f32(v(vMB), v(s1), v(s1)),
            lambda: self.rbf(s2, s2),
            lambda: k.v_add_f32(v(s2), f32(1e-5), v(s2)),
            lambda: self.rbf(s2, s2),
            lambda: k.v_sqrt_f32(v(s2), v(s2)),
            lambda: self.rbf(s2, s2),
            lambda: k.v_rcp_f32(v(vRINV), v(s2)),
        ]
        return ops

    def load_gemm_kv(self, L):
        k = self.k
        typ = L & 1
        assert not self.bg
        ST = 96
        CH = 63
        SPOS = 18
        k.s_add_u32(s(sT1), s(sXT), XB[L-1])
        def pre():
            k.s_mov_b64('exec', 0xffff)
            self.ws_ld(60, vSLD, sT1, 0, n=2)
            k.s_mov_b64('exec', -1)
        k.s_waitcnt('vmcnt(0)')
        if L == 1:
            self.colsum_part(L_CS1, (0, 1, 2), raw=False, sreg=sT2)
            k.s_waitcnt('lgkmcnt(0)')
        k.s_barrier()
        k.v_mov_b32(v(60), 0); k.v_mov_b32(v(61), 0)
        if L == 1:
            self.nohi(); pre(); self.nohi()
            self.colsum_fin(L_CS1, 1, (0, 1, 2))
            self.poll(pre, (60, 61, 61), 1 << (4*L), first_wait=0)
        else:
            self.poll(pre, (60, 61, 61), 1 << (4*L))
        self.stamp(f'L{L} x seen')
        AH = 10
        seq = []
        for st in range(28):
            if st == SPOS: seq += [('st', ST+4*i, 28672 + 1024*i) for i in range(4)]
            seq.append((f'x{st}', vXF+4*st, 1024*st))
        def ld(i):
            tag, reg, off = seq[i]
            self.ws_ld(reg, vL16, sT1, off); self.vtag(tag)
        self.nohi(); self.vq = []
        for i in range(AH): ld(i)
        k.s_mov_b32(s(sTRY), 0)
        lg, lg2, lok = k.newlabel('Lg'), k.newlabel('Lg'), k.newlabel('Lgok')
        D = 3
        def rd(st):
            b = vWF + (st % 4)*8
            k.ds_read_b128(v(b, 4), v(vL16), m=f'offset:{L_WK + st*1024}')
            k.ds_read_b128(v(b+4, 4), v(vL16), m=f'offset:{L_WV + st*1024}')
            self.ltag(f'w{st}', 2)
        vq0 = list(self.vq)
        def cold_g():
            k.label(lg)
            self.nohi()
            for i in range(AH): ld(i)
            self.nohi()
            k.s_branch(lg2)
        self.cold.append(cold_g)
        k.label(lg2)
        self.nohi()
        nxt = AH
        self.lq = []
        for st in range(D): rd(st)
        k.v_mov_b32(v(CH), 0)
        fill = []
        for st in range(28):
            self.vwait(f'x{st}')
            self.lwait(f'w{st}')
            b = vWF + (st % 4)*8
            xr = vXF + 4*st
            x = v(xr, 4)
            self.mfma(vAK, v(b, 4), x, v(vAK, 16) if st else 0)
            k.v_max3_u32(v(CH), v(xr), v(xr+1), v(CH)); k.v_max3_u32(v(CH), v(xr+2), v(xr+3), v(CH))
            for _ in range(2):
                if fill: fill.pop(0)()
            self.mfma(vAV, x, v(b+4, 4), v(vAV, 16) if st else 0)
            if st + D < 28: rd(st + D)
            for _ in range(2 if st < 8 else 1):
                if nxt < len(seq): ld(nxt); nxt += 1
            for _ in range(3):
                if fill: fill.pop(0)()
            if st == SPOS:
                fill += [lambda i=i: k.v_max3_u32(v(CH), v(ST+2*i), v(ST+2*i+1), v(CH)) for i in range(8)] + self.stats_ops(ST)
        while fill: fill.pop(0)()
        k.ds_write_b32(v(vRVW), v(vRINV))
        k.v_cmp_eq_u32('vcc', -1, v(CH))
        k.s_cmp_eq_u64('vcc', 0)
        lbad = k.newlabel('Lgbad')
        k.s_cbranch_scc0(lbad)
        k.label(lok)
        def cold_b():
            k.label(lbad)
            k.s_add_u32(s(sTRY), s(sTRY), 1)
            if self.ts: k.s_add_u32(s(sERR), s(sERR), 1 << 20)
            k.s_cmp_lt_u32(s(sTRY), MAXTRY//8)
            k.s_cbranch_scc1(lg)
            k.s_or_b32(s(sERR), s(sERR), 8 << (4*L))
            k.s_branch(lok)
        self.cold.append(cold_b)
        self.vq = []; self.lq = []
        self.mean_steps(typ)

    def gemm_q(self, typ, raw, every=2, hooks={}, fill=None):
        k = self.k
        D = 6
        per = 2 if raw else 1
        def rd(st):
            b = vWF + (st % 8)*4
            if raw:
                for j in range(2):
                    k.ds_read_b64_tr_b16(v(b + 2*j, 2), v(vWRD1), m=f'offset:{st*1024 + j*256}')
            else:
                k.ds_read_b128(v(b, 4), v(vWQ), m=f'offset:{st*1024}')
        k.s_waitcnt('lgkmcnt(0)')
        for st in range(D): rd(st)
        for st in range(28):
            rem = min(D-1, 27-st)
            k.s_waitcnt(f'lgkmcnt({per*rem})')
            b = vWF + (st % 8)*4
            self.mfma(vAQ, v(b, 4), v(vXF+4*st, 4), v(vAQ, 16) if st else 0)
            if st + D < 28: rd(st + D)
            if st % every == every - 1: self.tick()
            if st in hooks: hooks[st]()
            if fill and st >= 8:
                for _ in range(4):
                    if fill: fill.pop(0)()
        xm, wm = 112, 116
        k.v_mov_b32(v(xm), v(vMB)); k.v_mov_b32(v(wm), v(vCS+3*typ))
        for i in range(1, 4):
            k.v_mov_b32(v(xm+i), 0); k.v_mov_b32(v(wm+i), 0)
        self.mfma(vAQ, v(wm, 4), v(xm, 4), v(vAQ, 16))

    def scale_pack(self, acc, mul_lo, mul_hi=None):
        k = self.k
        for i in range(8):
            mreg = mul_hi if (mul_hi is not None and i >= 6) else mul_lo
            assert mreg % 2 == 0
            k.v_pk_mul_f32(v(acc+2*i, 2), v(acc+2*i, 2), v(mreg, 2), m='op_sel_hi:[1,0]')
        for i in range(8):
            k.v_cvt_pk_bf16_f32(v(acc+i), v(acc+2*i), v(acc+2*i+1))

    def epi_v(self):
        k = self.k
        rv = 128
        k.s_waitcnt('lgkmcnt(0)')
        for i in range(8):
            k.v_pk_mul_f32(v(vAV+2*i, 2), v(vAV+2*i, 2), v(rv+2*i, 2))
        for i in range(8):
            k.v_cvt_pk_bf16_f32(v(vAV+i), v(vAV+2*i), v(vAV+2*i+1))
        k.s_mov_b64('exec', s(sM28, 2))
        for i in range(8): k.v_mov_b32(v(vAV+i), '0x3f803f80')
        k.s_mov_b64('exec', -1)

    def sanitize(self, base, n):
        for i in range(n):
            self.k.v_min_u32(v(base+i), -2, v(base+i))

    def feature_mfma(self, frag, P):
        self.mfma(P, v(vWPHI, 4), v(frag, 4), 0)
        self.mfma(P, v(vWPHI+4, 4), v(frag+4, 4), v(P, 16))

    def feature(self, P, E, every=1, n=1):
        k = self.k
        cnt = [0]
        def tk():
            cnt[0] += 1
            if cnt[0] % every == 0: self.tick(n)
        mx, mn, t0, t1 = 58, 60, 62, 63
        c = 57
        k.v_mov_b32(v(c), f32(LOG2E))
        k.v_max3_f32(v(mx), v(P), v(P+1), v(P+2)); k.v_min3_f32(v(mn), v(P), v(P+1), v(P+2))
        for i in range(3, 11, 2):
            k.v_max3_f32(v(mx), v(P+i), v(P+i+1), v(mx)); k.v_min3_f32(v(mn), v(P+i), v(P+i+1), v(mn))
        k.v_max3_f32(v(t0), v(P+12), v(P+13), v(P+14)); k.v_min3_f32(v(t1), v(P+12), v(P+13), v(P+14))
        k.v_max_f32(v(t0), v(t0), v(P+15)); k.v_min_f32(v(t1), v(t1), v(P+15))
        k.v_sub_f32(v(t0), v(t0), v(vBIG)); k.v_add_f32(v(t1), v(t1), v(vBIG))
        k.v_max3_f32(v(mx), v(P+11), v(t0), v(mx)); k.v_min3_f32(v(mn), v(P+11), v(t1), v(mn))
        tk()
        k.v_mov_b32(v(t0), v(mx)); k.v_mov_b32(v(t1), v(mn))
        k.v_permlane32_swap_b32(v(mx), v(t0)); k.v_permlane32_swap_b32(v(mn), v(t1))
        k.v_max_f32(v(mx), v(mx), v(t0)); k.v_min_f32(v(mn), v(mn), v(t1))
        k.v_mul_f32(v(mx), v(c), v(mx)); k.v_mul_f32(v(mn), v(c), v(mn))
        k.v_add_f32(v(mx+1), v(mx), v(vBIG)); k.v_sub_f32(v(mn+1), v(mn), v(vBIG))
        for i in range(0, 16, 2):
            o = 1 if i >= 12 else 0
            k.v_pk_fma_f32(v(E+i, 2), v(P+i, 2), v(56, 2), v(mn, 2), m=f'op_sel:[0,1,{o}] op_sel_hi:[1,1,{o}] neg_lo:[1,0,0] neg_hi:[1,0,0]')
            k.v_pk_fma_f32(v(P+i, 2), v(P+i, 2), v(56, 2), v(mx, 2), m=f'op_sel:[0,1,{o}] op_sel_hi:[1,1,{o}] neg_lo:[0,0,1] neg_hi:[0,0,1]')
            if i % 8 == 6: tk()
        for i in range(16):
            k.v_exp_f32(v(E+i), v(E+i)); k.v_exp_f32(v(P+i), v(P+i))
            if i % 4 == 3: tk()
        for X, sm in ((P, mx), (E, mn)):
            k.v_pk_add_f32(v(sm, 2), v(X, 2), v(X+2, 2))
            for i in range(4, 16, 2): k.v_pk_add_f32(v(sm, 2), v(sm, 2), v(X+i, 2))
            k.v_add_f32(v(sm), v(sm), v(sm+1))
        tk()
        k.v_mov_b32(v(t0), v(mx)); k.v_mov_b32(v(t1), v(mn))
        k.v_permlane32_swap_b32(v(mx), v(t0)); k.v_permlane32_swap_b32(v(mn), v(t1))
        k.v_add_f32(v(mx), v(mx), v(t0)); k.v_add_f32(v(mn), v(mn), v(t1))
        k.v_rcp_f32(v(mx), v(mx)); k.v_rcp_f32(v(mn), v(mn))
        self.scale_pack(P, mx); tk(); self.scale_pack(E, mn); tk()

    def resets(self, L, z=124, t1=sT1, t2=sT2):
        k = self.k
        if L >= 3: return
        for i in range(4): k.v_mov_b32(v(z+i), -1)
        bufs = [XB[L], OB[L+1]]
        if self.opt.get('xb1early'):
            if L == 0: bufs.append(XB[1])
            if L == 1: bufs = bufs[1:]
        def st(fl):
            for b_ in bufs:
                k.s_add_u32(s(t1), s(sOT_P), b_)
                self.ws_st(z, vL16, t1, 0, flags=fl); self.ws_st(z, vL16, t1, 1024, flags=fl)
        self.local_stores(st)

    def bg_reset_kvh3(self):
        k = self.k
        z = 108
        def f0():
            for i in range(4): k.v_mov_b32(v(z+i), -1)
        for i in range(4):
            def f(i=i):
                k.s_add_u32(s(sB0), s(sKVH_P), KVH[3])
                k.buffer_store_dwordx4(v(z, 4), v(vL16), s(S_WS, 4), s(sB0), m=f'offen offset:{1024*i} sc1')
            self.bg.append(f)
        return f0

    def o_tail(self, L, acc, eps):
        k = self.k
        d0, d1 = 58, 60
        k.v_mov_b32(v(d0), v(acc+12)); k.v_mov_b32(v(d1), v(acc+12))
        k.s_add_u32(s(sT1), s(sOT_P), OB[L])
        k.v_permlane32_swap_b32(v(d0), v(d1))
        if eps: k.v_add_f32(v(d1), f32(1e-6), v(d1))
        k.v_rcp_f32(v(d1), v(d1))
        self.scale_pack(acc, d1)
        self.sanitize(acc, 8)
        def st(fl):
            self.ws_st(acc, vL16, sT1, 0, flags=fl); self.ws_st(acc+4, vL16, sT1, 1024, flags=fl)
        self.local_stores(st)

    def bg_reset(self, sb, add, off, z):
        k = self.k
        def f():
            k.s_add_u32(s(sB0), s(sb), add)
            k.buffer_store_dwordx4(v(z, 4), v(vL16), s(S_WS, 4), s(sB0), m=f'offen offset:{off} sc1')
            self.vtag('bg')
        f.gap = 120
        return f

    def layer_A(self, L):
        k = self.k
        self.stamp(f'L{L} kv gemm')
        if L == 2:
            self.bg_wpk(0, 14, 21)
            for f in self.bg: f.gap = 130
            self.bgon()
        self.scale_pack(vAK, vRINV)
        P, E = 112, 128
        self.feature_mfma(vAK, P)
        self.epi_v()
        if L == 0:
            self.bgoff()
            self.flag_wait(1, 96)
            k.s_barrier()
            self.flag_post(2, 92)
            wo_rest = self.bg; self.bg = []
            self.bg_wpk(1, 0, 14)
            wb = self.bg; self.bg = []
            while wo_rest or wb:
                if wb:
                    f = wb.pop(0); f.gap = self.ghit; self.bg.append(f)
                self.bg += wo_rest[:2]; wo_rest = wo_rest[2:]
            self.bgon()
        k.ds_write_b128(v(vVOW), v(vAV, 4)); k.ds_write_b128(v(vVOW), v(vAV+4, 4), m='offset:1024')
        self.feature(P, E)
        self.bgoff()
        for sg, X in ((0, P), (1, E)):
            for q in range(4):
                k.ds_write_b64(v(vPHW), v(X+2*q, 2), m=f'offset:{sg*PHI_SIGN + q*16}')
        if L == 0:
            self.burst(5)
            self.colsum_part(L_CS0, (0,), raw=False, sreg=sT3)
            self.burst(3)
        if L == 2:
            assert not self.bg
            k.s_waitcnt('vmcnt(0)')
        k.s_waitcnt('lgkmcnt(0)')
        k.s_barrier()
        self.stamp(f'L{L} phi_k')
        lq = k.newlabel('Lq')
        k.s_cmp_ge_u32(s(sW), 2); k.s_cbranch_scc1(lq)
        A0, ACC = 112, 96
        B0 = [64, 68, 72, 76, 80, 84, 88, 92]
        k.v_add_u32(v(55), L_VOWN, v(vL16))
        def rdkv(idx):
            u, j = idx >> 1, idx & 1
            for jj in range(2):
                k.ds_read_b64_tr_b16(v(A0+4*idx+2*jj, 2), v(vPHR), m=f'offset:{(u*8+4*j+2*jj)*264}')
            k.ds_read_b128(v(B0[idx], 4), v(55), m=f'offset:{u*2048+j*1024}')
        for idx in range(5): rdkv(idx)
        k.s_add_u32(s(sT1), s(sKVP_P), KVP[L])
        for idx in range(8):
            k.s_waitcnt(f'lgkmcnt({3*min(4, 7-idx)})')
            self.mfma(ACC, v(A0+4*idx, 4), v(B0[idx], 4), v(ACC, 16) if idx else 0)
            if idx + 5 < 8: rdkv(idx + 5)
        for i in range(8): k.v_cvt_pk_bf16_f32(v(64+i), v(ACC+2*i), v(ACC+2*i+1))
        self.sanitize(64, 8)
        self.nohi()
        self.ws_st(64, vL16, sT1, 0, flags='sc1'); self.ws_st(68, vL16, sT1, 1024, flags='sc1')
        k.label(lq)
        self.stamp(f'L{L} kvp pub')
        for i in range(4): k.v_mov_b32(v(84+i), -1)
        rs = [self.bg_reset(sKVH_P, KVH[L+1], 1024*i, 84) for i in range(4)]
        if L == 0:
            rs.append(self.bg_reset(97, KVP[2], 0, 84))
            self.colsum_fin(L_CS0, 0, (0,), base=72)
            for i in range(8):
                k.v_lshlrev_b32(v(vXRES+2*i), 16, v(vXRES+8+i)); k.v_and_b32(v(vXRES+2*i+1), '0xffff0000', v(vXRES+8+i))
            k.s_mul_i32(s(sT1), s(sW), 4096 - 128); k.s_add_u32(s(sT1), s(sT1), (L_RINV - L_RINV0) & 0xffffffff)
            k.v_add_u32(v(vRVW), s(sT1), v(vRVW)); k.v_add_u32(v(vRVR), s(sT1), v(vRVR))
        else:
            self.bg_wpk(1, 0, 14)
        self.bg = rs + self.bg
        self.resets(L)
        self.burst(3)
        self.bgon()
        self.gemm_q(0, raw=False, hooks={23: self.bgoff})
        assert not any(f in self.bg for f in rs)
        self.scale_pack(vAQ, vRINV)
        PQ, EQ = 64, 80
        self.feature_mfma(vAQ, PQ)
        self.stamp(f'L{L} q gemm')
        G = 144
        k.s_lshl_b32(s(sT1), s(sH), 16); k.s_lshl_b32(s(sT2), s(sOM), 6); k.s_add_u32(s(sT1), s(sT1), s(sT2))
        k.s_add_u32(s(sT1), s(sT1), KVP[L])
        k.v_lshrrev_b32(v(59), 2, v(vLANE)); k.v_lshlrev_b32(v(59), 12, v(59))
        k.v_and_b32(v(58), 3, v(vLANE)); k.v_lshl_add_u32(v(59), v(58), 4, v(59))
        k.v_lshrrev_b32(v(60), 4, v(vLANE)); k.v_lshlrev_b32(v(60), 2, v(60)); k.v_lshl_add_u32(v(G+8), v(58), 4, v(60))
        k.v_mov_b32(v(G+10), '0x3f80'); k.v_mov_b32(v(G+11), 1.0)
        k.v_mov_b32(v(G+4), 0); k.v_mov_b32(v(G+5), 0)
        self.poll(lambda: self.ws_ld(G, 59, sT1, 0), range(G, G+4), 2 << (4*L), sleep=1)
        self.stamp(f'L{L} kvp got')
        k.v_permlane32_swap_b32(v(G), v(G+2)); k.v_permlane32_swap_b32(v(G+1), v(G+3))
        k.v_permlane16_swap_b32(v(G), v(G+1)); k.v_permlane16_swap_b32(v(G+2), v(G+3))
        for i in range(4):
            k.v_dot2_f32_bf16(v(G+4), v(G+i), v(G+10), v(G+4)); k.v_dot2_f32_bf16(v(G+5), v(G+i), v(G+11), v(G+5))
        k.s_lshl_b32(s(sT1), s(sH), 12); k.s_add_u32(s(sT1), s(sT1), KVR[L]); k.s_add_u32(s(sT2), s(sT2), s(sT1))
        for rot in (4, 8):
            for i in (4, 5):
                k.v_add_f32_dpp(v(G+i), v(G+i), v(G+i), m=f'row_ror:{rot} row_mask:0xf bank_mask:0xf')
        k.v_cvt_pk_bf16_f32(v(G+4), v(G+4), v(G+5))
        self.sanitize(G+4, 1)
        k.s_mov_b32('exec_lo', 0x000f000f); k.s_mov_b32('exec_hi', 0x000f000f)
        k.buffer_store_dword(v(G+4), v(G+8), s(S_WS, 4), s(sT2), m='offen sc1')
        k.s_mov_b64('exec', -1)
        self.stamp(f'L{L} kvr pub')
        k.s_barrier()
        self.bg_wpk(1, 14, 21)
        self.burst(5)
        self.bgon()
        self.feature(PQ, EQ)
        self.bgoff()
        while any(getattr(f, 'wo', False) for f in self.bg): self.bg.pop(0)()
        if L == 0:
            self.vq = []
            self.flag_issue(2, 160)
        self.stamp(f'L{L} phi_q')
        def issue():
            for i in range(4): self.ws_ld(128+4*i, vL16, sT1, 1024*i)
        self.poll(issue, range(128, 144), 2 << (4*L), sleep=1)
        self.stamp(f'L{L} kvr got')
        ACC = 96
        for i, B in enumerate((PQ, PQ+4, EQ, EQ+4)):
            self.mfma(ACC, v(128+4*i, 4), v(B, 4), v(ACC, 16) if i else 0)
        self.o_tail(L, ACC, True)
        if L == 0:
            self.vq = []
            self.flag_wait(2, 160)
        self.stamp(f'L{L} o pub')

    def layer_B(self, L):
        k = self.k
        self.stamp(f'L{L} kv gemm')
        self.nohi()
        k.s_add_u32(s(sT1), s(sKVH_P), KVH[L])
        self.scale_pack(vAK, vRINV)
        self.sanitize(vAK, 8)
        for i, rg in enumerate((vAK, vAK+4)): self.ws_st(rg, vL16, sT1, 1024*i, flags='sc1')
        self.epi_v()
        self.sanitize(vAV, 8)
        for i, rg in enumerate((vAV, vAV+4)): self.ws_st(rg, vL16, sT1, 2048+1024*i, flags='sc1')
        self.stamp(f'L{L} kvh pub')
        if self.opt.get('early_reset'): self.resets(L)
        if L == 1: k.s_barrier()
        for i, rg in enumerate((vAK, vAK+4, vAV, vAV+4)):
            k.ds_write_b128(v(vKVL), v(rg, 4), m=f'offset:{8*4096 + 1024*i}')
        k.s_lshl_b32(s(sT1), s(sR), 1); k.s_add_u32(s(sT1), s(sT1), s(sW))
        k.s_add_u32(s(sT2), s(sKVH_C), KVH[L])
        k.s_cmp_lt_u32(s(sT1), 4); k.s_cselect_b32(s(sT1), 0x7000000, s(sT2))
        k.s_add_u32(s(sT2), s(sT1), 4096)
        k.s_lshl_b32(s(sT3), s(sW), 13); k.s_add_u32(s(sT3), s(sT3), L_KVL)
        def hdma(f0):
            def f():
                for j, so in ((0, sT1), (1, sT2)):
                    k.s_add_u32('m0', s(sT3), j*4096)
                    for fr in (f0, f0+1):
                        k.buffer_load_dwordx4(v(vL16), s(S_WS, 4), s(so), m=f'offen offset:{fr*1024} sc1 lds')
            return f
        def hcheck(f0, R, wait):
            lp, lo, lr = k.newlabel('Lhp'), k.newlabel('Lho'), k.newlabel('Lhr')
            k.s_mov_b32(s(sTRY), 0)
            k.s_waitcnt(f'vmcnt({wait})')
            k.label(lp)
            for j in range(2):
                for i in range(2):
                    k.ds_read_b128(v(R + 8*j + 4*i, 4), v(vHW), m=f'offset:{j*4096 + (f0+i)*1024}')
            k.s_waitcnt('lgkmcnt(0)')
            self.check(range(R, R+16))
            k.s_cbranch_scc0(lr)
            k.label(lo)
            def cold():
                k.label(lr)
                if self.ts: k.s_add_u32(s(sERR), s(sERR), 1 << 16)
                k.s_add_u32(s(sTRY), s(sTRY), 1)
                k.s_cmp_ge_u32(s(sTRY), MAXTRY); k.s_cselect_b32(s(sT6), 2 << (4*L), 0); k.s_or_b32(s(sERR), s(sERR), s(sT6))
                k.s_cmp_lg_u32(s(sT6), 0); k.s_cbranch_scc1(lo)
                k.s_sleep(2)
                hdma(f0)()
                if f0 == 0: hdma(2)()
                k.s_waitcnt('vmcnt(0)')
                k.s_branch(lp)
            self.cold.append(cold)
        SR = [144, 112, 128, 176, 192, 208, 224, 240]
        S0, S8 = 144, 160
        NEG = 57
        M = 88
        mx = 58
        fill = [lambda: k.v_mov_b32(v(NEG), f32(-BIGF)), lambda: k.v_mov_b32(v(60), 0xffff), lambda: k.v_mov_b32(v(61), '0xffff0000')]
        for r in range(0, 16, 2):
            fill += [lambda r=r: k.v_cmp_le_i32(s(sC0, 2), (r & 3) + 8*(r >> 2), v(vII)),
                     lambda r=r: k.v_cmp_le_i32(s(sP0, 2), ((r+1) & 3) + 8*((r+1) >> 2), v(vII)),
                     lambda r=r: k.v_mov_b32(v(mx), f32(-BIGF)) if r == 0 else (k.v_or_b32(v(M + r//2 - 1), v(62), v(63))),
                     lambda r=r: k.v_cndmask_b32(v(S8+r), v(NEG), 0, s(sC0, 2)), lambda r=r: k.v_cndmask_b32(v(S8+r+1), v(NEG), 0, s(sP0, 2)),
                     lambda r=r: k.v_cndmask_b32(v(S0+r), 0, v(NEG), s(sC0, 2)), lambda r=r: k.v_cndmask_b32(v(S0+r+1), 0, v(NEG), s(sP0, 2)),
                     lambda r=r: k.v_cndmask_b32(v(62), 0, v(60), s(sC0, 2)), lambda r=r: k.v_cndmask_b32(v(63), 0, v(61), s(sP0, 2))]
        fill += [lambda: k.v_or_b32(v(M + 7), v(62), v(63)), lambda: k.v_mov_b32(v(mx+1), f32(-BIGF)),
                 lambda: k.v_mul_f32(v(62), f32(28**-0.5 * LOG2E), v(vRINV)), lambda: k.v_mul_f32(v(60), v(62), v(vHFM))]
        self.gemm_q(1, raw=False, hooks={self.hk: hdma(0), self.hv: hdma(2)}, fill=fill)
        assert not fill
        self.scale_pack(vAQ, 62, 60)
        self.mfma(S8, v(vAK, 4), v(vAQ, 4), v(S8, 16))
        self.mfma(S8, v(vAK+4, 4), v(vAQ+4, 4), v(S8, 16))
        self.stamp(f'L{L} q')
        hcheck(0, 176, 4)
        k.s_barrier()
        self.stamp(f'L{L} halo got')
        KB = 64
        def kb(t): return KB + (t % 3)*8
        def rdk(t):
            k.ds_read_b128(v(kb(t), 4), v(vKVL), m=f'offset:{t*4096}')
            k.ds_read_b128(v(kb(t)+4, 4), v(vKVL), m=f'offset:{t*4096+1024}')
            self.ltag(f'k{t}', 2)
        def rdv(t):
            k.ds_read_b128(v(kb(t), 4), v(vKVL), m=f'offset:{t*4096+2048}')
            k.ds_read_b128(v(kb(t)+4, 4), v(vKVL), m=f'offset:{t*4096+3072}')
            self.ltag(f'v{t}', 2)
        def maxtile(S):
            return [lambda i=i: k.v_max3_f32(v(mx + ((i >> 1) & 1)), v(S+i), v(S+i+1), v(mx + ((i >> 1) & 1))) for i in range(0, 16, 2)]
        def merge():
            return [lambda r=r: k.v_max_f32(v(S0+r), v(S0+r), v(S8+r)) for r in range(16)]
        self.lq = []
        for t in range(3): rdk(t)
        if not self.opt.get('early_reset'): self.resets(L, z=104, t1=sT4, t2=sT5)
        lslow, ljoin = k.newlabel('Lsl'), k.newlabel('Ljn')
        k.s_cmp_lg_u32(s(sTMIN), 0); k.s_cbranch_scc1(lslow)
        lq0 = list(self.lq)
        self.vq = []
        if L == 1:
            self.bg_wpk(0, 0, 14)
            late = self.bg[5:]; self.bg = self.bg[:5]
            self.bg_wo(1, 0, 4)
            self.bg += late
        self.bg_log = []
        self.bgon()
        def smfma(fast):
            for t in range(8):
                self.lwait(f'k{t}')
                self.mfma(SR[t], v(kb(t), 4), v(vAQ, 4), v(S0, 16) if t == 0 else 0)
                for _ in range(6):
                    if fast: fast.pop(0)()
                self.mfma(SR[t], v(kb(t)+4, 4), v(vAQ+4, 4), v(SR[t], 16))
                if t + 3 < 8: rdk(t + 3)
                if fast is not None:
                    for _ in range(5):
                        if fast: fast.pop(0)()
                    if t == 1: fast += merge() + maxtile(S0)
                    if t >= 2: fast += maxtile(SR[t-1])
        fast = []
        smfma(fast)
        fast += maxtile(SR[7])
        while fast: fast.pop(0)()
        replay = list(self.bg_log)
        k.label(ljoin)
        def cold():
            k.label(lslow)
            self.lq = list(lq0)
            for f in replay: f()
            smfma(None)
            lf = k.newlabel('Lfix')
            for t in range(8):
                k.s_cmp_le_u32(s(sTMIN), t); k.s_cbranch_scc1(lf)
                for i in range(16): k.v_mov_b32(v(SR[t]+i), v(NEG))
            k.label(lf)
            for f in merge(): f()
            for t in range(8):
                for f in maxtile(SR[t]): f()
            k.s_branch(ljoin)
        self.cold.append(cold)
        k.v_max_f32(v(mx), v(mx), v(mx+1))
        self.xhalf('v_max_f32', mx, 60)
        k.v_sub_f32(v(mx), 0, v(mx))
        V8 = S8 + 8
        P8 = S8
        ACC = 96
        pend = []
        for t in range(8):
            S = SR[t]
            for i in range(8): k.v_pk_add_f32(v(S+2*i, 2), v(S+2*i, 2), v(mx, 2), m='op_sel_hi:[1,0]')
            for i in range(16):
                k.v_exp_f32(v(S+i), v(S+i))
                if i % 4 == 1 and pend: pend.pop(0)()
                if i % 4 == 3: self.tick()
            for i in range(8): k.v_cvt_pk_bf16_f32(v(S+i), v(S+2*i), v(S+2*i+1))
            if t >= 1: self.tick()
            if t == 0:
                for i in range(8):
                    k.v_and_b32(v(P8+i), v(S+i), v(M+i)); k.v_xor_b32(v(S+i), v(S+i), v(P8+i))
                self.bgoff()
                hcheck(2, 64, len(self.vq))
                k.s_barrier()
                self.stamp(f'L{L} V ok')
                self.burst(4)
                self.bgon()
                self.lq = []
                for tt in range(3): rdv(tt)
                k.ds_read_b128(v(V8, 4), v(vKVL), m=f'offset:{8*4096+2048}')
                k.ds_read_b128(v(V8+4, 4), v(vKVL), m=f'offset:{8*4096+3072}')
                self.ltag('v8', 2)
            def m1(t=t, S=S):
                self.lwait(f'v{t}')
                self.mfma(ACC, v(kb(t), 4), v(S, 4), v(ACC, 16) if t else 0)
            def m2(t=t, S=S):
                self.mfma(ACC, v(kb(t)+4, 4), v(S+4, 4), v(ACC, 16))
                if t + 3 < 8: rdv(t + 3)
            pend += [m1, m2]
            if t == 0:
                def m3():
                    self.lwait('v8')
                    self.mfma(ACC, v(V8, 4), v(P8, 4), v(ACC, 16))
                pend += [m3, lambda: self.mfma(ACC, v(V8+4, 4), v(P8+4, 4), v(ACC, 16))]
        while pend: pend.pop(0)()
        self.bgoff()
        while any(getattr(f, 'wo', False) for f in self.bg): self.bg.pop(0)()
        self.o_tail(L, ACC, False)
        self.stamp(f'L{L} o pub')

    def outproj(self, L):
        k = self.k
        typ = L & 1
        G = 144
        assert not any(getattr(f, 'wo', False) for f in self.bg)
        k.s_add_u32(s(sT1), s(sOT_C), OB[L])
        def issue():
            for i in range(8): self.ws_ld(G+4*i, vL16, sT1, 1024*i)
        self.poll(issue, range(G, G+32), 4 << (4*L))
        self.stamp(f'L{L} o got')
        for i in range(8): k.ds_write_b128(v(vGW), v(G+4*i, 4), m=f'offset:{1024*i}')
        if L == 0:
            self.touch_half(OPK + 524288, 16384)
        self.burst(5)
        for f in self.bg: f.gap = min(f.gap, 900 // max(1, len(self.bg)))
        self.bgon()
        for i in range(4):
            self.mfma(vXRES, a(typ*128+4*i, 4), v(G+4*i, 4), v(vXRES, 16))
        k.s_waitcnt('lgkmcnt(0)')
        k.s_barrier()
        def breg(f): return (64 if f < 8 else 176 - 32) + 4*f
        def rdo(f): k.ds_read_b128(v(breg(f), 4), v((vG1, vG2, vG3)[f >> 3]), m=f'offset:{1024*(f & 7)}')
        D = 12
        for i in range(4, 8):
            for f in range(3*(i-4), 3*(i-4)+3): rdo(f)
            self.mfma(vXRES, a(typ*128+4*i, 4), v(G+4*i, 4), v(vXRES, 16))
        for f in range(24):
            k.s_waitcnt(f'lgkmcnt({min(D-1, 23-f)})')
            self.mfma(vXRES, a(typ*128+32+4*f, 4), v(breg(f), 4), v(vXRES, 16))
            if f + D < 24: rdo(f + D)
            if f % 2 == 0: self.tick()
        self.bgoff()
        PK = 112
        for i in range(8): k.v_cvt_pk_bf16_f32(v(PK+i), v(vXRES+2*i), v(vXRES+2*i+1))
        if L == self.nlayers - 1:
            for q in range(3):
                k.buffer_store_dwordx2(v(PK+2*q, 2), v(vOUT), s(S_OUT, 4), 0, m=f'offen offset:{16*q}')
            k.s_mov_b32('exec_hi', 0)
            k.buffer_store_dwordx2(v(PK+6, 2), v(vOUT), s(S_OUT, 4), 0, m='offen offset:48')
            k.s_mov_b32('exec_hi', -1)
            self.stamp(f'L{L} out')
            return
        self.sanitize(PK, 8)
        k.s_add_u32(s(sT1), s(sXT_P), XB[L])
        def st(fl):
            for q in range(3): self.ws_st(PK+2*q, vXST, sT1, 512*q, n=2, flags=fl)
            k.s_mov_b32('exec_hi', 0)
            self.ws_st(PK+6, vXST, sT1, 512*3, n=2, flags=fl)
            k.s_mov_b32('exec_hi', -1)
        self.local_stores(st)
        for i in range(8):
            k.v_lshlrev_b32(v(vXRES+2*i), 16, v(PK+i)); k.v_and_b32(v(vXRES+2*i+1), '0xffff0000', v(PK+i))
        s1, s2, t1, t2 = 120, 122, 124, 126
        X = vXRES
        k.v_pk_add_f32(v(s1, 2), v(X, 2), v(X+2, 2)); k.v_pk_mul_f32(v(s2, 2), v(X, 2), v(X, 2))
        k.v_pk_fma_f32(v(s2, 2), v(X+2, 2), v(X+2, 2), v(s2, 2))
        for i in range(4, 12, 2):
            k.v_pk_add_f32(v(s1, 2), v(s1, 2), v(X+i, 2)); k.v_pk_fma_f32(v(s2, 2), v(X+i, 2), v(X+i, 2), v(s2, 2))
        k.v_pk_add_f32(v(t1, 2), v(X+12, 2), v(X+14, 2)); k.v_pk_mul_f32(v(t2, 2), v(X+12, 2), v(X+12, 2))
        k.v_pk_fma_f32(v(t2, 2), v(X+14, 2), v(X+14, 2), v(t2, 2))
        k.v_add_f32(v(s1), v(s1), v(s1+1)); k.v_add_f32(v(s2), v(s2), v(s2+1))
        k.v_add_f32(v(t1), v(t1), v(t1+1)); k.v_add_f32(v(t2), v(t2), v(t2+1))
        k.s_mov_b32('exec_hi', 0)
        k.v_add_f32(v(s1), v(s1), v(t1)); k.v_add_f32(v(s2), v(s2), v(t2))
        k.s_mov_b32('exec_hi', -1)
        k.v_mov_b32(v(t1), v(s1)); k.v_mov_b32(v(t2), v(s2))
        k.v_permlane32_swap_b32(v(s1), v(t1)); k.v_permlane32_swap_b32(v(s2), v(t2))
        k.v_add_f32(v(s1), v(s1), v(t1)); k.v_add_f32(v(s1+1), v(s2), v(t2))
        self.sanitize(s1, 2)
        def st2(fl):
            k.s_mov_b32('exec_hi', 0)
            self.ws_st(s1, vSST, sT1, 0, n=2, flags=fl)
            k.s_mov_b32('exec_hi', -1)
        self.local_stores(st2)
        self.drain()
        self.stamp(f'L{L} x pub')

    def build(self):
        k = self.k
        self.prologue()
        for L in range(self.nlayers):
            if L > 0: self.load_gemm_kv(L)
            if L & 1: self.layer_B(L)
            else: self.layer_A(L)
            self.outproj(L)
        if self.ts:
            k.s_memrealtime(s(sTS, 2)); k.s_waitcnt('lgkmcnt(0)')
            k.v_writelane_b32(v(vNEGB), s(90), 59); k.v_writelane_b32(v(vNEGB), s(sTS), 60); k.v_writelane_b32(v(vNEGB), s(92), 61)
            k.v_writelane_b32(v(vNEGB), s(sERR), 63)
            k.v_writelane_b32(v(vNEGB), s(sMODE), 62)
            k.v_lshlrev_b32(v(60), 2, v(vLANE))
            k.buffer_store_dword(v(vNEGB), v(60), s(S_WS, 4), s(sTSO), m='offen')
        k.label('Lend')
        k.s_endpgm()
        self.bgoff()
        while self.cold: self.cold.pop(0)()
        k.label('Lcode_end')
        body = k.finish()
        hdr = open('cdna_kernels/' + NAME + '.s.ref').read().split('; Override launch')[0]
        return hdr + f"""; Generated by gen/gen.py (persistent kernel, 256 workgroups x 4 waves).
; @launch grid=(256,1,1) block=(256,1,1) lds={LDS_BYTES}
.amdgcn_target "amdgcn-amd-amdhsa--gfx950"
.text
.globl {NAME}_kernel
.p2align 8
.type {NAME}_kernel,@function
{NAME}_kernel:
{body}.section .rodata,"a"
.p2align 6
.amdhsa_kernel {NAME}_kernel
  .amdhsa_next_free_vgpr 512
  .amdhsa_next_free_sgpr 102
  .amdhsa_accum_offset 256
  .amdhsa_group_segment_fixed_size 0
  .amdhsa_kernarg_size 80
  .amdhsa_user_sgpr_count 2
  .amdhsa_user_sgpr_kernarg_segment_ptr 1
  .amdhsa_system_sgpr_workgroup_id_x 1
.end_amdhsa_kernel
"""

if __name__ == '__main__':
    import argparse
    ap = argparse.ArgumentParser()
    ap.add_argument('-o', default='cdna_kernels/' + NAME + '.s')
    ap.add_argument('--ts', action='store_true')
    ap.add_argument('--slow', action='store_true')
    ap.add_argument('--noalias', action='store_true')
    ap.add_argument('--tlb', action='store_true')
    ap.add_argument('--opt', action='append', default=[])
    ap.add_argument('--gmiss', type=int, default=250)
    ap.add_argument('--ghit', type=int, default=90)
    ap.add_argument('--hk', type=int, default=14)
    ap.add_argument('--hv', type=int, default=24)
    ap.add_argument('--layers', type=int, default=4)
    args = ap.parse_args()
    g = Gen(ts=args.ts, force_slow=args.slow, nlayers=args.layers, alias=not args.noalias, tlb=args.tlb, hk=args.hk, hv=args.hv, gmiss=args.gmiss, ghit=args.ghit, opt={o.split('=')[0]: (int(o.split('=')[1]) if '=' in o else 1) for o in args.opt})
    src = g.build()
    open(args.o, 'w').write(src)
    if args.ts:
        open(args.o + '.tsnames', 'w').write('\n'.join(g.tsnames))
    print('instructions', g.k.nins, 'bytes of source', len(src))
```

```python
import sys, math, struct
from asmlib import *

NAME = "interleave_layers__linear_kernel_hedgehog__sliding_block__prompt"

def f32(x):
    return '0x%08x' % struct.unpack('<I', struct.pack('<f', x))[0]

MB = 1 << 20
XB = [0*MB, 2*MB, 4*MB]
OB = [6*MB, 8*MB, 10*MB, 12*MB]
KVP = {0: 14*MB, 2: 15*MB}
KVH = {1: 16*MB, 3: 20*MB}
TS_BASE = 24*MB
FLG = 24*MB + 768*1024
KVR = {0: 24*MB + 512*1024, 2: 24*MB + 576*1024}
WPK = [25*MB, 25*MB + 16*86016]
OPK = 28*MB
CSP = 29*MB
WS_BYTES = 30*MB

SEG = 28672
L_WK, L_WV, L_WQ = 0, SEG, 2*SEG
L_KVL = 3*SEG
L_PHI = L_KVL
PHI_SIGN = 32*264
L_VOWN = L_KVL + 17408
L_KVF = L_KVL + 25600
L_CS1 = L_KVL + 29696
L_RINV = L_KVL + 32768
L_GATH = L_KVL + 45056
L_ST = 114688
L_CS0 = L_KVL + 65536
L_RINV0 = L_KVL + 69632
LDS_BYTES = 163840
assert L_GATH + 32768 == LDS_BYTES

S_WS, S_AX, S_WA, S_WB, S_WPHI, S_WOA, S_WOB, S_OUT, S_DBG, S_CODE = 8, 12, 16, 20, 24, 28, 32, 36, 40, 44
sR, sH, sW, sTT, sCG, sMODE, sXCC, sTRY = 48, 49, 50, 51, 52, 53, 54, 55
sXT, sOT_P, sOT_C, sXT_P, sKVP_P, sKVP_C, sKVH_P, sKVH_C = 56, 57, 58, 59, 60, 61, 62, 63
sT0, sT1, sT2, sT3, sT4, sT5 = 64, 65, 66, 67, 68, 69
sM28 = 70
sTMIN = 72
sWPKH = 73
sLDSW = 74
sSTW = 75
sTS = 76
sTSO = 78
sERR = 79
sB0, sB1 = 80, 81
sC0, sC1 = 82, 83
sP0 = 84
sOPKC = 86
sOM = 87
sT6, sT7 = 88, 89
sSLOT = 94
sJUNK = 72
sE0, sE1 = 4, 5

vLANE, vL16, vWRD0, vWRD1, vWQ, vNEGB, vHW, vXST, vSST, vSLD = 0, 1, 2, 3, 4, 5, 6, 7, 8, 9
vPHW, vPHR, vRVW, vRVR, vKVL, vOUT, vG1, vG2, vG3, vHFM, vBIG, vII, vVOW, vGW = 10, 11, 12, 13, 14, 15, 16, 17, 18, 19, 20, 21, 22, 23
vWPHI = 24
vXRES = 32
vCS = 48
vMB, vRINV = 54, 56
vT = 54
vAK, vAV, vAQ = 64, 80, 96
vWF = 112
vXF = 144
vS = 112

BIGF = 3.0e38
LOG2E = 1.4426950408889634
MAXTRY = 20000
MFMA = 'v_mfma_f32_32x32x16_bf16'

class Gen:
    def __init__(self, ts=False, force_slow=False, nlayers=4, alias=True, tlb=False, hk=20, hv=27, gmiss=250, ghit=90, opt={}):
        self.tlb = tlb
        self.opt = opt
        self.gmiss, self.ghit = gmiss, ghit
        self.hk, self.hv = hk, hv
        if alias:
            XB[2] = XB[0]; OB[2] = OB[0]; OB[3] = OB[1]
        self.k = Asm()
        self.ts = ts
        self.force_slow = force_slow
        self.nlayers = nlayers
        self.nts = 0
        self.bg = []; self.bg_log = []
        self._hi = None
        self.lq = []; self.vq = []
        self.cold = []

    def stamp(self, name):
        if not self.ts or self.opt.get('lite'): return
        k = self.k
        k.c(f'stamp {self.nts}: {name}')
        k.s_memtime(s(sTS, 2))
        k.s_waitcnt('lgkmcnt(0)')
        k.v_writelane_b32(v(vNEGB), s(sTS), self.nts)
        self.tsnames = getattr(self, 'tsnames', []) + [name]
        self.nts += 1

    def tick(self, n=1):
        pass

    def _hook(self):
        if self.bg and self.k.est >= self.bg_next:
            f = self.bg.pop(0)
            f()
            self.bg_log.append(f)
            self.bg_next = self.k.est + getattr(f, 'gap', 90)

    def bgon(self, delay=0):
        self.k.hook = self._hook; self.k.hook_ok = True
        self.bg_next = max(getattr(self, 'bg_next', 0), self.k.est + delay)

    def bgoff(self):
        self.k.hook_ok = False

    def burst(self, n):
        for _ in range(n):
            if self.bg:
                f = self.bg.pop(0); f(); self.bg_log.append(f)
        self.bg_next = self.k.est + 200

    def drain(self):
        while self.bg: self.bg.pop(0)()

    def ltag(self, tag, n=1):
        self.lq += [tag]*n
    def lwait(self, tag=None):
        if tag is None:
            self.k.s_waitcnt('lgkmcnt(0)'); self.lq = []; return
        if tag not in self.lq: return
        idx = len(self.lq) - 1 - self.lq[::-1].index(tag)
        n = len(self.lq) - 1 - idx
        self.k.s_waitcnt(f'lgkmcnt({min(n, 15)})')
        self.lq = self.lq[idx+1:]
    def vtag(self, tag, n=1):
        self.vq += [tag]*n
    def vwait(self, tag=None):
        if tag is None:
            self.k.s_waitcnt('vmcnt(0)'); self.vq = []; return
        if tag not in self.vq: return
        idx = len(self.vq) - 1 - self.vq[::-1].index(tag)
        n = len(self.vq) - 1 - idx
        assert n <= 63
        self.k.s_waitcnt(f'vmcnt({n})')
        self.vq = self.vq[idx+1:]

    def mfma(self, d, a_, b_, c):
        self.k(MFMA, v(d, 16), a_, b_, c)

    def srd(self, d, b, n):
        k = self.k
        k.s_mov_b32(s(d), s(b)); k.s_and_b32(s(d+1), s(b+1), '0xffff')
        k.s_mov_b32(s(d+2), n); k.s_mov_b32(s(d+3), '0x20000')

    def _so(self, sbase, off):
        hi = off & ~0xfff
        if not hi: return s(sbase)
        if self._hi != (sbase, hi):
            self.k.s_add_u32(s(sT5), s(sbase), hi); self._hi = (sbase, hi)
        return s(sT5)

    def ws_ld(self, dst, voff, sbase, off, n=4, flags='sc1'):
        op = {1: 'buffer_load_dword', 2: 'buffer_load_dwordx2', 4: 'buffer_load_dwordx4'}[n]
        so = self._so(sbase, off)
        self.k(op, v(dst, n), v(voff), s(S_WS, 4), so, m=f'offen offset:{off & 0xfff} {flags}'.strip())

    def ws_st(self, src, voff, sbase, off, n=4, flags=''):
        op = {1: 'buffer_store_dword', 2: 'buffer_store_dwordx2', 4: 'buffer_store_dwordx4'}[n]
        so = self._so(sbase, off)
        self.k(op, v(src, n), v(voff), s(S_WS, 4), so, m=f'offen offset:{off & 0xfff} {flags}'.strip())

    def nohi(self):
        self._hi = None

    def local_stores(self, fn):
        k = self.k
        ls, ld = k.newlabel('Lslow'), k.newlabel('Ldone')
        k.s_cmp_eq_u32(s(sMODE), 0)
        k.s_cbranch_scc1(ls)
        self.nohi(); fn('')
        k.label(ld)
        self.nohi()
        def cold():
            k.label(ls)
            self.nohi(); fn('sc1'); self.nohi()
            k.s_branch(ld)
        self.cold.append(cold)

    def check(self, regs):
        k = self.k
        t = 62
        regs = list(regs)
        k.v_max3_u32(v(t), v(regs[0]), v(regs[1]), v(regs[2]))
        rest = regs[3:]
        while rest:
            if len(rest) >= 2:
                k.v_max3_u32(v(t), v(rest[0]), v(rest[1]), v(t)); rest = rest[2:]
            else:
                k.v_max_u32(v(t), v(rest[0]), v(t)); rest = rest[1:]
        k.v_cmp_eq_u32('vcc', -1, v(t))
        k.s_cmp_eq_u64('vcc', 0)

    def poll(self, issue, regs, code, first_wait=None, sleep=0):
        k = self.k
        lp, lo = k.newlabel('Lpoll'), k.newlabel('Lok')
        def loop():
            k.s_mov_b32(s(sTRY), 0)
            l2, l3 = k.newlabel('Lp2'), k.newlabel('Lp3')
            k.s_branch(l3) if sleep else None
            k.label(l2)
            if sleep: k.s_sleep(sleep)
            k.label(l3)
            self.nohi(); issue(); self.nohi()
            k.s_add_u32(s(sTRY), s(sTRY), 1)
            k.s_cmp_ge_u32(s(sTRY), MAXTRY)
            k.s_cselect_b32(s(sT6), code, 0)
            k.s_or_b32(s(sERR), s(sERR), s(sT6))
            k.s_waitcnt('vmcnt(0)')
            self.check(regs)
            k.s_cselect_b32(s(sT7), 1, s(sT6))
            k.s_cmp_eq_u32(s(sT7), 0)
            k.s_cbranch_scc1(l2)
        if first_wait is None:
            loop()
        else:
            k.s_mov_b32(s(sTRY), 0)
            k.s_mov_b32(s(sT6), 0)
            l2, l3 = k.newlabel('Lp2'), k.newlabel('Lp3')
            assert first_wait == 0
            k.s_branch(l3)
            k.label(l2)
            if self.ts: k.s_add_u32(s(sERR), s(sERR), 1 << 16)
            if sleep: k.s_sleep(sleep)
            self.nohi(); issue(); self.nohi()
            k.s_add_u32(s(sTRY), s(sTRY), 1)
            k.s_cmp_ge_u32(s(sTRY), MAXTRY)
            k.s_cselect_b32(s(sT6), code, 0)
            k.s_or_b32(s(sERR), s(sERR), s(sT6))
            k.label(l3)
            k.s_waitcnt('vmcnt(0)')
            self.check(regs)
            k.s_cselect_b32(s(sT7), 1, s(sT6))
            k.s_cmp_eq_u32(s(sT7), 0)
            k.s_cbranch_scc1(l2)

    def xhalf(self, op, dst, t):
        k = self.k
        k.v_mov_b32(v(t), v(dst))
        k.v_permlane32_swap_b32(v(dst), v(t))
        k(op, v(dst), v(dst), v(t))

    def rbf(self, dst, src):
        k = self.k
        k.v_cvt_pk_bf16_f32(v(dst), v(src), v(src))
        k.v_and_b32(v(dst), '0xffff0000', v(dst))

    def prologue(self):
        k = self.k
        k.label('Lstart')
        k.s_load_dwordx16(s(64, 16), s(0, 2), 0)
        k.s_load_dwordx4(s(80, 4), s(0, 2), 64)
        k.s_getpc_b64(s(4, 2))
        k.label('Lpc')
        k.s_memrealtime(s(90, 2))
        if self.ts: k.s_memtime(s(92, 2))
        k.s_cmp_ge_u32(s(2), 256)
        k.s_cbranch_scc1('Lend')
        k.s_lshr_b32(s(6), s(2), 3)
        k.s_sub_u32(s(S_CODE), s(4), 'Lpc-Lstart'); k.s_subb_u32(s(5), s(5), 0)
        k.s_and_b32(s(S_CODE+1), s(5), '0xffff')
        k.s_mov_b32(s(S_CODE+2), 'Lcode_end-Lstart'); k.s_mov_b32(s(S_CODE+3), '0x20000')
        k.v_lshrrev_b32(v(1), 6, v(0))
        k.v_and_b32(v(vLANE), 63, v(0))
        k.v_readfirstlane_b32(s(sW), v(1))
        k.s_lshl_b32(s(3), s(6), 11)
        k.v_lshlrev_b32(v(2), 5, v(vLANE))
        lcp = k.newlabel('Lcp')
        k.s_cmp_lg_u32(s(sW), 3); k.s_cbranch_scc1(lcp)
        k.buffer_load_dword(v(240), v(2), s(S_CODE, 4), s(3), m='offen')
        k.label(lcp)
        k.s_and_b32(s(sH), s(6), 15)
        k.s_and_b32(s(3), s(2), 7)
        k.s_lshr_b32(s(7), s(6), 4)
        k.s_lshl_b32(s(3), s(3), 1)
        k.s_add_u32(s(sR), s(3), s(7))
        n, hf, r4, ch, c4, l2 = 60, 61, 62, 63, 59, 58
        k.v_and_b32(v(c4), 3, v(vLANE))
        k.v_lshrrev_b32(v(l2), 2, v(vLANE))
        vODMA, vPDMA = 97, 98
        k.v_mul_u32_u24(v(vPDMA), 2688, v(l2))
        k.v_lshl_add_u32(v(vPDMA), v(c4), 4, v(vPDMA))
        k.v_mul_u32_u24(v(vODMA), 896, v(l2))
        k.v_lshl_add_u32(v(vODMA), v(c4), 4, v(vODMA))
        k.v_mul_u32_u24(v(96), 56, v(l2))
        k.v_lshl_add_u32(v(96), v(c4), 4, v(96))
        k.v_lshlrev_b32(v(vL16), 4, v(vLANE))
        k.s_lshl_b32(s(sOM), s(sR), 2); k.s_add_u32(s(sOM), s(sOM), s(sW))
        sRHO, sPH, sPD = 101, 100, 95
        k.s_lshl_b32(s(sRHO), s(sR), 4); k.s_add_u32(s(sRHO), s(sRHO), s(sH))
        k.s_and_b32(s(sPH), s(sRHO), 3); k.s_lshl_b32(s(sPH), s(sPH), 2); k.s_add_u32(s(sPH), s(sPH), s(sW))
        k.s_waitcnt('lgkmcnt(0)')
        self.srd(S_DBG, 80, 256)
        lep = k.newlabel('Lep')
        k.s_add_u32(s(3), s(2), s(sW)); k.s_cmp_lg_u32(s(3), 0); k.s_cbranch_scc1(lep)
        k.s_andn2_b32(s(3), s(90), 15); k.s_or_b32(s(4), s(91), 0x40000000)
        k.v_mov_b32(v(56), s(3)); k.v_mov_b32(v(57), s(4))
        k.s_mov_b64('exec', 1)
        k.buffer_store_dwordx2(v(56, 2), v(vLANE), s(S_DBG, 4), 0, m='offen sc1')
        k.s_mov_b64('exec', -1)
        k.label(lep)
        self.srd(S_WA, 66, 1204224); self.srd(S_WB, 74, 1204224)
        self.srd(S_WOA, 70, 401408); self.srd(S_WOB, 76, 401408)
        self.srd(S_AX, 64, 1835008); self.srd(S_WPHI, 68, 25088)
        self.srd(S_OUT, 78, 1835008); self.srd(S_WS, 82, WS_BYTES)
        k.s_lshl_b32(s(sLDSW), s(sW), 10)
        k.s_mul_i32(s(sSTW), s(sW), 7168); k.s_add_u32(s(sSTW), s(sSTW), L_ST)
        self.vq = []
        sPS = 97
        k.s_lshr_b32(s(sT1), s(sRHO), 2)
        k.s_cmp_ge_u32(s(sT1), 28); k.s_cselect_b32(s(sT2), 1, 0)
        k.s_cmp_ge_u32(s(sT1), 56); k.s_cselect_b32(s(sT2), 2, s(sT2))
        k.s_mul_i32(s(sT3), s(sT2), 28); k.s_sub_u32(s(sT3), s(sT1), s(sT3)); k.s_mul_i32(s(sT3), s(sT3), 16*2688)
        k.s_add_u32(s(sT2), s(sT2), 1); k.s_cmp_eq_u32(s(sT2), 3); k.s_cselect_b32(s(sT2), 0, s(sT2))
        k.s_mul_i32(s(sT2), s(sT2), 896); k.s_add_u32(s(sT3), s(sT3), s(sT2))
        k.s_mul_i32(s(sT0), s(sPH), 56); k.s_add_u32(s(sPS), s(sT3), s(sT0))
        k.s_add_u32('m0', s(sSTW), 0)
        k.buffer_load_dwordx4(v(vPDMA), s(S_WA, 4), s(sPS), m='offen lds')
        k.s_mul_i32(s(sT2), s(sPH), 86016); k.s_lshl_b32(s(sT3), s(sT1), 10); k.s_add_u32(s(sPD), s(sT2), s(sT3))
        k.s_add_u32(s(sPD), s(sPD), WPK[0])
        k.s_add_u32(s(sT3), s(sT1), 8); k.s_mul_i32(s(sT3), s(sT3), 16*2688); k.s_add_u32(s(sPS+1), s(sT3), s(sT0))
        k.s_add_u32(s(sPD+1), s(sPD), 65536)
        k.s_sub_u32(s(sT1), s(sRHO), 80)
        k.s_lshr_b32(s(sT2), s(sT1), 3); k.s_bfe_u32(s(sT1), s(sT1), 2 | (1 << 16))
        k.s_mul_i32(s(sT3), s(sT2), 28*896); k.s_add_u32(s(sT0), s(sT0), s(sT3)); k.s_mul_i32(s(sT3), s(sT1), 16*896); k.s_add_u32(s(sT0), s(sT0), s(sT3))
        k.s_lshl_b32(s(sT3), s(sPH), 15); k.s_lshl_b32(s(sT2), s(sT2), 11); k.s_add_u32(s(sT3), s(sT3), s(sT2))
        k.s_lshl_b32(s(sT1), s(sT1), 10); k.s_add_u32(s(sT3), s(sT3), s(sT1)); k.s_add_u32(s(sT3), s(sT3), OPK)
        k.s_cmp_ge_u32(s(sRHO), 208); k.s_cselect_b32(s(sT3), 0x7000000, s(sT3))
        k.s_cmp_ge_u32(s(sRHO), 80); k.s_cselect_b32(s(sPS+1), s(sT0), s(sPS+1)); k.s_cselect_b32(s(sPD+1), s(sT3), s(sPD+1))
        k.s_mul_i32(s(sC0), s(sPH), 10752); k.s_lshr_b32(s(sT1), s(sRHO), 2); k.s_lshl_b32(s(sT1), s(sT1), 7)
        k.s_add_u32(s(sC0), s(sC0), s(sT1)); k.s_add_u32(s(sC0), s(sC0), CSP)
        k.s_add_u32(s(sC1), s(sC0), 64*128)
        k.s_cmp_ge_u32(s(sRHO), 80); k.s_cselect_b32(s(sC1), 0x7000000, s(sC1))
        def pack_dma1(typ, slot):
            la, lb = k.newlabel('La'), k.newlabel('Lb')
            k.s_add_u32('m0', s(sSTW), slot*1024)
            k.s_cmp_ge_u32(s(sRHO), 80); k.s_cbranch_scc1(la)
            k.buffer_load_dwordx4(v(vPDMA), s(S_WB if typ else S_WA, 4), s(sPS+1), m='offen lds')
            k.s_branch(lb)
            k.label(la)
            k.buffer_load_dwordx4(v(vODMA), s(S_WOB if typ else S_WOA, 4), s(sPS+1), m='offen lds')
            k.label(lb)
        pack_dma1(0, 1)
        self.vtag('pack', 2)
        def packb_dma():
            k.s_add_u32('m0', s(sSTW), 2*1024)
            k.buffer_load_dwordx4(v(vPDMA), s(S_WB, 4), s(sPS), m='offen lds')
            pack_dma1(1, 3)
            self.vtag('packb', 2)
        k.s_mul_i32(s(sT1), s(sH), 1568)
        k.s_add_u32('m0', s(sSTW), 5*1024)
        k.buffer_load_dwordx4(v(96), s(S_WPHI, 4), s(sT1), m='offen lds')
        k.s_add_u32(s(sT1), s(sT1), 16*56)
        k.s_add_u32('m0', s(sSTW), 6*1024)
        k.buffer_load_dwordx4(v(96), s(S_WPHI, 4), s(sT1), m='offen lds')
        self.vtag('phi', 2)
        if self.tlb:
            k.v_lshlrev_b32(v(2), 20, v(vLANE))
            k.s_lshl_b32(s(sT1), s(2), 7)
            k.s_mov_b32('exec_hi', 0)
            k.buffer_load_dword(a(255), v(2), s(S_WS, 4), s(sT1), m='offen')
            k.buffer_load_dword(a(254), v(2), s(S_OUT, 4), s(sT1), m='offen')
            k.s_mov_b32('exec_hi', -1)
            self.vtag('tlb', 2)
        if self.ts:
            k.s_lshl_b32(s(sT1), s(2), 2); k.s_add_u32(s(sT1), s(sT1), s(sW)); k.s_lshl_b32(s(sT1), s(sT1), 8)
            k.s_add_u32(s(sTSO), s(sT1), TS_BASE)
            k.v_mov_b32(v(vNEGB), 0)
        self.stamp('pack issued')
        vX0, vBW0, vBW1, vBR = 101, 102, 103, 104
        vPK8, vPK4 = 99, 100
        k.v_lshrrev_b32(v(56), 3, v(vLANE))
        k.s_lshl_b32(s(sT1), s(sOM), 5)
        k.v_add_u32(v(55), s(sT1), v(56)); k.v_mul_u32_u24(v(vX0), 896, v(55))
        k.v_and_b32(v(55), 7, v(vLANE))
        k.v_lshrrev_b32(v(56), 4, v(vLANE)); k.v_xor_b32(v(55), v(55), v(56))
        k.v_lshl_add_u32(v(vX0), v(55), 4, v(vX0))
        k.v_xor_b32(v(vBW0), 64, v(vX0))
        sC0_ = 99
        k.s_and_b32(s(sT1), s(sR), 1); k.s_mul_i32(s(sT1), s(sT1), 3); k.s_add_u32(s(sC0_), s(sH), s(sT1))
        k.s_cmp_ge_u32(s(sC0_), 7); k.s_cselect_b32(s(sT1), 7, 0); k.s_cmp_ge_u32(s(sC0_), 14); k.s_cselect_b32(s(sT1), 14, s(sT1))
        k.s_sub_u32(s(sC0_), s(sC0_), s(sT1))
        def line(dst, i):
            k.s_add_u32(s(dst), s(sC0_), i)
            k.s_cmp_ge_u32(s(dst), 7); k.s_cselect_b32(s(sT5), 7, 0); k.s_sub_u32(s(dst), s(dst), s(sT5))
        def wdma(segs, ii):
            line(sT4, ii)
            k.s_lshl_b32(s(sT4), s(sT4), 12)
            k.s_add_u32(s(sT4), s(sT4), s(sWPKH))
            for g in segs:
                k.s_add_u32('m0', s(sLDSW), g*SEG + ii*4096)
                k.s_add_u32(s(sT5), s(sT4), WPK[0] + g*SEG)
                k.buffer_load_dwordx4(v(vL16), s(S_WS, 4), s(sT5), m='offen sc1 lds')
                self.vtag('wq' if g == 2 else f'w{ii}')
        def xload(c):
            line(sT0, c)
            k.s_lshl_b32(s(sT0), s(sT0), 7)
            for g in range(4):
                if g: k.s_add_u32(s(sT0), s(sT0), 8*896)
                k.s_add_u32('m0', s(sLDSW), (4*c+g)*4096)
                k.buffer_load_dwordx4(v(vBW0 if g & 1 else vX0), s(S_AX, 4), s(sT0), m='offen lds')
            self.vtag(f'x{c}', 4)
        def xread(c):
            for sp in range(4):
                k.ds_read_b128(v(vXF+4*(4*c+sp), 4), v((vBR if c < 4 else 84)+sp), m=f'offset:{(c & 3)*16384}')
            self.ltag(f'b{c}', 4)
        ones = 57
        def xstat(c):
            for i in range(16):
                x = vXF + 16*c + i
                k.v_dot2_f32_bf16(v(60), v(x), v(ones), v(60))
                k.v_dot2_f32_bf16(v(61), v(x), v(x), v(61))
        def st1(reg, sb, add, off=0, tag='st'):
            so = sb
            if add:
                k.s_add_u32(s(sT2), s(sb), add); so = sT2
            k.buffer_store_dwordx4(v(reg, 4), v(vL16), s(S_WS, 4), s(so), m=f'offen offset:{off} sc1')
            self.vtag(tag)
        xload(0)
        self.setup2()
        self.stamp('setup2')
        k.v_mov_b32(v(ones), '0x3f803f80')
        for i in range(4): k.v_mov_b32(v(60+i), 0)
        vPK1a, vPK1b = 110, 111
        k.s_cmp_ge_u32(s(sRHO), 80); k.s_cselect_b64('vcc', -1, 0); k.s_cselect_b32(s(sT1), 2, 1); k.s_lshl_b32(s(sT1), s(sT1), 8)
        k.v_cndmask_b32(v(vPK1a), v(vPK8), v(vPK4), 'vcc')
        k.v_add_u32(v(vPK1b), s(sT1), v(vPK1a))
        sPADM = 7
        k.s_sub_u32(s(sT1), s(sRHO), 80); k.s_bitcmp1_b32(s(sT1), 2); k.s_cselect_b32(s(sPADM), -1, 0)
        k.s_cmp_ge_u32(s(sRHO), 80); k.s_cselect_b32(s(sPADM), s(sPADM), 0)
        def pack_out(typ, slot, P, dadd):
            for j in range(2):
                k.ds_read_b64_tr_b16(v(P+2*j, 2), v(vPK8), m=f'offset:{slot*1024 + j*256}')
            k.ds_read_b64_tr_b16(v(P+4, 2), v(vPK1a), m=f'offset:{slot*1024 + 1024}')
            k.ds_read_b64_tr_b16(v(P+6, 2), v(vPK1b), m=f'offset:{slot*1024 + 1024}')
            k.s_waitcnt('lgkmcnt(2)')
            st1(P, sPD, dadd[0])
            k.s_waitcnt('lgkmcnt(0)')
            k.s_mov_b32('exec_lo', 0); k.s_mov_b32('exec_hi', s(sPADM))
            k.v_mov_b32(v(P+6), 0); k.v_mov_b32(v(P+7), 0)
            k.s_mov_b64('exec', -1)
            if typ:
                k.s_mov_b32(s(sT3), dadd[0]); k.s_cmp_ge_u32(s(sRHO), 80); k.s_cselect_b32(s(sT3), dadd[1], s(sT3))
                k.s_add_u32(s(sPD+1), s(sPD+1), s(sT3))
            st1(P+4, sPD+1, 0)
            A_, B_ = 76, 78
            k.v_mov_b32(v(A_), 0); k.v_mov_b32(v(B_), 0)
            for i in range(4):
                k.v_dot2_f32_bf16(v(A_), v(P+i), v(ones), v(A_)); k.v_dot2_f32_bf16(v(B_), v(P+4+i), v(ones), v(B_))
            k.v_permlane32_swap_b32(v(A_), v(B_))
            k.v_add_f32(v(A_), v(A_), v(B_))
            k.v_and_b32(v(B_), 31, v(vLANE)); k.v_lshlrev_b32(v(B_), 2, v(B_))
            k.s_mov_b32('exec_hi', 0)
            k.buffer_store_dword(v(A_), v(B_), s(S_WS, 4), s(sC0), m='offen sc1')
            k.s_mov_b32('exec_hi', -1); k.s_mov_b32('exec_lo', 0)
            k.buffer_store_dword(v(A_), v(B_), s(S_WS, 4), s(sC1), m='offen sc1')
            k.s_mov_b32('exec_lo', -1)
            self.vtag('st', 2)
            if typ == 0:
                k.s_add_u32(s(sC0), s(sC0), 172032); k.s_add_u32(s(sC1), s(sC1), 172032)
        self.vwait('pack')
        self.stamp('pack in')
        pack_out(0, 0, 64, (0, 0))
        EP = 80
        k.v_mov_b32(v(EP+2), 0)
        k.buffer_load_dwordx2(v(EP, 2), v(EP+2), s(S_DBG, 4), 0, m='offen sc1'); self.vtag('ep')
        self.stamp('pack out')
        def fillall():
            assert XB[1] - XB[0] == 2*MB and OB[0] - XB[0] == 6*MB and OB[1] - XB[0] == 8*MB
            k.v_lshrrev_b32(v(58), 4, v(vLANE)); k.v_lshrrev_b32(v(59), 5, v(vLANE)); k.v_add_u32(v(58), v(58), v(59))
            k.v_lshlrev_b32(v(58), 21, v(58))
            k.v_and_b32(v(59), 15, v(vLANE)); k.v_lshl_add_u32(v(58), v(59), 7, v(58))
            k.buffer_load_dword(a(255), v(58), s(S_WS, 4), s(sOT_P), m='offen sc1'); self.vtag('bg')
        FP = self.opt.get('fp', -1)
        packb_dma()
        if FP == 0: fillall()
        xload(1); xload(2)
        self.vwait('x0')
        self.lq = []
        xread(0)
        for j in range(2):
            for jj in range(2):
                k.ds_read_b64_tr_b16(v(vWPHI+4*j+2*jj, 2), v(vPK4), m=f'offset:{5120 + j*1024 + jj*512}')
        self.lwait()
        k.s_mov_b32('exec_lo', 0)
        k.v_mov_b32(v(vWPHI+6), 0); k.v_mov_b32(v(vWPHI+7), 0)
        k.s_mov_b64('exec', s(sP0, 2))
        for i in range(8): k.v_mov_b32(v(vWPHI+i), 0)
        k.s_mov_b64('exec', -1)
        xstat(0)
        self.vwait('ep')
        self.tag_get(EP)
        k.s_barrier()
        self.stamp('acked')
        self.flag_post(0, EP)
        if FP == 1: fillall()
        self.vwait('packb')
        pack_out(1, 2, 64, (WPK[1] - WPK[0], 524288))
        for i in range(4): k.v_mov_b32(v(108+i), -1)
        k.s_lshl_b32(s(97), s(sR), 12); k.s_add_u32(s(97), s(97), s(sKVP_C))
        k.s_lshl_b32(s(98), s(sH), 12); k.s_add_u32(s(98), s(98), s(sLDSW))
        k.s_lshl_b32(s(sT3), s(sR), 16); k.s_add_u32(s(98), s(98), s(sT3))
        k.s_mov_b32(s(sT3), 0x7000000); k.s_cmp_lt_u32(s(sR), 2); k.s_cselect_b32(s(sT3), KVR[0], s(sT3)); k.s_add_u32(s(98), s(98), s(sT3))
        st1(108, 97, KVP[0]); st1(108, 98, 0)
        for c in range(3, 7): xload(c)
        if FP == 2: fillall()
        for c in range(1, 7):
            if c == 3: self.quad_issue(72)
            self.vwait(f'x{c}')
            xread(c)
            if 2 <= c <= 4:
                self.lwait(f'b{c-1}')
                xstat(c-1)
        self.lwait()
        self.stamp('x0 done')
        self.quad_wait(72)
        self.code_pf(1024)
        self.stamp('flags')
        L_CT = L_KVL + 32768 + 4096*4 + 8192
        for ii in range(7):
            wdma((0, 1), ii)
            if ii == 2: self.cs_dma(0, L_CT)
            if ii == 3: self.flag_issue(0, 32)
            if ii in (2, 4, 6): xstat(3 + ii//2)
        self.stats_finish(60, 61)
        D = 3
        def rdw(st):
            b = vWF + (st % 4)*8
            k.ds_read_b128(v(b, 4), v(vL16), m=f'offset:{L_WK + st*1024}')
            k.ds_read_b128(v(b+4, 4), v(vL16), m=f'offset:{L_WV + st*1024}')
            self.ltag(f'w{st}', 2)
        def gemm(s0, s1, extra, fill=None):
            for st in range(s0, s1):
                self.lwait(f'w{st}')
                b = vWF + (st % 4)*8
                x = v(vXF+4*st, 4)
                self.mfma(vAK, v(b, 4), x, v(vAK, 16) if st else 0)
                for _ in range(4):
                    if fill: fill.pop(0)()
                self.mfma(vAV, x, v(b+4, 4), v(vAV, 16) if st else 0)
                if st + D < s1: rdw(st + D)
                if extra: extra.pop(0)()
        nop = lambda: None
        self.stamp('W issued')
        self.flag_wait(0, 32)
        k.s_waitcnt('lgkmcnt(0)')
        k.s_barrier()
        self.lq = []
        for st in range(D): rdw(st)
        self.flag_post(1, 96)
        self.touch_half(OPK, 16384); self.vtag('bg')
        self.stamp('W half1')
        def rob():
            k.s_add_u32(s(sT1), s(sOT_P), OB[0])
            def st(fl):
                self.ws_st(108, vL16, sT1, 0, flags=fl); self.ws_st(108, vL16, sT1, 1024, flags=fl)
            self.local_stores(st); self.vtag('st', 2)
        def resid():
            for q in range(4):
                k.buffer_load_dwordx2(v(100+2*q, 2), v(vOUT), s(S_AX, 4), 0, m=f'offen offset:{16*q}')
            self.vtag('res', 4)
        fin = self.cs_ops(0, L_CT, 32, 55)
        ex = [nop]
        for ii in range(7): ex += [lambda ii=ii: wdma((2,), ii)]
        ex += [resid]
        gemm(0, 16, ex, fin)
        self.vwait('w6')
        k.s_barrier()
        self.stamp('W kv')
        for st in range(16, 16+D): rdw(st)
        rob()
        self.rs0 = [self.bg_reset(sKVH_P, KVH[1], 1024*i, 108) for i in range(4)] + [self.bg_reset(97, KVP[2], 0, 108)]
        if self.opt.get('abl_r', 0) & 2: self.rs0 = []
        for f in self.rs0: f.gap = 60
        if not self.opt.get('s0a'): self.bg += self.rs0
        self.bg_wo(0)
        self.bgon()
        gemm(16, 28, [], fin)
        while fin: fin.pop(0)()
        if self.opt.get('s0a'):
            self.bgoff(); self.quad_issue(58, stage=1, both=True); self.bgon()
        self.mean_steps(0)
        self.vwait('res')
        for i in range(8):
            k.v_lshlrev_b32(v(vXRES+2*i), 16, v(100+i)); k.v_and_b32(v(vXRES+2*i+1), '0xffff0000', v(100+i))

    def tag_get(self, EP):
        k = self.k
        lfe, lfe2, lfe3 = k.newlabel('Lfe'), k.newlabel('Lfe'), k.newlabel('Lfe')
        k.s_mov_b32(s(sTRY), 0)
        k.label(lfe2)
        k.v_readfirstlane_b32(s(sE0), v(EP)); k.v_readfirstlane_b32(s(sE1), v(EP+1))
        k.s_cmp_eq_u32(s(sE1), 0); k.s_cbranch_scc1(lfe)
        k.label(lfe3)
        def cold():
            k.label(lfe)
            k.s_sleep(2)
            k.buffer_load_dwordx2(v(EP, 2), v(EP+2), s(S_DBG, 4), 0, m='offen sc1')
            k.s_add_u32(s(sTRY), s(sTRY), 1)
            k.s_waitcnt('vmcnt(0)')
            k.s_cmp_lt_u32(s(sTRY), MAXTRY); k.s_cbranch_scc1(lfe2)
            k.s_or_b32(s(sERR), s(sERR), 1 << 29)
            k.s_branch(lfe3)
        self.cold.append(cold)
        k.s_or_b32(s(sE0), s(sE0), s(sXCC))

    def flag_post(self, stage, EP):
        k = self.k
        lfx = k.newlabel('Lfx')
        k.s_cmp_lg_u32(s(sW), 3); k.s_cbranch_scc1(lfx)
        k.v_mov_b32(v(EP), s(sE0)); k.v_mov_b32(v(EP+1), s(sE1))
        k.s_and_b32(s(3), s(101), 3); k.s_lshl_b32(s(3), s(3), 9); k.s_lshr_b32(s(6), s(101), 2); k.s_lshl_b32(s(6), s(6), 3)
        k.s_add_u32(s(3), s(3), s(6)); k.s_add_u32(s(3), s(3), FLG + 2048*stage)
        k.s_mov_b64('exec', 1)
        k.buffer_store_dwordx2(v(EP, 2), v(vLANE), s(S_WS, 4), s(3), m='offen sc1')
        k.s_mov_b64('exec', -1)
        k.label(lfx)

    def quad_issue(self, F, stage=0, both=False):
        k = self.k
        A = F + (4 if both else 2)
        k.v_lshlrev_b32(v(A), 3, v(vLANE))
        k.s_lshr_b32(s(6), s(sH), 2); k.s_lshl_b32(s(6), s(6), 9); k.s_add_u32(s(6), s(6), FLG + 2048*stage)
        if both:
            k.s_lshl_b32(s(7), s(sCG), 9); k.s_add_u32(s(7), s(7), FLG + 2048*stage)
        self._quad_ld(F, both)
        self.vtag('quad', 2 if both else 1)

    def _quad_ld(self, F, both):
        k = self.k
        A = F + (4 if both else 2)
        k.buffer_load_dwordx2(v(F, 2), v(A), s(S_WS, 4), s(6), m='offen sc1')
        if both: k.buffer_load_dwordx2(v(F+2, 2), v(A), s(S_WS, 4), s(7), m='offen sc1')

    def quad_wait(self, F, both=False):
        k = self.k
        lp, lr, lgo = k.newlabel('Lqp'), k.newlabel('Lqr'), k.newlabel('Lqo')
        k.s_mov_b32(s(sTRY), 0)
        self.vwait('quad')
        k.label(lp)
        k.v_xor_b32(v(F), s(sE0), v(F)); k.v_xor_b32(v(F+1), s(sE1), v(F+1))
        if both:
            k.v_xor_b32(v(F+2), s(sE0), v(F+2)); k.v_xor_b32(v(F+3), s(sE1), v(F+3))
            k.v_or_b32(v(F), v(F), v(F+2)); k.v_or_b32(v(F+1), v(F+1), v(F+3))
        k.v_and_b32(v(F), -16, v(F)); k.v_or_b32(v(F), v(F), v(F+1))
        k.v_cmp_ne_u32('vcc', 0, v(F))
        k.s_cmp_eq_u64('vcc', 0)
        k.s_cbranch_scc1(lgo)
        k.s_add_u32(s(sTRY), s(sTRY), 1)
        k.s_cmp_ge_u32(s(sTRY), MAXTRY); k.s_cselect_b32(s(sT6), 1 << 28, 0); k.s_or_b32(s(sERR), s(sERR), s(sT6))
        k.s_cmp_lg_u32(s(sT6), 0); k.s_cbranch_scc1(lgo)
        if self.ts: k.s_add_u32(s(sERR), s(sERR), 1 << 24)
        k.s_sleep(4)
        self._quad_ld(F, both)
        k.s_waitcnt('vmcnt(0)')
        k.s_branch(lp)
        k.label(lgo)

    def flag_issue(self, stage, F):
        k = self.k
        k.v_lshlrev_b32(v(F+8), 5, v(vLANE))
        k.s_mov_b32(s(3), FLG + 2048*stage)
        k.buffer_load_dwordx4(v(F, 4), v(F+8), s(S_WS, 4), s(3), m='offen sc1')
        k.buffer_load_dwordx4(v(F+4, 4), v(F+8), s(S_WS, 4), s(3), m='offen offset:16 sc1')
        self.vtag('flg', 2)

    def flag_wait(self, stage, F):
        k = self.k
        lp, lr, lgo = k.newlabel('Lfp'), k.newlabel('Lfr'), k.newlabel('Lgo')
        k.s_mov_b32(s(sTRY), 0)
        self.vwait('flg')
        k.label(lp)
        for i in range(4):
            k.v_xor_b32(v(F+2*i), s(sE0), v(F+2*i)); k.v_xor_b32(v(F+2*i+1), s(sE1), v(F+2*i+1))
        k.v_or3_b32(v(F), v(F), v(F+2), v(F+4)); k.v_or_b32(v(F), v(F), v(F+6))
        k.v_or3_b32(v(F+1), v(F+1), v(F+3), v(F+5)); k.v_or_b32(v(F+1), v(F+1), v(F+7))
        k.v_and_b32(v(F+2), -16, v(F)); k.v_or_b32(v(F+2), v(F+2), v(F+1))
        k.v_cmp_ne_u32('vcc', 0, v(F+2))
        k.s_cmp_eq_u64('vcc', 0)
        k.s_cbranch_scc0(lr)
        k.label(lgo)
        def cold():
            k.label(lr)
            k.s_add_u32(s(sTRY), s(sTRY), 1)
            k.s_cmp_ge_u32(s(sTRY), MAXTRY); k.s_cselect_b32(s(sT6), 1 << 30, 0); k.s_or_b32(s(sERR), s(sERR), s(sT6))
            k.s_cmp_lg_u32(s(sT6), 0); k.s_cbranch_scc1(lgo)
            if self.ts: k.s_add_u32(s(sERR), s(sERR), 1 << 24)
            k.s_sleep(4)
            k.s_mov_b32(s(3), FLG + 2048*stage)
            k.buffer_load_dwordx4(v(F, 4), v(F+8), s(S_WS, 4), s(3), m='offen sc1')
            k.buffer_load_dwordx4(v(F+4, 4), v(F+8), s(S_WS, 4), s(3), m='offen offset:16 sc1')
            k.s_waitcnt('vmcnt(0)')
            k.s_branch(lp)
        self.cold.append(cold)
        if stage == 0:
            k.v_cmp_eq_u32('vcc', 0, v(F))
            k.s_lshr_b64(s(sP0, 2), 'vcc', s(sR))
            k.s_and_b32(s(3), s(sP0), s(sP0+1))
            k.s_and_b32(s(3), s(3), 0x10001)
            k.s_cmp_eq_u32(s(3), 0x10001)
            k.s_cselect_b32(s(sMODE), 0 if self.force_slow else 1, 0)

    def setup2(self):
        k = self.k
        n, hf, r4, ch, c4, l2 = 60, 61, 62, 63, 59, 58
        k.s_getreg_b32(s(sXCC), 'hwreg(HW_REG_XCC_ID)')
        k.s_and_b32(s(sXCC), s(sXCC), 15)
        k.s_mov_b32(s(sSLOT), s(6))
        k.s_lshr_b32(s(3), s(sH), 2)
        k.s_lshl_b32(s(sTT), s(sR), 2)
        k.s_add_u32(s(sTT), s(sTT), s(3))
        k.s_and_b32(s(sCG), s(sH), 3)
        k.s_mov_b32(s(sERR), 0)
        k.s_mov_b32(s(sMODE), 0)
        k.s_lshl_b32(s(sXT), s(sOM), 15)
        k.s_lshl_b32(s(sT1), s(sH), 11); k.s_add_u32(s(sOT_P), s(sXT), s(sT1))
        k.s_lshl_b32(s(sXT_P), s(sTT), 15)
        k.s_lshl_b32(s(sT1), s(sW), 13); k.s_add_u32(s(sOT_C), s(sXT_P), s(sT1))
        k.s_lshl_b32(s(sT1), s(sH), 16)
        k.s_lshl_b32(s(sT2), s(sR), 12); k.s_add_u32(s(sKVP_P), s(sT1), s(sT2))
        k.s_lshl_b32(s(sT2), s(sW), 11); k.s_add_u32(s(sKVP_P), s(sKVP_P), s(sT2))
        k.s_add_u32(s(sKVP_C), s(sT1), s(sLDSW))
        k.s_lshl_b32(s(sT1), s(sH), 18)
        k.s_lshl_b32(s(sT2), s(sOM), 12); k.s_add_u32(s(sKVH_P), s(sT1), s(sT2))
        k.s_add_u32(s(sT2), s(sOM), s(sW))
        k.s_sub_u32(s(sT2), s(sT2), 8); k.s_lshl_b32(s(sT2), s(sT2), 12); k.s_add_u32(s(sKVH_C), s(sT1), s(sT2))
        k.s_mul_i32(s(sWPKH), s(sH), 86016); k.s_add_u32(s(sWPKH), s(sWPKH), s(sLDSW))
        k.s_lshl_b32(s(sT1), s(sCG), 2); k.s_add_u32(s(sT1), s(sT1), s(sW)); k.s_lshl_b32(s(sOPKC), s(sT1), 15)
        k.v_and_b32(v(n), 31, v(vLANE))
        k.v_lshrrev_b32(v(hf), 5, v(vLANE))
        k.v_bfe_u32(v(r4), v(vLANE), 2, 2)
        k.v_bfe_u32(v(ch), v(vLANE), 4, 1)
        vX0, vBW0, vBW1, vBR = 101, 102, 103, 104
        k.v_bfe_u32(v(55), v(n), 1, 3)
        k.v_xor_b32(v(55), v(55), v(hf))
        k.v_and_b32(v(56), 7, v(n)); k.v_lshl_add_u32(v(56), v(56), 7, s(sLDSW))
        k.v_lshrrev_b32(v(57), 3, v(n)); k.v_lshl_add_u32(v(56), v(57), 12, v(56))
        k.v_lshl_add_u32(v(vBR), v(55), 4, v(56))
        for sp in range(1, 4): k.v_xor_b32(v(vBR+sp), 32*sp, v(vBR))
        for sp in range(4): k.v_add_u32(v(84+sp), 65536, v(vBR+sp))
        k.v_lshlrev_b32(v(57), 5, v(ch))
        k.v_lshl_add_u32(v(57), v(c4), 3, v(57))
        k.v_lshl_add_u32(v(56), v(hf), 3, v(r4))
        k.v_lshl_add_u32(v(vWRD0), v(56), 6, v(57))
        k.v_add_u32(v(vWRD1), L_WQ, v(vWRD0))
        k.v_add_u32(v(vWQ), L_WQ, v(vL16))
        vPK8, vPK4 = 99, 100
        k.v_add_u32(v(vPK8), s(sSTW), v(vWRD0))
        k.v_lshl_add_u32(v(56), v(hf), 2, v(r4))
        k.v_lshl_add_u32(v(vPK4), v(56), 6, v(57))
        k.v_add_u32(v(vPK4), s(sSTW), v(vPK4))
        k.v_mul_u32_u24(v(56), 264, v(hf))
        k.v_lshl_add_u32(v(56), v(r4), 6, v(56))
        k.s_and_b32(s(sT1), s(sW), 1); k.s_mul_i32(s(sT1), s(sT1), PHI_SIGN); k.s_add_u32(s(sT1), s(sT1), L_PHI)
        k.v_add3_u32(v(vPHR), v(56), v(57), s(sT1))
        k.v_lshrrev_b32(v(56), 2, v(n))
        k.s_lshl_b32(s(sT1), s(sW), 3)
        k.v_add_u32(v(56), s(sT1), v(56))
        k.v_mul_u32_u24(v(56), 264, v(56))
        k.v_lshl_add_u32(v(56), v(c4), 6, v(56))
        k.v_lshl_add_u32(v(56), v(hf), 3, v(56))
        k.v_add_u32(v(vPHW), L_PHI, v(56))
        k.s_lshl_b32(s(sT1), s(sW), 7); k.s_add_u32(s(sT1), s(sT1), L_RINV0)
        k.v_lshl_add_u32(v(vRVW), v(n), 2, s(sT1))
        k.v_lshl_add_u32(v(vRVR), v(hf), 4, s(sT1))
        k.s_lshl_b32(s(sT1), s(sW), 12); k.s_add_u32(s(sT1), s(sT1), L_KVL)
        k.v_add_u32(v(vKVL), s(sT1), v(vL16))
        k.s_lshl_b32(s(sT1), s(sW), 13); k.s_add_u32(s(sT1), s(sT1), L_KVL)
        k.v_add_u32(v(vHW), s(sT1), v(vL16))
        k.s_lshl_b32(s(sT1), s(sW), 11); k.s_add_u32(s(sT1), s(sT1), L_VOWN)
        k.v_add_u32(v(vVOW), s(sT1), v(vL16))
        for i, reg in ((0, vGW), (1, vG1), (2, vG2), (3, vG3)):
            k.s_add_u32(s(sT1), s(sW), i); k.s_and_b32(s(sT1), s(sT1), 3); k.s_lshl_b32(s(sT1), s(sT1), 13)
            k.s_sub_u32(s(sT1), L_GATH + 3*8192, s(sT1))
            k.v_add_u32(v(reg), s(sT1), v(vL16))
        k.s_mul_i32(s(sT1), s(sCG), 28); k.s_mul_i32(s(sT2), s(sW), 7); k.s_add_u32(s(sT1), s(sT1), s(sT2))
        k.v_add_u32(v(56), s(sT1), v(hf))
        k.v_lshrrev_b32(v(55), 1, v(56)); k.v_lshlrev_b32(v(55), 9, v(55))
        k.v_and_b32(v(56), 1, v(56)); k.v_lshl_add_u32(v(55), v(56), 3, v(55))
        k.v_lshl_add_u32(v(vXST), v(n), 4, v(55))
        k.s_lshl_b32(s(sT1), s(sCG), 2); k.s_add_u32(s(sT1), s(sT1), s(sW))
        k.s_bfe_u32(s(sT2), s(sT1), 1 | (2 << 16)); k.s_lshl_b32(s(sT2), s(sT2), 10)
        k.s_lshr_b32(s(sT3), s(sT1), 3); k.s_lshl_b32(s(sT3), s(sT3), 9); k.s_add_u32(s(sT2), s(sT2), s(sT3))
        k.s_and_b32(s(sT3), s(sT1), 1); k.s_lshl_b32(s(sT3), s(sT3), 3); k.s_add_u32(s(sT2), s(sT2), s(sT3))
        k.s_add_u32(s(sT2), s(sT2), 28672)
        k.v_lshl_add_u32(v(vSST), v(n), 4, s(sT2))
        k.v_and_b32(v(56), 15, v(vLANE)); k.v_mul_u32_u24(v(56), 7, v(56)); k.v_add_u32(v(56), 6, v(56))
        k.v_lshrrev_b32(v(55), 1, v(56)); k.v_lshlrev_b32(v(55), 9, v(55))
        k.v_and_b32(v(56), 1, v(56)); k.v_lshl_add_u32(v(55), v(56), 3, v(55))
        k.v_lshrrev_b32(v(56), 4, v(vLANE)); k.v_lshl_add_u32(v(55), v(56), 7, v(55))
        k.v_add_u32(v(vSLD), 112, v(55))
        k.s_lshl_b32(s(sT1), s(sTT), 5)
        k.v_add_u32(v(56), s(sT1), v(n)); k.v_mul_u32_u24(v(56), 896, v(56))
        k.s_mul_i32(s(sT1), s(sCG), 224); k.s_mul_i32(s(sT2), s(sW), 56); k.s_add_u32(s(sT1), s(sT1), s(sT2))
        k.v_lshl_add_u32(v(56), v(hf), 3, v(56))
        k.v_add_u32(v(vOUT), s(sT1), v(56))
        k.v_cmp_eq_u32('vcc', 0, v(hf))
        k.v_mov_b32(v(56), 1.0); k.v_mov_b32(v(55), f32(BIGF))
        k.v_cndmask_b32(v(vHFM), 0, v(56), 'vcc')
        k.v_mov_b32(v(56), 0)
        k.v_cndmask_b32(v(vBIG), v(55), v(56), 'vcc')
        k.v_lshlrev_b32(v(56), 2, v(hf)); k.v_sub_u32(v(vII), v(n), v(56))
        k.v_cmp_eq_u32(s(sM28, 2), 28, v(n))
        k.v_cmp_le_u32(s(sP0, 2), 28, v(n))

    def bg_wpk(self, typ, lo, hi, tag='bg'):
        k = self.k
        if self.opt.get('abl_w'): return
        for i in range(hi - lo):
            def f(i=i):
                k.s_bitcmp1_b32(s(sR), 0)
                k.s_cselect_b32(s(sB0), hi-1-i, lo+i)
                k.s_lshl_b32(s(sB0), s(sB0), 12)
                k.s_add_u32('m0', s(sLDSW), s(sB0))
                k.s_add_u32(s(sB0), s(sB0), s(sWPKH))
                k.s_add_u32(s(sB0), s(sB0), WPK[typ])
                k.buffer_load_dwordx4(v(vL16), s(S_WS, 4), s(sB0), m='offen sc1 lds')
                self.vtag(tag)
            f.gap = self.gmiss if 2*i < hi - lo else self.ghit
            self.bg.append(f)

    def bg_wo(self, typ, q0=0, q1=4):
        k = self.k
        if self.opt.get('abl_wo'): return
        for i in range(q0, q1):
            for f_ in range(8):
                def f(i=i, f_=f_):
                    if f_ == 0 or f_ == 4:
                        k.s_add_u32(s(sB1), s(sW), i); k.s_and_b32(s(sB1), s(sB1), 3); k.s_lshl_b32(s(sB1), s(sB1), 13)
                        k.s_add_u32(s(sB1), s(sB1), s(sOPKC)); k.s_add_u32(s(sB1), s(sB1), OPK + typ*524288 + f_*1024)
                    k.buffer_load_dwordx4(a(typ*128 + i*32 + f_*4, 4), v(vL16), s(S_WS, 4), s(sB1), m=f'offen offset:{(f_ & 3)*1024} ' + ('nt sc1' if self.opt.get('wont') else 'sc1'))
                    self.vtag('bg')
                f.wo = True; f.gap = self.ghit
                self.bg.append(f)

    def touch(self, base, share, ninstr, w0=0):
        k = self.k
        k.s_mul_i32(s(sB0), s(sSLOT), share); k.s_add_u32(s(sB0), s(sB0), base - w0*ninstr*8192)
        k.s_mul_i32(s(sB1), s(sW), ninstr*8192); k.s_add_u32(s(sB0), s(sB0), s(sB1))
        k.v_lshlrev_b32(v(59), 7, v(vLANE))
        for i in range(ninstr):
            k.buffer_load_dword(a(255), v(59), s(S_WS, 4), s(sB0), m='offen sc1')
            if i + 1 < ninstr: k.s_add_u32(s(sB0), s(sB0), 8192)

    def touch_half(self, base, share):
        k = self.k
        k.s_mul_i32(s(sB0), s(sSLOT), share); k.s_add_u32(s(sB0), s(sB0), base)
        k.s_lshl_b32(s(sB1), s(sW), 12); k.s_add_u32(s(sB0), s(sB0), s(sB1))
        k.v_lshlrev_b32(v(59), 6, v(vLANE))
        k.buffer_load_dword(a(255), v(59), s(S_WS, 4), s(sB0), m='offen ' + ('nt sc1' if self.opt.get('wont') == 2 else 'sc1'))

    def fill(self, buf):
        k = self.k
        if self.opt.get('nofill'): return
        k.s_add_u32(s(sB0), s(sOT_P), buf)
        k.s_mov_b32('exec_lo', 0x01010101); k.s_mov_b32('exec_hi', 0x01010101)
        k.buffer_load_dword(a(255), v(vL16), s(S_WS, 4), s(sB0), m='offen sc1')
        k.buffer_load_dword(a(255), v(vL16), s(S_WS, 4), s(sB0), m='offen offset:1024 sc1')
        k.s_mov_b64('exec', -1)
        self.vtag('bg', 2)

    def code_pf(self, ahead=0, n=1):
        k = self.k
        if self.opt.get('nocpf'): return
        lb = k.newlabel('Lpf')
        k.label(lb)
        k.s_lshl_b32(s(3), s(sSLOT), 2); k.s_add_u32(s(3), s(3), s(sW)); k.s_lshl_b32(s(3), s(3), 7)
        for i in range(n):
            k.s_add_u32(s(6), s(3), f'{lb}-Lstart+{ahead + i*16384}')
            k.s_min_u32(s(6), s(6), 'Lcode_end-Lstart-4')
            k.s_load_dword(s(sJUNK), s(S_CODE, 2), s(6))
        k.s_add_u32(s(6), s(3), 'Lend-Lstart')
        k.s_min_u32(s(6), s(6), 'Lcode_end-Lstart-4')
        k.s_load_dword(s(sJUNK), s(S_CODE, 2), s(6))

    def cs_dma(self, typ, lds):
        k = self.k
        k.s_mul_i32(s(sB0), s(sH), 10752); k.s_mul_i32(s(3), s(sW), 3072); k.s_add_u32(s(sB0), s(sB0), s(3))
        k.s_add_u32(s(sB0), s(sB0), CSP + typ*172032)
        k.s_add_u32('m0', s(3), lds)
        for i in range(3):
            k.buffer_load_dwordx4(v(vL16), s(S_WS, 4), s(sB0), m=f'offen offset:{1024*i} sc1 lds')
        self.vtag('cs', 3)

    def cs_ops(self, typ, lds, R, A):
        k = self.k
        ops = [lambda: k.v_lshlrev_b32(v(A), 2, v(vLANE)), lambda: k.v_add_u32(v(A), lds, v(A))]
        for seg, g in ((0, 1), (1, 2), (2, 0)):
            for half in range(2):
                def rd(seg=seg, half=half):
                    for i in range(7*half, 7*half+7):
                        k.ds_read_b32(v(R+i), v(A), m=f'offset:{(seg*28 + 2*i)*128}')
                    self.ltag(f'cs{seg}{half}', 7)
                ops += [rd] + [lambda: None]*5
            ops += [lambda seg=seg: self.lwait(f'cs{seg}1')]
            for i in range(1, 14): ops.append(lambda i=i: k.v_add_f32(v(R), v(R), v(R+i)))
            ops += [lambda: k.v_mov_b32(v(R+1), v(R)), lambda: k.v_permlane32_swap_b32(v(R), v(R+1)), lambda: k.v_add_f32(v(R), v(R), v(R+1)),
                    lambda: k.v_mul_f32(v(R), v(R), v(vHFM)), lambda: k.v_sub_f32(v(R), 0, v(R)), lambda: self.rbf(R+1, R),
                    lambda: k.v_sub_f32(v(R+2), v(R), v(R+1)),
                    lambda g=g: k.v_cvt_pk_bf16_f32(v(vCS + 3*typ + g), v(R+1), v(R+2))]
        return ops

    def stats_finish(self, s1, s2):
        k = self.k
        t = 58
        self.xhalf('v_add_f32', s1, t); self.xhalf('v_add_f32', s2, t)
        k.v_mul_f32(v(s1), f32(1.0/448), v(s1))
        k.v_mul_f32(v(s2), f32(1.0/448), v(s2))
        k.v_fma_f32(v(s2), '-'+v(s1), v(s1), v(s2))
        k.v_max_f32(v(s2), 0, v(s2))
        k.v_cvt_pk_bf16_f32(v(vMB), v(s1), v(s1))
        self.rbf(s2, s2)
        k.v_add_f32(v(s2), f32(1e-5), v(s2))
        self.rbf(s2, s2)
        k.v_sqrt_f32(v(s2), v(s2))
        self.rbf(s2, s2)
        k.v_rcp_f32(v(vRINV), v(s2))
        k.ds_write_b32(v(vRVW), v(vRINV))

    def mean_steps(self, typ):
        k = self.k
        xm, wk, wv = 112, 116, 120
        k.v_mov_b32(v(xm), v(vMB)); k.v_mov_b32(v(wk), v(vCS+3*typ+1)); k.v_mov_b32(v(wv), v(vCS+3*typ+2))
        for i in range(1, 4):
            k.v_mov_b32(v(xm+i), 0); k.v_mov_b32(v(wk+i), 0); k.v_mov_b32(v(wv+i), 0)
        self.mfma(vAK, v(wk, 4), v(xm, 4), v(vAK, 16))
        self.mfma(vAV, v(xm, 4), v(wv, 4), v(vAV, 16))
        for q in range(4):
            k.ds_read_b128(v(128+4*q, 4), v(vRVR), m=f'offset:{32*q}')

    def stats_ops(self, ST):
        k = self.k
        s1, s2, t = 60, 61, 58
        ops = [
            lambda: k.v_pk_add_f32(v(ST, 2), v(ST, 2), v(ST+2, 2)), lambda: k.v_pk_add_f32(v(ST+4, 2), v(ST+4, 2), v(ST+6, 2)),
            lambda: k.v_pk_add_f32(v(ST+8, 2), v(ST+8, 2), v(ST+10, 2)), lambda: k.v_pk_add_f32(v(ST+12, 2), v(ST+12, 2), v(ST+14, 2)),
            lambda: k.v_pk_add_f32(v(ST, 2), v(ST, 2), v(ST+4, 2)), lambda: k.v_pk_add_f32(v(ST+8, 2), v(ST+8, 2), v(ST+12, 2)),
            lambda: k.v_pk_add_f32(v(s1, 2), v(ST, 2), v(ST+8, 2)),
            lambda: k.v_mov_b32(v(t), v(s1)), lambda: k.v_mov_b32(v(t+1), v(s2)),
            lambda: k.v_permlane32_swap_b32(v(s1), v(t)), lambda: k.v_permlane32_swap_b32(v(s2), v(t+1)),
            lambda: k.v_add_f32(v(s1), v(s1), v(t)), lambda: k.v_add_f32(v(s2), v(s2), v(t+1)),
            lambda: k.v_mul_f32(v(s1), f32(1.0/448), v(s1)), lambda: k.v_mul_f32(v(s2), f32(1.0/448), v(s2)),
            lambda: k.v_fma_f32(v(s2), '-'+v(s1), v(s1), v(s2)),
            lambda: k.v_max_f32(v(s2), 0, v(s2)),
            lambda: k.v_cvt_pk_bf16_f32(v(vMB), v(s1), v(s1)),
            lambda: self.rbf(s2, s2),
            lambda: k.v_add_f32(v(s2), f32(1e-5), v(s2)),
            lambda: self.rbf(s2, s2),
            lambda: k.v_sqrt_f32(v(s2), v(s2)),
            lambda: self.rbf(s2, s2),
            lambda: k.v_rcp_f32(v(vRINV), v(s2)),
        ]
        return ops

    def load_gemm_kv(self, L):
        k = self.k
        typ = L & 1
        assert not self.bg
        ST = 96
        CH = 63
        SPOS = 18
        k.s_add_u32(s(sT1), s(sXT), XB[L-1])
        def pre():
            k.s_mov_b64('exec', 0xffff)
            self.ws_ld(60, vSLD, sT1, 0, n=2)
            k.s_mov_b64('exec', -1)
        k.s_waitcnt('vmcnt(0)')
        k.s_barrier()
        k.v_mov_b32(v(60), 0); k.v_mov_b32(v(61), 0)
        if self.opt.get('cpf2'): self.code_pf(512)
        self.poll(pre, (60, 61, 61), 1 << (4*L))
        self.stamp(f'L{L} x seen')
        AH = 10
        seq = []
        for st in range(28):
            if st == SPOS: seq += [('st', ST+4*i, 28672 + 1024*i) for i in range(4)]
            seq.append((f'x{st}', vXF+4*st, 1024*st))
        def ld(i):
            tag, reg, off = seq[i]
            self.ws_ld(reg, vL16, sT1, off); self.vtag(tag)
        self.nohi(); self.vq = []
        for i in range(AH): ld(i)
        k.s_mov_b32(s(sTRY), 0)
        lg, lg2, lok = k.newlabel('Lg'), k.newlabel('Lg'), k.newlabel('Lgok')
        D = 3
        def rd(st):
            b = vWF + (st % 4)*8
            k.ds_read_b128(v(b, 4), v(vL16), m=f'offset:{L_WK + st*1024}')
            k.ds_read_b128(v(b+4, 4), v(vL16), m=f'offset:{L_WV + st*1024}')
            self.ltag(f'w{st}', 2)
        vq0 = list(self.vq)
        def cold_g():
            k.label(lg)
            self.nohi()
            for i in range(AH): ld(i)
            self.nohi()
            k.s_branch(lg2)
        self.cold.append(cold_g)
        k.label(lg2)
        self.nohi()
        nxt = AH
        self.lq = []
        for st in range(D): rd(st)
        k.v_mov_b32(v(CH), 0)
        fill = []
        for st in range(28):
            self.vwait(f'x{st}')
            self.lwait(f'w{st}')
            b = vWF + (st % 4)*8
            xr = vXF + 4*st
            x = v(xr, 4)
            self.mfma(vAK, v(b, 4), x, v(vAK, 16) if st else 0)
            k.v_max3_u32(v(CH), v(xr), v(xr+1), v(CH)); k.v_max3_u32(v(CH), v(xr+2), v(xr+3), v(CH))
            for _ in range(2):
                if fill: fill.pop(0)()
            self.mfma(vAV, x, v(b+4, 4), v(vAV, 16) if st else 0)
            if st + D < 28: rd(st + D)
            for _ in range(2 if st < 8 else 1):
                if nxt < len(seq): ld(nxt); nxt += 1
            for _ in range(3):
                if fill: fill.pop(0)()
            if st == SPOS:
                fill += [lambda i=i: k.v_max3_u32(v(CH), v(ST+2*i), v(ST+2*i+1), v(CH)) for i in range(8)] + self.stats_ops(ST)
        while fill: fill.pop(0)()
        k.ds_write_b32(v(vRVW), v(vRINV))
        k.v_cmp_eq_u32('vcc', -1, v(CH))
        k.s_cmp_eq_u64('vcc', 0)
        lbad = k.newlabel('Lgbad')
        k.s_cbranch_scc0(lbad)
        k.label(lok)
        def cold_b():
            k.label(lbad)
            k.s_add_u32(s(sTRY), s(sTRY), 1)
            if self.ts: k.s_add_u32(s(sERR), s(sERR), 1 << 20)
            k.s_cmp_lt_u32(s(sTRY), MAXTRY//8)
            k.s_cbranch_scc1(lg)
            k.s_or_b32(s(sERR), s(sERR), 8 << (4*L))
            k.s_branch(lok)
        self.cold.append(cold_b)
        self.vq = []; self.lq = []
        self.mean_steps(typ)

    def gemm_q(self, typ, raw, every=2, hooks={}, fill=None):
        k = self.k
        D = 6
        per = 2 if raw else 1
        def rd(st):
            b = vWF + (st % 8)*4
            if raw:
                for j in range(2):
                    k.ds_read_b64_tr_b16(v(b + 2*j, 2), v(vWRD1), m=f'offset:{st*1024 + j*256}')
            else:
                k.ds_read_b128(v(b, 4), v(vWQ), m=f'offset:{st*1024}')
        k.s_waitcnt('lgkmcnt(0)')
        for st in range(D): rd(st)
        for st in range(28):
            rem = min(D-1, 27-st)
            k.s_waitcnt(f'lgkmcnt({per*rem})')
            b = vWF + (st % 8)*4
            self.mfma(vAQ, v(b, 4), v(vXF+4*st, 4), v(vAQ, 16) if st else 0)
            if st + D < 28: rd(st + D)
            if st % every == every - 1: self.tick()
            if st in hooks: hooks[st]()
            if fill and st >= 8:
                for _ in range(4):
                    if fill: fill.pop(0)()
        xm, wm = 112, 116
        k.v_mov_b32(v(xm), v(vMB)); k.v_mov_b32(v(wm), v(vCS+3*typ))
        for i in range(1, 4):
            k.v_mov_b32(v(xm+i), 0); k.v_mov_b32(v(wm+i), 0)
        self.mfma(vAQ, v(wm, 4), v(xm, 4), v(vAQ, 16))

    def scale_pack(self, acc, mul_lo, mul_hi=None):
        k = self.k
        for i in range(8):
            mreg = mul_hi if (mul_hi is not None and i >= 6) else mul_lo
            assert mreg % 2 == 0
            k.v_pk_mul_f32(v(acc+2*i, 2), v(acc+2*i, 2), v(mreg, 2), m='op_sel_hi:[1,0]')
        for i in range(8):
            k.v_cvt_pk_bf16_f32(v(acc+i), v(acc+2*i), v(acc+2*i+1))

    def epi_v(self):
        k = self.k
        rv = 128
        k.s_waitcnt('lgkmcnt(0)')
        for i in range(8):
            k.v_pk_mul_f32(v(vAV+2*i, 2), v(vAV+2*i, 2), v(rv+2*i, 2))
        for i in range(8):
            k.v_cvt_pk_bf16_f32(v(vAV+i), v(vAV+2*i), v(vAV+2*i+1))
        k.s_mov_b64('exec', s(sM28, 2))
        for i in range(8): k.v_mov_b32(v(vAV+i), '0x3f803f80')
        k.s_mov_b64('exec', -1)

    def sanitize(self, base, n):
        for i in range(n):
            self.k.v_min_u32(v(base+i), -2, v(base+i))

    def feature_mfma(self, frag, P):
        self.mfma(P, v(vWPHI, 4), v(frag, 4), 0)
        self.mfma(P, v(vWPHI+4, 4), v(frag+4, 4), v(P, 16))

    def feature(self, P, E, every=1, n=1):
        k = self.k
        cnt = [0]
        def tk():
            cnt[0] += 1
            if cnt[0] % every == 0: self.tick(n)
        mx, mn, t0, t1 = 58, 60, 62, 63
        c = 57
        k.v_mov_b32(v(c), f32(LOG2E))
        k.v_max3_f32(v(mx), v(P), v(P+1), v(P+2)); k.v_min3_f32(v(mn), v(P), v(P+1), v(P+2))
        for i in range(3, 11, 2):
            k.v_max3_f32(v(mx), v(P+i), v(P+i+1), v(mx)); k.v_min3_f32(v(mn), v(P+i), v(P+i+1), v(mn))
        k.v_max3_f32(v(t0), v(P+12), v(P+13), v(P+14)); k.v_min3_f32(v(t1), v(P+12), v(P+13), v(P+14))
        k.v_max_f32(v(t0), v(t0), v(P+15)); k.v_min_f32(v(t1), v(t1), v(P+15))
        k.v_sub_f32(v(t0), v(t0), v(vBIG)); k.v_add_f32(v(t1), v(t1), v(vBIG))
        k.v_max3_f32(v(mx), v(P+11), v(t0), v(mx)); k.v_min3_f32(v(mn), v(P+11), v(t1), v(mn))
        tk()
        k.v_mov_b32(v(t0), v(mx)); k.v_mov_b32(v(t1), v(mn))
        k.v_permlane32_swap_b32(v(mx), v(t0)); k.v_permlane32_swap_b32(v(mn), v(t1))
        k.v_max_f32(v(mx), v(mx), v(t0)); k.v_min_f32(v(mn), v(mn), v(t1))
        k.v_mul_f32(v(mx), v(c), v(mx)); k.v_mul_f32(v(mn), v(c), v(mn))
        k.v_add_f32(v(mx+1), v(mx), v(vBIG)); k.v_sub_f32(v(mn+1), v(mn), v(vBIG))
        for i in range(0, 16, 2):
            o = 1 if i >= 12 else 0
            k.v_pk_fma_f32(v(E+i, 2), v(P+i, 2), v(56, 2), v(mn, 2), m=f'op_sel:[0,1,{o}] op_sel_hi:[1,1,{o}] neg_lo:[1,0,0] neg_hi:[1,0,0]')
            k.v_pk_fma_f32(v(P+i, 2), v(P+i, 2), v(56, 2), v(mx, 2), m=f'op_sel:[0,1,{o}] op_sel_hi:[1,1,{o}] neg_lo:[0,0,1] neg_hi:[0,0,1]')
            if i % 8 == 6: tk()
        for i in range(16):
            k.v_exp_f32(v(E+i), v(E+i)); k.v_exp_f32(v(P+i), v(P+i))
            if i % 4 == 3: tk()
        for X, sm in ((P, mx), (E, mn)):
            k.v_pk_add_f32(v(sm, 2), v(X, 2), v(X+2, 2))
            for i in range(4, 16, 2): k.v_pk_add_f32(v(sm, 2), v(sm, 2), v(X+i, 2))
            k.v_add_f32(v(sm), v(sm), v(sm+1))
        tk()
        k.v_mov_b32(v(t0), v(mx)); k.v_mov_b32(v(t1), v(mn))
        k.v_permlane32_swap_b32(v(mx), v(t0)); k.v_permlane32_swap_b32(v(mn), v(t1))
        k.v_add_f32(v(mx), v(mx), v(t0)); k.v_add_f32(v(mn), v(mn), v(t1))
        k.v_rcp_f32(v(mx), v(mx)); k.v_rcp_f32(v(mn), v(mn))
        self.scale_pack(P, mx); tk(); self.scale_pack(E, mn); tk()

    def resets(self, L, z=124, t1=sT1, t2=sT2):
        k = self.k
        if L >= 3 or self.opt.get('abl_r', 0) & 1: return
        for i in range(4): k.v_mov_b32(v(z+i), -1)
        bufs = [XB[L], OB[L+1]]
        if True:
            if L == 0: bufs.append(XB[1])
            if L == 1: bufs = bufs[1:]
        def st(fl):
            for b_ in bufs:
                k.s_add_u32(s(t1), s(sOT_P), b_)
                self.ws_st(z, vL16, t1, 0, flags=fl); self.ws_st(z, vL16, t1, 1024, flags=fl)
        self.local_stores(st)

    def bg_reset_kvh3(self):
        k = self.k
        z = 108
        def f0():
            for i in range(4): k.v_mov_b32(v(z+i), -1)
        for i in range(4):
            def f(i=i):
                k.s_add_u32(s(sB0), s(sKVH_P), KVH[3])
                k.buffer_store_dwordx4(v(z, 4), v(vL16), s(S_WS, 4), s(sB0), m=f'offen offset:{1024*i} sc1')
            self.bg.append(f)
        return f0

    def o_tail(self, L, acc, eps):
        k = self.k
        d0, d1 = 58, 60
        k.v_mov_b32(v(d0), v(acc+12)); k.v_mov_b32(v(d1), v(acc+12))
        k.s_add_u32(s(sT1), s(sOT_P), OB[L])
        k.v_permlane32_swap_b32(v(d0), v(d1))
        if eps: k.v_add_f32(v(d1), f32(1e-6), v(d1))
        k.v_rcp_f32(v(d1), v(d1))
        self.scale_pack(acc, d1)
        self.sanitize(acc, 8)
        def st(fl):
            self.ws_st(acc, vL16, sT1, 0, flags=fl); self.ws_st(acc+4, vL16, sT1, 1024, flags=fl)
        self.local_stores(st)

    def bg_reset(self, sb, add, off, z):
        k = self.k
        def f():
            k.s_add_u32(s(sB0), s(sb), add)
            k.buffer_store_dwordx4(v(z, 4), v(vL16), s(S_WS, 4), s(sB0), m=f'offen offset:{off} sc1')
            self.vtag('bg')
        f.gap = 120
        return f

    def layer_A(self, L):
        k = self.k
        self.stamp(f'L{L} kv gemm')
        if L == 2:
            for i in range(4): k.v_mov_b32(v(108+i), -1)
            self.vq = []
            self.bg_wpk(0, 14, 21, tag='wq')
            self.burst(self.opt.get('bq', 5))
            for f in self.bg: f.gap = 90
            if not self.opt.get('abl_r', 0) & 2:
                self.bg += [self.bg_reset(sKVH_P, KVH[3], 1024*i, 108) for i in range(4)]
            self.bgon(400)
        self.scale_pack(vAK, vRINV)
        P, E = 112, 128
        self.feature_mfma(vAK, P)
        self.epi_v()
        sa = self.opt.get('s0a') if L == 0 else self.opt.get('s2a')
        if L == 0 and sa:
            self.bgoff()
            self.quad_wait(58, both=True)
            k.s_barrier()
            self.flag_post(2, 92)
            wo_rest = self.bg; self.bg = []
            self.bg_wpk(1, 0, 14)
            wb = self.bg; self.bg = []
            while wo_rest or wb:
                if wb:
                    f = wb.pop(0); f.gap = self.ghit; self.bg.append(f)
                self.bg += wo_rest[:2]; wo_rest = wo_rest[2:]
            self.bg = self.rs0 + self.bg
            self.bgon()
        k.ds_write_b128(v(vVOW), v(vAV, 4)); k.ds_write_b128(v(vVOW), v(vAV+4, 4), m='offset:1024')
        self.feature(P, E)
        self.bgoff()
        for sg, X in ((0, P), (1, E)):
            for q in range(4):
                k.ds_write_b64(v(vPHW), v(X+2*q, 2), m=f'offset:{sg*PHI_SIGN + q*16}')
        if L == 0:
            self.vwait('st')
            self.burst(5)
            if not sa: self.quad_issue(58, stage=1, both=True)
        if L == 2:
            self.drain()
            self.vwait('wq')
        k.s_waitcnt('lgkmcnt(0)')
        k.s_barrier()
        self.stamp(f'L{L} phi_k')
        if L == 0 and not sa: self.flag_post(2, 92)
        lq = k.newlabel('Lq')
        k.s_cmp_ge_u32(s(sW), 2); k.s_cbranch_scc1(lq)
        A0, ACC = 112, 96
        B0 = [64, 68, 72, 76, 80, 84, 88, 92]
        k.v_add_u32(v(55), L_VOWN, v(vL16))
        def rdkv(idx):
            u, j = idx >> 1, idx & 1
            for jj in range(2):
                k.ds_read_b64_tr_b16(v(A0+4*idx+2*jj, 2), v(vPHR), m=f'offset:{(u*8+4*j+2*jj)*264}')
            k.ds_read_b128(v(B0[idx], 4), v(55), m=f'offset:{u*2048+j*1024}')
        for idx in range(5): rdkv(idx)
        k.s_add_u32(s(sT1), s(sKVP_P), KVP[L])
        for idx in range(8):
            k.s_waitcnt(f'lgkmcnt({3*min(4, 7-idx)})')
            self.mfma(ACC, v(A0+4*idx, 4), v(B0[idx], 4), v(ACC, 16) if idx else 0)
            if idx + 5 < 8: rdkv(idx + 5)
        for i in range(8): k.v_cvt_pk_bf16_f32(v(64+i), v(ACC+2*i), v(ACC+2*i+1))
        self.sanitize(64, 8)
        self.nohi()
        self.ws_st(64, vL16, sT1, 0, flags='sc1'); self.ws_st(68, vL16, sT1, 1024, flags='sc1')
        if L == 0 and not sa:
            lq2 = k.newlabel('Lq')
            k.s_waitcnt('vmcnt(2)')
            k.s_branch(lq2)
            k.label(lq)
            k.s_waitcnt('vmcnt(1)')
            k.s_cmp_eq_u32(s(sW), 3); k.s_cbranch_scc1(lq2)
            k.s_waitcnt('vmcnt(0)')
            k.label(lq2)
        else:
            k.label(lq)
        self.stamp(f'L{L} kvp pub')
        if L == 0:
            assert not any(f in self.bg for f in self.rs0)
            self.vq = []
            if not sa:
                k.s_lshr_b32(s(6), s(sH), 2); k.s_lshl_b32(s(6), s(6), 9); k.s_add_u32(s(6), s(6), FLG + 2048)
                self.quad_wait(58, both=True)
                self.drain()
            k.s_mul_i32(s(sT1), s(sW), 4096 - 128); k.s_add_u32(s(sT1), s(sT1), (L_RINV - L_RINV0) & 0xffffffff)
            k.v_add_u32(v(vRVW), s(sT1), v(vRVW)); k.v_add_u32(v(vRVR), s(sT1), v(vRVR))
        self.resets(L)
        if not (L == 0 and sa): self.bg_wpk(1, 0, 14)
        nb1 = self.opt.get('b1', 6)
        if sa:
            self.burst(3); self.bgon()
        G = 144
        k.s_lshl_b32(s(sT1), s(sH), 16); k.s_lshl_b32(s(sT2), s(sOM), 6); k.s_add_u32(s(sT1), s(sT1), s(sT2))
        k.s_add_u32(s(sT1), s(sT1), KVP[L])
        k.v_lshrrev_b32(v(59), 2, v(vLANE)); k.v_lshlrev_b32(v(59), 12, v(59))
        k.v_and_b32(v(58), 3, v(vLANE)); k.v_lshl_add_u32(v(59), v(58), 4, v(59))
        h1 = lambda: self.ws_ld(G, 59, sT1, 0)
        H1 = self.opt.get('h1', 22)
        self.gemm_q(0, raw=False, hooks=({16: self.bgoff, H1: h1} if sa else {(8 if L == 0 else 2): lambda: self.burst(nb1), H1: h1}))
        k.v_lshrrev_b32(v(60), 4, v(vLANE)); k.v_lshlrev_b32(v(60), 2, v(60)); k.v_lshl_add_u32(v(G+8), v(58), 4, v(60))
        k.v_mov_b32(v(G+10), '0x3f80'); k.v_mov_b32(v(G+11), 1.0)
        k.v_mov_b32(v(G+4), 0); k.v_mov_b32(v(G+5), 0)
        self.scale_pack(vAQ, vRINV)
        PQ, EQ = 64, 80
        self.feature_mfma(vAQ, PQ)
        self.stamp(f'L{L} q gemm')
        self.poll(h1, range(G, G+4), 2 << (4*L), first_wait=0, sleep=1)
        self.stamp(f'L{L} kvp got')
        k.v_permlane32_swap_b32(v(G), v(G+2)); k.v_permlane32_swap_b32(v(G+1), v(G+3))
        k.v_permlane16_swap_b32(v(G), v(G+1)); k.v_permlane16_swap_b32(v(G+2), v(G+3))
        for i in range(4):
            k.v_dot2_f32_bf16(v(G+4), v(G+i), v(G+10), v(G+4)); k.v_dot2_f32_bf16(v(G+5), v(G+i), v(G+11), v(G+5))
        k.s_lshl_b32(s(sT1), s(sH), 12); k.s_add_u32(s(sT1), s(sT1), KVR[L]); k.s_add_u32(s(sT2), s(sT2), s(sT1))
        for rot in (4, 8):
            for i in (4, 5):
                k.v_add_f32_dpp(v(G+i), v(G+i), v(G+i), m=f'row_ror:{rot} row_mask:0xf bank_mask:0xf')
        k.v_cvt_pk_bf16_f32(v(G+4), v(G+4), v(G+5))
        self.sanitize(G+4, 1)
        k.s_mov_b32('exec_lo', 0x000f000f); k.s_mov_b32('exec_hi', 0x000f000f)
        k.buffer_store_dword(v(G+4), v(G+8), s(S_WS, 4), s(sT2), m='offen sc1')
        k.s_mov_b64('exec', -1)
        self.stamp(f'L{L} kvr pub')
        k.s_barrier()
        if sa:
            if L == 0: self.cs_dma(1, L_KVL)
            self.bg_wpk(1, 14, 21)
            self.burst(5 if L else 3)
            self.bgon()
            self.feature(PQ, EQ)
            self.bgoff()
            while any(getattr(f, 'wo', False) for f in self.bg): self.bg.pop(0)()
        else:
            rest = self.bg; self.bg = []
            self.bg_wpk(1, 14, 21)
            self.bg = rest[:7-nb1] + self.bg[:4] + rest[7-nb1:] + self.bg[4:]
            if L == 0:
                self.cs_dma(1, L_KVL)
                self.touch_half(OPK + 524288, 16384)
            self.burst(11 - nb1)
            self.feature(PQ, EQ)
        if self.opt.get('cpf2'): self.code_pf(512)
        if L == 0:
            self.vq = []
            self.flag_issue(2, 160)
        self.stamp(f'L{L} phi_q')
        def issue():
            for i in range(4): self.ws_ld(128+4*i, vL16, sT1, 1024*i)
        self.poll(issue, range(128, 144), 2 << (4*L), sleep=1)
        self.stamp(f'L{L} kvr got')
        ACC = 96
        for i, B in enumerate((PQ, PQ+4, EQ, EQ+4)):
            self.mfma(ACC, v(128+4*i, 4), v(B, 4), v(ACC, 16) if i else 0)
        self.o_tail(L, ACC, True)
        if L == 0:
            self.vq = []
            self.flag_wait(2, 160)
        self.stamp(f'L{L} o pub')

    def layer_B(self, L):
        k = self.k
        self.stamp(f'L{L} kv gemm')
        self.nohi()
        k.s_add_u32(s(sT1), s(sKVH_P), KVH[L])
        k.v_mul_f32(v(58), v(vRINV), v(vHFM))
        self.scale_pack(vAK, vRINV, 58)
        self.sanitize(vAK, 8)
        for i, rg in enumerate((vAK, vAK+4)): self.ws_st(rg, vL16, sT1, 1024*i, flags='sc1')
        self.epi_v()
        self.sanitize(vAV, 8)
        for i, rg in enumerate((vAV, vAV+4)): self.ws_st(rg, vL16, sT1, 2048+1024*i, flags='sc1')
        self.stamp(f'L{L} kvh pub')
        if self.opt.get('early_reset'): self.resets(L)
        for i, rg in enumerate((vAK, vAK+4, vAV, vAV+4)):
            k.ds_write_b128(v(vKVL), v(rg, 4), m=f'offset:{8*4096 + 1024*i}')
        k.s_lshl_b32(s(sT1), s(sR), 1); k.s_add_u32(s(sT1), s(sT1), s(sW))
        k.s_add_u32(s(sT2), s(sKVH_C), KVH[L])
        k.s_cmp_lt_u32(s(sT1), 4); k.s_cselect_b32(s(sT1), 0x7000000, s(sT2))
        k.s_add_u32(s(sT2), s(sT1), 4096)
        k.s_lshl_b32(s(sT3), s(sW), 13); k.s_add_u32(s(sT3), s(sT3), L_KVL)
        def hdma(f0):
            def f():
                for j, so in ((0, sT1), (1, sT2)):
                    k.s_add_u32('m0', s(sT3), j*4096)
                    for fr in (f0, f0+1):
                        k.buffer_load_dwordx4(v(vL16), s(S_WS, 4), s(so), m=f'offen offset:{fr*1024} ' + ('nt sc1 lds' if self.opt.get('hnt') else 'sc1 lds'))
            return f
        def hcheck(f0, R, wait):
            lp, lo, lr = k.newlabel('Lhp'), k.newlabel('Lho'), k.newlabel('Lhr')
            k.s_mov_b32(s(sTRY), 0)
            k.s_waitcnt(f'vmcnt({wait})')
            k.label(lp)
            for j in range(2):
                for i in range(2):
                    k.ds_read_b128(v(R + 8*j + 4*i, 4), v(vHW), m=f'offset:{j*4096 + (f0+i)*1024}')
            k.s_waitcnt('lgkmcnt(0)')
            self.check(range(R, R+16))
            k.s_cbranch_scc1(lo)
            if self.ts: k.s_add_u32(s(sERR), s(sERR), 1 << 16)
            k.s_add_u32(s(sTRY), s(sTRY), 1)
            k.s_cmp_ge_u32(s(sTRY), MAXTRY); k.s_cselect_b32(s(sT6), 2 << (4*L), 0); k.s_or_b32(s(sERR), s(sERR), s(sT6))
            k.s_cmp_lg_u32(s(sT6), 0); k.s_cbranch_scc1(lo)
            k.s_sleep(1)
            hdma(f0)()
            if f0 == 0: hdma(2)()
            k.s_waitcnt('vmcnt(4)' if f0 == 0 else 'vmcnt(0)')
            k.s_branch(lp)
            k.label(lo)
        SR = [144, 112, 128, 176, 192, 208, 224, 240]
        S0, S8 = 144, 160
        NEG = 57
        M = 88
        mx = 58
        fill = [lambda: k.v_mov_b32(v(NEG), f32(-BIGF)), lambda: k.v_mov_b32(v(60), 0xffff), lambda: k.v_mov_b32(v(61), '0xffff0000')]
        for r in range(0, 16, 2):
            fill += [lambda r=r: k.v_cmp_le_i32(s(sC0, 2), (r & 3) + 8*(r >> 2), v(vII)),
                     lambda r=r: k.v_cmp_le_i32(s(sP0, 2), ((r+1) & 3) + 8*((r+1) >> 2), v(vII)),
                     lambda r=r: k.v_mov_b32(v(mx), f32(-BIGF)) if r == 0 else (k.v_or_b32(v(M + r//2 - 1), v(62), v(63))),
                     lambda r=r: k.v_cndmask_b32(v(S8+r), v(NEG), 0, s(sC0, 2)), lambda r=r: k.v_cndmask_b32(v(S8+r+1), v(NEG), 0, s(sP0, 2)),
                     lambda r=r: k.v_cndmask_b32(v(S0+r), 0, v(NEG), s(sC0, 2)), lambda r=r: k.v_cndmask_b32(v(S0+r+1), 0, v(NEG), s(sP0, 2)),
                     lambda r=r: k.v_cndmask_b32(v(62), 0, v(60), s(sC0, 2)), lambda r=r: k.v_cndmask_b32(v(63), 0, v(61), s(sP0, 2))]
        fill += [lambda: k.v_or_b32(v(M + 7), v(62), v(63)), lambda: k.v_mov_b32(v(mx+1), f32(-BIGF)),
                 lambda: k.v_mul_f32(v(62), f32(28**-0.5 * LOG2E), v(vRINV)), lambda: k.v_mul_f32(v(60), v(62), v(vHFM))]
        self.gemm_q(1, raw=False, hooks={self.hk: hdma(0), self.hv: hdma(2)}, fill=fill)
        assert not fill
        self.scale_pack(vAQ, 62, 60)
        k.s_mov_b32('exec_lo', 0)
        k.v_mov_b32(v(vAQ+6), 0x3f80)
        k.s_mov_b32('exec_lo', -1)
        self.mfma(S8, v(vAK, 4), v(vAQ, 4), v(S8, 16))
        self.mfma(S8, v(vAK+4, 4), v(vAQ+4, 4), v(S8, 16))
        self.stamp(f'L{L} q')
        hcheck(0, 176, 4)
        lmk = k.newlabel('Lmk')
        k.s_cmp_lg_u32(s(sT1), 0x7000000); k.s_cbranch_scc1(lmk)
        k.v_mov_b32(v(62), 0xff61)
        k.s_mov_b32('exec_lo', 0)
        k.ds_write_b32(v(vHW), v(62), m='offset:1032'); k.ds_write_b32(v(vHW), v(62), m=f'offset:{4096+1032}')
        k.s_mov_b32('exec_lo', -1)
        k.s_waitcnt('lgkmcnt(0)')
        k.label(lmk)
        k.s_barrier()
        self.stamp(f'L{L} halo got')
        KB = 64
        def kb(t): return KB + (t % 3)*8
        def rdk(t):
            k.ds_read_b128(v(kb(t), 4), v(vKVL), m=f'offset:{t*4096}')
            k.ds_read_b128(v(kb(t)+4, 4), v(vKVL), m=f'offset:{t*4096+1024}')
            self.ltag(f'k{t}', 2)
        def rdv(t):
            k.ds_read_b128(v(kb(t), 4), v(vKVL), m=f'offset:{t*4096+2048}')
            k.ds_read_b128(v(kb(t)+4, 4), v(vKVL), m=f'offset:{t*4096+3072}')
            self.ltag(f'v{t}', 2)
        def maxtile(S):
            return [lambda i=i: k.v_max3_f32(v(mx + ((i >> 1) & 1)), v(S+i), v(S+i+1), v(mx + ((i >> 1) & 1))) for i in range(0, 16, 2)]
        def merge():
            return [lambda r=r: k.v_max_f32(v(S0+r), v(S0+r), v(S8+r)) for r in range(16)]
        self.lq = []
        for t in range(3): rdk(t)
        if not self.opt.get('early_reset'): self.resets(L, z=104, t1=sT4, t2=sT5)
        self.vq = []
        if L == 1:
            self.bg_wpk(0, 0, 14)
            if self.opt.get('s1a'):
                late = self.bg[5:]; self.bg = self.bg[:5]
                self.bg_wo(1, 0, 4)
                self.bg += late
                self.bgon()
            else:
                self.burst(7)
                late = self.bg; self.bg = []
                self.bg_wo(1, 0, 4)
                for f in self.bg: f.gap = 64
                self.bg += late
        def smfma(fast):
            for t in range(8):
                self.lwait(f'k{t}')
                self.mfma(SR[t], v(kb(t), 4), v(vAQ, 4), v(S0, 16) if t == 0 else 0)
                for _ in range(6):
                    if fast: fast.pop(0)()
                self.mfma(SR[t], v(kb(t)+4, 4), v(vAQ+4, 4), v(SR[t], 16))
                if t + 3 < 8: rdk(t + 3)
                if fast is not None:
                    for _ in range(5):
                        if fast: fast.pop(0)()
                    if t == 1: fast += merge() + maxtile(S0)
                    if t >= 2: fast += maxtile(SR[t-1])
        fast = []
        smfma(fast)
        fast += maxtile(SR[7])
        while fast: fast.pop(0)()
        k.v_max_f32(v(mx), v(mx), v(mx+1))
        self.xhalf('v_max_f32', mx, 60)
        k.v_sub_f32(v(mx), 0, v(mx))
        V8 = S8 + 8
        P8 = S8
        ACC = 96
        pend = []
        for t in range(8):
            S = SR[t]
            for i in range(8): k.v_pk_add_f32(v(S+2*i, 2), v(S+2*i, 2), v(mx, 2), m='op_sel_hi:[1,0]')
            for i in range(16):
                k.v_exp_f32(v(S+i), v(S+i))
                if i % 4 == 1 and pend: pend.pop(0)()
                if i % 4 == 3: self.tick()
            for i in range(8): k.v_cvt_pk_bf16_f32(v(S+i), v(S+2*i), v(S+2*i+1))
            if t >= 1: self.tick()
            if t == 0:
                for i in range(8):
                    k.v_and_b32(v(P8+i), v(S+i), v(M+i)); k.v_xor_b32(v(S+i), v(S+i), v(P8+i))
                self.bgoff()
                hcheck(2, 64, len(self.vq))
                k.s_barrier()
                self.stamp(f'L{L} V ok')
                self.burst(4)
                self.bgon()
                self.lq = []
                for tt in range(3): rdv(tt)
                k.ds_read_b128(v(V8, 4), v(vKVL), m=f'offset:{8*4096+2048}')
                k.ds_read_b128(v(V8+4, 4), v(vKVL), m=f'offset:{8*4096+3072}')
                self.ltag('v8', 2)
            def m1(t=t, S=S):
                self.lwait(f'v{t}')
                self.mfma(ACC, v(kb(t), 4), v(S, 4), v(ACC, 16) if t else 0)
            def m2(t=t, S=S):
                self.mfma(ACC, v(kb(t)+4, 4), v(S+4, 4), v(ACC, 16))
                if t + 3 < 8: rdv(t + 3)
            pend += [m1, m2]
            if t == 0:
                def m3():
                    self.lwait('v8')
                    self.mfma(ACC, v(V8, 4), v(P8, 4), v(ACC, 16))
                pend += [m3, lambda: self.mfma(ACC, v(V8+4, 4), v(P8+4, 4), v(ACC, 16))]
        while pend: pend.pop(0)()
        self.bgoff()
        while any(getattr(f, 'wo', False) for f in self.bg): self.bg.pop(0)()
        self.o_tail(L, ACC, False)
        self.stamp(f'L{L} o pub')

    def outproj(self, L):
        k = self.k
        typ = L & 1
        G = 144
        assert not any(getattr(f, 'wo', False) for f in self.bg)
        if L < 3: self.code_pf(1024)
        k.s_add_u32(s(sT1), s(sOT_C), OB[L])
        def issue():
            for i in range(8): self.ws_ld(G+4*i, vL16, sT1, 1024*i)
        self.poll(issue, range(G, G+32), 4 << (4*L))
        self.stamp(f'L{L} o got')
        for i in range(8): k.ds_write_b128(v(vGW), v(G+4*i, 4), m=f'offset:{1024*i}')
        if L == 0 and self.opt.get('s0a'): self.touch_half(OPK + 524288, 16384)
        self.burst(4)
        for f in self.bg: f.gap = min(90, 900 // len(self.bg))
        self.bgon()
        for i in range(4):
            self.mfma(vXRES, a(typ*128+4*i, 4), v(G+4*i, 4), v(vXRES, 16))
        k.s_waitcnt('lgkmcnt(0)')
        k.s_barrier()
        def breg(f): return (64 if f < 8 else 176 - 32) + 4*f
        def rdo(f):
            k.ds_read_b128(v(breg(f), 4), v((vG1, vG2, vG3)[f >> 3]), m=f'offset:{1024*(f & 7)}')
            self.ltag(f'o{f}')
        D = 8
        self.lq = []
        fill = self.cs_ops(1, L_KVL, 240, 55) if L == 0 else []
        for i in range(4, 8):
            for f in range(2*(i-4), 2*(i-4)+2): rdo(f)
            self.mfma(vXRES, a(typ*128+4*i, 4), v(G+4*i, 4), v(vXRES, 16))
        for f in range(24):
            self.lwait(f'o{f}')
            self.mfma(vXRES, a(typ*128+32+4*f, 4), v(breg(f), 4), v(vXRES, 16))
            if f + D < 24: rdo(f + D)
            for _ in range(5):
                if fill: fill.pop(0)()
        assert not fill
        self.bgoff()
        PK = 112
        for i in range(8): k.v_cvt_pk_bf16_f32(v(PK+i), v(vXRES+2*i), v(vXRES+2*i+1))
        if L == self.nlayers - 1:
            for q in range(3):
                k.buffer_store_dwordx2(v(PK+2*q, 2), v(vOUT), s(S_OUT, 4), 0, m=f'offen offset:{16*q}')
            k.s_mov_b32('exec_hi', 0)
            k.buffer_store_dwordx2(v(PK+6, 2), v(vOUT), s(S_OUT, 4), 0, m='offen offset:48')
            k.s_mov_b32('exec_hi', -1)
            self.stamp(f'L{L} out')
            return
        self.sanitize(PK, 8)
        k.s_add_u32(s(sT1), s(sXT_P), XB[L])
        def st(fl):
            for q in range(3): self.ws_st(PK+2*q, vXST, sT1, 512*q, n=2, flags=fl)
            k.s_mov_b32('exec_hi', 0)
            self.ws_st(PK+6, vXST, sT1, 512*3, n=2, flags=fl)
            k.s_mov_b32('exec_hi', -1)
        self.local_stores(st)
        for i in range(8):
            k.v_lshlrev_b32(v(vXRES+2*i), 16, v(PK+i)); k.v_and_b32(v(vXRES+2*i+1), '0xffff0000', v(PK+i))
        s1, s2, t1, t2 = 120, 122, 124, 126
        X = vXRES
        k.v_pk_add_f32(v(s1, 2), v(X, 2), v(X+2, 2)); k.v_pk_mul_f32(v(s2, 2), v(X, 2), v(X, 2))
        k.v_pk_fma_f32(v(s2, 2), v(X+2, 2), v(X+2, 2), v(s2, 2))
        for i in range(4, 12, 2):
            k.v_pk_add_f32(v(s1, 2), v(s1, 2), v(X+i, 2)); k.v_pk_fma_f32(v(s2, 2), v(X+i, 2), v(X+i, 2), v(s2, 2))
        k.v_pk_add_f32(v(t1, 2), v(X+12, 2), v(X+14, 2)); k.v_pk_mul_f32(v(t2, 2), v(X+12, 2), v(X+12, 2))
        k.v_pk_fma_f32(v(t2, 2), v(X+14, 2), v(X+14, 2), v(t2, 2))
        k.v_add_f32(v(s1), v(s1), v(s1+1)); k.v_add_f32(v(s2), v(s2), v(s2+1))
        k.v_add_f32(v(t1), v(t1), v(t1+1)); k.v_add_f32(v(t2), v(t2), v(t2+1))
        k.s_mov_b32('exec_hi', 0)
        k.v_add_f32(v(s1), v(s1), v(t1)); k.v_add_f32(v(s2), v(s2), v(t2))
        k.s_mov_b32('exec_hi', -1)
        k.v_mov_b32(v(t1), v(s1)); k.v_mov_b32(v(t2), v(s2))
        k.v_permlane32_swap_b32(v(s1), v(t1)); k.v_permlane32_swap_b32(v(s2), v(t2))
        k.v_add_f32(v(s1), v(s1), v(t1)); k.v_add_f32(v(s1+1), v(s2), v(t2))
        self.sanitize(s1, 2)
        def st2(fl):
            k.s_mov_b32('exec_hi', 0)
            self.ws_st(s1, vSST, sT1, 0, n=2, flags=fl)
            k.s_mov_b32('exec_hi', -1)
        self.local_stores(st2)
        self.drain()
        self.stamp(f'L{L} x pub')

    def build(self):
        k = self.k
        self.prologue()
        for L in range(self.nlayers):
            if L > 0: self.load_gemm_kv(L)
            if L & 1: self.layer_B(L)
            else: self.layer_A(L)
            self.outproj(L)
        if self.ts:
            k.s_memrealtime(s(sTS, 2)); k.s_waitcnt('lgkmcnt(0)')
            k.v_writelane_b32(v(vNEGB), s(90), 59); k.v_writelane_b32(v(vNEGB), s(sTS), 60); k.v_writelane_b32(v(vNEGB), s(92), 61)
            k.v_writelane_b32(v(vNEGB), s(sERR), 63)
            k.v_writelane_b32(v(vNEGB), s(sMODE), 62)
            k.v_lshlrev_b32(v(60), 2, v(vLANE))
            k.buffer_store_dword(v(vNEGB), v(60), s(S_WS, 4), s(sTSO), m='offen')
        k.label('Lend')
        k.s_endpgm()
        self.bgoff()
        while self.cold: self.cold.pop(0)()
        k.label('Lcode_end')
        body = k.finish()
        hdr = open('cdna_kernels/' + NAME + '.s.ref').read().split('; Override launch')[0]
        return hdr + f"""; Generated by gen/gen.py (persistent kernel, 256 workgroups x 4 waves).
; @launch grid=(256,1,1) block=(256,1,1) lds={LDS_BYTES}
.amdgcn_target "amdgcn-amd-amdhsa--gfx950"
.text
.globl {NAME}_kernel
.p2align 8
.type {NAME}_kernel,@function
{NAME}_kernel:
{body}.section .rodata,"a"
.p2align 6
.amdhsa_kernel {NAME}_kernel
  .amdhsa_next_free_vgpr 512
  .amdhsa_next_free_sgpr 102
  .amdhsa_accum_offset 256
  .amdhsa_group_segment_fixed_size 0
  .amdhsa_kernarg_size 80
  .amdhsa_user_sgpr_count 2
  .amdhsa_user_sgpr_kernarg_segment_ptr 1
  .amdhsa_system_sgpr_workgroup_id_x 1
.end_amdhsa_kernel
"""

if __name__ == '__main__':
    import argparse
    ap = argparse.ArgumentParser()
    ap.add_argument('-o', default='cdna_kernels/' + NAME + '.s')
    ap.add_argument('--ts', action='store_true')
    ap.add_argument('--slow', action='store_true')
    ap.add_argument('--noalias', action='store_true')
    ap.add_argument('--tlb', action='store_true')
    ap.add_argument('--opt', action='append', default=[])
    ap.add_argument('--gmiss', type=int, default=250)
    ap.add_argument('--ghit', type=int, default=90)
    ap.add_argument('--hk', type=int, default=20)
    ap.add_argument('--hv', type=int, default=27)
    ap.add_argument('--layers', type=int, default=4)
    args = ap.parse_args()
    g = Gen(ts=args.ts, force_slow=args.slow, nlayers=args.layers, alias=not args.noalias, tlb=args.tlb, hk=args.hk, hv=args.hv, gmiss=args.gmiss, ghit=args.ghit, opt={o.split('=')[0]: (int(o.split('=')[1]) if '=' in o else 1) for o in args.opt})
    src = g.build()
    open(args.o, 'w').write(src)
    if args.ts:
        open(args.o + '.tsnames', 'w').write('\n'.join(getattr(g, 'tsnames', [])))
    print('instructions', g.k.nins, 'bytes of source', len(src))
```

```python
import re

_REG = re.compile(r'^(-?)(?:\|)?([vas])(?:(\d+)|\[(\d+):(\d+)\])(?:\|)?$')

def regs_of(op):
    if not isinstance(op, str):
        return set()
    op = op.strip()
    if op.startswith('abs(') or op.startswith('-abs('):
        op = op[op.index('(')+1:-1]
    m = _REG.match(op)
    if m:
        kind = m.group(2)
        if m.group(3) is not None:
            return {(kind, int(m.group(3)))}
        return {(kind, i) for i in range(int(m.group(4)), int(m.group(5))+1)}
    if op == 'vcc':
        return {('s', 106), ('s', 107)}
    if op == 'vcc_lo':
        return {('s', 106)}
    if op == 'vcc_hi':
        return {('s', 107)}
    if op == 'exec':
        return {('s', 126), ('s', 127)}
    if op == 'exec_lo':
        return {('s', 126)}
    if op == 'exec_hi':
        return {('s', 127)}
    if op == 'm0':
        return {('s', 124)}
    return set()

def v(i, n=1):
    return f'v{i}' if n == 1 else f'v[{i}:{i+n-1}]'
def a(i, n=1):
    return f'a{i}' if n == 1 else f'a[{i}:{i+n-1}]'
def s(i, n=1):
    return f's{i}' if n == 1 else f's[{i}:{i+n-1}]'

TRANS = ('v_exp_f32', 'v_log_f32', 'v_rcp_f32', 'v_rsq_f32', 'v_sqrt_f32', 'v_sin_f32', 'v_cos_f32', 'v_rcp_iflag_f32')

class Ins:
    __slots__ = ('op', 'ops', 'mods', 'cls', 'w', 'r', 'passes', 'srcc', 'srcab', 'text', 'states', 'sdata', 'nopad')
    def __init__(self, op, ops, mods):
        self.op, self.ops, self.mods = op, ops, mods
        self.passes = 0
        self.nopad = False
        self.srcc = set(); self.srcab = set(); self.sdata = set()
        self.states = 1
        base = op
        for suf in ('_e32', '_e64', '_dpp', '_sdwa'):
            if base.endswith(suf):
                base = base[:-len(suf)]
        R = [regs_of(o) for o in ops]
        w = set(); r = set()
        if base.startswith('v_mfma'):
            self.cls = 'mfma'
            self.passes = 8 if '32x32' in base else 4
            w = R[0]; self.srcab = R[1] | R[2]; self.srcc = R[3]; r = R[1] | R[2] | R[3]
        elif base.startswith('v_'):
            self.cls = 'valu'
            if base in TRANS: self.cls = 'trans'
            if base.startswith('v_dot'): self.cls = 'dot'
            if base.startswith('v_permlane'):
                self.cls = 'perm'
                w = R[0] | R[1]; r = R[0] | R[1]
            elif base in ('v_readfirstlane_b32', 'v_readlane_b32'):
                self.cls = 'rdlane'
                w = R[0]; r = set().union(*R[1:])
            elif base in ('v_add_co_u32', 'v_sub_co_u32', 'v_addc_co_u32', 'v_subb_co_u32', 'v_div_scale_f32', 'v_mad_u64_u32'):
                w = R[0] | R[1]; r = set().union(*R[2:])
            elif base == 'v_nop':
                pass
            else:
                w = R[0]; r = set().union(*R[1:]) if len(R) > 1 else set()
                if base.startswith('v_fmac') or base.startswith('v_dot2c') or base.startswith('v_pk_fmac') or base == 'v_writelane_b32':
                    r |= R[0]
                if base.startswith('v_cmpx'):
                    w |= regs_of('exec')
                if base == 'v_cndmask_b32' and len(ops) == 3:
                    r |= regs_of('vcc')
            if 'dpp' in op or 'row_' in mods or 'quad_perm' in mods:
                self.cls = 'dpp'
        elif base.startswith('ds_'):
            self.cls = 'ds'
            if base.startswith('ds_read') or base.startswith('ds_bpermute') or base.startswith('ds_permute') or base.startswith('ds_swizzle') or 'rtn' in base:
                w = R[0]; r = set().union(*R[1:])
            else:
                r = set().union(*R)
        elif base.startswith('buffer_') or base.startswith('global_'):
            self.cls = 'vmem'
            islds = re.search(r'\blds\b', mods) is not None or '_lds_' in base
            if base in ('buffer_wbl2', 'buffer_inv'):
                pass
            elif islds:
                r = set().union(*R) | regs_of('m0')
                self.cls = 'dma'
            elif '_load' in base:
                w = R[0]; r = set().union(*R[1:])
                if 'd16' in base: r |= R[0]
            elif '_store' in base:
                r = set().union(*R)
                if base.endswith('x4') or base.endswith('x3'):
                    self.sdata = R[0] if base.startswith('buffer_') else R[1]
            elif '_atomic' in base:
                r = set().union(*R)
                if 'sc0' in mods: w = R[0]
        elif base.startswith('s_'):
            self.cls = 'salu'
            if base == 's_nop':
                self.states = int(ops[0]) + 1
            elif base.startswith('s_cmp') or base.startswith('s_cbranch') or base in ('s_branch', 's_waitcnt', 's_barrier', 's_endpgm', 's_setprio', 's_sleep', 's_bitcmp0_b32', 's_bitcmp1_b32', 's_setreg_b32'):
                r = set().union(*R) if R else set()
            else:
                w = R[0] if R else set(); r = set().union(*R[1:]) if len(R) > 1 else set()
                if 'saveexec' in base:
                    w |= regs_of('exec'); r |= regs_of('exec')
                if base.startswith('s_load') or base.startswith('s_memtime') or base.startswith('s_memrealtime') or base.startswith('s_buffer_load'):
                    self.cls = 'smem'
        else:
            raise ValueError('unknown op ' + op)
        self.w, self.r = w, r
        t = op + (' ' + ', '.join(str(o) for o in ops) if ops else '')
        if mods: t += ' ' + mods
        self.text = t

VALUISH = ('valu', 'trans', 'dot', 'perm', 'rdlane', 'dpp')

def need(p, c):
    n = 0
    pv = {x for x in p.w if x[0] in 'va'}
    ps = {x for x in p.w if x[0] == 's'}
    if p.cls == 'mfma':
        big = p.passes == 8
        if c.cls == 'mfma':
            if pv & c.srcab: n = max(n, 12 if big else 8)
            if pv & c.srcc:
                if not (pv == c.srcc and p.passes == c.passes): n = max(n, 10 if big else 6)
            elif pv & c.w: n = max(n, 12 if big else 8)
        elif c.cls in VALUISH:
            if pv & (c.r | c.w): n = max(n, 12 if big else 8)
            if p.srcc & c.w: n = max(n, 7 if big else 3)
        elif c.cls in ('ds', 'vmem', 'dma'):
            if pv & (c.r | c.w): n = max(n, 12 if big else 8)
            if p.srcc & c.w: n = max(n, 7 if big else 3)
    if p.cls in VALUISH:
        if c.cls == 'mfma' and pv & c.r: n = max(n, 2)
        if c.cls == 'mfma' and ps & regs_of('exec'): n = max(n, 4)
        if c.cls in ('vmem', 'dma') and ps & c.r: n = max(n, 5)
        if c.cls in VALUISH and ps & c.r: n = max(n, 4 if c.cls == 'rdlane' else 2)
        if c.cls == 'rdlane' and pv & c.r: n = max(n, 1)
        if c.cls in ('perm', 'dpp') and pv & c.r: n = max(n, 2)
        if p.cls == 'trans' and c.cls in VALUISH + ('mfma',) and c.cls != 'trans' and pv & c.r: n = max(n, 1)
        if p.cls == 'trans' and c.cls in ('ds', 'vmem') and pv & c.r: n = max(n, 1)
        if p.cls == 'dot' and pv & (c.r | c.w):
            if c.cls == 'dot' and c.op == p.op:
                ab = regs_of(c.ops[1]) | regs_of(c.ops[2])
                if pv & ab: n = max(n, 3)
            else:
                n = max(n, 3)
        if c.cls == 'salu' and ps & c.r: n = max(n, 1)
    if p.sdata and p.sdata & c.w:
        n = max(n, 2 if c.cls in VALUISH + ('mfma',) else 1)
    if p.cls == 'salu' and ('s', 124) in p.w and c.cls == 'dma': n = max(n, 1)
    return n

class Asm:
    def __init__(self):
        self.items = []
        self.nlabel = 0
        self.watch = False
        self.est = 0; self.shadow = 0; self.xlo = self.xhi = True
        self.hook = None; self.inhook = False; self.hook_ok = False
    def raw(self, text):
        self.items.append(text)
    def label(self, name):
        self.watch = False
        self.items.append(('label', name))
    def newlabel(self, base='L'):
        self.nlabel += 1
        return f'{base}_{self.nlabel}'
    def c(self, text):
        self.items.append('    ; ' + text)
    def __call__(self, op, *ops, m=''):
        it = Ins(op, list(ops), m)
        self.items.append(it)
        if (('s', 124) in it.w or ('s', 80) in it.w or op.startswith('s_cbranch') or op == 's_branch'): self.watch = False
        if it.cls == 'mfma':
            self.est += 8 + self.shadow; self.shadow = 24
        else:
            c = 8 if it.cls == 'trans' else 4
            self.est += c; self.shadow = max(0, self.shadow - c)
        if it.cls == 'salu' and ops and ops[0] in ('exec', 'exec_lo', 'exec_hi'):
            full = (op.startswith('s_mov') and ops[1] == -1)
            if ops[0] in ('exec', 'exec_lo'): self.xlo = full
            if ops[0] in ('exec', 'exec_hi'): self.xhi = full
        if self.hook and not self.inhook and it.cls in ('mfma', 'valu', 'trans') and self.hook_ok and self.xlo and self.xhi and not op.startswith('v_cmp'):
            self.inhook = True
            self.hook()
            self.inhook = False
    def __getattr__(self, op):
        if op.startswith(('v_', 's_', 'ds_', 'buffer_', 'global_')):
            return lambda *ops, m='': self(op, *ops, m=m)
        raise AttributeError(op)
    def br(self, op, label):
        self(op, label)
        self.items[-1].nopad = True
    def align(self, p=3):
        self.items.append(('align', p))
    def finish(self):
        out = []
        hist = []
        nins = 0
        for it in self.items:
            if isinstance(it, str):
                out.append(it); continue
            if isinstance(it, tuple):
                if it[0] == 'label': out.append(it[1] + ':')
                elif it[0] == 'align': out.append(f'.p2align {it[1]}')
                continue
            pad = 0
            isbr = (it.op.startswith('s_cbranch') or it.op == 's_branch') and not it.nopad
            for p, d in hist:
                if isbr:
                    worst = 0
                    if p.cls == 'mfma': worst = 12 if p.passes == 8 else 8
                    elif p.cls in VALUISH:
                        worst = 5 if any(x[0] == 's' for x in p.w) else (3 if p.cls == 'dot' else 2)
                    elif p.sdata: worst = 2
                    elif p.cls == 'salu' and ('s', 124) in p.w: worst = 1
                    pad = max(pad, worst - 1 - d)
                pad = max(pad, need(p, it) - d)
            while pad > 0:
                k = min(pad, 16)
                out.append(f'    s_nop {k-1}')
                hist = [(p, d + k) for p, d in hist]
                pad -= k; nins += 1
            out.append('    ' + it.text)
            nins += 1
            hist = [(p, d + it.states) for p, d in hist if d + it.states < 14]
            hist.append((it, 0))
        self.nins = nins
        return '\n'.join(out) + '\n'
```

```python
import sys, math, struct
from asmlib import *

NAME = "interleave_layers__linear_kernel_hedgehog__sliding_block__prompt"

def f32(x):
    return '0x%08x' % struct.unpack('<I', struct.pack('<f', x))[0]

MB = 1 << 20
XB = [0*MB, 2*MB, 4*MB]
OB = [6*MB, 8*MB, 10*MB, 12*MB]
KVP = {0: 14*MB, 2: 15*MB}
KVH = {1: 16*MB, 3: 20*MB}
TS_BASE = 24*MB
FLG = 24*MB + 768*1024
KVR = {0: 24*MB + 512*1024, 2: 24*MB + 576*1024}
FR = 1024
WPK = [25*MB, 25*MB + 16*84*FR]
OPK = 28*MB
OPT = 512*FR
CSP = 29*MB
WS_BYTES = 30*MB

SEG = 28672
L_WK, L_WV, L_WQ = 0, SEG, 2*SEG
L_KVL = 3*SEG
L_PHI = L_KVL
PHI_SIGN = 32*264
L_VOWN = L_KVL + 17408
L_KVF = L_KVL + 25600
L_CS1 = L_KVL + 29696
L_RINV = L_KVL + 32768
L_GATH = L_KVL + 45056
L_ST = 114688
L_CS0 = L_KVL + 65536
L_RINV0 = L_KVL + 69632
LDS_BYTES = 163840
assert L_GATH + 32768 == LDS_BYTES

S_WS, S_AX, S_WA, S_WB, S_WPHI, S_WOA, S_WOB, S_OUT, S_DBG, S_CODE = 8, 12, 16, 20, 24, 28, 32, 36, 40, 44
sR, sH, sW, sTT, sCG, sMODE, sXCC, sTRY = 48, 49, 50, 51, 52, 53, 54, 55
sXT, sOT_P, sOT_C, sXT_P, sKVP_P, sKVP_C, sKVH_P, sKVH_C = 56, 57, 58, 59, 60, 61, 62, 63
sT0, sT1, sT2, sT3, sT4, sT5 = 64, 65, 66, 67, 68, 69
sM28 = 70
sTMIN = 72
sWPKH = 73
sLDSW = 74
sSTW = 75
sTS = 24
sTSO = 93
sERR = 79
sB0, sB1 = 80, 81
sC0, sC1 = 82, 83
sP0 = 84
sOPKC = 86
sOM = 87
sT6, sT7 = 88, 89
sSLOT = 94
sJUNK = 72
sPFO = 70
sB2 = 75
sHA, sHB = 46, 47
sQA, sQB, sHEAD = 76, 77, 78
sE0, sE1 = 4, 5

vLANE, vL16, vWRD0, vL14, vWQ, vNEGB, vHW, vXST, vSST, vSLD = 0, 1, 2, 3, 4, 5, 6, 7, 8, 9
vPHW, vPHR, vRVW, vRVR, vKVL, vOUT, vG1, vG2, vG3, vHFM, vBIG, vII, vVOW, vGW = 10, 11, 12, 13, 14, 15, 16, 17, 18, 19, 20, 21, 22, 23
vONE = 2
vWPHI = 24
vXRES = 32
vCS = 48
vMB, vRINV = 54, 56
vT = 54
vAK, vAV, vAQ = 64, 80, 96
vWF = 112
vXF = 144
vS = 112

BIGF = 3.0e38
LOG2E = 1.4426950408889634
MAXTRY = 20000
MFMA = 'v_mfma_f32_32x32x16_bf16'

class Gen:
    def __init__(self, ts=False, force_slow=False, nlayers=4, alias=True, tlb=False, hk=20, hv=27, gmiss=250, ghit=90, opt={}):
        self.tlb = tlb
        self.opt = dict(s0a=1, s1a=1, s2a=1, cpf2=1, woq=2, f0=1, off0=21, g0=40); self.opt.update(opt)
        self.gmiss, self.ghit = gmiss, ghit
        self.hk, self.hv = hk, hv
        if alias:
            XB[2] = XB[0]; OB[2] = OB[0]; OB[3] = OB[1]
        self.k = Asm()
        self.ts = ts
        self.force_slow = force_slow
        self.nlayers = nlayers
        self.nts = 0
        self.bg = []; self.bg_log = []
        self._owner = None
        self._hi = None
        self.lq = []; self.vq = []
        self.cold = []

    @property
    def m0_owner(self):
        return self._owner if self.k.watch else None
    @m0_owner.setter
    def m0_owner(self, val):
        self._owner = val

    def stamp(self, name):
        if not self.ts or self.opt.get('lite'): return
        k = self.k
        k.c(f'stamp {self.nts}: {name}')
        (k.s_memrealtime if self.opt.get('rt') else k.s_memtime)(s(sTS, 2))
        k.s_waitcnt('lgkmcnt(0)')
        k.v_writelane_b32(v(vNEGB), s(sTS), self.nts)
        self.tsnames = getattr(self, 'tsnames', []) + [name]
        self.nts += 1

    def tick(self, n=1):
        pass

    def _hook(self):
        if self.bg and self.k.est >= self.bg_next:
            f = self.bg.pop(0)
            f()
            self.bg_log.append(f)
            self.bg_next = self.k.est + getattr(f, 'gap', 90)

    def bgon(self, delay=0):
        self.k.hook = self._hook; self.k.hook_ok = True
        self.bg_next = max(getattr(self, 'bg_next', 0), self.k.est + delay)

    def bgoff(self):
        self.k.hook_ok = False

    def burst(self, n):
        for _ in range(n):
            if self.bg:
                f = self.bg.pop(0); f(); self.bg_log.append(f)
        self.bg_next = self.k.est + 200

    def drain(self):
        while self.bg: self.bg.pop(0)()

    def ltag(self, tag, n=1):
        self.lq += [tag]*n
    def lwait(self, tag=None):
        if tag is None:
            self.k.s_waitcnt('lgkmcnt(0)'); self.lq = []; return
        if tag not in self.lq: return
        idx = len(self.lq) - 1 - self.lq[::-1].index(tag)
        n = len(self.lq) - 1 - idx
        self.k.s_waitcnt(f'lgkmcnt({min(n, 15)})')
        self.lq = self.lq[idx+1:]
    def vtag(self, tag, n=1):
        self.vq += [tag]*n
    def vwait(self, tag=None):
        if tag is None:
            self.k.s_waitcnt('vmcnt(0)'); self.vq = []; return
        if tag not in self.vq: return
        idx = len(self.vq) - 1 - self.vq[::-1].index(tag)
        n = len(self.vq) - 1 - idx
        assert n <= 63
        self.k.s_waitcnt(f'vmcnt({n})')
        self.vq = self.vq[idx+1:]

    def mfma(self, d, a_, b_, c):
        self.k(MFMA, v(d, 16), a_, b_, c)

    def srd(self, d, b, n):
        k = self.k
        k.s_mov_b32(s(d), s(b)); k.s_and_b32(s(d+1), s(b+1), '0xffff')
        k.s_mov_b32(s(d+2), n); k.s_mov_b32(s(d+3), '0x20000')

    def _so(self, sbase, off):
        hi = off & ~0xfff
        if not hi: return s(sbase)
        if self._hi != (sbase, hi):
            self.k.s_add_u32(s(sT5), s(sbase), hi); self._hi = (sbase, hi)
        return s(sT5)

    def ws_ld(self, dst, voff, sbase, off, n=4, flags='sc1'):
        op = {1: 'buffer_load_dword', 2: 'buffer_load_dwordx2', 4: 'buffer_load_dwordx4'}[n]
        so = self._so(sbase, off)
        self.k(op, v(dst, n), v(voff), s(S_WS, 4), so, m=f'offen offset:{off & 0xfff} {flags}'.strip())

    def ws_st(self, src, voff, sbase, off, n=4, flags=''):
        op = {1: 'buffer_store_dword', 2: 'buffer_store_dwordx2', 4: 'buffer_store_dwordx4'}[n]
        so = self._so(sbase, off)
        self.k(op, v(src, n), v(voff), s(S_WS, 4), so, m=f'offen offset:{off & 0xfff} {flags}'.strip())

    def nohi(self):
        self._hi = None

    def local_stores(self, fn):
        k = self.k
        ls, ld = k.newlabel('Lslow'), k.newlabel('Ldone')
        k.s_cmp_eq_u32(s(sMODE), 0)
        k.s_cbranch_scc1(ls)
        self.nohi(); fn('')
        k.label(ld)
        self.nohi()
        def cold():
            k.label(ls)
            self.nohi(); fn('sc1'); self.nohi()
            k.s_branch(ld)
        self.cold.append(cold)

    def check(self, regs):
        k = self.k
        t = 62
        regs = list(regs)
        k.v_max3_u32(v(t), v(regs[0]), v(regs[1]), v(regs[2]))
        rest = regs[3:]
        while rest:
            if len(rest) >= 2:
                k.v_max3_u32(v(t), v(rest[0]), v(rest[1]), v(t)); rest = rest[2:]
            else:
                k.v_max_u32(v(t), v(rest[0]), v(t)); rest = rest[1:]
        k.v_cmp_eq_u32('vcc', -1, v(t))
        k.s_cmp_eq_u64('vcc', 0)

    def poll(self, issue, regs, code, first_wait=None, sleep=0):
        k = self.k
        lp, lo = k.newlabel('Lpoll'), k.newlabel('Lok')
        def loop():
            k.s_mov_b32(s(sTRY), 0)
            l2, l3 = k.newlabel('Lp2'), k.newlabel('Lp3')
            k.s_branch(l3) if sleep else None
            k.label(l2)
            if sleep: k.s_sleep(sleep)
            k.label(l3)
            self.nohi(); issue(); self.nohi()
            k.s_add_u32(s(sTRY), s(sTRY), 1)
            k.s_cmp_ge_u32(s(sTRY), MAXTRY)
            k.s_cselect_b32(s(sT6), code, 0)
            k.s_or_b32(s(sERR), s(sERR), s(sT6))
            k.s_waitcnt('vmcnt(0)')
            self.check(regs)
            k.s_cselect_b32(s(sT7), 1, s(sT6))
            k.s_cmp_eq_u32(s(sT7), 0)
            k.s_cbranch_scc1(l2)
        if first_wait is None:
            loop()
        else:
            k.s_mov_b32(s(sTRY), 0)
            k.s_mov_b32(s(sT6), 0)
            l2, l3 = k.newlabel('Lp2'), k.newlabel('Lp3')
            assert first_wait == 0
            k.s_branch(l3)
            k.label(l2)
            if self.ts: k.s_add_u32(s(sERR), s(sERR), 1 << 16)
            if sleep: k.s_sleep(sleep)
            self.nohi(); issue(); self.nohi()
            k.s_add_u32(s(sTRY), s(sTRY), 1)
            k.s_cmp_ge_u32(s(sTRY), MAXTRY)
            k.s_cselect_b32(s(sT6), code, 0)
            k.s_or_b32(s(sERR), s(sERR), s(sT6))
            k.label(l3)
            k.s_waitcnt('vmcnt(0)')
            self.check(regs)
            k.s_cselect_b32(s(sT7), 1, s(sT6))
            k.s_cmp_eq_u32(s(sT7), 0)
            k.s_cbranch_scc1(l2)

    def xhalf(self, op, dst, t):
        k = self.k
        k.v_mov_b32(v(t), v(dst))
        k.v_permlane32_swap_b32(v(dst), v(t))
        k(op, v(dst), v(dst), v(t))

    def rbf(self, dst, src):
        k = self.k
        k.v_cvt_pk_bf16_f32(v(dst), v(src), v(src))
        k.v_and_b32(v(dst), '0xffff0000', v(dst))

    def prologue(self):
        k = self.k
        k.label('Lstart')
        k.s_load_dwordx16(s(64, 16), s(0, 2), 0)
        k.s_load_dwordx4(s(80, 4), s(0, 2), 64)
        k.s_getpc_b64(s(4, 2))
        k.label('Lpc')
        k.s_memrealtime(s(90, 2))
        if self.ts: k.s_memtime(s(92, 2))
        k.s_cmp_ge_u32(s(2), 256)
        k.s_cbranch_scc1('Lend')
        k.s_lshr_b32(s(6), s(2), 3)
        k.s_sub_u32(s(S_CODE), s(4), 'Lpc-Lstart'); k.s_subb_u32(s(5), s(5), 0)
        k.s_and_b32(s(S_CODE+1), s(5), '0xffff')
        k.s_mov_b32(s(S_CODE+2), 'Lcode_end-Lstart'); k.s_mov_b32(s(S_CODE+3), '0x20000')
        k.v_lshrrev_b32(v(1), 6, v(0))
        k.v_and_b32(v(vLANE), 63, v(0))
        k.v_readfirstlane_b32(s(sW), v(1))
        k.s_lshl_b32(s(3), s(6), 11)
        k.v_lshlrev_b32(v(2), 5, v(vLANE))
        lcp = k.newlabel('Lcp')
        k.s_cmp_lg_u32(s(sW), 3); k.s_cbranch_scc1(lcp)
        k.buffer_load_dword(v(240), v(2), s(S_CODE, 4), s(3), m='offen')
        k.label(lcp)
        k.s_and_b32(s(sH), s(6), 15)
        k.s_and_b32(s(3), s(2), 7)
        k.s_lshr_b32(s(7), s(6), 4)
        k.s_lshl_b32(s(3), s(3), 1)
        k.s_add_u32(s(sR), s(3), s(7))
        n, hf, r4, ch, c4, l2 = 60, 61, 62, 63, 59, 58
        k.v_and_b32(v(c4), 3, v(vLANE))
        k.v_lshrrev_b32(v(l2), 2, v(vLANE))
        vODMA, vPDMA = 97, 98
        k.v_mul_u32_u24(v(vPDMA), 2688, v(l2))
        k.v_lshl_add_u32(v(vPDMA), v(c4), 4, v(vPDMA))
        k.v_mul_u32_u24(v(vODMA), 896, v(l2))
        k.v_lshl_add_u32(v(vODMA), v(c4), 4, v(vODMA))
        k.v_mul_u32_u24(v(96), 56, v(l2))
        k.v_lshl_add_u32(v(96), v(c4), 4, v(96))
        k.v_lshlrev_b32(v(vL16), 4, v(vLANE))
        k.s_lshl_b32(s(sOM), s(sR), 2); k.s_add_u32(s(sOM), s(sOM), s(sW))
        sRHO, sPH, sPD = 101, 100, 95
        k.s_lshl_b32(s(sRHO), s(sR), 4); k.s_add_u32(s(sRHO), s(sRHO), s(sH))
        k.s_and_b32(s(sPH), s(sRHO), 3); k.s_lshl_b32(s(sPH), s(sPH), 2); k.s_add_u32(s(sPH), s(sPH), s(sW))
        k.s_waitcnt('lgkmcnt(0)')
        self.srd(S_DBG, 80, 256)
        lep = k.newlabel('Lep')
        k.s_add_u32(s(3), s(2), s(sW)); k.s_cmp_lg_u32(s(3), 0); k.s_cbranch_scc1(lep)
        k.s_andn2_b32(s(3), s(90), 15); k.s_or_b32(s(4), s(91), 0x40000000)
        k.v_mov_b32(v(56), s(3)); k.v_mov_b32(v(57), s(4))
        k.s_mov_b64('exec', 1)
        k.buffer_store_dwordx2(v(56, 2), v(vLANE), s(S_DBG, 4), 0, m='offen sc1')
        k.s_mov_b64('exec', -1)
        k.label(lep)
        self.srd(S_WA, 66, 1204224); self.srd(S_WB, 74, 1204224)
        self.srd(S_WOA, 70, 401408); self.srd(S_WOB, 76, 401408)
        self.srd(S_AX, 64, 1835008); self.srd(S_WPHI, 68, 25088)
        self.srd(S_OUT, 78, 1835008); self.srd(S_WS, 82, WS_BYTES)
        k.s_lshl_b32(s(sLDSW), s(sW), 10)
        k.s_mul_i32(s(sSTW), s(sW), 7168); k.s_add_u32(s(sSTW), s(sSTW), L_ST)
        self.vq = []
        sPS = 97
        k.s_lshr_b32(s(sT1), s(sRHO), 2)
        k.s_cmp_ge_u32(s(sT1), 28); k.s_cselect_b32(s(sT2), 1, 0)
        k.s_cmp_ge_u32(s(sT1), 56); k.s_cselect_b32(s(sT2), 2, s(sT2))
        k.s_mul_i32(s(sT3), s(sT2), 28); k.s_sub_u32(s(sT3), s(sT1), s(sT3)); k.s_mul_i32(s(sT3), s(sT3), 16*2688)
        k.s_add_u32(s(sT2), s(sT2), 1); k.s_cmp_eq_u32(s(sT2), 3); k.s_cselect_b32(s(sT2), 0, s(sT2))
        k.s_mul_i32(s(sT2), s(sT2), 896); k.s_add_u32(s(sT3), s(sT3), s(sT2))
        k.s_mul_i32(s(sT0), s(sPH), 56); k.s_add_u32(s(sPS), s(sT3), s(sT0))
        k.s_add_u32('m0', s(sSTW), 0)
        k.buffer_load_dwordx4(v(vPDMA), s(S_WA, 4), s(sPS), m='offen lds')
        k.s_mul_i32(s(sT2), s(sPH), 84*FR); k.s_mul_i32(s(sT3), s(sT1), FR); k.s_add_u32(s(sPD), s(sT2), s(sT3))
        k.s_add_u32(s(sPD), s(sPD), WPK[0])
        k.s_add_u32(s(sT3), s(sT1), 8); k.s_mul_i32(s(sT3), s(sT3), 16*2688); k.s_add_u32(s(sPS+1), s(sT3), s(sT0))
        k.s_add_u32(s(sPD+1), s(sPD), 64*FR)
        k.s_sub_u32(s(sT1), s(sRHO), 80)
        k.s_lshr_b32(s(sT2), s(sT1), 3); k.s_bfe_u32(s(sT1), s(sT1), 2 | (1 << 16))
        k.s_mul_i32(s(sT3), s(sT2), 28*896); k.s_add_u32(s(sT0), s(sT0), s(sT3)); k.s_mul_i32(s(sT3), s(sT1), 16*896); k.s_add_u32(s(sT0), s(sT0), s(sT3))
        k.s_mul_i32(s(sT3), s(sPH), 32*FR); k.s_mul_i32(s(sT2), s(sT2), 2*FR); k.s_add_u32(s(sT3), s(sT3), s(sT2))
        k.s_mul_i32(s(sT1), s(sT1), FR); k.s_add_u32(s(sT3), s(sT3), s(sT1)); k.s_add_u32(s(sT3), s(sT3), OPK)
        k.s_cmp_ge_u32(s(sRHO), 208); k.s_cselect_b32(s(sT3), 0x7000000, s(sT3))
        k.s_cmp_ge_u32(s(sRHO), 80); k.s_cselect_b32(s(sPS+1), s(sT0), s(sPS+1)); k.s_cselect_b32(s(sPD+1), s(sT3), s(sPD+1))
        k.s_mul_i32(s(sC0), s(sPH), 10752); k.s_lshr_b32(s(sT1), s(sRHO), 2); k.s_lshl_b32(s(sT1), s(sT1), 7)
        k.s_add_u32(s(sC0), s(sC0), s(sT1)); k.s_add_u32(s(sC0), s(sC0), CSP)
        k.s_add_u32(s(sC1), s(sC0), 64*128)
        k.s_cmp_ge_u32(s(sRHO), 80); k.s_cselect_b32(s(sC1), 0x7000000, s(sC1))
        def pack_dma1(typ, slot):
            la, lb = k.newlabel('La'), k.newlabel('Lb')
            k.s_add_u32('m0', s(sSTW), slot*1024)
            k.s_cmp_ge_u32(s(sRHO), 80); k.s_cbranch_scc1(la)
            k.buffer_load_dwordx4(v(vPDMA), s(S_WB if typ else S_WA, 4), s(sPS+1), m='offen lds')
            k.s_branch(lb)
            k.label(la)
            k.buffer_load_dwordx4(v(vODMA), s(S_WOB if typ else S_WOA, 4), s(sPS+1), m='offen lds')
            k.label(lb)
        pack_dma1(0, 1)
        self.vtag('pack', 2)
        def packb_dma():
            k.s_add_u32('m0', s(sSTW), 2*1024)
            k.buffer_load_dwordx4(v(vPDMA), s(S_WB, 4), s(sPS), m='offen lds')
            pack_dma1(1, 3)
            self.vtag('packb', 2)
        k.s_mul_i32(s(sT1), s(sH), 1568)
        k.s_add_u32('m0', s(sSTW), 5*1024)
        k.buffer_load_dwordx4(v(96), s(S_WPHI, 4), s(sT1), m='offen lds')
        k.s_add_u32(s(sT1), s(sT1), 16*56)
        k.s_add_u32('m0', s(sSTW), 6*1024)
        k.buffer_load_dwordx4(v(96), s(S_WPHI, 4), s(sT1), m='offen lds')
        self.vtag('phi', 2)
        if self.tlb:
            k.v_lshlrev_b32(v(2), 20, v(vLANE))
            k.s_lshl_b32(s(sT1), s(2), 7)
            k.s_mov_b32('exec_hi', 0)
            k.buffer_load_dword(a(255), v(2), s(S_WS, 4), s(sT1), m='offen')
            k.buffer_load_dword(a(254), v(2), s(S_OUT, 4), s(sT1), m='offen')
            k.s_mov_b32('exec_hi', -1)
            self.vtag('tlb', 2)
        if self.ts:
            k.s_lshl_b32(s(sT1), s(2), 2); k.s_add_u32(s(sT1), s(sT1), s(sW)); k.s_lshl_b32(s(sT1), s(sT1), 8)
            k.s_add_u32(s(sTSO), s(sT1), TS_BASE)
            k.v_mov_b32(v(vNEGB), 0)
        self.stamp('pack issued')
        vX0, vBW0, vBW1, vBR = 101, 102, 103, 104
        vPK8, vPK4 = 99, 100
        k.v_lshrrev_b32(v(56), 3, v(vLANE))
        k.s_lshl_b32(s(sT1), s(sOM), 5)
        k.v_add_u32(v(55), s(sT1), v(56)); k.v_mul_u32_u24(v(vX0), 896, v(55))
        k.v_and_b32(v(55), 7, v(vLANE))
        k.v_lshrrev_b32(v(56), 4, v(vLANE)); k.v_xor_b32(v(55), v(55), v(56))
        k.v_lshl_add_u32(v(vX0), v(55), 4, v(vX0))
        k.v_xor_b32(v(vBW0), 64, v(vX0))
        sC0_ = 99
        k.s_and_b32(s(sT1), s(sR), 1); k.s_mul_i32(s(sT1), s(sT1), 3); k.s_add_u32(s(sC0_), s(sH), s(sT1))
        k.s_cmp_ge_u32(s(sC0_), 7); k.s_cselect_b32(s(sT1), 7, 0); k.s_cmp_ge_u32(s(sC0_), 14); k.s_cselect_b32(s(sT1), 14, s(sT1))
        k.s_sub_u32(s(sC0_), s(sC0_), s(sT1))
        def line(dst, i):
            k.s_add_u32(s(dst), s(sC0_), i)
            k.s_cmp_ge_u32(s(dst), 7); k.s_cselect_b32(s(sT5), 7, 0); k.s_sub_u32(s(dst), s(dst), s(sT5))
        def wdma(segs, ii):
            line(sT4, ii)
            k.s_mul_i32(s(sT4), s(sT4), 4*FR)
            k.s_add_u32(s(sT4), s(sT4), s(sWPKH))
            for g in segs:
                k.s_add_u32('m0', s(sLDSW), g*SEG + ii*4096)
                k.s_add_u32(s(sT5), s(sT4), WPK[0] + g*28*FR)
                k.buffer_load_dwordx4(v(vL14), s(S_WS, 4), s(sT5), m='offen sc1 lds')
                self.vtag('wq' if g == 2 else f'w{ii}')
        def xload(c):
            line(sT0, c)
            k.s_lshl_b32(s(sT0), s(sT0), 7)
            for g in range(4):
                if g: k.s_add_u32(s(sT0), s(sT0), 8*896)
                k.s_add_u32('m0', s(sLDSW), (4*c+g)*4096)
                k.buffer_load_dwordx4(v(vBW0 if g & 1 else vX0), s(S_AX, 4), s(sT0), m='offen lds')
            self.vtag(f'x{c}', 4)
        def xread(c):
            for sp in range(4):
                k.ds_read_b128(v(vXF+4*(4*c+sp), 4), v((vBR if c < 4 else 84)+sp), m=f'offset:{(c & 3)*16384}')
            self.ltag(f'b{c}', 4)
        ones = 57
        def xstat(c):
            for i in range(16):
                x = vXF + 16*c + i
                k.v_dot2_f32_bf16(v(60), v(x), v(ones), v(60))
                k.v_dot2_f32_bf16(v(61), v(x), v(x), v(61))
        def st1(reg, sb, add, off=0, tag='st', frag=False):
            so = sb
            if add:
                k.s_add_u32(s(sT2), s(sb), add); so = sT2
            k.buffer_store_dwordx4(v(reg, 4), v(vL14 if frag else vL16), s(S_WS, 4), s(so), m=f'offen offset:{off} sc1')
            self.vtag(tag)
        xload(0)
        self.setup2()
        self.stamp('setup2')
        k.v_mov_b32(v(ones), '0x3f803f80')
        for i in range(4): k.v_mov_b32(v(60+i), 0)
        vPK1a, vPK1b = 110, 111
        k.s_cmp_ge_u32(s(sRHO), 80); k.s_cselect_b64('vcc', -1, 0); k.s_cselect_b32(s(sT1), 2, 1); k.s_lshl_b32(s(sT1), s(sT1), 8)
        k.v_cndmask_b32(v(vPK1a), v(vPK8), v(vPK4), 'vcc')
        k.v_add_u32(v(vPK1b), s(sT1), v(vPK1a))
        sPADM = 7
        k.s_sub_u32(s(sT1), s(sRHO), 80); k.s_bitcmp1_b32(s(sT1), 2); k.s_cselect_b32(s(sPADM), -1, 0)
        k.s_cmp_ge_u32(s(sRHO), 80); k.s_cselect_b32(s(sPADM), s(sPADM), 0)
        def pack_out(typ, slot, P, dadd):
            for j in range(2):
                k.ds_read_b64_tr_b16(v(P+2*j, 2), v(vPK8), m=f'offset:{slot*1024 + j*256}')
            k.ds_read_b64_tr_b16(v(P+4, 2), v(vPK1a), m=f'offset:{slot*1024 + 1024}')
            k.ds_read_b64_tr_b16(v(P+6, 2), v(vPK1b), m=f'offset:{slot*1024 + 1024}')
            k.s_waitcnt('lgkmcnt(2)')
            st1(P, sPD, dadd[0], frag=True)
            k.s_waitcnt('lgkmcnt(0)')
            k.s_mov_b32('exec_lo', 0); k.s_mov_b32('exec_hi', s(sPADM))
            k.v_mov_b32(v(P+6), 0); k.v_mov_b32(v(P+7), 0)
            k.s_mov_b64('exec', -1)
            if typ:
                k.s_mov_b32(s(sT3), dadd[0]); k.s_cmp_ge_u32(s(sRHO), 80); k.s_cselect_b32(s(sT3), dadd[1], s(sT3))
                k.s_add_u32(s(sPD+1), s(sPD+1), s(sT3))
            st1(P+4, sPD+1, 0, frag=True)
            A_, B_ = 76, 78
            k.v_mov_b32(v(A_), 0); k.v_mov_b32(v(B_), 0)
            for i in range(4):
                k.v_dot2_f32_bf16(v(A_), v(P+i), v(ones), v(A_)); k.v_dot2_f32_bf16(v(B_), v(P+4+i), v(ones), v(B_))
            k.v_permlane32_swap_b32(v(A_), v(B_))
            k.v_add_f32(v(A_), v(A_), v(B_))
            k.v_and_b32(v(B_), 31, v(vLANE)); k.v_lshlrev_b32(v(B_), 2, v(B_))
            k.s_mov_b32('exec_hi', 0)
            k.buffer_store_dword(v(A_), v(B_), s(S_WS, 4), s(sC0), m='offen sc1')
            k.s_mov_b32('exec_hi', -1); k.s_mov_b32('exec_lo', 0)
            k.buffer_store_dword(v(A_), v(B_), s(S_WS, 4), s(sC1), m='offen sc1')
            k.s_mov_b32('exec_lo', -1)
            self.vtag('st', 2)
            if typ == 0:
                k.s_add_u32(s(sC0), s(sC0), 172032); k.s_add_u32(s(sC1), s(sC1), 172032)
        self.vwait('pack')
        self.stamp('pack in')
        pack_out(0, 0, 64, (0, 0))
        EP = 80
        k.v_mov_b32(v(EP+2), 0)
        k.buffer_load_dwordx2(v(EP, 2), v(EP+2), s(S_DBG, 4), 0, m='offen sc1'); self.vtag('ep')
        self.stamp('pack out')
        def fillall():
            assert XB[1] - XB[0] == 2*MB and OB[0] - XB[0] == 6*MB and OB[1] - XB[0] == 8*MB
            k.v_lshrrev_b32(v(58), 4, v(vLANE)); k.v_lshrrev_b32(v(59), 5, v(vLANE)); k.v_add_u32(v(58), v(58), v(59))
            k.v_lshlrev_b32(v(58), 21, v(58))
            k.v_and_b32(v(59), 15, v(vLANE)); k.v_lshl_add_u32(v(58), v(59), 7, v(58))
            k.buffer_load_dword(a(255), v(58), s(S_WS, 4), s(sOT_P), m='offen sc1'); self.vtag('bg')
        FP = self.opt.get('fp', -1)
        packb_dma()
        if FP == 0: fillall()
        xload(1); xload(2)
        self.vwait('x0')
        self.lq = []
        xread(0)
        for j in range(2):
            for jj in range(2):
                k.ds_read_b64_tr_b16(v(vWPHI+4*j+2*jj, 2), v(vPK4), m=f'offset:{5120 + j*1024 + jj*512}')
        self.lwait()
        k.s_mov_b32('exec_lo', 0)
        k.v_mov_b32(v(vWPHI+6), 0); k.v_mov_b32(v(vWPHI+7), 0)
        k.s_mov_b64('exec', s(sP0, 2))
        for i in range(8): k.v_mov_b32(v(vWPHI+i), 0)
        k.s_mov_b64('exec', -1)
        xstat(0)
        self.vwait('ep')
        self.tag_get(EP)
        k.s_barrier()
        self.stamp('acked')
        self.flag_post(0, EP)
        if FP == 1: fillall()
        self.vwait('packb')
        pack_out(1, 2, 64, (WPK[1] - WPK[0], OPT))
        for i in range(4): k.v_mov_b32(v(108+i), -1)
        k.s_lshl_b32(s(97), s(sR), 12); k.s_add_u32(s(97), s(97), s(sKVP_C))
        k.s_lshl_b32(s(98), s(sH), 12); k.s_add_u32(s(98), s(98), s(sLDSW))
        k.s_lshl_b32(s(sT3), s(sR), 16); k.s_add_u32(s(98), s(98), s(sT3))
        k.s_mov_b32(s(sT3), 0x7000000); k.s_cmp_lt_u32(s(sR), 2); k.s_cselect_b32(s(sT3), KVR[0], s(sT3)); k.s_add_u32(s(98), s(98), s(sT3))
        st1(108, 97, KVP[0]); st1(108, 98, 0)
        for c in range(3, 7): xload(c)
        if FP == 2: fillall()
        for c in range(1, 7):
            if c == 3: self.quad_issue(72)
            self.vwait(f'x{c}')
            xread(c)
            if 2 <= c <= 4:
                self.lwait(f'b{c-1}')
                xstat(c-1)
        self.lwait()
        self.stamp('x0 done')
        self.quad_wait(72)
        self.code_pf(1024)
        self.stamp('flags')
        L_CT = L_KVL + 32768 + 4096*4 + 8192
        if self.opt.get('kf'):
            for ii in range(7): wdma((0,), ii)
            self.cs_dma(0, L_CT)
            self.flag_issue(0, 32)
            xstat(4); xstat(5)
            for ii in range(3): wdma((1,), ii)
            xstat(6)
            self.stats_finish(60, 61)
            for ii in range(3, 7): wdma((1,), ii)
            self.vtag('wv', 0)
            self.stamp('W issued')
            self.flag_wait(0, 32)
            k.s_waitcnt('lgkmcnt(0)')
            k.s_barrier()
            self.stamp('K in')
            D = 6
            self.lq = []
            def rdk(st):
                k.ds_read_b128(v(vWF + (st % 8)*4, 4), v(vL16), m=f'offset:{L_WK + st*1024}'); self.ltag(f'w{st}')
            for st in range(D): rdk(st)
            self.flag_post(1, 96)
            self.touch_half(OPK); self.vtag('bg')
            fin = self.cs_ops(0, L_CT, 32, 55)
            rs0 = [self.bg_reset(sKVH_P, KVH[1], 1024*i, 108) for i in range(4)] + [self.bg_reset(97, KVP[2], 0, 108)]
            ex = {}
            KF = self.opt['kf']
            if KF == 1:
                for ii in range(7): ex[6 + 2*ii] = lambda ii=ii: wdma((2,), ii)
                for i in range(5): ex[20 + i] = rs0[i]
            for st in range(28):
                self.lwait(f'w{st}')
                self.mfma(vAK, v(vWF + (st % 8)*4, 4), v(vXF+4*st, 4), v(vAK, 16) if st else 0)
                if st + D < 28: rdk(st + D)
                for _ in range(4):
                    if fin: fin.pop(0)()
                if st in ex: ex[st]()
            assert not fin
            xm, wm = 112, 116
            k.v_mov_b32(v(xm), v(vMB)); k.v_mov_b32(v(wm), v(vCS+1))
            for i in range(1, 4):
                k.v_mov_b32(v(xm+i), 0); k.v_mov_b32(v(wm+i), 0)
            self.mfma(vAK, v(wm, 4), v(xm, 4), v(vAK, 16))
            k.s_add_u32(s(sT1), s(sOT_P), OB[0])
            def st_(fl):
                self.ws_st(108, vL16, sT1, 0, flags=fl); self.ws_st(108, vL16, sT1, 1024, flags=fl)
            self.local_stores(st_); self.vtag('st', 2)
            for q in range(4): k.ds_read_b128(v(32+4*q, 4), v(vRVR), m=f'offset:{32*q}')
            self.rv = 32
            self.vwait('w6')
            k.s_barrier()
            self.stamp('K gemm')
            self.lq = []
            def rdv(st):
                k.ds_read_b128(v(96 + (st % 4)*4, 4), v(vL16), m=f'offset:{L_WV + st*1024}'); self.ltag(f'w{st}')
            for st in range(3): rdv(st)
            if KF >= 2:
                for ii in range(7): wdma((2,), ii)
            self.pack(vAK)
            P, E = 112, 128
            self.feature_mfma(vAK, P)
            def vstep(st):
                def f():
                    self.lwait(f'w{st}')
                    self.mfma(vAV, v(vXF+4*st, 4), v(96 + (st % 4)*4, 4), v(vAV, 16) if st else 0)
                    if st + 3 < 28: rdv(st + 3)
                f.gap = 16; f.vs = True
                return f
            self.bg_wo(0)
            wo = self.bg; self.bg = []
            for st in range(28):
                self.bg.append(vstep(st))
                if st % 3 == 2 and st >= 8 and KF == 1:
                    f = wo.pop(0); f.gap = 0; self.bg.append(f)
            self.burst(3); self.bg_next = 0
            self.bgon()
            self.feature(P, E)
            self.bgoff()
            for sg, X in ((0, P), (1, E)):
                for q in range(4):
                    k.ds_write_b64(v(vPHW), v(X+2*q, 2), m=f'offset:{sg*PHI_SIGN + q*16}'); self.ltag('ph')
            self.drain()
            xm, wm = 120, 124
            k.v_mov_b32(v(xm), v(vMB)); k.v_mov_b32(v(wm), v(vCS+2))
            for i in range(1, 4):
                k.v_mov_b32(v(xm+i), 0); k.v_mov_b32(v(wm+i), 0)
            self.mfma(vAV, v(xm, 4), v(wm, 4), v(vAV, 16))
            self.bg = wo
            self.vwait('wq'); self.vwait('st')
            self.epi_v()
            k.ds_write_b128(v(vVOW), v(vAV, 4)); k.ds_write_b128(v(vVOW), v(vAV+4, 4), m='offset:1024')
            for q in range(4):
                k.buffer_load_dwordx2(v(vXRES+8+2*q, 2), v(vOUT), s(S_AX, 4), 0, m=f'offen offset:{16*q}')
            self.burst(4)
            self.quad_issue(58, stage=1, both=True)
            self.rs0 = []
            if KF >= 2:
                self.rs_late = [self.bg_reset(sKVH_P, KVH[1], 1024*i, 92) for i in range(4)] + [self.bg_reset(97, KVP[2], 0, 92)]
            return
        for ii in range(7):
            wdma((0, 1), ii)
            if ii == 2: self.cs_dma(0, L_CT)
            if ii == 3: self.flag_issue(0, 32)
            if ii in (2, 4, 6): xstat(3 + ii//2)
        self.stats_finish(60, 61)
        D = 3
        def rdw(st):
            b = vWF + (st % 4)*8
            k.ds_read_b128(v(b, 4), v(vL16), m=f'offset:{L_WK + st*1024}')
            k.ds_read_b128(v(b+4, 4), v(vL16), m=f'offset:{L_WV + st*1024}')
            self.ltag(f'w{st}', 2)
        def gemm(s0, s1, extra, fill=None):
            for st in range(s0, s1):
                self.lwait(f'w{st}')
                b = vWF + (st % 4)*8
                x = v(vXF+4*st, 4)
                self.mfma(vAK, v(b, 4), x, v(vAK, 16) if st else 0)
                for _ in range(4):
                    if fill: fill.pop(0)()
                self.mfma(vAV, x, v(b+4, 4), v(vAV, 16) if st else 0)
                if st + D < s1: rdw(st + D)
                if extra: extra.pop(0)()
        nop = lambda: None
        self.stamp('W issued')
        self.flag_wait(0, 32)
        k.s_waitcnt('lgkmcnt(0)')
        k.s_barrier()
        self.lq = []
        for st in range(D): rdw(st)
        self.flag_post(1, 96)
        self.touch_half(OPK); self.vtag('bg')
        self.stamp('W half1')
        def rob():
            k.s_add_u32(s(sT1), s(sOT_P), OB[0])
            def st(fl):
                self.ws_st(108, vL16, sT1, 0, flags=fl); self.ws_st(108, vL16, sT1, 1024, flags=fl)
            self.local_stores(st); self.vtag('st', 2)
        def resid():
            for q in range(4):
                k.buffer_load_dwordx2(v(100+2*q, 2), v(vOUT), s(S_AX, 4), 0, m=f'offen offset:{16*q}')
            self.vtag('res', 4)
        fin = self.cs_ops(0, L_CT, 32, 55)
        ex = [nop]
        for ii in range(7): ex += [lambda ii=ii: wdma((2,), ii)]
        ex += [resid]
        gemm(0, 16, ex, fin)
        self.vwait('w6')
        k.s_barrier()
        self.stamp('W kv')
        for st in range(16, 16+D): rdw(st)
        rob()
        self.rs0 = [self.bg_reset(sKVH_P, KVH[1], 1024*i, 108) for i in range(4)] + [self.bg_reset(97, KVP[2], 0, 108)]
        if self.opt.get('abl_r', 0) & 2: self.rs0 = []
        for f in self.rs0: f.gap = 60
        if not self.opt.get('s0a'): self.bg += self.rs0
        self.bg_wo(0)
        for f in self.bg[:14]: f.gap = self.opt.get('gh2', 90)
        self.bgon()
        gemm(16, 28, [], fin)
        while fin: fin.pop(0)()
        if self.opt.get('s0a'):
            self.bgoff(); self.quad_issue(58, stage=1, both=True); self.bgon()
        self.mean_steps(0)
        self.vwait('res')
        for i in range(8):
            k.v_lshlrev_b32(v(vXRES+2*i), 16, v(100+i)); k.v_and_b32(v(vXRES+2*i+1), '0xffff0000', v(100+i))
        k.s_mov_b32('exec_lo', 0)
        for i in range(12, 16): k.v_mov_b32(v(vXRES+i), 0)
        k.s_mov_b32('exec_lo', -1)

    def tag_get(self, EP):
        k = self.k
        lfe, lfe2, lfe3 = k.newlabel('Lfe'), k.newlabel('Lfe'), k.newlabel('Lfe')
        k.s_mov_b32(s(sTRY), 0)
        k.label(lfe2)
        k.v_readfirstlane_b32(s(sE0), v(EP)); k.v_readfirstlane_b32(s(sE1), v(EP+1))
        k.s_cmp_eq_u32(s(sE1), 0); k.s_cbranch_scc1(lfe)
        k.label(lfe3)
        def cold():
            k.label(lfe)
            k.s_sleep(2)
            k.buffer_load_dwordx2(v(EP, 2), v(EP+2), s(S_DBG, 4), 0, m='offen sc1')
            k.s_add_u32(s(sTRY), s(sTRY), 1)
            k.s_waitcnt('vmcnt(0)')
            k.s_cmp_lt_u32(s(sTRY), MAXTRY); k.s_cbranch_scc1(lfe2)
            k.s_or_b32(s(sERR), s(sERR), 1 << 29)
            k.s_branch(lfe3)
        self.cold.append(cold)
        k.s_or_b32(s(sE0), s(sE0), s(sXCC))

    def flag_post(self, stage, EP):
        k = self.k
        lfx = k.newlabel('Lfx')
        k.s_cmp_lg_u32(s(sW), 3); k.s_cbranch_scc1(lfx)
        k.v_mov_b32(v(EP), s(sE0)); k.v_mov_b32(v(EP+1), s(sE1))
        k.s_and_b32(s(3), s(101), 3); k.s_lshl_b32(s(3), s(3), 9); k.s_lshr_b32(s(6), s(101), 2); k.s_lshl_b32(s(6), s(6), 3)
        k.s_add_u32(s(3), s(3), s(6)); k.s_add_u32(s(3), s(3), FLG + 2048*stage)
        k.s_mov_b64('exec', 1)
        k.buffer_store_dwordx2(v(EP, 2), v(vLANE), s(S_WS, 4), s(3), m='offen sc1')
        k.s_mov_b64('exec', -1)
        k.label(lfx)

    def quad_issue(self, F, stage=0, both=False):
        k = self.k
        A = F + (4 if both else 2)
        k.v_lshlrev_b32(v(A), 3, v(vLANE))
        k.s_lshr_b32(s(6), s(sH), 2); k.s_lshl_b32(s(6), s(6), 9); k.s_add_u32(s(6), s(6), FLG + 2048*stage)
        if both:
            k.s_lshl_b32(s(7), s(sCG), 9); k.s_add_u32(s(7), s(7), FLG + 2048*stage)
        self._quad_ld(F, both)
        self.vtag('quad', 2 if both else 1)

    def _quad_ld(self, F, both):
        k = self.k
        A = F + (4 if both else 2)
        k.buffer_load_dwordx2(v(F, 2), v(A), s(S_WS, 4), s(6), m='offen sc1')
        if both: k.buffer_load_dwordx2(v(F+2, 2), v(A), s(S_WS, 4), s(7), m='offen sc1')

    def quad_wait(self, F, both=False):
        k = self.k
        lp, lr, lgo = k.newlabel('Lqp'), k.newlabel('Lqr'), k.newlabel('Lqo')
        k.s_mov_b32(s(sTRY), 0)
        self.vwait('quad')
        k.label(lp)
        k.v_xor_b32(v(F), s(sE0), v(F)); k.v_xor_b32(v(F+1), s(sE1), v(F+1))
        if both:
            k.v_xor_b32(v(F+2), s(sE0), v(F+2)); k.v_xor_b32(v(F+3), s(sE1), v(F+3))
            k.v_or_b32(v(F), v(F), v(F+2)); k.v_or_b32(v(F+1), v(F+1), v(F+3))
        k.v_and_b32(v(F), -16, v(F)); k.v_or_b32(v(F), v(F), v(F+1))
        k.v_cmp_ne_u32('vcc', 0, v(F))
        k.s_cmp_eq_u64('vcc', 0)
        k.s_cbranch_scc1(lgo)
        k.s_add_u32(s(sTRY), s(sTRY), 1)
        k.s_cmp_ge_u32(s(sTRY), MAXTRY); k.s_cselect_b32(s(sT6), 1 << 28, 0); k.s_or_b32(s(sERR), s(sERR), s(sT6))
        k.s_cmp_lg_u32(s(sT6), 0); k.s_cbranch_scc1(lgo)
        if self.ts: k.s_add_u32(s(sERR), s(sERR), 1 << 24)
        k.s_sleep(4)
        self._quad_ld(F, both)
        k.s_waitcnt('vmcnt(0)')
        k.s_branch(lp)
        k.label(lgo)

    def flag_issue(self, stage, F):
        k = self.k
        k.v_lshlrev_b32(v(F+8), 5, v(vLANE))
        k.s_mov_b32(s(3), FLG + 2048*stage)
        k.buffer_load_dwordx4(v(F, 4), v(F+8), s(S_WS, 4), s(3), m='offen sc1')
        k.buffer_load_dwordx4(v(F+4, 4), v(F+8), s(S_WS, 4), s(3), m='offen offset:16 sc1')
        self.vtag('flg', 2)

    def flag_wait(self, stage, F):
        k = self.k
        lp, lr, lgo = k.newlabel('Lfp'), k.newlabel('Lfr'), k.newlabel('Lgo')
        k.s_mov_b32(s(sTRY), 0)
        self.vwait('flg')
        k.label(lp)
        for i in range(4):
            k.v_xor_b32(v(F+2*i), s(sE0), v(F+2*i)); k.v_xor_b32(v(F+2*i+1), s(sE1), v(F+2*i+1))
        k.v_or3_b32(v(F), v(F), v(F+2), v(F+4)); k.v_or_b32(v(F), v(F), v(F+6))
        k.v_or3_b32(v(F+1), v(F+1), v(F+3), v(F+5)); k.v_or_b32(v(F+1), v(F+1), v(F+7))
        k.v_and_b32(v(F+2), -16, v(F)); k.v_or_b32(v(F+2), v(F+2), v(F+1))
        k.v_cmp_ne_u32('vcc', 0, v(F+2))
        k.s_cmp_eq_u64('vcc', 0)
        k.s_cbranch_scc0(lr)
        k.label(lgo)
        def cold():
            k.label(lr)
            k.s_add_u32(s(sTRY), s(sTRY), 1)
            k.s_cmp_ge_u32(s(sTRY), MAXTRY); k.s_cselect_b32(s(sT6), 1 << 30, 0); k.s_or_b32(s(sERR), s(sERR), s(sT6))
            k.s_cmp_lg_u32(s(sT6), 0); k.s_cbranch_scc1(lgo)
            if self.ts: k.s_add_u32(s(sERR), s(sERR), 1 << 24)
            k.s_sleep(4)
            k.s_mov_b32(s(3), FLG + 2048*stage)
            k.buffer_load_dwordx4(v(F, 4), v(F+8), s(S_WS, 4), s(3), m='offen sc1')
            k.buffer_load_dwordx4(v(F+4, 4), v(F+8), s(S_WS, 4), s(3), m='offen offset:16 sc1')
            k.s_waitcnt('vmcnt(0)')
            k.s_branch(lp)
        self.cold.append(cold)
        if stage == 0:
            k.v_cmp_eq_u32('vcc', 0, v(F))
            k.s_lshr_b64(s(sP0, 2), 'vcc', s(sR))
            k.s_and_b32(s(3), s(sP0), s(sP0+1))
            k.s_and_b32(s(3), s(3), 0x10001)
            k.s_cmp_eq_u32(s(3), 0x10001)
            k.s_cselect_b32(s(sMODE), 0 if self.force_slow else 1, 0)

    def setup2(self):
        k = self.k
        n, hf, r4, ch, c4, l2 = 60, 61, 62, 63, 59, 58
        k.s_getreg_b32(s(sXCC), 'hwreg(HW_REG_XCC_ID)')
        k.s_and_b32(s(sXCC), s(sXCC), 15)
        k.s_mov_b32(s(sSLOT), s(6))
        k.s_lshl_b32(s(sPFO), s(6), 2); k.s_add_u32(s(sPFO), s(sPFO), s(sW)); k.s_lshl_b32(s(sPFO), s(sPFO), 7)
        k.s_lshr_b32(s(3), s(sH), 2)
        k.s_lshl_b32(s(sTT), s(sR), 2)
        k.s_add_u32(s(sTT), s(sTT), s(3))
        k.s_and_b32(s(sCG), s(sH), 3)
        k.s_mov_b32(s(sERR), 0)
        k.s_mov_b32(s(sMODE), 0)
        k.s_lshl_b32(s(sXT), s(sOM), 15)
        k.s_lshl_b32(s(sT1), s(sH), 11); k.s_add_u32(s(sOT_P), s(sXT), s(sT1))
        k.s_lshl_b32(s(sXT_P), s(sTT), 15)
        k.s_lshl_b32(s(sT1), s(sW), 13); k.s_add_u32(s(sOT_C), s(sXT_P), s(sT1))
        k.s_lshl_b32(s(sT1), s(sH), 16)
        k.s_lshl_b32(s(sT2), s(sR), 12); k.s_add_u32(s(sKVP_P), s(sT1), s(sT2))
        k.s_lshl_b32(s(sT2), s(sW), 11); k.s_add_u32(s(sKVP_P), s(sKVP_P), s(sT2))
        k.s_add_u32(s(sKVP_C), s(sT1), s(sLDSW))
        k.s_lshl_b32(s(sT1), s(sH), 18)
        k.s_lshl_b32(s(sT2), s(sOM), 12); k.s_add_u32(s(sKVH_P), s(sT1), s(sT2))
        k.s_add_u32(s(sT2), s(sOM), s(sW))
        k.s_sub_u32(s(sT2), s(sT2), 8); k.s_lshl_b32(s(sT2), s(sT2), 12); k.s_add_u32(s(sKVH_C), s(sT1), s(sT2))
        k.s_mul_i32(s(sWPKH), s(sH), 84*FR); k.s_mul_i32(s(sT1), s(sW), FR); k.s_add_u32(s(sWPKH), s(sWPKH), s(sT1))
        k.s_and_b32(s(sT2), s(sR), 1); k.s_mul_i32(s(sT1), s(sW), 14336); k.s_mul_i32(s(sT3), s(sT2), 7168)
        k.s_add_u32(s(sHA), s(sT1), s(sT3)); k.s_sub_u32(s(sHB), s(sT1), s(sT3)); k.s_add_u32(s(sHB), s(sHB), 7168)
        k.s_mul_i32(s(sT1), s(sW), 7168); k.s_mul_i32(s(sT3), s(sT2), 3072); k.s_add_u32(s(sT1), s(sT1), L_WQ)
        k.s_add_u32(s(sQA), s(sT1), s(sT3)); k.s_sub_u32(s(sQB), s(sT1), s(sT3)); k.s_add_u32(s(sQB), s(sQB), 3072)
        k.s_mul_i32(s(sHEAD), s(sH), 84*FR)
        k.s_lshl_b32(s(sT1), s(sCG), 2); k.s_add_u32(s(sT1), s(sT1), s(sW)); k.s_mul_i32(s(sOPKC), s(sT1), 32*FR)
        k.v_and_b32(v(n), 31, v(vLANE))
        k.v_lshrrev_b32(v(hf), 5, v(vLANE))
        k.v_bfe_u32(v(r4), v(vLANE), 2, 2)
        k.v_bfe_u32(v(ch), v(vLANE), 4, 1)
        vX0, vBW0, vBW1, vBR = 101, 102, 103, 104
        k.v_bfe_u32(v(55), v(n), 1, 3)
        k.v_xor_b32(v(55), v(55), v(hf))
        k.v_and_b32(v(56), 7, v(n)); k.v_lshl_add_u32(v(56), v(56), 7, s(sLDSW))
        k.v_lshrrev_b32(v(57), 3, v(n)); k.v_lshl_add_u32(v(56), v(57), 12, v(56))
        k.v_lshl_add_u32(v(vBR), v(55), 4, v(56))
        for sp in range(1, 4): k.v_xor_b32(v(vBR+sp), 32*sp, v(vBR))
        for sp in range(4): k.v_add_u32(v(84+sp), 65536, v(vBR+sp))
        k.v_lshlrev_b32(v(57), 5, v(ch))
        k.v_lshl_add_u32(v(57), v(c4), 3, v(57))
        k.v_lshl_add_u32(v(56), v(hf), 3, v(r4))
        k.v_lshl_add_u32(v(vWRD0), v(56), 6, v(57))
        k.v_mul_u32_u24(v(vL14), 448, v(hf)); k.v_lshl_add_u32(v(vL14), v(n), 4, v(vL14))
        k.v_mov_b32(v(55), 0x7000000); k.v_cmp_gt_u32('vcc', 28, v(n)); k.v_cndmask_b32(v(vL14), v(55), v(vL14), 'vcc')
        k.v_add_u32(v(vWQ), L_WQ, v(vL16))
        vPK8, vPK4 = 99, 100
        k.v_add_u32(v(vPK8), s(sSTW), v(vWRD0))
        k.v_lshl_add_u32(v(56), v(hf), 2, v(r4))
        k.v_lshl_add_u32(v(vPK4), v(56), 6, v(57))
        k.v_add_u32(v(vPK4), s(sSTW), v(vPK4))
        k.v_mul_u32_u24(v(56), 264, v(hf))
        k.v_lshl_add_u32(v(56), v(r4), 6, v(56))
        k.s_and_b32(s(sT1), s(sW), 1); k.s_mul_i32(s(sT1), s(sT1), PHI_SIGN); k.s_add_u32(s(sT1), s(sT1), L_PHI)
        k.v_add3_u32(v(vPHR), v(56), v(57), s(sT1))
        k.v_lshrrev_b32(v(56), 2, v(n))
        k.s_lshl_b32(s(sT1), s(sW), 3)
        k.v_add_u32(v(56), s(sT1), v(56))
        k.v_mul_u32_u24(v(56), 264, v(56))
        k.v_lshl_add_u32(v(56), v(c4), 6, v(56))
        k.v_lshl_add_u32(v(56), v(hf), 3, v(56))
        k.v_add_u32(v(vPHW), L_PHI, v(56))
        k.s_lshl_b32(s(sT1), s(sW), 7); k.s_add_u32(s(sT1), s(sT1), L_RINV0)
        k.v_lshl_add_u32(v(vRVW), v(n), 2, s(sT1))
        k.v_lshl_add_u32(v(vRVR), v(hf), 4, s(sT1))
        k.s_lshl_b32(s(sT1), s(sW), 12); k.s_add_u32(s(sT1), s(sT1), L_KVL)
        k.v_add_u32(v(vKVL), s(sT1), v(vL16))
        k.s_lshl_b32(s(sT1), s(sW), 13); k.s_add_u32(s(sT1), s(sT1), L_KVL)
        k.v_add_u32(v(vHW), s(sT1), v(vL16))
        k.s_lshl_b32(s(sT1), s(sW), 11); k.s_add_u32(s(sT1), s(sT1), L_VOWN)
        k.v_add_u32(v(vVOW), s(sT1), v(vL16))
        for i, reg in ((0, vGW), (1, vG1), (2, vG2), (3, vG3)):
            k.s_add_u32(s(sT1), s(sW), i); k.s_and_b32(s(sT1), s(sT1), 3); k.s_lshl_b32(s(sT1), s(sT1), 13)
            k.s_sub_u32(s(sT1), L_GATH + 3*8192, s(sT1))
            k.v_add_u32(v(reg), s(sT1), v(vL16))
        k.s_mul_i32(s(sT1), s(sCG), 28); k.s_mul_i32(s(sT2), s(sW), 7); k.s_add_u32(s(sT1), s(sT1), s(sT2))
        k.v_add_u32(v(56), s(sT1), v(hf))
        k.v_lshrrev_b32(v(55), 1, v(56)); k.v_lshlrev_b32(v(55), 9, v(55))
        k.v_and_b32(v(56), 1, v(56)); k.v_lshl_add_u32(v(55), v(56), 3, v(55))
        k.v_lshl_add_u32(v(vXST), v(n), 4, v(55))
        k.s_lshl_b32(s(sT1), s(sCG), 2); k.s_add_u32(s(sT1), s(sT1), s(sW))
        k.s_bfe_u32(s(sT2), s(sT1), 1 | (2 << 16)); k.s_lshl_b32(s(sT2), s(sT2), 10)
        k.s_lshr_b32(s(sT3), s(sT1), 3); k.s_lshl_b32(s(sT3), s(sT3), 9); k.s_add_u32(s(sT2), s(sT2), s(sT3))
        k.s_and_b32(s(sT3), s(sT1), 1); k.s_lshl_b32(s(sT3), s(sT3), 3); k.s_add_u32(s(sT2), s(sT2), s(sT3))
        k.s_add_u32(s(sT2), s(sT2), 28672)
        k.v_lshl_add_u32(v(vSST), v(n), 4, s(sT2))
        k.v_and_b32(v(56), 15, v(vLANE)); k.v_mul_u32_u24(v(56), 7, v(56)); k.v_add_u32(v(56), 6, v(56))
        k.v_lshrrev_b32(v(55), 1, v(56)); k.v_lshlrev_b32(v(55), 9, v(55))
        k.v_and_b32(v(56), 1, v(56)); k.v_lshl_add_u32(v(55), v(56), 3, v(55))
        k.v_lshrrev_b32(v(56), 4, v(vLANE)); k.v_lshl_add_u32(v(55), v(56), 7, v(55))
        k.v_add_u32(v(vSLD), 112, v(55))
        k.s_lshl_b32(s(sT1), s(sTT), 5)
        k.v_add_u32(v(56), s(sT1), v(n)); k.v_mul_u32_u24(v(56), 896, v(56))
        k.s_mul_i32(s(sT1), s(sCG), 224); k.s_mul_i32(s(sT2), s(sW), 56); k.s_add_u32(s(sT1), s(sT1), s(sT2))
        k.v_lshl_add_u32(v(56), v(hf), 3, v(56))
        k.v_add_u32(v(vOUT), s(sT1), v(56))
        k.v_cmp_eq_u32('vcc', 0, v(hf))
        k.v_mov_b32(v(56), 1.0); k.v_mov_b32(v(55), f32(BIGF))
        k.v_cndmask_b32(v(vHFM), 0, v(56), 'vcc')
        k.v_mov_b32(v(56), 0)
        k.v_cndmask_b32(v(vBIG), v(55), v(56), 'vcc')
        k.v_lshlrev_b32(v(56), 2, v(hf)); k.v_sub_u32(v(vII), v(n), v(56))
        k.v_cmp_eq_u32('vcc', 28, v(n)); k.v_mov_b32(v(56), 1.0); k.v_cndmask_b32(v(vONE), 0, v(56), 'vcc')
        k.v_cmp_le_u32(s(sP0, 2), 28, v(n))

    def bg_wpk(self, typ, lo, hi, tag='bg'):
        k = self.k
        if self.opt.get('abl_w'): return
        groups = [(sHA, 0, 4), (sHA, 4096, 3), (sHB, 0, 4), (sHB, 4096, 3)] if lo == 0 else [(sQA, 0, 4), (sQB, 0, 4)]
        for gi, (sb, off, n) in enumerate(groups):
            for i in range(n):
                def f(sb=sb, off=off, i=i):
                    if i == 0 or self.m0_owner != (sb, off):
                        k.s_add_u32('m0', s(sb), off)
                        k.s_add_u32(s(sB0), s(sb), s(sHEAD))
                        k.s_add_u32(s(sB0), s(sB0), WPK[typ] + off)
                    k.buffer_load_dwordx4(v(vL14), s(S_WS, 4), s(sB0), m=f'offen offset:{1024*i} sc1 lds')
                    self.m0_owner = (sb, off); self.k.watch = True
                    self.vtag(tag)
                f.gap = self.gmiss if 2*gi < len(groups) else self.ghit
                self.bg.append(f)

    def bg_wo(self, typ, q0=0, q1=4):
        k = self.k
        if self.opt.get('abl_wo'): return
        for i in range(q0, q1):
            for f_ in range(8):
                def f(i=i, f_=f_):
                    if f_ == 0:
                        k.s_add_u32(s(sB1), s(sW), i); k.s_and_b32(s(sB1), s(sB1), 3); k.s_lshl_b32(s(sB1), s(sB1), 13)
                        k.s_add_u32(s(sB1), s(sB1), s(sOPKC)); k.s_add_u32(s(sB1), s(sB1), OPK + typ*OPT)
                    if f_ == 4: k.s_add_u32(s(sB1), s(sB1), 4096)
                    k.buffer_load_dwordx4(a(typ*128 + i*32 + f_*4, 4), v(vL14), s(S_WS, 4), s(sB1), m=f'offen offset:{(f_ & 3)*FR} sc1')
                    self.vtag('bg')
                f.wo = True; f.gap = self.ghit
                self.bg.append(f)

    def touch(self, base, share, ninstr, w0=0):
        k = self.k
        k.s_mul_i32(s(sB0), s(sSLOT), share); k.s_add_u32(s(sB0), s(sB0), base - w0*ninstr*8192)
        k.s_mul_i32(s(sB1), s(sW), ninstr*8192); k.s_add_u32(s(sB0), s(sB0), s(sB1))
        k.v_lshlrev_b32(v(59), 7, v(vLANE))
        for i in range(ninstr):
            k.buffer_load_dword(a(255), v(59), s(S_WS, 4), s(sB0), m='offen sc1')
            if i + 1 < ninstr: k.s_add_u32(s(sB0), s(sB0), 8192)

    def touch_half(self, base):
        k = self.k
        k.s_lshl_b32(s(sB0), s(sSLOT), 2); k.s_add_u32(s(sB0), s(sB0), s(sW)); k.s_lshl_b32(s(sB0), s(sB0), 12)
        k.s_add_u32(s(sB0), s(sB0), base)
        k.v_lshlrev_b32(v(59), 7, v(vLANE))
        k.s_mov_b64('exec', 0x7f7f7f7f)
        k.buffer_load_dword(a(255), v(59), s(S_WS, 4), s(sB0), m='offen sc1')
        k.s_mov_b64('exec', -1)

    def fill(self, buf):
        k = self.k
        if self.opt.get('nofill'): return
        k.s_add_u32(s(sB0), s(sOT_P), buf)
        k.s_mov_b32('exec_lo', 0x01010101); k.s_mov_b32('exec_hi', 0x01010101)
        k.buffer_load_dword(a(255), v(vL16), s(S_WS, 4), s(sB0), m='offen sc1')
        k.buffer_load_dword(a(255), v(vL16), s(S_WS, 4), s(sB0), m='offen offset:1024 sc1')
        k.s_mov_b64('exec', -1)
        self.vtag('bg', 2)

    def code_pf(self, ahead=0, n=1):
        k = self.k
        if self.opt.get('nocpf'): return
        lb = k.newlabel('Lpf')
        k.label(lb)
        for i in range(n):
            k.s_add_u32(s(6), s(sPFO), f'{lb}-Lstart+{ahead + i*16384}')
            k.s_min_u32(s(6), s(6), 'Lcode_end-Lstart-4')
            k.s_load_dword(s(sJUNK), s(S_CODE, 2), s(6))

    def cs_dma(self, typ, lds):
        k = self.k
        k.s_mul_i32(s(sB0), s(sH), 10752); k.s_mul_i32(s(3), s(sW), 3072); k.s_add_u32(s(sB0), s(sB0), s(3))
        k.s_add_u32(s(sB0), s(sB0), CSP + typ*172032)
        k.s_add_u32('m0', s(3), lds)
        for i in range(3):
            k.buffer_load_dwordx4(v(vL16), s(S_WS, 4), s(sB0), m=f'offen offset:{1024*i} sc1 lds')
        self.vtag('cs', 3)

    def cs_ops(self, typ, lds, R, A):
        k = self.k
        ops = [lambda: k.v_lshlrev_b32(v(A), 2, v(vLANE)), lambda: k.v_add_u32(v(A), lds, v(A))]
        for seg, g in ((0, 1), (1, 2), (2, 0)):
            for half in range(2):
                def rd(seg=seg, half=half):
                    for i in range(7*half, 7*half+7):
                        k.ds_read_b32(v(R+i), v(A), m=f'offset:{(seg*28 + 2*i)*128}')
                    self.ltag(f'cs{seg}{half}', 7)
                ops += [rd] + [lambda: None]*5
            ops += [lambda seg=seg: self.lwait(f'cs{seg}1')]
            for i in range(1, 14): ops.append(lambda i=i: k.v_add_f32(v(R), v(R), v(R+i)))
            ops += [lambda: k.v_mov_b32(v(R+1), v(R)), lambda: k.v_permlane32_swap_b32(v(R), v(R+1)), lambda: k.v_add_f32(v(R), v(R), v(R+1)),
                    lambda: k.v_cmp_gt_u32('vcc', 448, v(vL14)), lambda: k.v_sub_f32(v(R), 0, v(R)), lambda: k.v_cndmask_b32(v(R), 0, v(R), 'vcc'), lambda: self.rbf(R+1, R),
                    lambda: k.v_sub_f32(v(R+2), v(R), v(R+1)),
                    lambda g=g: k.v_cvt_pk_bf16_f32(v(vCS + 3*typ + g), v(R+1), v(R+2))]
        return ops

    def stats_finish(self, s1, s2):
        k = self.k
        t = 58
        self.xhalf('v_add_f32', s1, t); self.xhalf('v_add_f32', s2, t)
        k.v_mul_f32(v(s1), f32(1.0/448), v(s1))
        k.v_mul_f32(v(s2), f32(1.0/448), v(s2))
        k.v_fma_f32(v(s2), '-'+v(s1), v(s1), v(s2))
        k.v_max_f32(v(s2), 0, v(s2))
        k.v_cvt_pk_bf16_f32(v(vMB), v(s1), v(s1))
        self.rbf(s2, s2)
        k.v_add_f32(v(s2), f32(1e-5), v(s2))
        self.rbf(s2, s2)
        k.v_sqrt_f32(v(s2), v(s2))
        self.rbf(s2, s2)
        k.v_rcp_f32(v(vRINV), v(s2))
        k.ds_write_b32(v(vRVW), v(vRINV))

    def mean_steps(self, typ):
        k = self.k
        xm, wk, wv = 112, 116, 120
        k.v_mov_b32(v(xm), v(vMB)); k.v_mov_b32(v(wk), v(vCS+3*typ+1)); k.v_mov_b32(v(wv), v(vCS+3*typ+2))
        for i in range(1, 4):
            k.v_mov_b32(v(xm+i), 0); k.v_mov_b32(v(wk+i), 0); k.v_mov_b32(v(wv+i), 0)
        self.mfma(vAK, v(wk, 4), v(xm, 4), v(vAK, 16))
        self.mfma(vAV, v(xm, 4), v(wv, 4), v(vAV, 16))
        for q in range(4):
            k.ds_read_b128(v(128+4*q, 4), v(vRVR), m=f'offset:{32*q}')
        self.rv = 128

    def stats_ops(self, ST):
        k = self.k
        s1, s2, t = 60, 61, 58
        ops = [
            lambda: k.v_pk_add_f32(v(ST, 2), v(ST, 2), v(ST+2, 2)), lambda: k.v_pk_add_f32(v(ST+4, 2), v(ST+4, 2), v(ST+6, 2)),
            lambda: k.v_pk_add_f32(v(ST+8, 2), v(ST+8, 2), v(ST+10, 2)), lambda: k.v_pk_add_f32(v(ST+12, 2), v(ST+12, 2), v(ST+14, 2)),
            lambda: k.v_pk_add_f32(v(ST, 2), v(ST, 2), v(ST+4, 2)), lambda: k.v_pk_add_f32(v(ST+8, 2), v(ST+8, 2), v(ST+12, 2)),
            lambda: k.v_pk_add_f32(v(s1, 2), v(ST, 2), v(ST+8, 2)),
            lambda: k.v_mov_b32(v(t), v(s1)), lambda: k.v_mov_b32(v(t+1), v(s2)),
            lambda: k.v_permlane32_swap_b32(v(s1), v(t)), lambda: k.v_permlane32_swap_b32(v(s2), v(t+1)),
            lambda: k.v_add_f32(v(s1), v(s1), v(t)), lambda: k.v_add_f32(v(s2), v(s2), v(t+1)),
            lambda: k.v_mul_f32(v(s1), f32(1.0/448), v(s1)), lambda: k.v_mul_f32(v(s2), f32(1.0/448), v(s2)),
            lambda: k.v_fma_f32(v(s2), '-'+v(s1), v(s1), v(s2)),
            lambda: k.v_max_f32(v(s2), 0, v(s2)),
            lambda: k.v_cvt_pk_bf16_f32(v(vMB), v(s1), v(s1)),
            lambda: self.rbf(s2, s2),
            lambda: k.v_add_f32(v(s2), f32(1e-5), v(s2)),
            lambda: self.rbf(s2, s2),
            lambda: k.v_sqrt_f32(v(s2), v(s2)),
            lambda: self.rbf(s2, s2),
            lambda: k.v_rcp_f32(v(vRINV), v(s2)),
        ]
        return ops

    def load_gemm_kv(self, L):
        k = self.k
        typ = L & 1
        assert not self.bg
        ST = 96
        CH = 63
        SPOS = self.opt.get('spos', 14)
        A0 = self.opt.get('a0', 4)
        AH = 10
        k.s_add_u32(s(sT1), s(sXT), XB[L-1])
        seq = []
        for st in range(28):
            if st == SPOS: seq += [('st', ST+4*i, 28672 + 1024*i) for i in range(4)]
            seq.append((f'x{st}', vXF+4*st, 1024*st))
        def ld(i):
            tag, reg, off = seq[i]
            self.ws_ld(reg, vL16, sT1, off); self.vtag(tag)
        D = 3
        def rd(st):
            b = vWF + (st % 4)*8
            k.ds_read_b128(v(b, 4), v(vL16), m=f'offset:{L_WK + st*1024}')
            k.ds_read_b128(v(b+4, 4), v(vL16), m=f'offset:{L_WV + st*1024}')
            self.ltag(f'w{st}', 2)
        k.v_mov_b32(v(60), 0); k.v_mov_b32(v(61), 0)
        k.s_mov_b32(s(sTRY), 0)
        k.s_waitcnt('vmcnt(0)' if self.opt.get('w0') else 'vmcnt(5)')
        k.s_barrier()
        lg, lok = k.newlabel('Lg'), k.newlabel('Lgok')
        first = [True]
        k.label(lg)
        self.nohi(); self.vq = []
        k.s_mov_b64('exec', 0xffff)
        self.ws_ld(60, vSLD, sT1, 0, n=2)
        k.s_mov_b64('exec', -1)
        for i in range(A0): ld(i)
        k.s_add_u32(s(sTRY), s(sTRY), 1)
        k.s_cmp_ge_u32(s(sTRY), MAXTRY)
        k.s_cselect_b32(s(sT6), 1 << (4*L), 0)
        k.s_or_b32(s(sERR), s(sERR), s(sT6))
        k.s_waitcnt(f'vmcnt({A0})')
        k.v_max_u32(v(62), v(60), v(61))
        k.v_cmp_eq_u32('vcc', -1, v(62))
        k.s_cmp_eq_u64('vcc', 0)
        k.s_cselect_b32(s(sT7), 1, s(sT6))
        k.s_cmp_eq_u32(s(sT7), 0)
        k.s_cbranch_scc1(lg)
        self.stamp(f'L{L} x seen')
        self.lq = []
        for i in range(A0, AH): ld(i)
        for st in range(D): rd(st)
        nxt = AH
        k.v_mov_b32(v(CH), 0)
        fill = []
        xm, wk, wv = ST, ST+4, ST+8
        for st in range(28):
            self.vwait(f'x{st}')
            self.lwait(f'w{st}')
            b = vWF + (st % 4)*8
            xr = vXF + 4*st
            x = v(xr, 4)
            self.mfma(vAK, v(b, 4), x, v(vAK, 16) if st else 0)
            k.v_max3_u32(v(CH), v(xr), v(xr+1), v(CH)); k.v_max3_u32(v(CH), v(xr+2), v(xr+3), v(CH))
            for _ in range(2):
                if fill: fill.pop(0)()
            self.mfma(vAV, x, v(b+4, 4), v(vAV, 16) if st else 0)
            if st + D < 28: rd(st + D)
            for _ in range(2 if st < 8 else 1):
                if nxt < len(seq): ld(nxt); nxt += 1
            for _ in range(3):
                if fill: fill.pop(0)()
            if st == SPOS:
                fill += [lambda i=i: k.v_max3_u32(v(CH), v(ST+2*i), v(ST+2*i+1), v(CH)) for i in range(8)] + self.stats_ops(ST)
                def wr():
                    k.ds_write_b32(v(vRVW), v(vRINV)); self.ltag('rw')
                fill += [wr, lambda: k.v_mov_b32(v(xm), v(vMB)), lambda: k.v_mov_b32(v(wk), v(vCS+3*typ+1)), lambda: k.v_mov_b32(v(wv), v(vCS+3*typ+2))]
                for i in range(1, 4):
                    fill += [lambda i=i: k.v_mov_b32(v(xm+i), 0), lambda i=i: k.v_mov_b32(v(wk+i), 0), lambda i=i: k.v_mov_b32(v(wv+i), 0)]
            if st == 25:
                assert not fill
                self.mfma(vAK, v(wk, 4), v(xm, 4), v(vAK, 16))
                self.mfma(vAV, v(xm, 4), v(wv, 4), v(vAV, 16))
                for q in range(4):
                    k.ds_read_b128(v(ST+4*q, 4), v(vRVR), m=f'offset:{32*q}')
                self.ltag('rv', 4)
        k.v_cmp_eq_u32('vcc', -1, v(CH))
        k.s_cmp_eq_u64('vcc', 0)
        lbad = k.newlabel('Lgbad')
        k.br('s_cbranch_scc0', lbad)
        k.label(lok)
        def cold_b():
            k.label(lbad)
            k.s_nop(15)
            k.s_waitcnt('lgkmcnt(0)')
            k.v_mov_b32(v(60), 0); k.v_mov_b32(v(61), 0)
            k.s_add_u32(s(sTRY), s(sTRY), 8)
            if self.ts: k.s_add_u32(s(sERR), s(sERR), 1 << 20)
            k.s_cmp_lt_u32(s(sTRY), MAXTRY)
            k.s_cbranch_scc1(lg)
            k.s_or_b32(s(sERR), s(sERR), 8 << (4*L))
            k.s_branch(lok)
        self.cold.append(cold_b)
        self.vq = []; self.lq = []
        self.rv = ST

    def gemm_q(self, typ, raw, every=2, hooks={}, fill=None):
        k = self.k
        D = 6
        per = 2 if raw else 1
        def rd(st):
            b = vWF + (st % 8)*4
            if True:
                k.ds_read_b128(v(b, 4), v(vWQ), m=f'offset:{st*1024}')
        k.s_waitcnt('lgkmcnt(0)')
        for st in range(D): rd(st)
        for st in range(28):
            rem = min(D-1, 27-st)
            k.s_waitcnt(f'lgkmcnt({per*rem})')
            b = vWF + (st % 8)*4
            self.mfma(vAQ, v(b, 4), v(vXF+4*st, 4), v(vAQ, 16) if st else 0)
            if st + D < 28: rd(st + D)
            if st % every == every - 1: self.tick()
            if st in hooks: hooks[st]()
            if fill and st >= 8:
                for _ in range(4):
                    if fill: fill.pop(0)()
        xm, wm = 112, 116
        k.v_mov_b32(v(xm), v(vMB)); k.v_mov_b32(v(wm), v(vCS+3*typ))
        for i in range(1, 4):
            k.v_mov_b32(v(xm+i), 0); k.v_mov_b32(v(wm+i), 0)
        self.mfma(vAQ, v(wm, 4), v(xm, 4), v(vAQ, 16))

    def scale_pack(self, acc, mul_lo, mul_hi=None):
        k = self.k
        for i in range(8):
            mreg = mul_hi if (mul_hi is not None and i >= 6) else mul_lo
            assert mreg % 2 == 0
            k.v_pk_mul_f32(v(acc+2*i, 2), v(acc+2*i, 2), v(mreg, 2), m='op_sel_hi:[1,0]')
        for i in range(8):
            k.v_cvt_pk_bf16_f32(v(acc+i), v(acc+2*i), v(acc+2*i+1))

    def pack(self, acc):
        for i in range(8):
            self.k.v_cvt_pk_bf16_f32(v(acc+i), v(acc+2*i), v(acc+2*i+1))

    def epi_v(self):
        k = self.k
        rv = self.rv
        k.s_waitcnt('lgkmcnt(0)')
        for i in range(8):
            k.v_pk_fma_f32(v(vAV+2*i, 2), v(vAV+2*i, 2), v(rv+2*i, 2), v(vONE, 2), m='op_sel_hi:[1,1,0]')
        for i in range(8):
            k.v_cvt_pk_bf16_f32(v(vAV+i), v(vAV+2*i), v(vAV+2*i+1))

    def sanitize(self, base, n):
        for i in range(n):
            self.k.v_min_u32(v(base+i), -2, v(base+i))

    def feature_mfma(self, frag, P):
        self.mfma(P, v(vWPHI, 4), v(frag, 4), 0)
        self.mfma(P, v(vWPHI+4, 4), v(frag+4, 4), v(P, 16))

    def feature(self, P, E, every=1, n=1, late=None, wr=None):
        k = self.k
        cnt = [0]
        def tk():
            cnt[0] += 1
            if cnt[0] % every == 0: self.tick(n)
        mx, mn, t0, t1 = 58, 60, 62, 63
        c = 57
        k.v_mul_f32(v(c), f32(LOG2E), v(vRINV))
        k.v_max3_f32(v(mx), v(P), v(P+1), v(P+2)); k.v_min3_f32(v(mn), v(P), v(P+1), v(P+2))
        for i in range(3, 11, 2):
            k.v_max3_f32(v(mx), v(P+i), v(P+i+1), v(mx)); k.v_min3_f32(v(mn), v(P+i), v(P+i+1), v(mn))
        k.v_max3_f32(v(t0), v(P+12), v(P+13), v(P+14)); k.v_min3_f32(v(t1), v(P+12), v(P+13), v(P+14))
        k.v_max_f32(v(t0), v(t0), v(P+15)); k.v_min_f32(v(t1), v(t1), v(P+15))
        k.v_sub_f32(v(t0), v(t0), v(vBIG)); k.v_add_f32(v(t1), v(t1), v(vBIG))
        k.v_max3_f32(v(mx), v(P+11), v(t0), v(mx)); k.v_min3_f32(v(mn), v(P+11), v(t1), v(mn))
        tk()
        k.v_mov_b32(v(t0), v(mx)); k.v_mov_b32(v(t1), v(mn))
        k.v_permlane32_swap_b32(v(mx), v(t0)); k.v_permlane32_swap_b32(v(mn), v(t1))
        k.v_max_f32(v(mx), v(mx), v(t0)); k.v_min_f32(v(mn), v(mn), v(t1))
        k.v_mul_f32(v(mx), v(c), v(mx)); k.v_mul_f32(v(mn), v(c), v(mn))
        k.v_add_f32(v(mx+1), v(mx), v(vBIG)); k.v_sub_f32(v(mn+1), v(mn), v(vBIG))
        for i in range(0, 16, 2):
            o = 1 if i >= 12 else 0
            k.v_pk_fma_f32(v(E+i, 2), v(P+i, 2), v(56, 2), v(mn, 2), m=f'op_sel:[0,1,{o}] op_sel_hi:[1,1,{o}] neg_lo:[1,0,0] neg_hi:[1,0,0]')
            k.v_pk_fma_f32(v(P+i, 2), v(P+i, 2), v(56, 2), v(mx, 2), m=f'op_sel:[0,1,{o}] op_sel_hi:[1,1,{o}] neg_lo:[0,0,1] neg_hi:[0,0,1]')
            if i % 8 == 6: tk()
        for i in range(16):
            k.v_exp_f32(v(E+i), v(E+i)); k.v_exp_f32(v(P+i), v(P+i))
            if i % 4 == 3: tk()
        if late: late()
        for X, sm in ((P, mx), (E, mn)):
            k.v_pk_add_f32(v(sm, 2), v(X, 2), v(X+2, 2))
            for i in range(4, 16, 2): k.v_pk_add_f32(v(sm, 2), v(sm, 2), v(X+i, 2))
            k.v_add_f32(v(sm), v(sm), v(sm+1))
        tk()
        k.v_mov_b32(v(t0), v(mx)); k.v_mov_b32(v(t1), v(mn))
        k.v_permlane32_swap_b32(v(mx), v(t0)); k.v_permlane32_swap_b32(v(mn), v(t1))
        k.v_add_f32(v(mx), v(mx), v(t0)); k.v_add_f32(v(mn), v(mn), v(t1))
        k.v_rcp_f32(v(mx), v(mx)); k.v_rcp_f32(v(mn), v(mn))
        self.scale_pack(P, mx)
        if wr: wr(0, P)
        self.scale_pack(E, mn)
        if wr: wr(1, E)

    def resets(self, L, z=124, t1=sT1, t2=sT2):
        k = self.k
        if L >= 3 or self.opt.get('abl_r', 0) & 1: return
        for i in range(4): k.v_mov_b32(v(z+i), -1)
        bufs = [XB[L], OB[L+1]]
        if True:
            if L == 0: bufs.append(XB[1])
            if L == 1: bufs = bufs[1:]
        def st(fl):
            for b_ in bufs:
                k.s_add_u32(s(t1), s(sOT_P), b_)
                self.ws_st(z, vL16, t1, 0, flags=fl); self.ws_st(z, vL16, t1, 1024, flags=fl)
        self.local_stores(st)

    def bg_reset_kvh3(self):
        k = self.k
        z = 108
        def f0():
            for i in range(4): k.v_mov_b32(v(z+i), -1)
        for i in range(4):
            def f(i=i):
                k.s_add_u32(s(sB0), s(sKVH_P), KVH[3])
                k.buffer_store_dwordx4(v(z, 4), v(vL16), s(S_WS, 4), s(sB0), m=f'offen offset:{1024*i} sc1')
            self.bg.append(f)
        return f0

    def o_tail(self, L, acc, eps):
        k = self.k
        d0, d1 = 58, 60
        k.v_mov_b32(v(d0), v(acc+12)); k.v_mov_b32(v(d1), v(acc+12))
        k.s_add_u32(s(sT1), s(sOT_P), OB[L])
        k.v_permlane32_swap_b32(v(d0), v(d1))
        if eps: k.v_add_f32(v(d1), f32(1e-6), v(d1))
        k.v_rcp_f32(v(d1), v(d1))
        self.scale_pack(acc, d1)
        def st(fl):
            self.ws_st(acc, vL16, sT1, 0, flags=fl); self.ws_st(acc+4, vL16, sT1, 1024, flags=fl)
        self.local_stores(st)

    def bg_reset(self, sb, add, off, z):
        k = self.k
        def f():
            if off == 0: k.s_add_u32(s(sB2), s(sb), add)
            k.buffer_store_dwordx4(v(z, 4), v(vL16), s(S_WS, 4), s(sB2), m=f'offen offset:{off} sc1')
            self.vtag('bg')
        f.gap = 120
        return f

    def layer_A(self, L):
        k = self.k
        self.stamp(f'L{L} kv gemm')
        if L == 2:
            self.vq = []
            if not self.opt.get('qo'): self.bg_wpk(0, 14, 21, tag='wq')
            self.burst(self.opt.get('bq', 5))
            for f in self.bg: f.gap = 90
            if not self.opt.get('abl_r', 0) & 2:
                self.bg += [self.bg_reset(sKVH_P, KVH[3], 1024*i, 72) for i in range(4)]
            if not self.opt.get('f2'): self.bgon(100 if self.opt.get('qo') else 400)
        sa = self.opt.get('s0a') if L == 0 else self.opt.get('s2a')
        kf = L == 0 and self.opt.get('kf')
        if not kf:
            self.pack(vAK)
            P, E = 112, 128
            self.feature_mfma(vAK, P)
            if L == 2:
                for i in range(4): k.v_mov_b32(v(72+i), -1)
            self.epi_v()
            sa = self.opt.get('s0a') if L == 0 else self.opt.get('s2a')
            if L == 0 and sa:
                self.bgoff()
                self.quad_wait(58, both=True)
                k.s_barrier()
                self.flag_post(2, 92)
                wo_rest = self.bg; self.bg = []
                self.bg_wpk(1, 0, 14)
                wb = self.bg; self.bg = []
                while wo_rest or wb:
                    if wb:
                        f = wb.pop(0); f.gap = self.ghit; self.bg.append(f)
                    self.bg += wo_rest[:2]; wo_rest = wo_rest[2:]
                self.bg = self.rs0 + self.bg
                if self.opt.get('f0') == 1: self.burst(5)
                elif self.opt.get('f0') == 2:
                    for f in self.bg: f.gap = 160
                    self.bgon()
                else: self.bgon()
            k.ds_write_b128(v(vVOW), v(vAV, 4)); k.ds_write_b128(v(vVOW), v(vAV+4, 4), m='offset:1024')
            def wr(sg, X):
                for q in range(4):
                    k.ds_write_b64(v(vPHW), v(X+2*q, 2), m=f'offset:{sg*PHI_SIGN + q*16}')
            self.feature(P, E, wr=wr)
            self.bgoff()
            if L == 0:
                self.vwait('st')
                self.burst(self.opt.get('bb2', 5))
                if not sa: self.quad_issue(58, stage=1, both=True)
            if L == 2:
                self.drain()
                self.vwait('wq')
        k.s_waitcnt('lgkmcnt(0)')
        k.s_barrier()
        self.stamp(f'L{L} phi_k')
        if L == 0 and (kf or not sa): self.flag_post(2, 92)
        if kf:
            wo_rest = self.bg; self.bg = []
            self.bg_wpk(1, 0, 14)
            wb = self.bg; self.bg = []
            while wo_rest or wb:
                self.bg += wo_rest[:2]; wo_rest = wo_rest[2:]
                if wb:
                    f = wb.pop(0); f.gap = self.ghit; self.bg.append(f)
        lq = k.newlabel('Lq')
        k.s_cmp_ge_u32(s(sW), 2); k.s_cbranch_scc1(lq)
        A0, ACC = 112, 96
        B0 = [64, 68, 72, 76, 80, 84, 88, 92]
        k.v_add_u32(v(55), L_VOWN, v(vL16))
        def rdkv(idx):
            u, j = idx >> 1, idx & 1
            for jj in range(2):
                k.ds_read_b64_tr_b16(v(A0+4*idx+2*jj, 2), v(vPHR), m=f'offset:{(u*8+4*j+2*jj)*264}')
            k.ds_read_b128(v(B0[idx], 4), v(55), m=f'offset:{u*2048+j*1024}')
        for idx in range(5): rdkv(idx)
        k.s_add_u32(s(sT1), s(sKVP_P), KVP[L])
        for idx in range(8):
            k.s_waitcnt(f'lgkmcnt({3*min(4, 7-idx)})')
            self.mfma(ACC, v(A0+4*idx, 4), v(B0[idx], 4), v(ACC, 16) if idx else 0)
            if idx + 5 < 8: rdkv(idx + 5)
        for i in range(8): k.v_cvt_pk_bf16_f32(v(64+i), v(ACC+2*i), v(ACC+2*i+1))
        self.nohi()
        self.ws_st(64, vL16, sT1, 0, flags='sc1'); self.ws_st(68, vL16, sT1, 1024, flags='sc1')
        if L == 0 and (kf or not sa):
            lq2 = k.newlabel('Lq')
            k.s_waitcnt('vmcnt(2)')
            k.s_branch(lq2)
            k.label(lq)
            k.s_waitcnt('vmcnt(1)')
            k.s_cmp_eq_u32(s(sW), 3); k.s_cbranch_scc1(lq2)
            k.s_waitcnt('vmcnt(0)')
            k.label(lq2)
        else:
            k.label(lq)
        self.stamp(f'L{L} kvp pub')
        if L == 0:
            assert not any(f in self.bg for f in self.rs0)
            self.vq = []
            if kf or not sa:
                k.s_lshr_b32(s(6), s(sH), 2); k.s_lshl_b32(s(6), s(6), 9); k.s_add_u32(s(6), s(6), FLG + 2048)
                self.quad_wait(58, both=True)
                if not kf: self.drain()
            k.s_mul_i32(s(sT1), s(sW), 4096 - 128); k.s_add_u32(s(sT1), s(sT1), (L_RINV - L_RINV0) & 0xffffffff)
            k.v_add_u32(v(vRVW), s(sT1), v(vRVW)); k.v_add_u32(v(vRVR), s(sT1), v(vRVR))
        pw = L == 0 and self.opt.get('pw')
        if pw:
            wo = [f for f in self.bg if getattr(f, 'wo', False)]
            rest = [f for f in self.bg if not getattr(f, 'wo', False)]
            if pw == 2:
                k.s_waitcnt('vmcnt(0)'); self.stamp('pre wo')
                for f in wo: f()
                k.s_waitcnt('vmcnt(0)'); self.stamp('wo done')
                self.bg = rest
            else:
                for f in wo: f.gap = 24
                self.bg = wo
        if not pw == 1: self.resets(L)
        if not (L == 0 and sa): self.bg_wpk(1, 0, 14)
        nb1 = self.opt.get('b1', 6)
        if sa:
            if L == 0 and self.opt.get('f0'):
                for f in self.bg: f.gap = self.opt.get('g0', 60)
            if L == 2 and self.opt.get('g2'):
                for f in self.bg: f.gap = self.opt.get('g2')
            self.burst(self.opt.get('bp', 3)); self.bgon()
        G = 144
        k.s_lshl_b32(s(sT1), s(sH), 16); k.s_lshl_b32(s(sT2), s(sOM), 6); k.s_add_u32(s(sT1), s(sT1), s(sT2))
        k.s_add_u32(s(sT1), s(sT1), KVP[L])
        k.v_lshrrev_b32(v(59), 2, v(vLANE)); k.v_lshlrev_b32(v(59), 12, v(59))
        k.v_and_b32(v(58), 3, v(vLANE)); k.v_lshl_add_u32(v(59), v(58), 4, v(59))
        h1 = lambda: self.ws_ld(G, 59, sT1, 0)
        H1 = self.opt.get('h1', 22)
        if pw == 1:
            def endwo():
                self.bgoff(); self.drain(); self.resets(L, z=84, t1=sT4); h1(); self.bg = rest
            self.gemm_q(0, raw=False, hooks={27: endwo})
        else:
          self.gemm_q(0, raw=False, hooks=({(self.opt.get('off0', 16) if L == 0 else self.opt.get('off2', 16)): self.bgoff, H1: h1} if sa else {(8 if L == 0 else 2): lambda: self.burst(nb1), H1: h1}))
        k.v_lshrrev_b32(v(60), 4, v(vLANE)); k.v_lshlrev_b32(v(60), 2, v(60)); k.v_lshl_add_u32(v(G+8), v(58), 4, v(60))
        k.v_mov_b32(v(G+10), '0x3f80'); k.v_mov_b32(v(G+11), 1.0)
        k.v_mov_b32(v(G+4), 0); k.v_mov_b32(v(G+5), 0)
        self.pack(vAQ)
        PQ, EQ = 64, 80
        self.feature_mfma(vAQ, PQ)
        self.stamp(f'L{L} q gemm')
        self.poll(h1, range(G, G+4), 2 << (4*L), first_wait=0, sleep=1)
        self.stamp(f'L{L} kvp got')
        k.v_permlane32_swap_b32(v(G), v(G+2)); k.v_permlane32_swap_b32(v(G+1), v(G+3))
        k.v_permlane16_swap_b32(v(G), v(G+1)); k.v_permlane16_swap_b32(v(G+2), v(G+3))
        for i in range(4):
            k.v_dot2_f32_bf16(v(G+4), v(G+i), v(G+10), v(G+4)); k.v_dot2_f32_bf16(v(G+5), v(G+i), v(G+11), v(G+5))
        k.s_lshl_b32(s(sT1), s(sH), 12); k.s_add_u32(s(sT1), s(sT1), KVR[L]); k.s_add_u32(s(sT2), s(sT2), s(sT1))
        for rot in (4, 8):
            for i in (4, 5):
                k.v_add_f32_dpp(v(G+i), v(G+i), v(G+i), m=f'row_ror:{rot} row_mask:0xf bank_mask:0xf')
        k.v_cvt_pk_bf16_f32(v(G+4), v(G+4), v(G+5))
        self.sanitize(G+4, 1)
        k.s_mov_b32('exec_lo', 0x000f000f); k.s_mov_b32('exec_hi', 0x000f000f)
        k.buffer_store_dword(v(G+4), v(G+8), s(S_WS, 4), s(sT2), m='offen sc1')
        k.s_mov_b64('exec', -1)
        self.stamp(f'L{L} kvr pub')
        if kf:
            for i in range(8):
                k.v_lshlrev_b32(v(vXRES+2*i), 16, v(vXRES+8+i)); k.v_and_b32(v(vXRES+2*i+1), '0xffff0000', v(vXRES+8+i))
            k.s_mov_b32('exec_lo', 0)
            for i in range(12, 16): k.v_mov_b32(v(vXRES+i), 0)
            k.s_mov_b32('exec_lo', -1)
        k.s_barrier()
        if sa:
            if L == 0 and kf and kf >= 2:
                for i in range(4): k.v_mov_b32(v(176+i), -1)
                for i in range(4): self.bg_reset(sKVH_P, KVH[1], 1024*i, 176)()
                self.bg_reset(97, KVP[2], 0, 176)()
            if L == 0: self.cs_dma(1, L_KVL)
            self.bg_wpk(1, 14, 21)
            self.burst(self.opt.get('bf2', 5) if L else self.opt.get('bf0', 3))
            if not self.opt.get('nfq'): self.bgon()
            self.feature(PQ, EQ)
            self.bgoff()
            while any(getattr(f, 'wo', False) for f in self.bg): self.bg.pop(0)()
        else:
            rest = self.bg; self.bg = []
            self.bg_wpk(1, 14, 21)
            self.bg = rest[:7-nb1] + self.bg[:4] + rest[7-nb1:] + self.bg[4:]
            if L == 0:
                self.cs_dma(1, L_KVL)
                self.touch_half(OPK + OPT)
            self.burst(11 - nb1)
            self.feature(PQ, EQ)
        if self.opt.get('cpf2'): self.code_pf(512)
        if L == 0:
            self.vq = []
            self.flag_issue(2, 160)
        self.stamp(f'L{L} phi_q')
        def issue():
            for i in range(4): self.ws_ld(128+4*i, vL16, sT1, 1024*i)
        self.poll(issue, range(128, 144), 2 << (4*L), sleep=1)
        self.stamp(f'L{L} kvr got')
        ACC = 96
        for i, B in enumerate((PQ, PQ+4, EQ, EQ+4)):
            self.mfma(ACC, v(128+4*i, 4), v(B, 4), v(ACC, 16) if i else 0)
        self.o_tail(L, ACC, True)
        if L == 0:
            self.vq = []
            self.flag_wait(2, 160)
        self.stamp(f'L{L} o pub')

    def layer_B(self, L):
        k = self.k
        self.stamp(f'L{L} kv gemm')
        s3 = L == 1 and self.opt.get('kf', 0) >= 2
        if s3:
            self.vq = []
            self.quad_issue(112, stage=3, both=True)
        self.nohi()
        k.s_add_u32(s(sT1), s(sKVH_P), KVH[L])
        self.scale_pack(vAK, vRINV)
        for i, rg in enumerate((vAK, vAK+4)): self.ws_st(rg, vL16, sT1, 1024*i, flags='sc1')
        self.epi_v()
        for i, rg in enumerate((vAV, vAV+4)): self.ws_st(rg, vL16, sT1, 2048+1024*i, flags='sc1')
        self.stamp(f'L{L} kvh pub')
        if s3:
            self.vtag('pub', 4)
            self.quad_wait(112, both=True)
        if self.opt.get('early_reset'): self.resets(L)
        for i, rg in enumerate((vAK, vAK+4, vAV, vAV+4)):
            k.ds_write_b128(v(vKVL), v(rg, 4), m=f'offset:{8*4096 + 1024*i}')
        k.s_lshl_b32(s(sT1), s(sR), 1); k.s_add_u32(s(sT1), s(sT1), s(sW))
        k.s_add_u32(s(sT2), s(sKVH_C), KVH[L])
        k.s_cmp_lt_u32(s(sT1), 4); k.s_cselect_b32(s(sT1), 0x7000000, s(sT2))
        k.s_add_u32(s(sT2), s(sT1), 4096)
        k.s_lshl_b32(s(sT3), s(sW), 13); k.s_add_u32(s(sT3), s(sT3), L_KVL)
        def hdma(f0):
            def f():
                for j, so in ((0, sT1), (1, sT2)):
                    k.s_add_u32('m0', s(sT3), j*4096)
                    for fr in (f0, f0+1):
                        k.buffer_load_dwordx4(v(vL16), s(S_WS, 4), s(so), m=f'offen offset:{fr*1024} ' + ('nt sc1 lds' if self.opt.get('hnt') else 'sc1 lds'))
            return f
        def hread(f0, R):
            for j in range(2):
                for i in range(2):
                    k.ds_read_b128(v(R + 8*j + 4*i, 4), v(vHW), m=f'offset:{j*4096 + (f0+i)*1024}')
        def hcheck(f0, R, wait):
            lp, lo, lr = k.newlabel('Lhp'), k.newlabel('Lho'), k.newlabel('Lhr')
            k.s_mov_b32(s(sTRY), 0)
            if wait is not None:
                k.s_waitcnt(f'vmcnt({wait})')
                hread(f0, R)
            k.label(lp)
            k.s_waitcnt('lgkmcnt(0)')
            self.check(range(R, R+16))
            k.s_cbranch_scc1(lo)
            if self.ts: k.s_add_u32(s(sERR), s(sERR), 1 << 16)
            k.s_add_u32(s(sTRY), s(sTRY), 1)
            k.s_cmp_ge_u32(s(sTRY), MAXTRY); k.s_cselect_b32(s(sT6), 2 << (4*L), 0); k.s_or_b32(s(sERR), s(sERR), s(sT6))
            k.s_cmp_lg_u32(s(sT6), 0); k.s_cbranch_scc1(lo)
            k.s_sleep(1)
            hdma(f0)()
            if f0 == 0: hdma(2)()
            k.s_waitcnt('vmcnt(4)' if f0 == 0 else 'vmcnt(0)')
            hread(f0, R)
            k.s_branch(lp)
            k.label(lo)
        SR = [144, 112, 128, 176, 192, 208, 224, 240]
        S0, S8 = 144, 160
        NEG = 57
        M = 88
        mx = 58
        fill = [lambda: k.v_mov_b32(v(NEG), f32(-BIGF)), lambda: k.v_mov_b32(v(60), 0xffff), lambda: k.v_mov_b32(v(61), '0xffff0000')]
        for r in range(0, 16, 2):
            fill += [lambda r=r: k.v_cmp_le_i32(s(sC0, 2), (r & 3) + 8*(r >> 2), v(vII)),
                     lambda r=r: k.v_cmp_le_i32(s(sP0, 2), ((r+1) & 3) + 8*((r+1) >> 2), v(vII)),
                     lambda r=r: k.v_mov_b32(v(mx), f32(-BIGF)) if r == 0 else (k.v_or_b32(v(M + r//2 - 1), v(62), v(63))),
                     lambda r=r: k.v_cndmask_b32(v(S8+r), v(NEG), 0, s(sC0, 2)), lambda r=r: k.v_cndmask_b32(v(S8+r+1), v(NEG), 0, s(sP0, 2)),
                     lambda r=r: k.v_cndmask_b32(v(S0+r), 0, v(NEG), s(sC0, 2)), lambda r=r: k.v_cndmask_b32(v(S0+r+1), 0, v(NEG), s(sP0, 2)),
                     lambda r=r: k.v_cndmask_b32(v(62), 0, v(60), s(sC0, 2)), lambda r=r: k.v_cndmask_b32(v(63), 0, v(61), s(sP0, 2))]
        fill += [lambda: k.v_or_b32(v(M + 7), v(62), v(63)), lambda: k.v_mov_b32(v(mx+1), f32(-BIGF)),
                 lambda: k.v_mul_f32(v(62), f32(28**-0.5 * LOG2E), v(vRINV))]
        NQ = self.opt.get('woq', 0) if L == 1 else 0
        hooks = {self.hk: hdma(0), self.hv: hdma(2)}
        if NQ:
            self.bg_wo(1, 0, NQ)
            wl = self.bg; self.bg = []
            for i, f in enumerate(wl): hooks[1 + i*(self.hk - 3)//len(wl) if len(wl) <= 8 else 1 + i] = f
        self.gemm_q(1, raw=False, hooks=hooks, fill=fill)
        assert not fill
        self.scale_pack(vAQ, 62)
        k.s_mov_b32('exec_lo', 0)
        k.v_mov_b32(v(vAQ+6), 0x3f80)
        k.s_mov_b32('exec_lo', -1)
        self.mfma(S8, v(vAK, 4), v(vAQ, 4), v(S8, 16))
        self.mfma(S8, v(vAK+4, 4), v(vAQ+4, 4), v(S8, 16))
        self.stamp(f'L{L} q')
        hcheck(0, 176, 4)
        lmk = k.newlabel('Lmk')
        k.s_cmp_lg_u32(s(sT1), 0x7000000); k.s_cbranch_scc1(lmk)
        k.v_mov_b32(v(62), 0xff61)
        k.s_mov_b32('exec_lo', 0)
        k.ds_write_b32(v(vHW), v(62), m='offset:1032'); k.ds_write_b32(v(vHW), v(62), m=f'offset:{4096+1032}')
        k.s_mov_b32('exec_lo', -1)
        k.s_waitcnt('lgkmcnt(0)')
        k.label(lmk)
        k.s_barrier()
        self.stamp(f'L{L} halo got')
        KB = 64
        def kb(t): return KB + (t % 3)*8
        def rdk(t):
            k.ds_read_b128(v(kb(t), 4), v(vKVL), m=f'offset:{t*4096}')
            k.ds_read_b128(v(kb(t)+4, 4), v(vKVL), m=f'offset:{t*4096+1024}')
            self.ltag(f'k{t}', 2)
        def rdv(t):
            k.ds_read_b128(v(kb(t), 4), v(vKVL), m=f'offset:{t*4096+2048}')
            k.ds_read_b128(v(kb(t)+4, 4), v(vKVL), m=f'offset:{t*4096+3072}')
            self.ltag(f'v{t}', 2)
        def maxtile(S):
            return [lambda i=i: k.v_max3_f32(v(mx + ((i >> 1) & 1)), v(S+i), v(S+i+1), v(mx + ((i >> 1) & 1))) for i in range(0, 16, 2)]
        def merge():
            return [lambda r=r: k.v_max_f32(v(S0+r), v(S0+r), v(S8+r)) for r in range(16)]
        self.lq = []
        for t in range(3): rdk(t)
        if not self.opt.get('early_reset'): self.resets(L, z=104, t1=sT4, t2=sT5)
        self.vq = []
        if L == 1:
            self.bg_wpk(0, 0, 14)
            if self.opt.get('s1a'):
                ne = self.opt.get('wae', 5)
                late = self.bg[ne:]; self.bg = self.bg[:ne]
                self.bg_wo(1, NQ, 4)
                self.bg += late
                if self.opt.get('qo'): self.bg_wpk(0, 14, 21)
                self.bgon()
            else:
                self.burst(7)
                late = self.bg; self.bg = []
                self.bg_wo(1, 0, 4)
                for f in self.bg: f.gap = 64
                self.bg += late
        def smfma(fast):
            for t in range(8):
                self.lwait(f'k{t}')
                self.mfma(SR[t], v(kb(t), 4), v(vAQ, 4), v(S0, 16) if t == 0 else 0)
                for _ in range(6):
                    if fast: fast.pop(0)()
                self.mfma(SR[t], v(kb(t)+4, 4), v(vAQ+4, 4), v(SR[t], 16))
                if t + 3 < 8: rdk(t + 3)
                if fast is not None:
                    for _ in range(5):
                        if fast: fast.pop(0)()
                    if t == 1: fast += merge() + maxtile(S0)
                    if t >= 2: fast += maxtile(SR[t-1])
        fast = []
        smfma(fast)
        fast += maxtile(SR[7])
        while fast: fast.pop(0)()
        k.v_max_f32(v(mx), v(mx), v(mx+1))
        self.xhalf('v_max_f32', mx, 60)
        k.v_sub_f32(v(mx), 0, v(mx))
        V8 = S8 + 8
        P8 = S8
        ACC = 96
        pend = []
        for t in range(8):
            S = SR[t]
            for i in range(8): k.v_pk_add_f32(v(S+2*i, 2), v(S+2*i, 2), v(mx, 2), m='op_sel_hi:[1,0]')
            for i in range(16):
                k.v_exp_f32(v(S+i), v(S+i))
                if i % 4 == 1 and pend: pend.pop(0)()
                if i % 4 == 3: self.tick()
            if t == 0:
                self.bgoff()
                k.s_waitcnt(f'vmcnt({len(self.vq)})')
                hread(2, 64)
            for i in range(8): k.v_cvt_pk_bf16_f32(v(S+i), v(S+2*i), v(S+2*i+1))
            if t == 0:
                for i in range(8):
                    k.v_and_b32(v(P8+i), v(S+i), v(M+i)); k.v_xor_b32(v(S+i), v(S+i), v(P8+i))
                self.bgoff()
                hcheck(2, 64, None)
                k.s_barrier()
                self.stamp(f'L{L} V ok')
                self.burst(4)
                self.bgon()
                self.lq = []
                for tt in range(3): rdv(tt)
                k.ds_read_b128(v(V8, 4), v(vKVL), m=f'offset:{8*4096+2048}')
                k.ds_read_b128(v(V8+4, 4), v(vKVL), m=f'offset:{8*4096+3072}')
                self.ltag('v8', 2)
            def m1(t=t, S=S):
                self.lwait(f'v{t}')
                self.mfma(ACC, v(kb(t), 4), v(S, 4), v(ACC, 16) if t else 0)
            def m2(t=t, S=S):
                self.mfma(ACC, v(kb(t)+4, 4), v(S+4, 4), v(ACC, 16))
                if t + 3 < 8: rdv(t + 3)
            pend += [m1, m2]
            if t == 0:
                def m3():
                    self.lwait('v8')
                    self.mfma(ACC, v(V8, 4), v(P8, 4), v(ACC, 16))
                pend += [m3, lambda: self.mfma(ACC, v(V8+4, 4), v(P8+4, 4), v(ACC, 16))]
        while pend: pend.pop(0)()
        self.bgoff()
        while any(getattr(f, 'wo', False) for f in self.bg): self.bg.pop(0)()
        self.o_tail(L, ACC, False)
        self.stamp(f'L{L} o pub')

    def outproj(self, L):
        k = self.k
        typ = L & 1
        G = 144
        assert not any(getattr(f, 'wo', False) for f in self.bg)
        if L < 3: self.code_pf(1024)
        k.s_add_u32(s(sT1), s(sOT_C), OB[L])
        k.s_add_u32(s(sT2), s(sT1), 4096)
        k.s_mov_b32(s(sTRY), 0)
        lp = k.newlabel('Lop')
        OW = self.opt.get('ow', 0)
        k.label(lp)
        for i in range(8): self.ws_ld(G+4*i, vL16, sT2 if i >= 4 else sT1, 1024*(i & 3))
        k.s_add_u32(s(sTRY), s(sTRY), 1)
        k.s_cmp_ge_u32(s(sTRY), MAXTRY)
        k.s_cselect_b32(s(sT6), 4 << (4*L), 0)
        k.s_or_b32(s(sERR), s(sERR), s(sT6))
        for i in range(8):
            if OW or i % 2 == 0: k.s_waitcnt(f'vmcnt({7-i if OW else 6-i})')
            if OW: k.ds_write_b128(v(vGW), v(G+4*i, 4), m=f'offset:{1024*i}')
            if i == 0:
                k.v_max3_u32(v(62), v(G), v(G+1), v(G+2)); k.v_max_u32(v(62), v(G+3), v(62))
            else:
                k.v_max3_u32(v(62), v(G+4*i), v(G+4*i+1), v(62)); k.v_max3_u32(v(62), v(G+4*i+2), v(G+4*i+3), v(62))
        k.v_cmp_eq_u32('vcc', -1, v(62))
        k.s_cmp_eq_u64('vcc', 0)
        k.s_cselect_b32(s(sT7), 1, s(sT6))
        k.s_cmp_eq_u32(s(sT7), 0)
        k.s_cbranch_scc1(lp)
        self.stamp(f'L{L} o got')
        NPRE = self.opt.get('npre', 3 if OW else 6)
        for i in range(8):
            if not OW: k.ds_write_b128(v(vGW), v(G+4*i, 4), m=f'offset:{1024*i}')
            if i < NPRE: self.mfma(vXRES, a(typ*128+4*i, 4), v(G+4*i, 4), v(vXRES, 16))
        k.s_waitcnt('lgkmcnt(0)')
        k.s_barrier()
        def breg(f): return (64 if f < 8 else 176 - 32) + 4*f
        def rdo(f):
            k.ds_read_b128(v(breg(f), 4), v((vG1, vG2, vG3)[f >> 3]), m=f'offset:{1024*(f & 7)}')
            self.ltag(f'o{f}')
        D = 8
        self.lq = []
        fill = self.cs_ops(1, L_KVL, 240, 55) if L == 0 else []
        for f in range(4): rdo(f)
        for i in range(NPRE, 8):
            self.mfma(vXRES, a(typ*128+4*i, 4), v(G+4*i, 4), v(vXRES, 16))
        for f in range(4, D): rdo(f)
        if L == 0 and self.opt.get('kf', 0) >= 2: self.flag_post(3, 60)
        if L == 0: self.touch_half(OPK + OPT)
        self.burst(3)
        for f in self.bg: f.gap = min(90, 700 // len(self.bg))
        self.bg_next = 0
        self.bgon()
        for f in range(24):
            self.lwait(f'o{f}')
            self.mfma(vXRES, a(typ*128+32+4*f, 4), v(breg(f), 4), v(vXRES, 16))
            if f + D < 24: rdo(f + D)
            for _ in range(5):
                if fill: fill.pop(0)()
        assert not fill
        self.bgoff()
        PK = 112
        last = L == self.nlayers - 1
        if not last:
            self.drain()
            k.s_add_u32(s(sT1), s(sXT_P), XB[L])
            k.v_mov_b32(v(122), '0x3f803f80'); k.v_mov_b32(v(120), 0); k.v_mov_b32(v(121), 0)
        for i in range(8): k.v_cvt_pk_bf16_f32(v(PK+i), v(vXRES+2*i), v(vXRES+2*i+1))
        if last:
            for q in range(3):
                k.buffer_store_dwordx2(v(PK+2*q, 2), v(vOUT), s(S_OUT, 4), 0, m=f'offen offset:{16*q}')
            k.s_mov_b32('exec_hi', 0)
            k.buffer_store_dwordx2(v(PK+6, 2), v(vOUT), s(S_OUT, 4), 0, m='offen offset:48')
            k.s_mov_b32('exec_hi', -1)
            self.stamp(f'L{L} out')
            return
        def st(fl):
            for q in range(3): self.ws_st(PK+2*q, vXST, sT1, 512*q, n=2, flags=fl)
            k.s_mov_b32('exec_hi', 0)
            self.ws_st(PK+6, vXST, sT1, 512*3, n=2, flags=fl)
            k.s_mov_b32('exec_hi', -1)
        self.local_stores(st)
        s1, s2 = 120, 121
        for i in range(8):
            k.v_dot2_f32_bf16(v(s1), v(PK+i), v(122), v(s1)); k.v_dot2_f32_bf16(v(s2), v(PK+i), v(PK+i), v(s2))
        k.v_mov_b32(v(124), v(s1)); k.v_mov_b32(v(125), v(s2))
        k.v_permlane32_swap_b32(v(s1), v(124)); k.v_permlane32_swap_b32(v(s2), v(125))
        k.v_pk_add_f32(v(s1, 2), v(s1, 2), v(124, 2))
        self.sanitize(s1, 2)
        def st2(fl):
            k.s_mov_b32('exec_hi', 0)
            self.ws_st(s1, vSST, sT1, 0, n=2, flags=fl)
            k.s_mov_b32('exec_hi', -1)
        self.local_stores(st2)
        if self.opt.get('cpf2'): self.code_pf(1024)
        for i in range(8):
            k.v_lshlrev_b32(v(vXRES+2*i), 16, v(PK+i)); k.v_and_b32(v(vXRES+2*i+1), '0xffff0000', v(PK+i))
        self.stamp(f'L{L} x pub')

    def build(self):
        k = self.k
        self.prologue()
        for L in range(self.nlayers):
            if L > 0: self.load_gemm_kv(L)
            if L & 1: self.layer_B(L)
            else: self.layer_A(L)
            self.outproj(L)
        if self.ts:
            k.s_memrealtime(s(sTS, 2)); k.s_waitcnt('lgkmcnt(0)')
            k.v_writelane_b32(v(vNEGB), s(90), 59); k.v_writelane_b32(v(vNEGB), s(sTS), 60); k.v_writelane_b32(v(vNEGB), s(92), 61)
            k.v_writelane_b32(v(vNEGB), s(sERR), 63)
            k.v_writelane_b32(v(vNEGB), s(sMODE), 62)
            k.v_lshlrev_b32(v(60), 2, v(vLANE))
            k.buffer_store_dword(v(vNEGB), v(60), s(S_WS, 4), s(sTSO), m='offen')
        k.label('Lend')
        k.s_endpgm()
        self.bgoff()
        while self.cold: self.cold.pop(0)()
        k.label('Lcode_end')
        body = k.finish()
        hdr = open('cdna_kernels/' + NAME + '.s.ref').read().split('; Override launch')[0]
        return hdr + f"""; Generated by gen/gen.py (persistent kernel, 256 workgroups x 4 waves).
; @launch grid=(256,1,1) block=(256,1,1) lds={LDS_BYTES}
.amdgcn_target "amdgcn-amd-amdhsa--gfx950"
.text
.globl {NAME}_kernel
.p2align 8
.type {NAME}_kernel,@function
{NAME}_kernel:
{body}.section .rodata,"a"
.p2align 6
.amdhsa_kernel {NAME}_kernel
  .amdhsa_next_free_vgpr 512
  .amdhsa_next_free_sgpr 102
  .amdhsa_accum_offset 256
  .amdhsa_group_segment_fixed_size 0
  .amdhsa_kernarg_size 80
  .amdhsa_user_sgpr_count 2
  .amdhsa_user_sgpr_kernarg_segment_ptr 1
  .amdhsa_system_sgpr_workgroup_id_x 1
.end_amdhsa_kernel
"""

if __name__ == '__main__':
    import argparse
    ap = argparse.ArgumentParser()
    ap.add_argument('-o', default='cdna_kernels/' + NAME + '.s')
    ap.add_argument('--ts', action='store_true')
    ap.add_argument('--slow', action='store_true')
    ap.add_argument('--noalias', action='store_true')
    ap.add_argument('--tlb', action='store_true')
    ap.add_argument('--opt', action='append', default=[])
    ap.add_argument('--gmiss', type=int, default=250)
    ap.add_argument('--ghit', type=int, default=90)
    ap.add_argument('--hk', type=int, default=20)
    ap.add_argument('--hv', type=int, default=27)
    ap.add_argument('--layers', type=int, default=4)
    args = ap.parse_args()
    g = Gen(ts=args.ts, force_slow=args.slow, nlayers=args.layers, alias=not args.noalias, tlb=args.tlb, hk=args.hk, hv=args.hv, gmiss=args.gmiss, ghit=args.ghit, opt={o.split('=')[0]: (int(o.split('=')[1]) if '=' in o else 1) for o in args.opt})
    src = g.build()
    open(args.o, 'w').write(src)
    if args.ts:
        open(args.o + '.tsnames', 'w').write('\n'.join(getattr(g, 'tsnames', [])))
    print('instructions', g.k.nins, 'bytes of source', len(src))
```

```python
import sys, math, struct
from asmlib import *

NAME = "interleave_layers__linear_kernel_hedgehog__sliding_block__prompt"

def f32(x):
    return '0x%08x' % struct.unpack('<I', struct.pack('<f', x))[0]

MB = 1 << 20
XB = [0*MB, 2*MB, 4*MB]
OB = [6*MB, 8*MB, 10*MB, 12*MB]
KVP = {0: 14*MB, 2: 15*MB}
KVH = {1: 16*MB, 3: 20*MB}
TS_BASE = 24*MB
FLG = 24*MB + 768*1024
KVR = {0: 24*MB + 512*1024, 2: 24*MB + 576*1024}
FR = 1024
WPK = [25*MB, 25*MB + 16*84*FR]
OPK = 28*MB
OPT = 512*FR
CSP = 29*MB
WS_BYTES = 30*MB

SEG = 28672
L_WK, L_WV, L_WQ = 0, SEG, 2*SEG
L_KVL = 3*SEG
L_PHI = L_KVL
PHI_SIGN = 32*264
L_VOWN = L_KVL + 17408
L_KVF = L_KVL + 25600
L_CS1 = L_KVL + 29696
L_STAT = L_KVL + 16384
L_RINV = L_KVL + 32768
L_GATH = L_KVL + 45056
L_ST = 114688
L_CS0 = L_KVL + 65536
L_RINV0 = L_KVL + 69632
LDS_BYTES = 163840
assert L_GATH + 32768 == LDS_BYTES

S_WS, S_AX, S_WA, S_WB, S_WPHI, S_WOA, S_WOB, S_OUT, S_DBG, S_CODE = 8, 12, 16, 20, 24, 28, 32, 36, 40, 44
sR, sH, sW, sTT, sCG, sMODE, sXCC, sTRY = 48, 49, 50, 51, 52, 53, 54, 55
sXT, sOT_P, sOT_C, sXT_P, sKVP_P, sKVP_C, sKVH_P, sKVH_C = 56, 57, 58, 59, 60, 61, 62, 63
sT0, sT1, sT2, sT3, sT4, sT5 = 64, 65, 66, 67, 68, 69
sM28 = 70
sTMIN = 72
sWPKH = 73
sLDSW = 74
sSTW = 75
sTS = 24
sTSO = 93
sERR = 79
sB0, sB1 = 80, 81
sC0, sC1 = 82, 83
sP0 = 84
sOPKC = 86
sOM = 87
sT6, sT7 = 88, 89
sSLOT = 94
sJUNK = 72
sPFO = 70
sB2 = 75
sHA, sHB = 46, 47
sQA, sQB, sHEAD = 76, 77, 78
sE0, sE1 = 4, 5

vLANE, vL16, vWRD0, vL14, vWQ, vNEGB, vHW, vXST, vSST, vSLD = 0, 1, 2, 3, 4, 5, 6, 7, 8, 9
vPHW, vPHR, vRVW, vRVR, vKVL, vOUT, vG1, vG2, vG3, vHFM, vBIG, vII, vVOW, vGW = 10, 11, 12, 13, 14, 15, 16, 17, 18, 19, 20, 21, 22, 23
vONE = 2
vWPHI = 24
vXRES = 32
vCS = 48
vMB, vRINV = 54, 56
vT = 54
vAK, vAV, vAQ = 64, 80, 96
vWF = 112
vXF = 144
vS = 112

BIGF = 3.0e38
LOG2E = 1.4426950408889634
MAXTRY = 20000
MFMA = 'v_mfma_f32_32x32x16_bf16'

class Gen:
    def __init__(self, ts=False, force_slow=False, nlayers=4, alias=True, tlb=False, hk=20, hv=27, gmiss=250, ghit=90, opt={}):
        self.tlb = tlb
        self.opt = dict(s0a=1, s1a=1, s2a=1, cpf2=1, woq=2, f0=1, off0=21, g0=40, et=1, h1=27); self.opt.update(opt)
        self.gmiss, self.ghit = gmiss, ghit
        self.hk, self.hv = hk, hv
        if alias:
            XB[2] = XB[0]; OB[2] = OB[0]; OB[3] = OB[1]
        self.k = Asm()
        self.ts = ts
        self.force_slow = force_slow
        self.nlayers = nlayers
        self.nts = 0
        self.bg = []; self.bg_log = []
        self._owner = None
        self._hi = None
        self.lq = []; self.vq = []
        self.cold = []

    @property
    def m0_owner(self):
        return self._owner if self.k.watch else None
    @m0_owner.setter
    def m0_owner(self, val):
        self._owner = val

    def stamp(self, name):
        if not self.ts or self.opt.get('lite'): return
        k = self.k
        k.c(f'stamp {self.nts}: {name}')
        (k.s_memrealtime if self.opt.get('rt') else k.s_memtime)(s(sTS, 2))
        k.s_waitcnt('lgkmcnt(0)')
        k.v_writelane_b32(v(vNEGB), s(sTS), self.nts)
        self.tsnames = getattr(self, 'tsnames', []) + [name]
        self.nts += 1

    def tick(self, n=1):
        pass

    def _hook(self):
        if self.bg and self.k.est >= self.bg_next:
            f = self.bg.pop(0)
            f()
            self.bg_log.append(f)
            self.bg_next = self.k.est + getattr(f, 'gap', 90)

    def bgon(self, delay=0):
        self.k.hook = self._hook; self.k.hook_ok = True
        self.bg_next = max(getattr(self, 'bg_next', 0), self.k.est + delay)

    def bgoff(self):
        self.k.hook_ok = False

    def burst(self, n):
        for _ in range(n):
            if self.bg:
                f = self.bg.pop(0); f(); self.bg_log.append(f)
        self.bg_next = self.k.est + 200

    def drain(self):
        while self.bg: self.bg.pop(0)()

    def ltag(self, tag, n=1):
        self.lq += [tag]*n
    def lwait(self, tag=None):
        if tag is None:
            self.k.s_waitcnt('lgkmcnt(0)'); self.lq = []; return
        if tag not in self.lq: return
        idx = len(self.lq) - 1 - self.lq[::-1].index(tag)
        n = len(self.lq) - 1 - idx
        self.k.s_waitcnt(f'lgkmcnt({min(n, 15)})')
        self.lq = self.lq[idx+1:]
    def vtag(self, tag, n=1):
        self.vq += [tag]*n
    def vwait(self, tag=None):
        if tag is None:
            self.k.s_waitcnt('vmcnt(0)'); self.vq = []; return
        if tag not in self.vq: return
        idx = len(self.vq) - 1 - self.vq[::-1].index(tag)
        n = len(self.vq) - 1 - idx
        assert n <= 63
        self.k.s_waitcnt(f'vmcnt({n})')
        self.vq = self.vq[idx+1:]

    def mfma(self, d, a_, b_, c):
        self.k(MFMA, v(d, 16), a_, b_, c)

    def srd(self, d, b, n):
        k = self.k
        k.s_mov_b32(s(d), s(b)); k.s_and_b32(s(d+1), s(b+1), '0xffff')
        k.s_mov_b32(s(d+2), n); k.s_mov_b32(s(d+3), '0x20000')

    def _so(self, sbase, off):
        hi = off & ~0xfff
        if not hi: return s(sbase)
        if self._hi != (sbase, hi):
            self.k.s_add_u32(s(sT5), s(sbase), hi); self._hi = (sbase, hi)
        return s(sT5)

    def ws_ld(self, dst, voff, sbase, off, n=4, flags='sc1'):
        op = {1: 'buffer_load_dword', 2: 'buffer_load_dwordx2', 4: 'buffer_load_dwordx4'}[n]
        so = self._so(sbase, off)
        self.k(op, v(dst, n), v(voff), s(S_WS, 4), so, m=f'offen offset:{off & 0xfff} {flags}'.strip())

    def ws_st(self, src, voff, sbase, off, n=4, flags=''):
        op = {1: 'buffer_store_dword', 2: 'buffer_store_dwordx2', 4: 'buffer_store_dwordx4'}[n]
        so = self._so(sbase, off)
        self.k(op, v(src, n), v(voff), s(S_WS, 4), so, m=f'offen offset:{off & 0xfff} {flags}'.strip())

    def nohi(self):
        self._hi = None

    def local_stores(self, fn):
        k = self.k
        ls, ld = k.newlabel('Lslow'), k.newlabel('Ldone')
        k.s_cmp_eq_u32(s(sMODE), 0)
        k.s_cbranch_scc1(ls)
        self.nohi(); fn('')
        k.label(ld)
        self.nohi()
        def cold():
            k.label(ls)
            self.nohi(); fn('sc1'); self.nohi()
            k.s_branch(ld)
        self.cold.append(cold)

    def check(self, regs):
        k = self.k
        t = 62
        regs = list(regs)
        k.v_max3_u32(v(t), v(regs[0]), v(regs[1]), v(regs[2]))
        rest = regs[3:]
        while rest:
            if len(rest) >= 2:
                k.v_max3_u32(v(t), v(rest[0]), v(rest[1]), v(t)); rest = rest[2:]
            else:
                k.v_max_u32(v(t), v(rest[0]), v(t)); rest = rest[1:]
        k.v_cmp_eq_u32('vcc', -1, v(t))
        k.s_cmp_eq_u64('vcc', 0)

    def poll(self, issue, regs, code, first_wait=None, sleep=0):
        k = self.k
        lp, lo = k.newlabel('Lpoll'), k.newlabel('Lok')
        def loop():
            k.s_mov_b32(s(sTRY), 0)
            l2, l3 = k.newlabel('Lp2'), k.newlabel('Lp3')
            k.s_branch(l3) if sleep else None
            k.label(l2)
            if sleep: k.s_sleep(sleep)
            k.label(l3)
            self.nohi(); issue(); self.nohi()
            k.s_add_u32(s(sTRY), s(sTRY), 1)
            k.s_cmp_ge_u32(s(sTRY), MAXTRY)
            k.s_cselect_b32(s(sT6), code, 0)
            k.s_or_b32(s(sERR), s(sERR), s(sT6))
            k.s_waitcnt('vmcnt(0)')
            self.check(regs)
            k.s_cselect_b32(s(sT7), 1, s(sT6))
            k.s_cmp_eq_u32(s(sT7), 0)
            k.s_cbranch_scc1(l2)
        if first_wait is None:
            loop()
        else:
            k.s_mov_b32(s(sTRY), 0)
            k.s_mov_b32(s(sT6), 0)
            l2, l3 = k.newlabel('Lp2'), k.newlabel('Lp3')
            assert first_wait == 0
            k.s_branch(l3)
            k.label(l2)
            if self.ts: k.s_add_u32(s(sERR), s(sERR), 1 << 16)
            if sleep: k.s_sleep(sleep)
            self.nohi(); issue(); self.nohi()
            k.s_add_u32(s(sTRY), s(sTRY), 1)
            k.s_cmp_ge_u32(s(sTRY), MAXTRY)
            k.s_cselect_b32(s(sT6), code, 0)
            k.s_or_b32(s(sERR), s(sERR), s(sT6))
            k.label(l3)
            k.s_waitcnt('vmcnt(0)')
            self.check(regs)
            k.s_cselect_b32(s(sT7), 1, s(sT6))
            k.s_cmp_eq_u32(s(sT7), 0)
            k.s_cbranch_scc1(l2)

    def xhalf(self, op, dst, t):
        k = self.k
        k.v_mov_b32(v(t), v(dst))
        k.v_permlane32_swap_b32(v(dst), v(t))
        k(op, v(dst), v(dst), v(t))

    def rbf(self, dst, src):
        k = self.k
        k.v_cvt_pk_bf16_f32(v(dst), v(src), v(src))
        k.v_and_b32(v(dst), '0xffff0000', v(dst))

    def prologue(self):
        k = self.k
        k.label('Lstart')
        k.s_load_dwordx16(s(64, 16), s(0, 2), 0)
        k.s_load_dwordx4(s(80, 4), s(0, 2), 64)
        k.s_getpc_b64(s(4, 2))
        k.label('Lpc')
        k.s_memrealtime(s(90, 2))
        if self.ts: k.s_memtime(s(92, 2))
        k.s_cmp_ge_u32(s(2), 256)
        k.s_cbranch_scc1('Lend')
        k.s_lshr_b32(s(6), s(2), 3)
        k.s_sub_u32(s(S_CODE), s(4), 'Lpc-Lstart'); k.s_subb_u32(s(5), s(5), 0)
        k.s_and_b32(s(S_CODE+1), s(5), '0xffff')
        k.s_mov_b32(s(S_CODE+2), 'Lcode_end-Lstart'); k.s_mov_b32(s(S_CODE+3), '0x20000')
        k.v_lshrrev_b32(v(1), 6, v(0))
        k.v_and_b32(v(vLANE), 63, v(0))
        k.v_readfirstlane_b32(s(sW), v(1))
        k.s_lshl_b32(s(3), s(6), 11)
        k.v_lshlrev_b32(v(2), 5, v(vLANE))
        lcp = k.newlabel('Lcp')
        k.s_cmp_lg_u32(s(sW), 3); k.s_cbranch_scc1(lcp)
        k.buffer_load_dword(v(240), v(2), s(S_CODE, 4), s(3), m='offen')
        k.label(lcp)
        k.s_and_b32(s(sH), s(6), 15)
        k.s_and_b32(s(3), s(2), 7)
        k.s_lshr_b32(s(7), s(6), 4)
        k.s_lshl_b32(s(3), s(3), 1)
        k.s_add_u32(s(sR), s(3), s(7))
        n, hf, r4, ch, c4, l2 = 60, 61, 62, 63, 59, 58
        k.v_and_b32(v(c4), 3, v(vLANE))
        k.v_lshrrev_b32(v(l2), 2, v(vLANE))
        vODMA, vPDMA = 97, 98
        k.v_mul_u32_u24(v(vPDMA), 2688, v(l2))
        k.v_lshl_add_u32(v(vPDMA), v(c4), 4, v(vPDMA))
        k.v_mul_u32_u24(v(vODMA), 896, v(l2))
        k.v_lshl_add_u32(v(vODMA), v(c4), 4, v(vODMA))
        k.v_mul_u32_u24(v(96), 56, v(l2))
        k.v_lshl_add_u32(v(96), v(c4), 4, v(96))
        k.v_lshlrev_b32(v(vL16), 4, v(vLANE))
        k.s_lshl_b32(s(sOM), s(sR), 2); k.s_add_u32(s(sOM), s(sOM), s(sW))
        sRHO, sPH, sPD = 101, 100, 95
        k.s_lshl_b32(s(sRHO), s(sR), 4); k.s_add_u32(s(sRHO), s(sRHO), s(sH))
        k.s_and_b32(s(sPH), s(sRHO), 3); k.s_lshl_b32(s(sPH), s(sPH), 2); k.s_add_u32(s(sPH), s(sPH), s(sW))
        k.s_waitcnt('lgkmcnt(0)')
        self.srd(S_DBG, 80, 256)
        lep = k.newlabel('Lep')
        k.s_add_u32(s(3), s(2), s(sW)); k.s_cmp_lg_u32(s(3), 0); k.s_cbranch_scc1(lep)
        k.s_andn2_b32(s(3), s(90), 15); k.s_or_b32(s(4), s(91), 0x40000000)
        k.v_mov_b32(v(56), s(3)); k.v_mov_b32(v(57), s(4))
        k.s_mov_b64('exec', 1)
        k.buffer_store_dwordx2(v(56, 2), v(vLANE), s(S_DBG, 4), 0, m='offen sc1')
        k.s_mov_b64('exec', -1)
        k.label(lep)
        self.srd(S_WA, 66, 1204224); self.srd(S_WB, 74, 1204224)
        self.srd(S_WOA, 70, 401408); self.srd(S_WOB, 76, 401408)
        self.srd(S_AX, 64, 1835008); self.srd(S_WPHI, 68, 25088)
        self.srd(S_OUT, 78, 1835008); self.srd(S_WS, 82, WS_BYTES)
        k.s_lshl_b32(s(sLDSW), s(sW), 10)
        k.s_mul_i32(s(sSTW), s(sW), 7168); k.s_add_u32(s(sSTW), s(sSTW), L_ST)
        self.vq = []
        sPS = 97
        k.s_lshr_b32(s(sT1), s(sRHO), 2)
        k.s_cmp_ge_u32(s(sT1), 28); k.s_cselect_b32(s(sT2), 1, 0)
        k.s_cmp_ge_u32(s(sT1), 56); k.s_cselect_b32(s(sT2), 2, s(sT2))
        k.s_mul_i32(s(sT3), s(sT2), 28); k.s_sub_u32(s(sT3), s(sT1), s(sT3)); k.s_mul_i32(s(sT3), s(sT3), 16*2688)
        k.s_add_u32(s(sT2), s(sT2), 1); k.s_cmp_eq_u32(s(sT2), 3); k.s_cselect_b32(s(sT2), 0, s(sT2))
        k.s_mul_i32(s(sT2), s(sT2), 896); k.s_add_u32(s(sT3), s(sT3), s(sT2))
        k.s_mul_i32(s(sT0), s(sPH), 56); k.s_add_u32(s(sPS), s(sT3), s(sT0))
        k.s_add_u32('m0', s(sSTW), 0)
        k.buffer_load_dwordx4(v(vPDMA), s(S_WA, 4), s(sPS), m='offen lds')
        k.s_mul_i32(s(sT2), s(sPH), 84*FR); k.s_mul_i32(s(sT3), s(sT1), FR); k.s_add_u32(s(sPD), s(sT2), s(sT3))
        k.s_add_u32(s(sPD), s(sPD), WPK[0])
        k.s_add_u32(s(sT3), s(sT1), 8); k.s_mul_i32(s(sT3), s(sT3), 16*2688); k.s_add_u32(s(sPS+1), s(sT3), s(sT0))
        k.s_add_u32(s(sPD+1), s(sPD), 64*FR)
        k.s_sub_u32(s(sT1), s(sRHO), 80)
        k.s_lshr_b32(s(sT2), s(sT1), 3); k.s_bfe_u32(s(sT1), s(sT1), 2 | (1 << 16))
        k.s_mul_i32(s(sT3), s(sT2), 28*896); k.s_add_u32(s(sT0), s(sT0), s(sT3)); k.s_mul_i32(s(sT3), s(sT1), 16*896); k.s_add_u32(s(sT0), s(sT0), s(sT3))
        k.s_mul_i32(s(sT3), s(sPH), 32*FR); k.s_mul_i32(s(sT2), s(sT2), 2*FR); k.s_add_u32(s(sT3), s(sT3), s(sT2))
        k.s_mul_i32(s(sT1), s(sT1), FR); k.s_add_u32(s(sT3), s(sT3), s(sT1)); k.s_add_u32(s(sT3), s(sT3), OPK)
        k.s_cmp_ge_u32(s(sRHO), 208); k.s_cselect_b32(s(sT3), 0x7000000, s(sT3))
        k.s_cmp_ge_u32(s(sRHO), 80); k.s_cselect_b32(s(sPS+1), s(sT0), s(sPS+1)); k.s_cselect_b32(s(sPD+1), s(sT3), s(sPD+1))
        k.s_mul_i32(s(sC0), s(sPH), 10752); k.s_lshr_b32(s(sT1), s(sRHO), 2); k.s_lshl_b32(s(sT1), s(sT1), 7)
        k.s_add_u32(s(sC0), s(sC0), s(sT1)); k.s_add_u32(s(sC0), s(sC0), CSP)
        k.s_add_u32(s(sC1), s(sC0), 64*128)
        k.s_cmp_ge_u32(s(sRHO), 80); k.s_cselect_b32(s(sC1), 0x7000000, s(sC1))
        def pack_dma1(typ, slot):
            la, lb = k.newlabel('La'), k.newlabel('Lb')
            k.s_add_u32('m0', s(sSTW), slot*1024)
            k.s_cmp_ge_u32(s(sRHO), 80); k.s_cbranch_scc1(la)
            k.buffer_load_dwordx4(v(vPDMA), s(S_WB if typ else S_WA, 4), s(sPS+1), m='offen lds')
            k.s_branch(lb)
            k.label(la)
            k.buffer_load_dwordx4(v(vODMA), s(S_WOB if typ else S_WOA, 4), s(sPS+1), m='offen lds')
            k.label(lb)
        pack_dma1(0, 1)
        self.vtag('pack', 2)
        def packb_dma():
            k.s_add_u32('m0', s(sSTW), 2*1024)
            k.buffer_load_dwordx4(v(vPDMA), s(S_WB, 4), s(sPS), m='offen lds')
            pack_dma1(1, 3)
            self.vtag('packb', 2)
        k.s_mul_i32(s(sT1), s(sH), 1568)
        k.s_add_u32('m0', s(sSTW), 5*1024)
        k.buffer_load_dwordx4(v(96), s(S_WPHI, 4), s(sT1), m='offen lds')
        k.s_add_u32(s(sT1), s(sT1), 16*56)
        k.s_add_u32('m0', s(sSTW), 6*1024)
        k.buffer_load_dwordx4(v(96), s(S_WPHI, 4), s(sT1), m='offen lds')
        self.vtag('phi', 2)
        if self.tlb:
            k.v_lshlrev_b32(v(2), 20, v(vLANE))
            k.s_lshl_b32(s(sT1), s(2), 7)
            k.s_mov_b32('exec_hi', 0)
            k.buffer_load_dword(a(255), v(2), s(S_WS, 4), s(sT1), m='offen')
            k.buffer_load_dword(a(254), v(2), s(S_OUT, 4), s(sT1), m='offen')
            k.s_mov_b32('exec_hi', -1)
            self.vtag('tlb', 2)
        if self.ts:
            k.s_lshl_b32(s(sT1), s(2), 2); k.s_add_u32(s(sT1), s(sT1), s(sW)); k.s_lshl_b32(s(sT1), s(sT1), 8)
            k.s_add_u32(s(sTSO), s(sT1), TS_BASE)
            k.v_mov_b32(v(vNEGB), 0)
        self.stamp('pack issued')
        vX0, vBW0, vBW1, vBR = 101, 102, 103, 104
        vPK8, vPK4 = 99, 100
        k.v_lshrrev_b32(v(56), 3, v(vLANE))
        k.s_lshl_b32(s(sT1), s(sOM), 5)
        k.v_add_u32(v(55), s(sT1), v(56)); k.v_mul_u32_u24(v(vX0), 896, v(55))
        k.v_and_b32(v(55), 7, v(vLANE))
        k.v_lshrrev_b32(v(56), 4, v(vLANE)); k.v_xor_b32(v(55), v(55), v(56))
        k.v_lshl_add_u32(v(vX0), v(55), 4, v(vX0))
        k.v_xor_b32(v(vBW0), 64, v(vX0))
        sC0_ = 99
        k.s_and_b32(s(sT1), s(sR), 1); k.s_mul_i32(s(sT1), s(sT1), 3); k.s_add_u32(s(sC0_), s(sH), s(sT1))
        k.s_cmp_ge_u32(s(sC0_), 7); k.s_cselect_b32(s(sT1), 7, 0); k.s_cmp_ge_u32(s(sC0_), 14); k.s_cselect_b32(s(sT1), 14, s(sT1))
        k.s_sub_u32(s(sC0_), s(sC0_), s(sT1))
        def line(dst, i):
            k.s_add_u32(s(dst), s(sC0_), i)
            k.s_cmp_ge_u32(s(dst), 7); k.s_cselect_b32(s(sT5), 7, 0); k.s_sub_u32(s(dst), s(dst), s(sT5))
        sSL = 16
        def wprep():
            for ii in range(7):
                line(sT4, ii)
                k.s_lshl_b32(s(sT4), s(sT4), 12)
                k.s_add_u32(s(sT4), s(sT4), s(sWPKH))
                k.s_add_u32(s(sSL+ii), s(sT4), WPK[0])
        def wdma(segs, ii):
            for g in segs:
                k.s_add_u32('m0', s(sLDSW), g*SEG + ii*4096)
                so = sSL + ii
                if g:
                    k.s_add_u32(s(sT5), s(sSL+ii), g*28*FR); so = sT5
                k.buffer_load_dwordx4(v(vL14), s(S_WS, 4), s(so), m='offen sc1 lds')
                self.vtag('wq' if g == 2 else f'w{ii}')
        def xload(c):
            line(sT0, c)
            k.s_lshl_b32(s(sT0), s(sT0), 7)
            for g in range(4):
                if g: k.s_add_u32(s(sT0), s(sT0), 8*896)
                k.s_add_u32('m0', s(sLDSW), (4*c+g)*4096)
                k.buffer_load_dwordx4(v(vBW0 if g & 1 else vX0), s(S_AX, 4), s(sT0), m='offen lds')
            self.vtag(f'x{c}', 4)
        def xread(c):
            for sp in range(4):
                k.ds_read_b128(v(vXF+4*(4*c+sp), 4), v((vBR if c < 4 else 84)+sp), m=f'offset:{(c & 3)*16384}')
            self.ltag(f'b{c}', 4)
        ones = 57
        def xstat(c):
            for i in range(16):
                x = vXF + 16*c + i
                k.v_dot2_f32_bf16(v(60), v(x), v(ones), v(60))
                k.v_dot2_f32_bf16(v(61), v(x), v(x), v(61))
        def st1(reg, sb, add, off=0, tag='st', frag=False):
            so = sb
            if add:
                k.s_add_u32(s(sT2), s(sb), add); so = sT2
            k.buffer_store_dwordx4(v(reg, 4), v(vL14 if frag else vL16), s(S_WS, 4), s(so), m=f'offen offset:{off} sc1')
            self.vtag(tag)
        xload(0)
        self.setup2()
        self.stamp('setup2')
        k.v_mov_b32(v(ones), '0x3f803f80')
        for i in range(4): k.v_mov_b32(v(60+i), 0)
        vPK1a, vPK1b = 110, 111
        k.s_cmp_ge_u32(s(sRHO), 80); k.s_cselect_b64('vcc', -1, 0); k.s_cselect_b32(s(sT1), 2, 1); k.s_lshl_b32(s(sT1), s(sT1), 8)
        k.v_cndmask_b32(v(vPK1a), v(vPK8), v(vPK4), 'vcc')
        k.v_add_u32(v(vPK1b), s(sT1), v(vPK1a))
        sPADM = 7
        k.s_sub_u32(s(sT1), s(sRHO), 80); k.s_bitcmp1_b32(s(sT1), 2); k.s_cselect_b32(s(sPADM), -1, 0)
        k.s_cmp_ge_u32(s(sRHO), 80); k.s_cselect_b32(s(sPADM), s(sPADM), 0)
        def pack_out(typ, slot, P, dadd):
            for j in range(2):
                k.ds_read_b64_tr_b16(v(P+2*j, 2), v(vPK8), m=f'offset:{slot*1024 + j*256}')
            k.ds_read_b64_tr_b16(v(P+4, 2), v(vPK1a), m=f'offset:{slot*1024 + 1024}')
            k.ds_read_b64_tr_b16(v(P+6, 2), v(vPK1b), m=f'offset:{slot*1024 + 1024}')
            k.s_waitcnt('lgkmcnt(2)')
            st1(P, sPD, dadd[0], frag=True)
            k.s_waitcnt('lgkmcnt(0)')
            k.s_mov_b32('exec_lo', 0); k.s_mov_b32('exec_hi', s(sPADM))
            k.v_mov_b32(v(P+6), 0); k.v_mov_b32(v(P+7), 0)
            k.s_mov_b64('exec', -1)
            if typ:
                k.s_mov_b32(s(sT3), dadd[0]); k.s_cmp_ge_u32(s(sRHO), 80); k.s_cselect_b32(s(sT3), dadd[1], s(sT3))
                k.s_add_u32(s(sPD+1), s(sPD+1), s(sT3))
            st1(P+4, sPD+1, 0, frag=True)
            A_, B_ = 76, 78
            k.v_mov_b32(v(A_), 0); k.v_mov_b32(v(B_), 0)
            for i in range(4):
                k.v_dot2_f32_bf16(v(A_), v(P+i), v(ones), v(A_)); k.v_dot2_f32_bf16(v(B_), v(P+4+i), v(ones), v(B_))
            k.v_permlane32_swap_b32(v(A_), v(B_))
            k.v_add_f32(v(A_), v(A_), v(B_))
            k.v_and_b32(v(B_), 31, v(vLANE)); k.v_lshlrev_b32(v(B_), 2, v(B_))
            k.s_mov_b32('exec_hi', 0)
            k.buffer_store_dword(v(A_), v(B_), s(S_WS, 4), s(sC0), m='offen sc1')
            k.s_mov_b32('exec_hi', -1); k.s_mov_b32('exec_lo', 0)
            k.buffer_store_dword(v(A_), v(B_), s(S_WS, 4), s(sC1), m='offen sc1')
            k.s_mov_b32('exec_lo', -1)
            self.vtag('st', 2)
            if typ == 0:
                k.s_add_u32(s(sC0), s(sC0), 172032); k.s_add_u32(s(sC1), s(sC1), 172032)
        self.vwait('pack')
        self.stamp('pack in')
        pack_out(0, 0, 64, (0, 0))
        EP = 80
        k.v_mov_b32(v(EP+2), 0)
        k.buffer_load_dwordx2(v(EP, 2), v(EP+2), s(S_DBG, 4), 0, m='offen sc1'); self.vtag('ep')
        self.stamp('pack out')
        def fillall():
            assert XB[1] - XB[0] == 2*MB and OB[0] - XB[0] == 6*MB and OB[1] - XB[0] == 8*MB
            k.v_lshrrev_b32(v(58), 4, v(vLANE)); k.v_lshrrev_b32(v(59), 5, v(vLANE)); k.v_add_u32(v(58), v(58), v(59))
            k.v_lshlrev_b32(v(58), 21, v(58))
            k.v_and_b32(v(59), 15, v(vLANE)); k.v_lshl_add_u32(v(58), v(59), 7, v(58))
            k.buffer_load_dword(a(255), v(58), s(S_WS, 4), s(sOT_P), m='offen sc1'); self.vtag('bg')
        FP = self.opt.get('fp', -1)
        packb_dma()
        xload(1)
        for q in range(4):
            k.buffer_load_dwordx2(a(128+2*q, 2), v(vOUT), s(S_AX, 4), 0, m=f'offen offset:{16*q}')
        self.vtag('res', 4)
        xload(2)
        self.vwait('x0')
        self.lq = []
        xread(0)
        for j in range(2):
            for jj in range(2):
                k.ds_read_b64_tr_b16(v(vWPHI+4*j+2*jj, 2), v(vPK4), m=f'offset:{5120 + j*1024 + jj*512}')
        self.lwait()
        k.s_mov_b32('exec_lo', 0)
        k.v_mov_b32(v(vWPHI+6), 0); k.v_mov_b32(v(vWPHI+7), 0)
        k.s_mov_b64('exec', s(sP0, 2))
        for i in range(8): k.v_mov_b32(v(vWPHI+i), 0)
        k.s_mov_b64('exec', -1)
        xstat(0)
        wprep()
        self.vwait('ep')
        self.tag_get(EP)
        k.s_barrier()
        self.stamp('acked')
        self.flag_post(0, EP)
        if FP == 1: fillall()
        self.vwait('packb')
        pack_out(1, 2, 64, (WPK[1] - WPK[0], OPT))
        for i in range(4): k.v_mov_b32(v(108+i), -1)
        k.s_lshl_b32(s(97), s(sR), 12); k.s_add_u32(s(97), s(97), s(sKVP_C))
        k.s_lshl_b32(s(98), s(sH), 12); k.s_add_u32(s(98), s(98), s(sLDSW))
        k.s_lshl_b32(s(sT3), s(sR), 16); k.s_add_u32(s(98), s(98), s(sT3))
        k.s_mov_b32(s(sT3), 0x7000000); k.s_cmp_lt_u32(s(sR), 2); k.s_cselect_b32(s(sT3), KVR[0], s(sT3)); k.s_add_u32(s(98), s(98), s(sT3))
        st1(108, 97, KVP[0]); st1(108, 98, 0)
        for c in range(3, 7): xload(c)
        if FP == 2: fillall()
        for c in range(1, 7):
            if c == 3: self.quad_issue(72)
            self.vwait(f'x{c}')
            xread(c)
            if 2 <= c <= 4:
                self.lwait(f'b{c-1}')
                xstat(c-1)
        self.lwait()
        self.stamp('x0 done')
        self.quad_wait(72)
        self.code_pf(1024)
        self.stamp('flags')
        L_CT = L_KVL + 32768 + 4096*4 + 8192
        if self.opt.get('kf'):
            for ii in range(7): wdma((0,), ii)
            self.cs_dma(0, L_CT)
            self.flag_issue(0, 32)
            xstat(4); xstat(5)
            for ii in range(3): wdma((1,), ii)
            xstat(6)
            self.stats_finish(60, 61)
            for ii in range(3, 7): wdma((1,), ii)
            self.vtag('wv', 0)
            self.stamp('W issued')
            self.flag_wait(0, 32)
            k.s_waitcnt('lgkmcnt(0)')
            k.s_barrier()
            self.stamp('K in')
            D = 6
            self.lq = []
            def rdk(st):
                k.ds_read_b128(v(vWF + (st % 8)*4, 4), v(vL16), m=f'offset:{L_WK + st*1024}'); self.ltag(f'w{st}')
            for st in range(D): rdk(st)
            self.flag_post(1, 96)
            self.touch_half(OPK); self.vtag('bg')
            fin = self.cs_ops(0, L_CT, 32, 55)
            rs0 = [self.bg_reset(sKVH_P, KVH[1], 1024*i, 108) for i in range(4)] + [self.bg_reset(97, KVP[2], 0, 108)]
            ex = {}
            KF = self.opt['kf']
            if KF == 1:
                for ii in range(7): ex[6 + 2*ii] = lambda ii=ii: wdma((2,), ii)
                for i in range(5): ex[20 + i] = rs0[i]
            for st in range(28):
                self.lwait(f'w{st}')
                self.mfma(vAK, v(vWF + (st % 8)*4, 4), v(vXF+4*st, 4), v(vAK, 16) if st else 0)
                if st + D < 28: rdk(st + D)
                for _ in range(4):
                    if fin: fin.pop(0)()
                if st in ex: ex[st]()
            assert not fin
            xm, wm = 112, 116
            k.v_mov_b32(v(xm), v(vMB)); k.v_mov_b32(v(wm), v(vCS+1))
            for i in range(1, 4):
                k.v_mov_b32(v(xm+i), 0); k.v_mov_b32(v(wm+i), 0)
            self.mfma(vAK, v(wm, 4), v(xm, 4), v(vAK, 16))
            k.s_add_u32(s(sT1), s(sOT_P), OB[0])
            def st_(fl):
                self.ws_st(108, vL16, sT1, 0, flags=fl); self.ws_st(108, vL16, sT1, 1024, flags=fl)
            self.local_stores(st_); self.vtag('st', 2)
            for q in range(4): k.ds_read_b128(v(32+4*q, 4), v(vRVR), m=f'offset:{32*q}')
            self.rv = 32
            self.vwait('w6')
            k.s_barrier()
            self.stamp('K gemm')
            self.lq = []
            def rdv(st):
                k.ds_read_b128(v(96 + (st % 4)*4, 4), v(vL16), m=f'offset:{L_WV + st*1024}'); self.ltag(f'w{st}')
            for st in range(3): rdv(st)
            if KF >= 2:
                for ii in range(7): wdma((2,), ii)
            self.pack(vAK)
            P, E = 112, 128
            self.feature_mfma(vAK, P)
            def vstep(st):
                def f():
                    self.lwait(f'w{st}')
                    self.mfma(vAV, v(vXF+4*st, 4), v(96 + (st % 4)*4, 4), v(vAV, 16) if st else 0)
                    if st + 3 < 28: rdv(st + 3)
                f.gap = 16; f.vs = True
                return f
            self.bg_wo(0)
            wo = self.bg; self.bg = []
            for st in range(28):
                self.bg.append(vstep(st))
                if st % 3 == 2 and st >= 8 and KF == 1:
                    f = wo.pop(0); f.gap = 0; self.bg.append(f)
            self.burst(3); self.bg_next = 0
            self.bgon()
            self.feature(P, E)
            self.bgoff()
            for sg, X in ((0, P), (1, E)):
                for q in range(4):
                    k.ds_write_b64(v(vPHW), v(X+2*q, 2), m=f'offset:{sg*PHI_SIGN + q*16}'); self.ltag('ph')
            self.drain()
            xm, wm = 120, 124
            k.v_mov_b32(v(xm), v(vMB)); k.v_mov_b32(v(wm), v(vCS+2))
            for i in range(1, 4):
                k.v_mov_b32(v(xm+i), 0); k.v_mov_b32(v(wm+i), 0)
            self.mfma(vAV, v(xm, 4), v(wm, 4), v(vAV, 16))
            self.bg = wo
            self.vwait('wq'); self.vwait('st')
            self.epi_v()
            k.ds_write_b128(v(vVOW), v(vAV, 4)); k.ds_write_b128(v(vVOW), v(vAV+4, 4), m='offset:1024')
            for q in range(4):
                k.buffer_load_dwordx2(v(vXRES+8+2*q, 2), v(vOUT), s(S_AX, 4), 0, m=f'offen offset:{16*q}')
            self.burst(4)
            self.quad_issue(58, stage=1, both=True)
            self.rs0 = []
            if KF >= 2:
                self.rs_late = [self.bg_reset(sKVH_P, KVH[1], 1024*i, 92) for i in range(4)] + [self.bg_reset(97, KVP[2], 0, 92)]
            return
        for ii in range(7):
            wdma((0, 1), ii)
            if ii in (3, 5, 6): xstat({3: 4, 5: 5, 6: 6}[ii])
        self.cs_dma(0, L_CT)
        ET = self.opt.get('et', 0)
        if ET: self.touch_half(OPK); self.vtag('bg')
        self.flag_issue(0, 96)
        self.stats_finish(60, 61)
        D = 3
        def rdw(st):
            b = vWF + (st % 4)*8
            k.ds_read_b128(v(b, 4), v(vL16), m=f'offset:{L_WK + st*1024}')
            k.ds_read_b128(v(b+4, 4), v(vL16), m=f'offset:{L_WV + st*1024}')
            self.ltag(f'w{st}', 2)
        def gemm(s0, s1, extra, fill=None):
            for st in range(s0, s1):
                self.lwait(f'w{st}')
                b = vWF + (st % 4)*8
                x = v(vXF+4*st, 4)
                self.mfma(vAK, v(b, 4), x, v(vAK, 16) if st else 0)
                for _ in range(4):
                    if fill: fill.pop(0)()
                self.mfma(vAV, x, v(b+4, 4), v(vAV, 16) if st else 0)
                if st + D < s1: rdw(st + D)
                for _ in range(3):
                    if fill: fill.pop(0)()
                if extra: extra.pop(0)()
        nop = lambda: None
        self.stamp('W issued')
        self.vwait('w3')
        k.s_waitcnt('lgkmcnt(0)')
        k.s_barrier()
        self.lq = []
        for st in range(D): rdw(st)
        self.flag_post(1, 106)
        self.stamp('W half1')
        def rob():
            k.s_add_u32(s(sT1), s(sOT_P), OB[0])
            def st(fl):
                self.ws_st(108, vL16, sT1, 0, flags=fl); self.ws_st(108, vL16, sT1, 1024, flags=fl)
            self.local_stores(st); self.vtag('st', 2)
        ex = [nop]*self.opt.get('qd', 8)
        for ii in range(7): ex += [lambda ii=ii: wdma((2,), ii)]
        gemm(0, 16, ex)
        self.flag_wait(0, 96)
        k.s_barrier()
        self.stamp('W kv')
        for st in range(16, 16+D): rdw(st)
        if not ET: self.touch_half(OPK); self.vtag('bg')
        rob()
        self.rs0 = [self.bg_reset(sKVH_P, KVH[1], 1024*i, 108) for i in range(4)] + [self.bg_reset(97, KVP[2], 0, 108)]
        for f in self.rs0: f.gap = 60
        fin = self.cs_ops(0, L_CT, 32, 55, segs=(0, 1))
        self.L_CT = L_CT
        early = self.opt.get('rse', 1)
        self.bg_wo(0)
        if ET == 1:
            ex = ex + self.bg[:7] + self.rs0; self.bg = self.bg[7:]
        elif ET == 2:
            ex = ex + self.bg[:12]; self.bg = self.rs0 + self.bg[12:]
        else: ex = ex + self.rs0
        gemm(16, 28, ex, fin)
        assert not ex
        self.rs0 = []
        while fin: fin.pop(0)()
        self.mean_steps(0)

    def tag_get(self, EP):
        k = self.k
        lfe, lfe2, lfe3 = k.newlabel('Lfe'), k.newlabel('Lfe'), k.newlabel('Lfe')
        k.s_mov_b32(s(sTRY), 0)
        k.label(lfe2)
        k.v_readfirstlane_b32(s(sE0), v(EP)); k.v_readfirstlane_b32(s(sE1), v(EP+1))
        k.s_cmp_eq_u32(s(sE1), 0); k.s_cbranch_scc1(lfe)
        k.label(lfe3)
        def cold():
            k.label(lfe)
            k.s_sleep(2)
            k.buffer_load_dwordx2(v(EP, 2), v(EP+2), s(S_DBG, 4), 0, m='offen sc1')
            k.s_add_u32(s(sTRY), s(sTRY), 1)
            k.s_waitcnt('vmcnt(0)')
            k.s_cmp_lt_u32(s(sTRY), MAXTRY); k.s_cbranch_scc1(lfe2)
            k.s_or_b32(s(sERR), s(sERR), 1 << 29)
            k.s_branch(lfe3)
        self.cold.append(cold)
        k.s_or_b32(s(sE0), s(sE0), s(sXCC))

    def flag_post(self, stage, EP):
        k = self.k
        lfx = k.newlabel('Lfx')
        k.s_cmp_lg_u32(s(sW), 3); k.s_cbranch_scc1(lfx)
        k.v_mov_b32(v(EP), s(sE0)); k.v_mov_b32(v(EP+1), s(sE1))
        k.s_and_b32(s(3), s(101), 3); k.s_lshl_b32(s(3), s(3), 9); k.s_lshr_b32(s(6), s(101), 2); k.s_lshl_b32(s(6), s(6), 3)
        k.s_add_u32(s(3), s(3), s(6)); k.s_add_u32(s(3), s(3), FLG + 2048*stage)
        k.s_mov_b64('exec', 1)
        k.buffer_store_dwordx2(v(EP, 2), v(vLANE), s(S_WS, 4), s(3), m='offen sc1')
        k.s_mov_b64('exec', -1)
        k.label(lfx)

    def quad_issue(self, F, stage=0, both=False):
        k = self.k
        A = F + (4 if both else 2)
        k.v_lshlrev_b32(v(A), 3, v(vLANE))
        k.s_lshr_b32(s(6), s(sH), 2); k.s_lshl_b32(s(6), s(6), 9); k.s_add_u32(s(6), s(6), FLG + 2048*stage)
        if both:
            k.s_lshl_b32(s(7), s(sCG), 9); k.s_add_u32(s(7), s(7), FLG + 2048*stage)
        self._quad_ld(F, both)
        self.vtag('quad', 2 if both else 1)

    def _quad_ld(self, F, both):
        k = self.k
        A = F + (4 if both else 2)
        k.buffer_load_dwordx2(v(F, 2), v(A), s(S_WS, 4), s(6), m='offen sc1')
        if both: k.buffer_load_dwordx2(v(F+2, 2), v(A), s(S_WS, 4), s(7), m='offen sc1')

    def quad_wait(self, F, both=False):
        k = self.k
        lp, lr, lgo = k.newlabel('Lqp'), k.newlabel('Lqr'), k.newlabel('Lqo')
        k.s_mov_b32(s(sTRY), 0)
        self.vwait('quad')
        k.label(lp)
        k.v_xor_b32(v(F), s(sE0), v(F)); k.v_xor_b32(v(F+1), s(sE1), v(F+1))
        if both:
            k.v_xor_b32(v(F+2), s(sE0), v(F+2)); k.v_xor_b32(v(F+3), s(sE1), v(F+3))
            k.v_or_b32(v(F), v(F), v(F+2)); k.v_or_b32(v(F+1), v(F+1), v(F+3))
        k.v_and_b32(v(F), -16, v(F)); k.v_or_b32(v(F), v(F), v(F+1))
        k.v_cmp_ne_u32('vcc', 0, v(F))
        k.s_cmp_eq_u64('vcc', 0)
        k.s_cbranch_scc1(lgo)
        k.s_add_u32(s(sTRY), s(sTRY), 1)
        k.s_cmp_ge_u32(s(sTRY), MAXTRY); k.s_cselect_b32(s(sT6), 1 << 28, 0); k.s_or_b32(s(sERR), s(sERR), s(sT6))
        k.s_cmp_lg_u32(s(sT6), 0); k.s_cbranch_scc1(lgo)
        if self.ts: k.s_add_u32(s(sERR), s(sERR), 1 << 24)
        k.s_sleep(4)
        self._quad_ld(F, both)
        k.s_waitcnt('vmcnt(0)')
        k.s_branch(lp)
        k.label(lgo)

    def flag_issue(self, stage, F):
        k = self.k
        k.v_lshlrev_b32(v(F+8), 5, v(vLANE))
        k.s_mov_b32(s(3), FLG + 2048*stage)
        k.buffer_load_dwordx4(v(F, 4), v(F+8), s(S_WS, 4), s(3), m='offen sc1')
        k.buffer_load_dwordx4(v(F+4, 4), v(F+8), s(S_WS, 4), s(3), m='offen offset:16 sc1')
        self.vtag('flg', 2)

    def flag_wait(self, stage, F):
        k = self.k
        lp, lr, lgo = k.newlabel('Lfp'), k.newlabel('Lfr'), k.newlabel('Lgo')
        k.s_mov_b32(s(sTRY), 0)
        self.vwait('flg')
        k.label(lp)
        for i in range(4):
            k.v_xor_b32(v(F+2*i), s(sE0), v(F+2*i)); k.v_xor_b32(v(F+2*i+1), s(sE1), v(F+2*i+1))
        k.v_or3_b32(v(F), v(F), v(F+2), v(F+4)); k.v_or_b32(v(F), v(F), v(F+6))
        k.v_or3_b32(v(F+1), v(F+1), v(F+3), v(F+5)); k.v_or_b32(v(F+1), v(F+1), v(F+7))
        k.v_and_b32(v(F+2), -16, v(F)); k.v_or_b32(v(F+2), v(F+2), v(F+1))
        k.v_cmp_ne_u32('vcc', 0, v(F+2))
        k.s_cmp_eq_u64('vcc', 0)
        k.s_cbranch_scc0(lr)
        k.label(lgo)
        def cold():
            k.label(lr)
            k.s_add_u32(s(sTRY), s(sTRY), 1)
            k.s_cmp_ge_u32(s(sTRY), MAXTRY); k.s_cselect_b32(s(sT6), 1 << 30, 0); k.s_or_b32(s(sERR), s(sERR), s(sT6))
            k.s_cmp_lg_u32(s(sT6), 0); k.s_cbranch_scc1(lgo)
            if self.ts: k.s_add_u32(s(sERR), s(sERR), 1 << 24)
            k.s_sleep(4)
            k.s_mov_b32(s(3), FLG + 2048*stage)
            k.buffer_load_dwordx4(v(F, 4), v(F+8), s(S_WS, 4), s(3), m='offen sc1')
            k.buffer_load_dwordx4(v(F+4, 4), v(F+8), s(S_WS, 4), s(3), m='offen offset:16 sc1')
            k.s_waitcnt('vmcnt(0)')
            k.s_branch(lp)
        self.cold.append(cold)
        if stage == 0:
            k.v_cmp_eq_u32('vcc', 0, v(F))
            k.s_lshr_b64(s(sP0, 2), 'vcc', s(sR))
            k.s_and_b32(s(3), s(sP0), s(sP0+1))
            k.s_and_b32(s(3), s(3), 0x10001)
            k.s_cmp_eq_u32(s(3), 0x10001)
            k.s_cselect_b32(s(sMODE), 0 if self.force_slow else 1, 0)

    def setup2(self):
        k = self.k
        n, hf, r4, ch, c4, l2 = 60, 61, 62, 63, 59, 58
        k.s_getreg_b32(s(sXCC), 'hwreg(HW_REG_XCC_ID)')
        k.s_and_b32(s(sXCC), s(sXCC), 15)
        k.s_mov_b32(s(sSLOT), s(6))
        k.s_lshl_b32(s(sPFO), s(6), 2); k.s_add_u32(s(sPFO), s(sPFO), s(sW)); k.s_lshl_b32(s(sPFO), s(sPFO), 7)
        k.s_lshr_b32(s(3), s(sH), 2)
        k.s_lshl_b32(s(sTT), s(sR), 2)
        k.s_add_u32(s(sTT), s(sTT), s(3))
        k.s_and_b32(s(sCG), s(sH), 3)
        k.s_mov_b32(s(sERR), 0)
        k.s_mov_b32(s(sMODE), 0)
        k.s_lshl_b32(s(sXT), s(sOM), 15)
        k.s_lshl_b32(s(sT1), s(sH), 11); k.s_add_u32(s(sOT_P), s(sXT), s(sT1))
        k.s_lshl_b32(s(sXT_P), s(sTT), 15)
        k.s_lshl_b32(s(sT1), s(sW), 13); k.s_add_u32(s(sOT_C), s(sXT_P), s(sT1))
        k.s_lshl_b32(s(sT1), s(sH), 16)
        k.s_lshl_b32(s(sT2), s(sR), 12); k.s_add_u32(s(sKVP_P), s(sT1), s(sT2))
        k.s_lshl_b32(s(sT2), s(sW), 11); k.s_add_u32(s(sKVP_P), s(sKVP_P), s(sT2))
        k.s_add_u32(s(sKVP_C), s(sT1), s(sLDSW))
        k.s_lshl_b32(s(sT1), s(sH), 18)
        k.s_lshl_b32(s(sT2), s(sOM), 12); k.s_add_u32(s(sKVH_P), s(sT1), s(sT2))
        k.s_add_u32(s(sT2), s(sOM), s(sW))
        k.s_sub_u32(s(sT2), s(sT2), 8); k.s_lshl_b32(s(sT2), s(sT2), 12); k.s_add_u32(s(sKVH_C), s(sT1), s(sT2))
        k.s_mul_i32(s(sWPKH), s(sH), 84*FR); k.s_mul_i32(s(sT1), s(sW), FR); k.s_add_u32(s(sWPKH), s(sWPKH), s(sT1))
        k.s_and_b32(s(sT2), s(sR), 1); k.s_mul_i32(s(sT1), s(sW), 14336); k.s_mul_i32(s(sT3), s(sT2), 7168)
        k.s_add_u32(s(sHA), s(sT1), s(sT3)); k.s_sub_u32(s(sHB), s(sT1), s(sT3)); k.s_add_u32(s(sHB), s(sHB), 7168)
        k.s_mul_i32(s(sT1), s(sW), 7168); k.s_mul_i32(s(sT3), s(sT2), 3072); k.s_add_u32(s(sT1), s(sT1), L_WQ)
        k.s_add_u32(s(sQA), s(sT1), s(sT3)); k.s_sub_u32(s(sQB), s(sT1), s(sT3)); k.s_add_u32(s(sQB), s(sQB), 3072)
        k.s_mul_i32(s(sHEAD), s(sH), 84*FR)
        k.s_lshl_b32(s(sT1), s(sCG), 2); k.s_add_u32(s(sT1), s(sT1), s(sW)); k.s_mul_i32(s(sOPKC), s(sT1), 32*FR)
        k.v_and_b32(v(n), 31, v(vLANE))
        k.v_lshrrev_b32(v(hf), 5, v(vLANE))
        k.v_bfe_u32(v(r4), v(vLANE), 2, 2)
        k.v_bfe_u32(v(ch), v(vLANE), 4, 1)
        vX0, vBW0, vBW1, vBR = 101, 102, 103, 104
        k.v_bfe_u32(v(55), v(n), 1, 3)
        k.v_xor_b32(v(55), v(55), v(hf))
        k.v_and_b32(v(56), 7, v(n)); k.v_lshl_add_u32(v(56), v(56), 7, s(sLDSW))
        k.v_lshrrev_b32(v(57), 3, v(n)); k.v_lshl_add_u32(v(56), v(57), 12, v(56))
        k.v_lshl_add_u32(v(vBR), v(55), 4, v(56))
        for sp in range(1, 4): k.v_xor_b32(v(vBR+sp), 32*sp, v(vBR))
        for sp in range(4): k.v_add_u32(v(84+sp), 65536, v(vBR+sp))
        k.v_lshlrev_b32(v(57), 5, v(ch))
        k.v_lshl_add_u32(v(57), v(c4), 3, v(57))
        k.v_lshl_add_u32(v(56), v(hf), 3, v(r4))
        k.v_lshl_add_u32(v(vWRD0), v(56), 6, v(57))
        k.v_mul_u32_u24(v(vL14), 448, v(hf)); k.v_lshl_add_u32(v(vL14), v(n), 4, v(vL14))
        k.v_mov_b32(v(55), 0x7000000); k.v_cmp_gt_u32('vcc', 28, v(n)); k.v_cndmask_b32(v(vL14), v(55), v(vL14), 'vcc')
        k.v_add_u32(v(vWQ), L_WQ, v(vL16))
        vPK8, vPK4 = 99, 100
        k.v_add_u32(v(vPK8), s(sSTW), v(vWRD0))
        k.v_lshl_add_u32(v(56), v(hf), 2, v(r4))
        k.v_lshl_add_u32(v(vPK4), v(56), 6, v(57))
        k.v_add_u32(v(vPK4), s(sSTW), v(vPK4))
        k.v_mul_u32_u24(v(56), 264, v(hf))
        k.v_lshl_add_u32(v(56), v(r4), 6, v(56))
        k.s_and_b32(s(sT1), s(sW), 1); k.s_mul_i32(s(sT1), s(sT1), PHI_SIGN); k.s_add_u32(s(sT1), s(sT1), L_PHI)
        k.v_add3_u32(v(vPHR), v(56), v(57), s(sT1))
        k.v_lshrrev_b32(v(56), 2, v(n))
        k.s_lshl_b32(s(sT1), s(sW), 3)
        k.v_add_u32(v(56), s(sT1), v(56))
        k.v_mul_u32_u24(v(56), 264, v(56))
        k.v_lshl_add_u32(v(56), v(c4), 6, v(56))
        k.v_lshl_add_u32(v(56), v(hf), 3, v(56))
        k.v_add_u32(v(vPHW), L_PHI, v(56))
        k.s_lshl_b32(s(sT1), s(sW), 7); k.s_add_u32(s(sT1), s(sT1), L_RINV0)
        k.v_lshl_add_u32(v(vRVW), v(n), 2, s(sT1))
        k.v_lshl_add_u32(v(vRVR), v(hf), 4, s(sT1))
        k.s_lshl_b32(s(sT1), s(sW), 12); k.s_add_u32(s(sT1), s(sT1), L_KVL)
        k.v_add_u32(v(vKVL), s(sT1), v(vL16))
        k.s_lshl_b32(s(sT1), s(sW), 13); k.s_add_u32(s(sT1), s(sT1), L_KVL)
        k.v_add_u32(v(vHW), s(sT1), v(vL16))
        k.s_lshl_b32(s(sT1), s(sW), 11); k.s_add_u32(s(sT1), s(sT1), L_VOWN)
        k.v_add_u32(v(vVOW), s(sT1), v(vL16))
        for i, reg in ((0, vGW), (1, vG1), (2, vG2), (3, vG3)):
            k.s_add_u32(s(sT1), s(sW), i); k.s_and_b32(s(sT1), s(sT1), 3); k.s_lshl_b32(s(sT1), s(sT1), 13)
            k.s_sub_u32(s(sT1), L_GATH + 3*8192, s(sT1))
            k.v_add_u32(v(reg), s(sT1), v(vL16))
        k.s_mul_i32(s(sT1), s(sCG), 28); k.s_mul_i32(s(sT2), s(sW), 7); k.s_add_u32(s(sT1), s(sT1), s(sT2))
        k.v_add_u32(v(56), s(sT1), v(hf))
        k.v_lshrrev_b32(v(55), 1, v(56)); k.v_lshlrev_b32(v(55), 9, v(55))
        k.v_and_b32(v(56), 1, v(56)); k.v_lshl_add_u32(v(55), v(56), 3, v(55))
        k.v_lshl_add_u32(v(vXST), v(n), 4, v(55))
        k.s_lshr_b32(s(sT2), s(sCG), 1); k.s_lshl_b32(s(sT2), s(sT2), 9)
        k.s_and_b32(s(sT3), s(sCG), 1); k.s_lshl_b32(s(sT3), s(sT3), 3); k.s_add_u32(s(sT2), s(sT2), s(sT3))
        k.s_add_u32(s(sT2), s(sT2), 28672)
        k.v_lshl_add_u32(v(vSST), v(n), 4, s(sT2))
        k.v_and_b32(v(56), 15, v(vLANE)); k.v_mul_u32_u24(v(56), 7, v(56)); k.v_add_u32(v(56), 6, v(56))
        k.v_lshrrev_b32(v(55), 1, v(56)); k.v_lshlrev_b32(v(55), 9, v(55))
        k.v_and_b32(v(56), 1, v(56)); k.v_lshl_add_u32(v(55), v(56), 3, v(55))
        k.v_lshrrev_b32(v(56), 4, v(vLANE)); k.v_lshl_add_u32(v(55), v(56), 7, v(55))
        k.v_add_u32(v(vSLD), 112, v(55))
        k.s_lshl_b32(s(sT1), s(sTT), 5)
        k.v_add_u32(v(56), s(sT1), v(n)); k.v_mul_u32_u24(v(56), 896, v(56))
        k.s_mul_i32(s(sT1), s(sCG), 224); k.s_mul_i32(s(sT2), s(sW), 56); k.s_add_u32(s(sT1), s(sT1), s(sT2))
        k.v_lshl_add_u32(v(56), v(hf), 3, v(56))
        k.v_add_u32(v(vOUT), s(sT1), v(56))
        k.v_cmp_eq_u32('vcc', 0, v(hf))
        k.v_mov_b32(v(56), 1.0); k.v_mov_b32(v(55), f32(BIGF))
        k.v_cndmask_b32(v(vHFM), 0, v(56), 'vcc')
        k.v_mov_b32(v(56), 0)
        k.v_cndmask_b32(v(vBIG), v(55), v(56), 'vcc')
        k.v_lshlrev_b32(v(56), 2, v(hf)); k.v_sub_u32(v(vII), v(n), v(56))
        k.v_cmp_eq_u32('vcc', 28, v(n)); k.v_mov_b32(v(56), 1.0); k.v_cndmask_b32(v(vONE), 0, v(56), 'vcc')
        k.v_cmp_le_u32(s(sP0, 2), 28, v(n))

    def bg_wpk(self, typ, lo, hi, tag='bg'):
        k = self.k
        if self.opt.get('abl_w'): return
        groups = [(sHA, 0, 4), (sHA, 4096, 3), (sHB, 0, 4), (sHB, 4096, 3)] if lo == 0 else [(sQA, 0, 4), (sQB, 0, 4)]
        for gi, (sb, off, n) in enumerate(groups):
            for i in range(n):
                def f(sb=sb, off=off, i=i):
                    if i == 0 or self.m0_owner != (sb, off):
                        k.s_add_u32('m0', s(sb), off)
                        k.s_add_u32(s(sB0), s(sb), s(sHEAD))
                        k.s_add_u32(s(sB0), s(sB0), WPK[typ] + off)
                    k.buffer_load_dwordx4(v(vL14), s(S_WS, 4), s(sB0), m=f'offen offset:{1024*i} sc1 lds')
                    self.m0_owner = (sb, off); self.k.watch = True
                    self.vtag(tag)
                f.gap = self.gmiss if 2*gi < len(groups) else self.ghit
                self.bg.append(f)

    def bg_wo(self, typ, q0=0, q1=4):
        k = self.k
        if self.opt.get('abl_wo'): return
        for i in range(q0, q1):
            for f_ in range(8):
                def f(i=i, f_=f_):
                    if f_ == 0:
                        k.s_add_u32(s(sB1), s(sW), i); k.s_and_b32(s(sB1), s(sB1), 3); k.s_lshl_b32(s(sB1), s(sB1), 13)
                        k.s_add_u32(s(sB1), s(sB1), s(sOPKC)); k.s_add_u32(s(sB1), s(sB1), OPK + typ*OPT)
                    if f_ == 4: k.s_add_u32(s(sB1), s(sB1), 4096)
                    k.buffer_load_dwordx4(a(typ*128 + i*32 + f_*4, 4), v(vL14), s(S_WS, 4), s(sB1), m=f'offen offset:{(f_ & 3)*FR} sc1')
                    self.vtag('bg')
                f.wo = True; f.gap = self.ghit
                self.bg.append(f)

    def touch(self, base, share, ninstr, w0=0):
        k = self.k
        k.s_mul_i32(s(sB0), s(sSLOT), share); k.s_add_u32(s(sB0), s(sB0), base - w0*ninstr*8192)
        k.s_mul_i32(s(sB1), s(sW), ninstr*8192); k.s_add_u32(s(sB0), s(sB0), s(sB1))
        k.v_lshlrev_b32(v(59), 7, v(vLANE))
        for i in range(ninstr):
            k.buffer_load_dword(a(255), v(59), s(S_WS, 4), s(sB0), m='offen sc1')
            if i + 1 < ninstr: k.s_add_u32(s(sB0), s(sB0), 8192)

    def touch_half(self, base):
        k = self.k
        k.s_lshl_b32(s(sB0), s(sSLOT), 2); k.s_add_u32(s(sB0), s(sB0), s(sW)); k.s_lshl_b32(s(sB0), s(sB0), 12)
        k.s_add_u32(s(sB0), s(sB0), base)
        k.v_lshlrev_b32(v(59), 7, v(vLANE))
        k.s_mov_b64('exec', 0x7f7f7f7f)
        k.buffer_load_dword(a(255), v(59), s(S_WS, 4), s(sB0), m='offen sc1')
        k.s_mov_b64('exec', -1)

    def fill(self, buf):
        k = self.k
        if self.opt.get('nofill'): return
        k.s_add_u32(s(sB0), s(sOT_P), buf)
        k.s_mov_b32('exec_lo', 0x01010101); k.s_mov_b32('exec_hi', 0x01010101)
        k.buffer_load_dword(a(255), v(vL16), s(S_WS, 4), s(sB0), m='offen sc1')
        k.buffer_load_dword(a(255), v(vL16), s(S_WS, 4), s(sB0), m='offen offset:1024 sc1')
        k.s_mov_b64('exec', -1)
        self.vtag('bg', 2)

    def code_pf(self, ahead=0, n=1):
        k = self.k
        if self.opt.get('nocpf'): return
        lb = k.newlabel('Lpf')
        k.label(lb)
        for i in range(n):
            k.s_add_u32(s(6), s(sPFO), f'{lb}-Lstart+{ahead + i*16384}')
            k.s_min_u32(s(6), s(6), 'Lcode_end-Lstart-4')
            k.s_load_dword(s(sJUNK), s(S_CODE, 2), s(6))

    def cs_dma(self, typ, lds):
        k = self.k
        k.s_mul_i32(s(sB0), s(sH), 10752); k.s_mul_i32(s(3), s(sW), 3072); k.s_add_u32(s(sB0), s(sB0), s(3))
        k.s_add_u32(s(sB0), s(sB0), CSP + typ*172032)
        k.s_add_u32('m0', s(3), lds)
        for i in range(3):
            k.buffer_load_dwordx4(v(vL16), s(S_WS, 4), s(sB0), m=f'offen offset:{1024*i} sc1 lds')
        self.vtag('cs', 3)

    def cs_ops(self, typ, lds, R, A, segs=(0, 1, 2)):
        k = self.k
        ops = [lambda: k.v_lshlrev_b32(v(A), 2, v(vLANE)), lambda: k.v_add_u32(v(A), lds, v(A))]
        for seg in segs:
            g = (1, 2, 0)[seg]
            for half in range(2):
                def rd(seg=seg, half=half):
                    for i in range(7*half, 7*half+7):
                        k.ds_read_b32(v(R+i), v(A), m=f'offset:{(seg*28 + 2*i)*128}')
                    self.ltag(f'cs{seg}{half}', 7)
                ops += [rd] + [lambda: None]*5
            ops += [lambda seg=seg: self.lwait(f'cs{seg}1')]
            for i in range(1, 14): ops.append(lambda i=i: k.v_add_f32(v(R), v(R), v(R+i)))
            ops += [lambda: k.v_mov_b32(v(R+1), v(R)), lambda: k.v_permlane32_swap_b32(v(R), v(R+1)), lambda: k.v_add_f32(v(R), v(R), v(R+1)),
                    lambda: k.v_cmp_gt_u32('vcc', 448, v(vL14)), lambda: k.v_sub_f32(v(R), 0, v(R)), lambda: k.v_cndmask_b32(v(R), 0, v(R), 'vcc'), lambda: self.rbf(R+1, R),
                    lambda: k.v_sub_f32(v(R+2), v(R), v(R+1)),
                    lambda g=g: k.v_cvt_pk_bf16_f32(v(vCS + 3*typ + g), v(R+1), v(R+2))]
        return ops

    def stats_finish(self, s1, s2):
        k = self.k
        t = 58
        self.xhalf('v_add_f32', s1, t); self.xhalf('v_add_f32', s2, t)
        k.v_mul_f32(v(s1), f32(1.0/448), v(s1))
        k.v_mul_f32(v(s2), f32(1.0/448), v(s2))
        k.v_fma_f32(v(s2), '-'+v(s1), v(s1), v(s2))
        k.v_max_f32(v(s2), 0, v(s2))
        k.v_cvt_pk_bf16_f32(v(vMB), v(s1), v(s1))
        self.rbf(s2, s2)
        k.v_add_f32(v(s2), f32(1e-5), v(s2))
        self.rbf(s2, s2)
        k.v_sqrt_f32(v(s2), v(s2))
        self.rbf(s2, s2)
        k.v_rcp_f32(v(vRINV), v(s2))
        k.ds_write_b32(v(vRVW), v(vRINV))

    def mean_steps(self, typ):
        k = self.k
        xm, wk, wv = 112, 116, 120
        k.v_mov_b32(v(xm), v(vMB)); k.v_mov_b32(v(wk), v(vCS+3*typ+1)); k.v_mov_b32(v(wv), v(vCS+3*typ+2))
        for i in range(1, 4):
            k.v_mov_b32(v(xm+i), 0); k.v_mov_b32(v(wk+i), 0); k.v_mov_b32(v(wv+i), 0)
        self.mfma(vAK, v(wk, 4), v(xm, 4), v(vAK, 16))
        self.mfma(vAV, v(xm, 4), v(wv, 4), v(vAV, 16))
        for q in range(4):
            k.ds_read_b128(v(128+4*q, 4), v(vRVR), m=f'offset:{32*q}')
        self.rv = 128

    def stats_ops(self, ST):
        k = self.k
        s1, s2, t = 60, 61, 58
        ops = [
            lambda: k.v_pk_add_f32(v(s1, 2), v(ST, 2), v(ST+2, 2)),
            lambda: k.v_mov_b32(v(t), v(s1)), lambda: k.v_mov_b32(v(t+1), v(s2)),
            lambda: k.v_permlane32_swap_b32(v(s1), v(t)), lambda: k.v_permlane32_swap_b32(v(s2), v(t+1)),
            lambda: k.v_add_f32(v(s1), v(s1), v(t)), lambda: k.v_add_f32(v(s2), v(s2), v(t+1)),
            lambda: k.v_mul_f32(v(s1), f32(1.0/448), v(s1)), lambda: k.v_mul_f32(v(s2), f32(1.0/448), v(s2)),
            lambda: k.v_fma_f32(v(s2), '-'+v(s1), v(s1), v(s2)),
            lambda: k.v_max_f32(v(s2), 0, v(s2)),
            lambda: k.v_cvt_pk_bf16_f32(v(vMB), v(s1), v(s1)),
            lambda: self.rbf(s2, s2),
            lambda: k.v_add_f32(v(s2), f32(1e-5), v(s2)),
            lambda: self.rbf(s2, s2),
            lambda: k.v_sqrt_f32(v(s2), v(s2)),
            lambda: self.rbf(s2, s2),
            lambda: k.v_rcp_f32(v(vRINV), v(s2)),
        ]
        return ops

    def load_gemm_kv(self, L):
        k = self.k
        typ = L & 1
        assert not self.bg
        ST = 96
        CH = 63
        SPOS = self.opt.get('spos', 17)
        A0 = self.opt.get('a0', 4)
        AH = 10
        k.s_add_u32(s(sT1), s(sXT), XB[L-1])
        seq = []
        for st in range(28):
            if st == SPOS: seq += [('st', ST, 28672)]
            seq.append((f'x{st}', vXF+4*st, 1024*st))
        def ld(i):
            tag, reg, off = seq[i]
            self.ws_ld(reg, vL16, sT1, off); self.vtag(tag)
        D = 3
        def rd(st):
            b = vWF + (st % 4)*8
            k.ds_read_b128(v(b, 4), v(vL16), m=f'offset:{L_WK + st*1024}')
            k.ds_read_b128(v(b+4, 4), v(vL16), m=f'offset:{L_WV + st*1024}')
            self.ltag(f'w{st}', 2)
        k.v_mov_b32(v(60), 0); k.v_mov_b32(v(61), 0)
        k.s_mov_b32(s(sTRY), 0)
        k.s_waitcnt('vmcnt(4) lgkmcnt(0)')
        k.s_barrier()
        lst = k.newlabel('Lst')
        k.s_cmp_lg_u32(s(sW), 0); k.s_cbranch_scc1(lst)
        for i in range(1, 4): k.ds_read_b64(v(124+2*i, 2), v(124), m=f'offset:{512*i}')
        k.s_add_u32(s(sT2), s(sXT_P), XB[L-1])
        k.s_waitcnt('lgkmcnt(0)')
        k.v_pk_add_f32(v(120, 2), v(120, 2), v(126, 2)); k.v_pk_add_f32(v(128, 2), v(128, 2), v(130, 2))
        k.v_pk_add_f32(v(120, 2), v(120, 2), v(128, 2))
        k.v_mov_b32(v(124), v(120)); k.v_mov_b32(v(125), v(121))
        k.v_permlane32_swap_b32(v(120), v(124)); k.v_permlane32_swap_b32(v(121), v(125))
        k.v_pk_add_f32(v(120, 2), v(120, 2), v(124, 2))
        self.sanitize(120, 2)
        def st2(fl):
            k.s_mov_b32('exec_hi', 0)
            self.ws_st(120, vSST, sT2, 0, n=2, flags=fl)
            k.s_mov_b32('exec_hi', -1)
        self.local_stores(st2)
        k.label(lst)
        self.code_pf(1024)
        lg, lok = k.newlabel('Lg'), k.newlabel('Lgok')
        first = [True]
        k.label(lg)
        self.nohi(); self.vq = []
        k.s_mov_b64('exec', 0xffff)
        self.ws_ld(60, vSLD, sT1, 0, n=2)
        k.s_mov_b64('exec', -1)
        for i in range(A0): ld(i)
        k.s_add_u32(s(sTRY), s(sTRY), 1)
        k.s_cmp_ge_u32(s(sTRY), MAXTRY)
        k.s_cselect_b32(s(sT6), 1 << (4*L), 0)
        k.s_or_b32(s(sERR), s(sERR), s(sT6))
        k.s_waitcnt(f'vmcnt({A0})')
        k.v_max_u32(v(62), v(60), v(61))
        k.v_cmp_eq_u32('vcc', -1, v(62))
        k.s_cmp_eq_u64('vcc', 0)
        k.s_cselect_b32(s(sT7), 1, s(sT6))
        k.s_cmp_eq_u32(s(sT7), 0)
        k.s_cbranch_scc1(lg)
        self.stamp(f'L{L} x seen')
        self.lq = []
        for i in range(A0, AH): ld(i)
        for st in range(D): rd(st)
        nxt = AH
        self.vwait(f'x{A0-1}')
        self.check(range(vXF, vXF + 4*A0))
        k.s_cselect_b32(s(sT7), 1, s(sT6))
        k.s_cmp_eq_u32(s(sT7), 0)
        k.s_cbranch_scc1(lg)
        k.v_mov_b32(v(CH), 0)
        fill = []
        xm, wk, wv = ST, ST+4, ST+8
        for st in range(28):
            self.vwait(f'x{st}')
            self.lwait(f'w{st}')
            b = vWF + (st % 4)*8
            xr = vXF + 4*st
            x = v(xr, 4)
            self.mfma(vAK, v(b, 4), x, v(vAK, 16) if st else 0)
            if st >= A0:
                k.v_max3_u32(v(CH), v(xr), v(xr+1), v(CH)); k.v_max3_u32(v(CH), v(xr+2), v(xr+3), v(CH))
            for _ in range(2):
                if fill: fill.pop(0)()
            self.mfma(vAV, x, v(b+4, 4), v(vAV, 16) if st else 0)
            if st + D < 28: rd(st + D)
            for _ in range(2 if st < 8 else 1):
                if nxt < len(seq): ld(nxt); nxt += 1
            for _ in range(3):
                if fill: fill.pop(0)()
            if st == SPOS:
                ls1, ls2 = k.newlabel('Lsr'), k.newlabel('Lsb')
                k.v_max3_u32(v(62), v(ST), v(ST+1), v(ST+2)); k.v_max_u32(v(62), v(ST+3), v(62))
                k.v_cmp_eq_u32('vcc', -1, v(62))
                k.s_cmp_eq_u64('vcc', 0)
                k.br('s_cbranch_scc0', ls1)
                k.label(ls2)
                def cold_s():
                    k.label(ls1)
                    if self.ts: k.s_add_u32(s(sERR), s(sERR), 1 << 22)
                    k.s_add_u32(s(sT2), s(sT1), 28672)
                    k.buffer_load_dwordx4(v(ST, 4), v(vL16), s(S_WS, 4), s(sT2), m='offen sc1')
                    k.s_add_u32(s(sTRY), s(sTRY), 1)
                    k.s_cmp_ge_u32(s(sTRY), MAXTRY); k.s_cselect_b32(s(sT6), 8 << (4*L), 0); k.s_or_b32(s(sERR), s(sERR), s(sT6))
                    k.s_waitcnt('vmcnt(0)')
                    k.v_max3_u32(v(62), v(ST), v(ST+1), v(ST+2)); k.v_max_u32(v(62), v(ST+3), v(62))
                    k.v_cmp_eq_u32('vcc', -1, v(62))
                    k.s_cmp_eq_u64('vcc', 0)
                    k.s_cselect_b32(s(sT7), 1, s(sT6))
                    k.s_cmp_eq_u32(s(sT7), 0)
                    k.s_cbranch_scc1(ls1)
                    k.s_branch(ls2)
                self.cold.append(cold_s)
                fill += self.stats_ops(ST)
                def wr():
                    k.ds_write_b32(v(vRVW), v(vRINV)); self.ltag('rw')
                fill += [wr, lambda: k.v_mov_b32(v(xm), v(vMB)), lambda: k.v_mov_b32(v(wk), v(vCS+3*typ+1)), lambda: k.v_mov_b32(v(wv), v(vCS+3*typ+2))]
                for i in range(1, 4):
                    fill += [lambda i=i: k.v_mov_b32(v(xm+i), 0), lambda i=i: k.v_mov_b32(v(wk+i), 0), lambda i=i: k.v_mov_b32(v(wv+i), 0)]
            if st == 25:
                assert not fill
                self.mfma(vAK, v(wk, 4), v(xm, 4), v(vAK, 16))
                self.mfma(vAV, v(xm, 4), v(wv, 4), v(vAV, 16))
                for q in range(4):
                    k.ds_read_b128(v(ST+4*q, 4), v(vRVR), m=f'offset:{32*q}')
                self.ltag('rv', 4)
        k.v_cmp_eq_u32('vcc', -1, v(CH))
        k.s_cmp_eq_u64('vcc', 0)
        lbad = k.newlabel('Lgbad')
        k.br('s_cbranch_scc0', lbad)
        k.label(lok)
        def cold_b():
            k.label(lbad)
            k.s_nop(15)
            k.s_waitcnt('lgkmcnt(0)')
            k.v_mov_b32(v(60), 0); k.v_mov_b32(v(61), 0)
            k.s_add_u32(s(sTRY), s(sTRY), 8)
            if self.ts: k.s_add_u32(s(sERR), s(sERR), 1 << 20)
            k.s_cmp_lt_u32(s(sTRY), MAXTRY)
            k.s_cbranch_scc1(lg)
            k.s_or_b32(s(sERR), s(sERR), 8 << (4*L))
            k.s_branch(lok)
        self.cold.append(cold_b)
        self.vq = []; self.lq = []
        self.rv = ST

    def gemm_q(self, typ, raw, hooks={}, fill=None, f0=8):
        k = self.k
        D = 6
        def rd(st):
            k.ds_read_b128(v(vWF + (st % 8)*4, 4), v(vWQ), m=f'offset:{st*1024}'); self.ltag(f'w{st}')
        self.lq = []
        for st in range(D): rd(st)
        xm, wm = 120, 124
        for st in range(28):
            self.lwait(f'w{st}')
            b = vWF + (st % 8)*4
            self.mfma(vAQ, v(b, 4), v(vXF+4*st, 4), v(vAQ, 16) if st else 0)
            if st + D < 28: rd(st + D)
            if st in hooks: hooks[st]()
            if fill and st >= f0:
                for _ in range(4):
                    if fill: fill.pop(0)()
            if st == 24:
                k.v_mov_b32(v(128), v(vMB)); k.v_mov_b32(v(132), v(vCS+3*typ))
            if st in (25, 26, 27):
                i = st - 24
                k.v_mov_b32(v(128+i), 0); k.v_mov_b32(v(132+i), 0)
        assert not fill
        self.mfma(vAQ, v(132, 4), v(128, 4), v(vAQ, 16))

    def scale_pack(self, acc, mul_lo, mul_hi=None):
        k = self.k
        for i in range(8):
            mreg = mul_hi if (mul_hi is not None and i >= 6) else mul_lo
            assert mreg % 2 == 0
            k.v_pk_mul_f32(v(acc+2*i, 2), v(acc+2*i, 2), v(mreg, 2), m='op_sel_hi:[1,0]')
        for i in range(8):
            k.v_cvt_pk_bf16_f32(v(acc+i), v(acc+2*i), v(acc+2*i+1))

    def pack(self, acc):
        for i in range(8):
            self.k.v_cvt_pk_bf16_f32(v(acc+i), v(acc+2*i), v(acc+2*i+1))

    def epi_v(self):
        k = self.k
        rv = self.rv
        k.s_waitcnt('lgkmcnt(0)')
        for i in range(8):
            k.v_pk_fma_f32(v(vAV+2*i, 2), v(vAV+2*i, 2), v(rv+2*i, 2), v(vONE, 2), m='op_sel_hi:[1,1,0]')
        for i in range(8):
            k.v_cvt_pk_bf16_f32(v(vAV+i), v(vAV+2*i), v(vAV+2*i+1))

    def sanitize(self, base, n):
        for i in range(n):
            self.k.v_min_u32(v(base+i), -2, v(base+i))

    def feature_mfma(self, frag, P):
        self.mfma(P, v(vWPHI, 4), v(frag, 4), 0)
        self.mfma(P, v(vWPHI+4, 4), v(frag+4, 4), v(P, 16))

    def feature(self, P, E, every=1, n=1, late=None, wr=None):
        k = self.k
        cnt = [0]
        def tk():
            cnt[0] += 1
            if cnt[0] % every == 0: self.tick(n)
        mx, mn, t0, t1 = 58, 60, 62, 63
        c = 57
        k.v_mul_f32(v(c), f32(LOG2E), v(vRINV))
        k.v_max3_f32(v(mx), v(P), v(P+1), v(P+2)); k.v_min3_f32(v(mn), v(P), v(P+1), v(P+2))
        for i in range(3, 11, 2):
            k.v_max3_f32(v(mx), v(P+i), v(P+i+1), v(mx)); k.v_min3_f32(v(mn), v(P+i), v(P+i+1), v(mn))
        k.v_max3_f32(v(t0), v(P+12), v(P+13), v(P+14)); k.v_min3_f32(v(t1), v(P+12), v(P+13), v(P+14))
        k.v_max_f32(v(t0), v(t0), v(P+15)); k.v_min_f32(v(t1), v(t1), v(P+15))
        k.v_sub_f32(v(t0), v(t0), v(vBIG)); k.v_add_f32(v(t1), v(t1), v(vBIG))
        k.v_max3_f32(v(mx), v(P+11), v(t0), v(mx)); k.v_min3_f32(v(mn), v(P+11), v(t1), v(mn))
        tk()
        k.v_mov_b32(v(t0), v(mx)); k.v_mov_b32(v(t1), v(mn))
        k.v_permlane32_swap_b32(v(mx), v(t0)); k.v_permlane32_swap_b32(v(mn), v(t1))
        k.v_max_f32(v(mx), v(mx), v(t0)); k.v_min_f32(v(mn), v(mn), v(t1))
        k.v_mul_f32(v(mx), v(c), v(mx)); k.v_mul_f32(v(mn), v(c), v(mn))
        k.v_add_f32(v(mx+1), v(mx), v(vBIG)); k.v_sub_f32(v(mn+1), v(mn), v(vBIG))
        for i in range(0, 16, 2):
            o = 1 if i >= 12 else 0
            k.v_pk_fma_f32(v(E+i, 2), v(P+i, 2), v(56, 2), v(mn, 2), m=f'op_sel:[0,1,{o}] op_sel_hi:[1,1,{o}] neg_lo:[1,0,0] neg_hi:[1,0,0]')
            k.v_pk_fma_f32(v(P+i, 2), v(P+i, 2), v(56, 2), v(mx, 2), m=f'op_sel:[0,1,{o}] op_sel_hi:[1,1,{o}] neg_lo:[0,0,1] neg_hi:[0,0,1]')
            if i % 8 == 6: tk()
        for i in range(16):
            k.v_exp_f32(v(E+i), v(E+i)); k.v_exp_f32(v(P+i), v(P+i))
            if i % 4 == 3: tk()
        if late: late()
        for X, sm in ((P, mx), (E, mn)):
            k.v_pk_add_f32(v(sm, 2), v(X, 2), v(X+2, 2))
            for i in range(4, 16, 2): k.v_pk_add_f32(v(sm, 2), v(sm, 2), v(X+i, 2))
            k.v_add_f32(v(sm), v(sm), v(sm+1))
        tk()
        k.v_mov_b32(v(t0), v(mx)); k.v_mov_b32(v(t1), v(mn))
        k.v_permlane32_swap_b32(v(mx), v(t0)); k.v_permlane32_swap_b32(v(mn), v(t1))
        k.v_add_f32(v(mx), v(mx), v(t0)); k.v_add_f32(v(mn), v(mn), v(t1))
        k.v_rcp_f32(v(mx), v(mx)); k.v_rcp_f32(v(mn), v(mn))
        self.scale_pack(P, mx)
        if wr: wr(0, P)
        self.scale_pack(E, mn)
        if wr: wr(1, E)

    def resets(self, L, z=124, t1=sT1, t2=sT2):
        k = self.k
        if L >= 3 or self.opt.get('abl_r', 0) & 1: return
        for i in range(4): k.v_mov_b32(v(z+i), -1)
        bufs = [XB[L], OB[L+1]]
        if True:
            if L == 0: bufs.append(XB[1])
            if L == 1: bufs = bufs[1:]
        def st(fl):
            for b_ in bufs:
                k.s_add_u32(s(t1), s(sOT_P), b_)
                self.ws_st(z, vL16, t1, 0, flags=fl); self.ws_st(z, vL16, t1, 1024, flags=fl)
        self.local_stores(st)

    def bg_reset_kvh3(self):
        k = self.k
        z = 108
        def f0():
            for i in range(4): k.v_mov_b32(v(z+i), -1)
        for i in range(4):
            def f(i=i):
                k.s_add_u32(s(sB0), s(sKVH_P), KVH[3])
                k.buffer_store_dwordx4(v(z, 4), v(vL16), s(S_WS, 4), s(sB0), m=f'offen offset:{1024*i} sc1')
            self.bg.append(f)
        return f0

    def o_tail(self, L, acc, eps):
        k = self.k
        d0, d1 = 58, 60
        k.v_mov_b32(v(d0), v(acc+12)); k.v_mov_b32(v(d1), v(acc+12))
        k.s_add_u32(s(sT1), s(sOT_P), OB[L])
        k.v_permlane32_swap_b32(v(d0), v(d1))
        if eps: k.v_add_f32(v(d1), f32(1e-6), v(d1))
        k.v_rcp_f32(v(d1), v(d1))
        self.scale_pack(acc, d1)
        def st(fl):
            self.ws_st(acc, vL16, sT1, 0, flags=fl); self.ws_st(acc+4, vL16, sT1, 1024, flags=fl)
        self.local_stores(st)

    def bg_reset(self, sb, add, off, z):
        k = self.k
        def f():
            if off == 0: k.s_add_u32(s(sB2), s(sb), add)
            k.buffer_store_dwordx4(v(z, 4), v(vL16), s(S_WS, 4), s(sB2), m=f'offen offset:{off} sc1')
            self.vtag('bg')
        f.gap = 120
        return f

    def layer_A(self, L):
        k = self.k
        self.stamp(f'L{L} kv gemm')
        if L == 2:
            self.vq = []
            if not self.opt.get('qo'): self.bg_wpk(0, 14, 21, tag='wq')
            self.burst(self.opt.get('bq', 5))
            for f in self.bg: f.gap = 90
            if not self.opt.get('abl_r', 0) & 2:
                self.bg += [self.bg_reset(sKVH_P, KVH[3], 1024*i, 72) for i in range(4)]
            if not self.opt.get('f2'): self.bgon(100 if self.opt.get('qo') else 400)
        sa = self.opt.get('s0a') if L == 0 else self.opt.get('s2a')
        kf = L == 0 and self.opt.get('kf')
        if not kf:
            self.pack(vAK)
            P, E = 112, 128
            self.feature_mfma(vAK, P)
            if L == 2:
                for i in range(4): k.v_mov_b32(v(72+i), -1)
            self.epi_v()
            sa = self.opt.get('s0a') if L == 0 else self.opt.get('s2a')
            if L == 0: self.burst(self.opt.get('bf', 5))
            k.ds_write_b128(v(vVOW), v(vAV, 4)); k.ds_write_b128(v(vVOW), v(vAV+4, 4), m='offset:1024')
            def wr(sg, X):
                for q in range(4):
                    k.ds_write_b64(v(vPHW), v(X+2*q, 2), m=f'offset:{sg*PHI_SIGN + q*16}')
            self.feature(P, E, wr=wr)
            self.bgoff()
            if L == 0:
                self.vwait('wq'); self.vwait('st')
                self.burst(self.opt.get('bb2', 5))
                self.quad_issue(58, stage=1, both=True)
            if L == 2:
                self.drain()
                self.vwait('wq')
        k.s_waitcnt('lgkmcnt(0)')
        k.s_barrier()
        self.stamp(f'L{L} phi_k')
        if L == 0: self.flag_post(2, 92)
        if L == 0:
            wo_rest = self.bg; self.bg = []
            self.bg_wpk(1, 0, 14)
            wb = self.bg; self.bg = []
            while wo_rest or wb:
                self.bg += wo_rest[:2]; wo_rest = wo_rest[2:]
                if wb:
                    f = wb.pop(0); f.gap = self.ghit; self.bg.append(f)
        lq = k.newlabel('Lq')
        k.s_cmp_ge_u32(s(sW), 2); k.s_cbranch_scc1(lq)
        A0, ACC = 112, 96
        B0 = [64, 68, 72, 76, 80, 84, 88, 92]
        k.v_add_u32(v(55), L_VOWN, v(vL16))
        def rdkv(idx):
            u, j = idx >> 1, idx & 1
            for jj in range(2):
                k.ds_read_b64_tr_b16(v(A0+4*idx+2*jj, 2), v(vPHR), m=f'offset:{(u*8+4*j+2*jj)*264}')
            k.ds_read_b128(v(B0[idx], 4), v(55), m=f'offset:{u*2048+j*1024}')
        for idx in range(5): rdkv(idx)
        k.s_add_u32(s(sT1), s(sKVP_P), KVP[L])
        for idx in range(8):
            k.s_waitcnt(f'lgkmcnt({3*min(4, 7-idx)})')
            self.mfma(ACC, v(A0+4*idx, 4), v(B0[idx], 4), v(ACC, 16) if idx else 0)
            if idx + 5 < 8: rdkv(idx + 5)
        for i in range(8): k.v_cvt_pk_bf16_f32(v(64+i), v(ACC+2*i), v(ACC+2*i+1))
        self.nohi()
        self.ws_st(64, vL16, sT1, 0, flags='sc1'); self.ws_st(68, vL16, sT1, 1024, flags='sc1')
        if L == 0:
            lq2 = k.newlabel('Lq')
            k.s_waitcnt('vmcnt(2)')
            k.s_branch(lq2)
            k.label(lq)
            k.s_waitcnt('vmcnt(1)')
            k.s_cmp_eq_u32(s(sW), 3); k.s_cbranch_scc1(lq2)
            k.s_waitcnt('vmcnt(0)')
            k.label(lq2)
        else:
            k.label(lq)
        self.stamp(f'L{L} kvp pub')
        if L == 0:
            assert not any(f in self.bg for f in self.rs0)
            self.vq = []
            if True:
                k.s_lshr_b32(s(6), s(sH), 2); k.s_lshl_b32(s(6), s(6), 9); k.s_add_u32(s(6), s(6), FLG + 2048)
                self.quad_wait(58, both=True)
            k.s_mul_i32(s(sT1), s(sW), 4096 - 128); k.s_add_u32(s(sT1), s(sT1), (L_RINV - L_RINV0) & 0xffffffff)
            k.v_add_u32(v(vRVW), s(sT1), v(vRVW)); k.v_add_u32(v(vRVR), s(sT1), v(vRVR))
        pw = L == 0 and self.opt.get('pw')
        if pw:
            wo = [f for f in self.bg if getattr(f, 'wo', False)]
            rest = [f for f in self.bg if not getattr(f, 'wo', False)]
            if pw == 2:
                k.s_waitcnt('vmcnt(0)'); self.stamp('pre wo')
                for f in wo: f()
                k.s_waitcnt('vmcnt(0)'); self.stamp('wo done')
                self.bg = rest
            else:
                for f in wo: f.gap = 24
                self.bg = wo
        if not pw == 1: self.resets(L)
        if not (L == 0 and sa): self.bg_wpk(1, 0, 14)
        nb1 = self.opt.get('b1', 6)
        if sa:
            if L == 0 and self.opt.get('f0'):
                for f in self.bg: f.gap = self.opt.get('g0', 60)
            if L == 2 and self.opt.get('g2'):
                for f in self.bg: f.gap = self.opt.get('g2')
            self.burst(self.opt.get('bp', 3)); self.bgon()
        G = 144
        k.s_lshl_b32(s(sT1), s(sH), 16); k.s_lshl_b32(s(sT2), s(sOM), 6); k.s_add_u32(s(sT1), s(sT1), s(sT2))
        k.s_add_u32(s(sT1), s(sT1), KVP[L])
        k.v_lshrrev_b32(v(59), 2, v(vLANE)); k.v_lshlrev_b32(v(59), 12, v(59))
        k.v_and_b32(v(58), 3, v(vLANE)); k.v_lshl_add_u32(v(59), v(58), 4, v(59))
        h1 = lambda: self.ws_ld(G, 59, sT1, 0)
        H1 = self.opt.get('h1', 22)
        if pw == 1:
            def endwo():
                self.bgoff(); self.drain(); self.resets(L, z=84, t1=sT4); h1(); self.bg = rest
            self.gemm_q(0, raw=False, hooks={27: endwo})
        else:
          qfill = None
          if L == 0:
              qfill = self.cs_ops(0, self.L_CT, 72, 55, segs=(2,))
              for i in range(8):
                  qfill += [lambda i=i: k.v_accvgpr_read_b32(v(vXRES+2*i+1), a(128+i)), lambda i=i: k.v_lshlrev_b32(v(vXRES+2*i), 16, v(vXRES+2*i+1)),
                            lambda i=i: k.v_and_b32(v(vXRES+2*i+1), '0xffff0000', v(vXRES+2*i+1))]
              def zp():
                  k.s_mov_b32('exec_lo', 0)
                  for i in range(12, 16): k.v_mov_b32(v(vXRES+i), 0)
                  k.s_mov_b32('exec_lo', -1)
              qfill.append(zp)
          self.gemm_q(0, raw=False, fill=qfill, f0=0, hooks=({(self.opt.get('off0', 16) if L == 0 else self.opt.get('off2', 16)): self.bgoff, H1: h1} if sa else {(8 if L == 0 else 2): lambda: self.burst(nb1), H1: h1}))
        k.v_lshrrev_b32(v(60), 4, v(vLANE)); k.v_lshlrev_b32(v(60), 2, v(60)); k.v_lshl_add_u32(v(G+8), v(58), 4, v(60))
        k.v_mov_b32(v(G+10), '0x3f80'); k.v_mov_b32(v(G+11), 1.0)
        k.v_mov_b32(v(G+4), 0); k.v_mov_b32(v(G+5), 0)
        self.pack(vAQ)
        PQ, EQ = 64, 80
        self.feature_mfma(vAQ, PQ)
        self.stamp(f'L{L} q gemm')
        self.poll(h1, range(G, G+4), 2 << (4*L), first_wait=0, sleep=1)
        self.stamp(f'L{L} kvp got')
        k.v_permlane32_swap_b32(v(G), v(G+2)); k.v_permlane32_swap_b32(v(G+1), v(G+3))
        k.v_permlane16_swap_b32(v(G), v(G+1)); k.v_permlane16_swap_b32(v(G+2), v(G+3))
        for i in range(4):
            k.v_dot2_f32_bf16(v(G+4), v(G+i), v(G+10), v(G+4)); k.v_dot2_f32_bf16(v(G+5), v(G+i), v(G+11), v(G+5))
        k.s_lshl_b32(s(sT1), s(sH), 12); k.s_add_u32(s(sT1), s(sT1), KVR[L]); k.s_add_u32(s(sT2), s(sT2), s(sT1))
        for rot in (4, 8):
            for i in (4, 5):
                k.v_add_f32_dpp(v(G+i), v(G+i), v(G+i), m=f'row_ror:{rot} row_mask:0xf bank_mask:0xf')
        k.v_cvt_pk_bf16_f32(v(G+4), v(G+4), v(G+5))
        self.sanitize(G+4, 1)
        k.s_mov_b32('exec_lo', 0x000f000f); k.s_mov_b32('exec_hi', 0x000f000f)
        k.buffer_store_dword(v(G+4), v(G+8), s(S_WS, 4), s(sT2), m='offen sc1')
        k.s_mov_b64('exec', -1)
        self.stamp(f'L{L} kvr pub')
        if kf:
            for i in range(8):
                k.v_lshlrev_b32(v(vXRES+2*i), 16, v(vXRES+8+i)); k.v_and_b32(v(vXRES+2*i+1), '0xffff0000', v(vXRES+8+i))
            k.s_mov_b32('exec_lo', 0)
            for i in range(12, 16): k.v_mov_b32(v(vXRES+i), 0)
            k.s_mov_b32('exec_lo', -1)
        k.s_barrier()
        if sa:
            if L == 0 and kf and kf >= 2:
                for i in range(4): k.v_mov_b32(v(176+i), -1)
                for i in range(4): self.bg_reset(sKVH_P, KVH[1], 1024*i, 176)()
                self.bg_reset(97, KVP[2], 0, 176)()
            if L == 0: self.cs_dma(1, L_KVL)
            self.bg_wpk(1, 14, 21)
            self.burst(self.opt.get('bf2', 5) if L else self.opt.get('bf0', 3))
            if not self.opt.get('nfq'): self.bgon()
            self.feature(PQ, EQ)
            self.bgoff()
            while any(getattr(f, 'wo', False) for f in self.bg): self.bg.pop(0)()
        else:
            rest = self.bg; self.bg = []
            self.bg_wpk(1, 14, 21)
            self.bg = rest[:7-nb1] + self.bg[:4] + rest[7-nb1:] + self.bg[4:]
            if L == 0:
                self.cs_dma(1, L_KVL)
                self.touch_half(OPK + OPT)
            self.burst(11 - nb1)
            self.feature(PQ, EQ)
        if self.opt.get('cpf2'): self.code_pf(512)
        if L == 0:
            self.vq = []
            self.flag_issue(2, 160)
        self.stamp(f'L{L} phi_q')
        def issue():
            for i in range(4): self.ws_ld(128+4*i, vL16, sT1, 1024*i)
        self.poll(issue, range(128, 144), 2 << (4*L), sleep=1)
        self.stamp(f'L{L} kvr got')
        ACC = 96
        for i, B in enumerate((PQ, PQ+4, EQ, EQ+4)):
            self.mfma(ACC, v(128+4*i, 4), v(B, 4), v(ACC, 16) if i else 0)
        self.o_tail(L, ACC, True)
        if L == 0:
            self.vq = []
            self.flag_wait(2, 160)
        self.stamp(f'L{L} o pub')

    def layer_B(self, L):
        k = self.k
        self.stamp(f'L{L} kv gemm')
        s3 = L == 1 and self.opt.get('kf', 0) >= 2
        if s3:
            self.vq = []
            self.quad_issue(112, stage=3, both=True)
        self.nohi()
        k.s_add_u32(s(sT1), s(sKVH_P), KVH[L])
        self.scale_pack(vAK, vRINV)
        for i, rg in enumerate((vAK, vAK+4)): self.ws_st(rg, vL16, sT1, 1024*i, flags='sc1')
        self.epi_v()
        for i, rg in enumerate((vAV, vAV+4)): self.ws_st(rg, vL16, sT1, 2048+1024*i, flags='sc1')
        self.stamp(f'L{L} kvh pub')
        if s3:
            self.vtag('pub', 4)
            self.quad_wait(112, both=True)
        if self.opt.get('early_reset'): self.resets(L)
        for i, rg in enumerate((vAK, vAK+4, vAV, vAV+4)):
            k.ds_write_b128(v(vKVL), v(rg, 4), m=f'offset:{8*4096 + 1024*i}')
        k.s_lshl_b32(s(sT1), s(sR), 1); k.s_add_u32(s(sT1), s(sT1), s(sW))
        k.s_add_u32(s(sT2), s(sKVH_C), KVH[L])
        k.s_cmp_lt_u32(s(sT1), 4); k.s_cselect_b32(s(sT1), 0x7000000, s(sT2))
        k.s_add_u32(s(sT2), s(sT1), 4096)
        k.s_lshl_b32(s(sT3), s(sW), 13); k.s_add_u32(s(sT3), s(sT3), L_KVL)
        def hdma(f0):
            def f():
                for j, so in ((0, sT1), (1, sT2)):
                    k.s_add_u32('m0', s(sT3), j*4096)
                    for fr in (f0, f0+1):
                        k.buffer_load_dwordx4(v(vL16), s(S_WS, 4), s(so), m=f'offen offset:{fr*1024} ' + ('nt sc1 lds' if self.opt.get('hnt') else 'sc1 lds'))
            return f
        def hread(f0, R):
            for j in range(2):
                for i in range(2):
                    k.ds_read_b128(v(R + 8*j + 4*i, 4), v(vHW), m=f'offset:{j*4096 + (f0+i)*1024}')
        def hcheck(f0, R, wait):
            lp, lo, lr = k.newlabel('Lhp'), k.newlabel('Lho'), k.newlabel('Lhr')
            k.s_mov_b32(s(sTRY), 0)
            if wait is not None:
                k.s_waitcnt(f'vmcnt({wait})')
                hread(f0, R)
            k.label(lp)
            k.s_waitcnt('lgkmcnt(0)')
            self.check(range(R, R+16))
            k.s_cbranch_scc1(lo)
            if self.ts: k.s_add_u32(s(sERR), s(sERR), 1 << 16)
            k.s_add_u32(s(sTRY), s(sTRY), 1)
            k.s_cmp_ge_u32(s(sTRY), MAXTRY); k.s_cselect_b32(s(sT6), 2 << (4*L), 0); k.s_or_b32(s(sERR), s(sERR), s(sT6))
            k.s_cmp_lg_u32(s(sT6), 0); k.s_cbranch_scc1(lo)
            k.s_sleep(1)
            hdma(f0)()
            if f0 == 0: hdma(2)()
            k.s_waitcnt('vmcnt(4)' if f0 == 0 else 'vmcnt(0)')
            hread(f0, R)
            k.s_branch(lp)
            k.label(lo)
        SR = [144, 112, 128, 176, 192, 208, 224, 240]
        S0, S8 = 144, 160
        NEG = 57
        M = 88
        mx = 58
        fill = [lambda: k.v_mov_b32(v(NEG), f32(-BIGF)), lambda: k.v_mov_b32(v(60), 0xffff), lambda: k.v_mov_b32(v(61), '0xffff0000')]
        for r in range(0, 16, 2):
            fill += [lambda r=r: k.v_cmp_le_i32(s(sC0, 2), (r & 3) + 8*(r >> 2), v(vII)),
                     lambda r=r: k.v_cmp_le_i32(s(sP0, 2), ((r+1) & 3) + 8*((r+1) >> 2), v(vII)),
                     lambda r=r: k.v_mov_b32(v(mx), f32(-BIGF)) if r == 0 else (k.v_or_b32(v(M + r//2 - 1), v(62), v(63))),
                     lambda r=r: k.v_cndmask_b32(v(S8+r), v(NEG), 0, s(sC0, 2)), lambda r=r: k.v_cndmask_b32(v(S8+r+1), v(NEG), 0, s(sP0, 2)),
                     lambda r=r: k.v_cndmask_b32(v(S0+r), 0, v(NEG), s(sC0, 2)), lambda r=r: k.v_cndmask_b32(v(S0+r+1), 0, v(NEG), s(sP0, 2)),
                     lambda r=r: k.v_cndmask_b32(v(62), 0, v(60), s(sC0, 2)), lambda r=r: k.v_cndmask_b32(v(63), 0, v(61), s(sP0, 2))]
        fill += [lambda: k.v_or_b32(v(M + 7), v(62), v(63)), lambda: k.v_mov_b32(v(mx+1), f32(-BIGF)),
                 lambda: k.v_mul_f32(v(62), f32(28**-0.5 * LOG2E), v(vRINV))]
        NQ = self.opt.get('woq', 0) if L == 1 else 0
        hooks = {self.hk: hdma(0), self.hv: hdma(2)}
        if NQ:
            self.bg_wo(1, 0, NQ)
            wl = self.bg; self.bg = []
            for i, f in enumerate(wl): hooks[1 + i*(self.hk - 3)//len(wl) if len(wl) <= 8 else 1 + i] = f
        self.gemm_q(1, raw=False, hooks=hooks, fill=fill)
        assert not fill
        self.scale_pack(vAQ, 62)
        k.s_mov_b32('exec_lo', 0)
        k.v_mov_b32(v(vAQ+6), 0x3f80)
        k.s_mov_b32('exec_lo', -1)
        self.mfma(S8, v(vAK, 4), v(vAQ, 4), v(S8, 16))
        self.mfma(S8, v(vAK+4, 4), v(vAQ+4, 4), v(S8, 16))
        self.stamp(f'L{L} q')
        hcheck(0, 176, 4)
        lmk = k.newlabel('Lmk')
        k.s_cmp_lg_u32(s(sT1), 0x7000000); k.s_cbranch_scc1(lmk)
        k.v_mov_b32(v(62), 0xff61)
        k.s_mov_b32('exec_lo', 0)
        k.ds_write_b32(v(vHW), v(62), m='offset:1032'); k.ds_write_b32(v(vHW), v(62), m=f'offset:{4096+1032}')
        k.s_mov_b32('exec_lo', -1)
        k.s_waitcnt('lgkmcnt(0)')
        k.label(lmk)
        k.s_barrier()
        self.stamp(f'L{L} halo got')
        KB = 64
        def kb(t): return KB + (t % 3)*8
        def rdk(t):
            k.ds_read_b128(v(kb(t), 4), v(vKVL), m=f'offset:{t*4096}')
            k.ds_read_b128(v(kb(t)+4, 4), v(vKVL), m=f'offset:{t*4096+1024}')
            self.ltag(f'k{t}', 2)
        def rdv(t):
            k.ds_read_b128(v(kb(t), 4), v(vKVL), m=f'offset:{t*4096+2048}')
            k.ds_read_b128(v(kb(t)+4, 4), v(vKVL), m=f'offset:{t*4096+3072}')
            self.ltag(f'v{t}', 2)
        def maxtile(S):
            return [lambda i=i: k.v_max3_f32(v(mx + ((i >> 1) & 1)), v(S+i), v(S+i+1), v(mx + ((i >> 1) & 1))) for i in range(0, 16, 2)]
        def merge():
            return [lambda r=r: k.v_max_f32(v(S0+r), v(S0+r), v(S8+r)) for r in range(16)]
        self.lq = []
        for t in range(3): rdk(t)
        if not self.opt.get('early_reset'): self.resets(L, z=104, t1=sT4, t2=sT5)
        self.vq = []
        if L == 1:
            self.bg_wpk(0, 0, 14)
            if self.opt.get('s1a'):
                ne = self.opt.get('wae', 5)
                late = self.bg[ne:]; self.bg = self.bg[:ne]
                self.bg_wo(1, NQ, 4)
                self.bg += late
                if self.opt.get('qo'): self.bg_wpk(0, 14, 21)
                self.bgon()
            else:
                self.burst(7)
                late = self.bg; self.bg = []
                self.bg_wo(1, 0, 4)
                for f in self.bg: f.gap = 64
                self.bg += late
        def smfma(fast):
            for t in range(8):
                self.lwait(f'k{t}')
                self.mfma(SR[t], v(kb(t), 4), v(vAQ, 4), v(S0, 16) if t == 0 else 0)
                for _ in range(6):
                    if fast: fast.pop(0)()
                self.mfma(SR[t], v(kb(t)+4, 4), v(vAQ+4, 4), v(SR[t], 16))
                if t + 3 < 8: rdk(t + 3)
                if fast is not None:
                    for _ in range(5):
                        if fast: fast.pop(0)()
                    if t == 1: fast += merge() + maxtile(S0)
                    if t >= 2: fast += maxtile(SR[t-1])
        fast = []
        smfma(fast)
        fast += maxtile(SR[7])
        while fast: fast.pop(0)()
        k.v_max_f32(v(mx), v(mx), v(mx+1))
        self.xhalf('v_max_f32', mx, 60)
        k.v_sub_f32(v(mx), 0, v(mx))
        V8 = S8 + 8
        P8 = S8
        ACC = 96
        pend = []
        for t in range(8):
            S = SR[t]
            for i in range(8): k.v_pk_add_f32(v(S+2*i, 2), v(S+2*i, 2), v(mx, 2), m='op_sel_hi:[1,0]')
            for i in range(16):
                k.v_exp_f32(v(S+i), v(S+i))
                if i % 4 == 1 and pend: pend.pop(0)()
                if i % 4 == 3: self.tick()
            if t == 0:
                self.bgoff()
                k.s_waitcnt(f'vmcnt({len(self.vq)})')
                hread(2, 64)
            for i in range(8): k.v_cvt_pk_bf16_f32(v(S+i), v(S+2*i), v(S+2*i+1))
            if t == 0:
                for i in range(8):
                    k.v_and_b32(v(P8+i), v(S+i), v(M+i)); k.v_xor_b32(v(S+i), v(S+i), v(P8+i))
                self.bgoff()
                hcheck(2, 64, None)
                k.s_barrier()
                self.stamp(f'L{L} V ok')
                self.burst(4)
                self.bgon()
                self.lq = []
                for tt in range(3): rdv(tt)
                k.ds_read_b128(v(V8, 4), v(vKVL), m=f'offset:{8*4096+2048}')
                k.ds_read_b128(v(V8+4, 4), v(vKVL), m=f'offset:{8*4096+3072}')
                self.ltag('v8', 2)
            def m1(t=t, S=S):
                self.lwait(f'v{t}')
                self.mfma(ACC, v(kb(t), 4), v(S, 4), v(ACC, 16) if t else 0)
            def m2(t=t, S=S):
                self.mfma(ACC, v(kb(t)+4, 4), v(S+4, 4), v(ACC, 16))
                if t + 3 < 8: rdv(t + 3)
            pend += [m1, m2]
            if t == 0:
                def m3():
                    self.lwait('v8')
                    self.mfma(ACC, v(V8, 4), v(P8, 4), v(ACC, 16))
                pend += [m3, lambda: self.mfma(ACC, v(V8+4, 4), v(P8+4, 4), v(ACC, 16))]
        while pend: pend.pop(0)()
        self.bgoff()
        while any(getattr(f, 'wo', False) for f in self.bg): self.bg.pop(0)()
        self.o_tail(L, ACC, False)
        self.stamp(f'L{L} o pub')

    def outproj(self, L):
        k = self.k
        typ = L & 1
        G = 144
        assert not any(getattr(f, 'wo', False) for f in self.bg)
        if L < 3: self.code_pf(1024)
        k.s_add_u32(s(sT1), s(sOT_C), OB[L])
        k.s_add_u32(s(sT2), s(sT1), 4096)
        k.s_mov_b32(s(sTRY), 0)
        lp = k.newlabel('Lop')
        OW = self.opt.get('ow', 0)
        k.label(lp)
        for i in range(8): self.ws_ld(G+4*i, vL16, sT2 if i >= 4 else sT1, 1024*(i & 3))
        k.s_add_u32(s(sTRY), s(sTRY), 1)
        k.s_cmp_ge_u32(s(sTRY), MAXTRY)
        k.s_cselect_b32(s(sT6), 4 << (4*L), 0)
        k.s_or_b32(s(sERR), s(sERR), s(sT6))
        for i in range(8):
            if OW or i % 2 == 0: k.s_waitcnt(f'vmcnt({7-i if OW else 6-i})')
            if OW: k.ds_write_b128(v(vGW), v(G+4*i, 4), m=f'offset:{1024*i}')
            if i == 0:
                k.v_max3_u32(v(62), v(G), v(G+1), v(G+2)); k.v_max_u32(v(62), v(G+3), v(62))
            else:
                k.v_max3_u32(v(62), v(G+4*i), v(G+4*i+1), v(62)); k.v_max3_u32(v(62), v(G+4*i+2), v(G+4*i+3), v(62))
        k.v_cmp_eq_u32('vcc', -1, v(62))
        k.s_cmp_eq_u64('vcc', 0)
        k.s_cselect_b32(s(sT7), 1, s(sT6))
        k.s_cmp_eq_u32(s(sT7), 0)
        k.s_cbranch_scc1(lp)
        self.stamp(f'L{L} o got')
        NPRE = self.opt.get('npre', 3 if OW else 6)
        for i in range(8):
            if not OW: k.ds_write_b128(v(vGW), v(G+4*i, 4), m=f'offset:{1024*i}')
            if i < NPRE: self.mfma(vXRES, a(typ*128+4*i, 4), v(G+4*i, 4), v(vXRES, 16))
        k.s_waitcnt('lgkmcnt(0)')
        k.s_barrier()
        def breg(f): return (64 if f < 8 else 176 - 32) + 4*f
        def rdo(f):
            k.ds_read_b128(v(breg(f), 4), v((vG1, vG2, vG3)[f >> 3]), m=f'offset:{1024*(f & 7)}')
            self.ltag(f'o{f}')
        D = 8
        self.lq = []
        fill = self.cs_ops(1, L_KVL, 240, 55) if L == 0 else []
        for f in range(4): rdo(f)
        for i in range(NPRE, 8):
            self.mfma(vXRES, a(typ*128+4*i, 4), v(G+4*i, 4), v(vXRES, 16))
        for f in range(4, D): rdo(f)
        if L == 0 and self.opt.get('kf', 0) >= 2: self.flag_post(3, 60)
        if L == 0: self.touch_half(OPK + OPT)
        self.burst(3)
        for f in self.bg: f.gap = min(90, 700 // len(self.bg))
        self.bg_next = 0
        self.bgon()
        for f in range(24):
            self.lwait(f'o{f}')
            self.mfma(vXRES, a(typ*128+32+4*f, 4), v(breg(f), 4), v(vXRES, 16))
            if f + D < 24: rdo(f + D)
            for _ in range(5):
                if fill: fill.pop(0)()
        assert not fill
        self.bgoff()
        PK = 112
        last = L == self.nlayers - 1
        if not last:
            self.drain()
            k.s_add_u32(s(sT1), s(sXT_P), XB[L])
            k.v_mov_b32(v(122), '0x3f803f80'); k.v_mov_b32(v(120), 0); k.v_mov_b32(v(121), 0)
        for i in range(8): k.v_cvt_pk_bf16_f32(v(PK+i), v(vXRES+2*i), v(vXRES+2*i+1))
        if last:
            for q in range(3):
                k.buffer_store_dwordx2(v(PK+2*q, 2), v(vOUT), s(S_OUT, 4), 0, m=f'offen offset:{16*q}')
            k.s_mov_b32('exec_hi', 0)
            k.buffer_store_dwordx2(v(PK+6, 2), v(vOUT), s(S_OUT, 4), 0, m='offen offset:48')
            k.s_mov_b32('exec_hi', -1)
            self.stamp(f'L{L} out')
            return
        def st(fl):
            for q in range(3): self.ws_st(PK+2*q, vXST, sT1, 512*q, n=2, flags=fl)
            k.s_mov_b32('exec_hi', 0)
            self.ws_st(PK+6, vXST, sT1, 512*3, n=2, flags=fl)
            k.s_mov_b32('exec_hi', -1)
        self.local_stores(st)
        s1, s2 = 120, 121
        for i in range(8):
            k.v_dot2_f32_bf16(v(s1), v(PK+i), v(122), v(s1)); k.v_dot2_f32_bf16(v(s2), v(PK+i), v(PK+i), v(s2))
        k.s_lshl_b32(s(sT2), s(sW), 9); k.s_add_u32(s(sT2), s(sT2), L_STAT)
        k.v_lshl_add_u32(v(124), v(vLANE), 3, s(sT2))
        k.ds_write_b64(v(124), v(s1, 2))
        for i in range(8):
            k.v_lshlrev_b32(v(vXRES+2*i), 16, v(PK+i)); k.v_and_b32(v(vXRES+2*i+1), '0xffff0000', v(PK+i))
        self.stamp(f'L{L} x pub')

    def build(self):
        k = self.k
        self.prologue()
        for L in range(self.nlayers):
            if L > 0: self.load_gemm_kv(L)
            if L & 1: self.layer_B(L)
            else: self.layer_A(L)
            self.outproj(L)
        if self.ts:
            k.s_memrealtime(s(sTS, 2)); k.s_waitcnt('lgkmcnt(0)')
            k.v_writelane_b32(v(vNEGB), s(90), 59); k.v_writelane_b32(v(vNEGB), s(sTS), 60); k.v_writelane_b32(v(vNEGB), s(92), 61)
            k.v_writelane_b32(v(vNEGB), s(sERR), 63)
            k.v_writelane_b32(v(vNEGB), s(sMODE), 62)
            k.v_lshlrev_b32(v(60), 2, v(vLANE))
            k.buffer_store_dword(v(vNEGB), v(60), s(S_WS, 4), s(sTSO), m='offen')
        k.label('Lend')
        k.s_endpgm()
        self.bgoff()
        while self.cold: self.cold.pop(0)()
        k.label('Lcode_end')
        body = k.finish()
        hdr = open('cdna_kernels/' + NAME + '.s.ref').read().split('; Override launch')[0]
        return hdr + f"""; Generated by gen/gen.py (persistent kernel, 256 workgroups x 4 waves).
; @launch grid=(256,1,1) block=(256,1,1) lds={LDS_BYTES}
.amdgcn_target "amdgcn-amd-amdhsa--gfx950"
.text
.globl {NAME}_kernel
.p2align 8
.type {NAME}_kernel,@function
{NAME}_kernel:
{body}.section .rodata,"a"
.p2align 6
.amdhsa_kernel {NAME}_kernel
  .amdhsa_next_free_vgpr 512
  .amdhsa_next_free_sgpr 102
  .amdhsa_accum_offset 256
  .amdhsa_group_segment_fixed_size 0
  .amdhsa_kernarg_size 80
  .amdhsa_user_sgpr_count 2
  .amdhsa_user_sgpr_kernarg_segment_ptr 1
  .amdhsa_system_sgpr_workgroup_id_x 1
.end_amdhsa_kernel
"""

if __name__ == '__main__':
    import argparse
    ap = argparse.ArgumentParser()
    ap.add_argument('-o', default='cdna_kernels/' + NAME + '.s')
    ap.add_argument('--ts', action='store_true')
    ap.add_argument('--slow', action='store_true')
    ap.add_argument('--noalias', action='store_true')
    ap.add_argument('--tlb', action='store_true')
    ap.add_argument('--opt', action='append', default=[])
    ap.add_argument('--gmiss', type=int, default=250)
    ap.add_argument('--ghit', type=int, default=90)
    ap.add_argument('--hk', type=int, default=20)
    ap.add_argument('--hv', type=int, default=27)
    ap.add_argument('--layers', type=int, default=4)
    args = ap.parse_args()
    g = Gen(ts=args.ts, force_slow=args.slow, nlayers=args.layers, alias=not args.noalias, tlb=args.tlb, hk=args.hk, hv=args.hv, gmiss=args.gmiss, ghit=args.ghit, opt={o.split('=')[0]: (int(o.split('=')[1]) if '=' in o else 1) for o in args.opt})
    src = g.build()
    open(args.o, 'w').write(src)
    if args.ts:
        open(args.o + '.tsnames', 'w').write('\n'.join(getattr(g, 'tsnames', [])))
    print('instructions', g.k.nins, 'bytes of source', len(src))
```

```python
import sys, math, struct
from asmlib import *

NAME = "interleave_layers__linear_kernel_hedgehog__sliding_block__prompt"

def f32(x):
    return '0x%08x' % struct.unpack('<I', struct.pack('<f', x))[0]

MB = 1 << 20
XB = [0*MB, 2*MB, 4*MB]
OB = [6*MB, 8*MB, 10*MB, 12*MB]
KVP = {0: 14*MB, 2: 15*MB}
KVH = {1: 16*MB, 3: 20*MB}
TS_BASE = 24*MB
FLG = 24*MB + 768*1024
KVR = {0: 24*MB + 512*1024, 2: 24*MB + 576*1024}
FR = 1024
WPK = [25*MB, 25*MB + 16*84*FR]
OPK = 28*MB
OPT = 512*FR
CSP = 29*MB
WS_BYTES = 30*MB

SEG = 28672
L_WK, L_WV, L_WQ = 0, SEG, 2*SEG
L_KVL = 3*SEG
L_PHI = L_KVL
PHI_SIGN = 32*264
L_VOWN = L_KVL + 17408
L_KVF = L_KVL + 25600
L_CS1 = L_KVL + 29696
L_STAT = L_KVL + 32768 + 1024
L_RINV = L_KVL + 32768
L_GATH = L_KVL + 45056
L_ST = 114688
L_CS0 = L_KVL + 65536
L_RINV0 = L_KVL + 69632
LDS_BYTES = 163840
assert L_GATH + 32768 == LDS_BYTES

S_WS, S_AX, S_WA, S_WB, S_WPHI, S_WOA, S_WOB, S_OUT, S_DBG, S_CODE = 8, 12, 16, 20, 24, 28, 32, 36, 40, 44
sR, sH, sW, sTT, sCG, sMODE, sXCC, sTRY = 48, 49, 50, 51, 52, 53, 54, 55
sXT, sOT_P, sOT_C, sXT_P, sKVP_P, sKVP_C, sKVH_P, sKVH_C = 56, 57, 58, 59, 60, 61, 62, 63
sT0, sT1, sT2, sT3, sT4, sT5 = 64, 65, 66, 67, 68, 69
sM28 = 70
sTMIN = 72
sWPKH = 73
sLDSW = 74
sSTW = 75
sTS = 24
sTSO = 93
sERR = 79
sB0, sB1 = 80, 81
sC0, sC1 = 82, 83
sP0 = 84
sOPKC = 86
sOM = 87
sT6, sT7 = 88, 89
sSLOT = 94
sJUNK = 72
sPFO = 70
sB2 = 75
sHA, sHB = 46, 47
sQA, sQB, sHEAD = 76, 77, 78
sE0, sE1 = 4, 5

vLANE, vL16, vWRD0, vL14, vWQ, vNEGB, vHW, vXST, vSST, vSLD = 0, 1, 2, 3, 4, 5, 6, 7, 8, 9
vPHW, vPHR, vRVW, vRVR, vKVL, vOUT, vG1, vG2, vG3, vHFM, vBIG, vII, vVOW, vGW = 10, 11, 12, 13, 14, 15, 16, 17, 18, 19, 20, 21, 22, 23
vONE = 2
vWPHI = 24
vXRES = 32
vCS = 48
vMB, vRINV = 54, 56
vT = 54
vAK, vAV, vAQ = 64, 80, 96
vWF = 112
vXF = 144
vS = 112

BIGF = 3.0e38
LOG2E = 1.4426950408889634
MAXTRY = 200000
MFMA = 'v_mfma_f32_32x32x16_bf16'

class Gen:
    def __init__(self, ts=False, force_slow=False, nlayers=4, alias=True, tlb=False, hk=20, hv=27, gmiss=250, ghit=90, opt={}):
        self.tlb = tlb
        self.opt = dict(s0a=1, s1a=1, s2a=1, cpf2=1, woq=2, f0=1, off0=21, g0=40, et=1, h1=27, rp=1); self.opt.update(opt)
        self.gmiss, self.ghit = gmiss, ghit
        self.hk, self.hv = hk, hv
        if alias:
            XB[2] = XB[0]; OB[2] = OB[0]; OB[3] = OB[1]
        self.k = Asm()
        self.ts = ts
        self.force_slow = force_slow
        self.nlayers = nlayers
        self.nts = 0
        self.bg = []; self.bg_log = []
        self._owner = None
        self._hi = None
        self.lq = []; self.vq = []
        self.cold = []

    @property
    def m0_owner(self):
        return self._owner if self.k.watch else None
    @m0_owner.setter
    def m0_owner(self, val):
        self._owner = val

    def stamp(self, name):
        if not self.ts or self.opt.get('lite'): return
        k = self.k
        k.c(f'stamp {self.nts}: {name}')
        (k.s_memrealtime if self.opt.get('rt') else k.s_memtime)(s(sTS, 2))
        k.s_waitcnt('lgkmcnt(0)')
        k.v_writelane_b32(v(vNEGB), s(sTS), self.nts)
        self.tsnames = getattr(self, 'tsnames', []) + [name]
        self.nts += 1

    def tick(self, n=1):
        pass

    def _hook(self):
        if self.bg and self.k.est >= self.bg_next:
            f = self.bg.pop(0)
            f()
            self.bg_log.append(f)
            self.bg_next = self.k.est + getattr(f, 'gap', 90)

    def bgon(self, delay=0):
        self.k.hook = self._hook; self.k.hook_ok = True
        self.bg_next = max(getattr(self, 'bg_next', 0), self.k.est + delay)

    def bgoff(self):
        self.k.hook_ok = False

    def burst(self, n):
        for _ in range(n):
            if self.bg:
                f = self.bg.pop(0); f(); self.bg_log.append(f)
        self.bg_next = self.k.est + 200

    def drain(self):
        while self.bg: self.bg.pop(0)()

    def ltag(self, tag, n=1):
        self.lq += [tag]*n
    def lwait(self, tag=None):
        if tag is None:
            self.k.s_waitcnt('lgkmcnt(0)'); self.lq = []; return
        if tag not in self.lq: return
        idx = len(self.lq) - 1 - self.lq[::-1].index(tag)
        n = len(self.lq) - 1 - idx
        self.k.s_waitcnt(f'lgkmcnt({min(n, 15)})')
        self.lq = self.lq[idx+1:]
    def vtag(self, tag, n=1):
        self.vq += [tag]*n
    def vwait(self, tag=None):
        if tag is None:
            self.k.s_waitcnt('vmcnt(0)'); self.vq = []; return
        if tag not in self.vq: return
        idx = len(self.vq) - 1 - self.vq[::-1].index(tag)
        n = len(self.vq) - 1 - idx
        assert n <= 63
        self.k.s_waitcnt(f'vmcnt({n})')
        self.vq = self.vq[idx+1:]

    def mfma(self, d, a_, b_, c):
        self.k(MFMA, v(d, 16), a_, b_, c)

    def srd(self, d, b, n):
        k = self.k
        k.s_mov_b32(s(d), s(b)); k.s_and_b32(s(d+1), s(b+1), '0xffff')
        k.s_mov_b32(s(d+2), n); k.s_mov_b32(s(d+3), '0x20000')

    def _so(self, sbase, off):
        hi = off & ~0xfff
        if not hi: return s(sbase)
        if self._hi != (sbase, hi):
            self.k.s_add_u32(s(sT5), s(sbase), hi); self._hi = (sbase, hi)
        return s(sT5)

    def ws_ld(self, dst, voff, sbase, off, n=4, flags='sc1'):
        op = {1: 'buffer_load_dword', 2: 'buffer_load_dwordx2', 4: 'buffer_load_dwordx4'}[n]
        so = self._so(sbase, off)
        self.k(op, v(dst, n), v(voff), s(S_WS, 4), so, m=f'offen offset:{off & 0xfff} {flags}'.strip())

    def ws_st(self, src, voff, sbase, off, n=4, flags=''):
        op = {1: 'buffer_store_dword', 2: 'buffer_store_dwordx2', 4: 'buffer_store_dwordx4'}[n]
        so = self._so(sbase, off)
        self.k(op, v(src, n), v(voff), s(S_WS, 4), so, m=f'offen offset:{off & 0xfff} {flags}'.strip())

    def nohi(self):
        self._hi = None

    def local_stores(self, fn):
        k = self.k
        ls, ld = k.newlabel('Lslow'), k.newlabel('Ldone')
        k.s_cmp_eq_u32(s(sMODE), 0)
        k.s_cbranch_scc1(ls)
        self.nohi(); fn('')
        k.label(ld)
        self.nohi()
        def cold():
            k.label(ls)
            self.nohi(); fn('sc1'); self.nohi()
            k.s_branch(ld)
        self.cold.append(cold)

    def check(self, regs):
        k = self.k
        t = 62
        regs = list(regs)
        k.v_max3_u32(v(t), v(regs[0]), v(regs[1]), v(regs[2]))
        rest = regs[3:]
        while rest:
            if len(rest) >= 2:
                k.v_max3_u32(v(t), v(rest[0]), v(rest[1]), v(t)); rest = rest[2:]
            else:
                k.v_max_u32(v(t), v(rest[0]), v(t)); rest = rest[1:]
        k.v_cmp_eq_u32('vcc', -1, v(t))
        k.s_cmp_eq_u64('vcc', 0)

    def poll(self, issue, regs, code, first_wait=None, sleep=0):
        k = self.k
        lp, lo = k.newlabel('Lpoll'), k.newlabel('Lok')
        def loop():
            k.s_mov_b32(s(sTRY), 0)
            l2, l3 = k.newlabel('Lp2'), k.newlabel('Lp3')
            k.s_branch(l3) if sleep else None
            k.label(l2)
            if sleep: k.s_sleep(sleep)
            k.label(l3)
            self.nohi(); issue(); self.nohi()
            k.s_add_u32(s(sTRY), s(sTRY), 1)
            k.s_cmp_ge_u32(s(sTRY), MAXTRY)
            k.s_cselect_b32(s(sT6), code, 0)
            k.s_or_b32(s(sERR), s(sERR), s(sT6))
            k.s_waitcnt('vmcnt(0)')
            self.check(regs)
            k.s_cselect_b32(s(sT7), 1, s(sT6))
            k.s_cmp_eq_u32(s(sT7), 0)
            k.s_cbranch_scc1(l2)
        if first_wait is None:
            loop()
        else:
            k.s_mov_b32(s(sTRY), 0)
            k.s_mov_b32(s(sT6), 0)
            l2, l3 = k.newlabel('Lp2'), k.newlabel('Lp3')
            assert first_wait == 0
            k.s_branch(l3)
            k.label(l2)
            if self.ts: k.s_add_u32(s(sERR), s(sERR), 1 << 16)
            if sleep: k.s_sleep(sleep)
            self.nohi(); issue(); self.nohi()
            k.s_add_u32(s(sTRY), s(sTRY), 1)
            k.s_cmp_ge_u32(s(sTRY), MAXTRY)
            k.s_cselect_b32(s(sT6), code, 0)
            k.s_or_b32(s(sERR), s(sERR), s(sT6))
            k.label(l3)
            k.s_waitcnt('vmcnt(0)')
            self.check(regs)
            k.s_cselect_b32(s(sT7), 1, s(sT6))
            k.s_cmp_eq_u32(s(sT7), 0)
            k.s_cbranch_scc1(l2)

    def xhalf(self, op, dst, t):
        k = self.k
        k.v_mov_b32(v(t), v(dst))
        k.v_permlane32_swap_b32(v(dst), v(t))
        k(op, v(dst), v(dst), v(t))

    def rbf(self, dst, src):
        k = self.k
        k.v_cvt_pk_bf16_f32(v(dst), v(src), v(src))
        k.v_and_b32(v(dst), '0xffff0000', v(dst))

    def prologue(self):
        k = self.k
        k.label('Lstart')
        k.s_load_dwordx16(s(64, 16), s(0, 2), 0)
        k.s_load_dwordx4(s(80, 4), s(0, 2), 64)
        k.s_getpc_b64(s(4, 2))
        k.label('Lpc')
        k.s_memrealtime(s(90, 2))
        if self.ts: k.s_memtime(s(92, 2))
        k.s_cmp_ge_u32(s(2), 256)
        k.s_cbranch_scc1('Lend')
        k.s_lshr_b32(s(6), s(2), 3)
        k.s_sub_u32(s(S_CODE), s(4), 'Lpc-Lstart'); k.s_subb_u32(s(5), s(5), 0)
        k.s_and_b32(s(S_CODE+1), s(5), '0xffff')
        k.s_mov_b32(s(S_CODE+2), 'Lcode_end-Lstart'); k.s_mov_b32(s(S_CODE+3), '0x20000')
        k.v_lshrrev_b32(v(1), 6, v(0))
        k.v_and_b32(v(vLANE), 63, v(0))
        k.v_readfirstlane_b32(s(sW), v(1))
        k.s_lshl_b32(s(3), s(6), 11)
        k.v_lshlrev_b32(v(2), 5, v(vLANE))
        lcp = k.newlabel('Lcp')
        k.s_cmp_lg_u32(s(sW), 3); k.s_cbranch_scc1(lcp)
        k.buffer_load_dword(v(240), v(2), s(S_CODE, 4), s(3), m='offen')
        k.label(lcp)
        k.s_and_b32(s(sH), s(6), 15)
        k.s_and_b32(s(3), s(2), 7)
        k.s_lshr_b32(s(7), s(6), 4)
        k.s_lshl_b32(s(3), s(3), 1)
        k.s_add_u32(s(sR), s(3), s(7))
        n, hf, r4, ch, c4, l2 = 60, 61, 62, 63, 59, 58
        k.v_and_b32(v(c4), 3, v(vLANE))
        k.v_lshrrev_b32(v(l2), 2, v(vLANE))
        vODMA, vPDMA = 97, 98
        k.v_mul_u32_u24(v(vPDMA), 2688, v(l2))
        k.v_lshl_add_u32(v(vPDMA), v(c4), 4, v(vPDMA))
        k.v_mul_u32_u24(v(vODMA), 896, v(l2))
        k.v_lshl_add_u32(v(vODMA), v(c4), 4, v(vODMA))
        k.v_mul_u32_u24(v(96), 56, v(l2))
        k.v_lshl_add_u32(v(96), v(c4), 4, v(96))
        k.v_lshlrev_b32(v(vL16), 4, v(vLANE))
        k.s_lshl_b32(s(sOM), s(sR), 2); k.s_add_u32(s(sOM), s(sOM), s(sW))
        sRHO, sPH, sPD = 101, 100, 95
        k.s_lshl_b32(s(sRHO), s(sR), 4); k.s_add_u32(s(sRHO), s(sRHO), s(sH))
        k.s_and_b32(s(sPH), s(sRHO), 3); k.s_lshl_b32(s(sPH), s(sPH), 2); k.s_add_u32(s(sPH), s(sPH), s(sW))
        k.s_waitcnt('lgkmcnt(0)')
        self.srd(S_DBG, 80, 256)
        lep = k.newlabel('Lep')
        k.s_add_u32(s(3), s(2), s(sW)); k.s_cmp_lg_u32(s(3), 0); k.s_cbranch_scc1(lep)
        k.s_andn2_b32(s(3), s(90), 15); k.s_or_b32(s(4), s(91), 0x40000000)
        k.v_mov_b32(v(56), s(3)); k.v_mov_b32(v(57), s(4))
        k.s_mov_b64('exec', 1)
        k.buffer_store_dwordx2(v(56, 2), v(vLANE), s(S_DBG, 4), 0, m='offen sc1')
        k.s_mov_b64('exec', -1)
        k.label(lep)
        self.srd(S_WA, 66, 1204224); self.srd(S_WB, 74, 1204224)
        self.srd(S_WOA, 70, 401408); self.srd(S_WOB, 76, 401408)
        self.srd(S_AX, 64, 1835008); self.srd(S_WPHI, 68, 25088)
        self.srd(S_OUT, 78, 1835008); self.srd(S_WS, 82, WS_BYTES)
        k.s_lshl_b32(s(sLDSW), s(sW), 10)
        k.s_mul_i32(s(sSTW), s(sW), 7168); k.s_add_u32(s(sSTW), s(sSTW), L_ST)
        self.vq = []
        sPS = 97
        k.s_lshr_b32(s(sT1), s(sRHO), 2)
        k.s_cmp_ge_u32(s(sT1), 28); k.s_cselect_b32(s(sT2), 1, 0)
        k.s_cmp_ge_u32(s(sT1), 56); k.s_cselect_b32(s(sT2), 2, s(sT2))
        k.s_mul_i32(s(sT3), s(sT2), 28); k.s_sub_u32(s(sT3), s(sT1), s(sT3)); k.s_mul_i32(s(sT3), s(sT3), 16*2688)
        k.s_add_u32(s(sT2), s(sT2), 1); k.s_cmp_eq_u32(s(sT2), 3); k.s_cselect_b32(s(sT2), 0, s(sT2))
        k.s_mul_i32(s(sT2), s(sT2), 896); k.s_add_u32(s(sT3), s(sT3), s(sT2))
        k.s_mul_i32(s(sT0), s(sPH), 56); k.s_add_u32(s(sPS), s(sT3), s(sT0))
        k.s_add_u32('m0', s(sSTW), 0)
        k.buffer_load_dwordx4(v(vPDMA), s(S_WA, 4), s(sPS), m='offen lds')
        k.s_mul_i32(s(sT2), s(sPH), 84*FR); k.s_mul_i32(s(sT3), s(sT1), FR); k.s_add_u32(s(sPD), s(sT2), s(sT3))
        k.s_add_u32(s(sPD), s(sPD), WPK[0])
        k.s_add_u32(s(sT3), s(sT1), 8); k.s_mul_i32(s(sT3), s(sT3), 16*2688); k.s_add_u32(s(sPS+1), s(sT3), s(sT0))
        k.s_add_u32(s(sPD+1), s(sPD), 64*FR)
        k.s_sub_u32(s(sT1), s(sRHO), 80)
        k.s_lshr_b32(s(sT2), s(sT1), 3); k.s_bfe_u32(s(sT1), s(sT1), 2 | (1 << 16))
        k.s_mul_i32(s(sT3), s(sT2), 28*896); k.s_add_u32(s(sT0), s(sT0), s(sT3)); k.s_mul_i32(s(sT3), s(sT1), 16*896); k.s_add_u32(s(sT0), s(sT0), s(sT3))
        k.s_mul_i32(s(sT3), s(sPH), 32*FR); k.s_mul_i32(s(sT2), s(sT2), 2*FR); k.s_add_u32(s(sT3), s(sT3), s(sT2))
        k.s_mul_i32(s(sT1), s(sT1), FR); k.s_add_u32(s(sT3), s(sT3), s(sT1)); k.s_add_u32(s(sT3), s(sT3), OPK)
        k.s_cmp_ge_u32(s(sRHO), 208); k.s_cselect_b32(s(sT3), 0x7000000, s(sT3))
        k.s_cmp_ge_u32(s(sRHO), 80); k.s_cselect_b32(s(sPS+1), s(sT0), s(sPS+1)); k.s_cselect_b32(s(sPD+1), s(sT3), s(sPD+1))
        k.s_mul_i32(s(sC0), s(sPH), 10752); k.s_lshr_b32(s(sT1), s(sRHO), 2); k.s_lshl_b32(s(sT1), s(sT1), 7)
        k.s_add_u32(s(sC0), s(sC0), s(sT1)); k.s_add_u32(s(sC0), s(sC0), CSP)
        k.s_add_u32(s(sC1), s(sC0), 64*128)
        k.s_cmp_ge_u32(s(sRHO), 80); k.s_cselect_b32(s(sC1), 0x7000000, s(sC1))
        def pack_dma1(typ, slot):
            la, lb = k.newlabel('La'), k.newlabel('Lb')
            k.s_add_u32('m0', s(sSTW), slot*1024)
            k.s_cmp_ge_u32(s(sRHO), 80); k.s_cbranch_scc1(la)
            k.buffer_load_dwordx4(v(vPDMA), s(S_WB if typ else S_WA, 4), s(sPS+1), m='offen lds')
            k.s_branch(lb)
            k.label(la)
            k.buffer_load_dwordx4(v(vODMA), s(S_WOB if typ else S_WOA, 4), s(sPS+1), m='offen lds')
            k.label(lb)
        pack_dma1(0, 1)
        self.vtag('pack', 2)
        def packb_dma():
            k.s_add_u32('m0', s(sSTW), 2*1024)
            k.buffer_load_dwordx4(v(vPDMA), s(S_WB, 4), s(sPS), m='offen lds')
            pack_dma1(1, 3)
            self.vtag('packb', 2)
        k.s_mul_i32(s(sT1), s(sH), 1568)
        k.s_add_u32('m0', s(sSTW), 5*1024)
        k.buffer_load_dwordx4(v(96), s(S_WPHI, 4), s(sT1), m='offen lds')
        k.s_add_u32(s(sT1), s(sT1), 16*56)
        k.s_add_u32('m0', s(sSTW), 6*1024)
        k.buffer_load_dwordx4(v(96), s(S_WPHI, 4), s(sT1), m='offen lds')
        self.vtag('phi', 2)
        if self.tlb:
            k.v_lshlrev_b32(v(2), 20, v(vLANE))
            k.s_lshl_b32(s(sT1), s(2), 7)
            k.s_mov_b32('exec_hi', 0)
            k.buffer_load_dword(a(255), v(2), s(S_WS, 4), s(sT1), m='offen')
            k.buffer_load_dword(a(254), v(2), s(S_OUT, 4), s(sT1), m='offen')
            k.s_mov_b32('exec_hi', -1)
            self.vtag('tlb', 2)
        if self.ts:
            k.s_lshl_b32(s(sT1), s(2), 2); k.s_add_u32(s(sT1), s(sT1), s(sW)); k.s_lshl_b32(s(sT1), s(sT1), 8)
            k.s_add_u32(s(sTSO), s(sT1), TS_BASE)
            k.v_mov_b32(v(vNEGB), 0)
        self.stamp('pack issued')
        vX0, vBW0, vBW1, vBR = 101, 102, 103, 104
        vPK8, vPK4 = 99, 100
        k.v_lshrrev_b32(v(56), 3, v(vLANE))
        k.s_lshl_b32(s(sT1), s(sOM), 5)
        k.v_add_u32(v(55), s(sT1), v(56)); k.v_mul_u32_u24(v(vX0), 896, v(55))
        k.v_and_b32(v(55), 7, v(vLANE))
        k.v_lshrrev_b32(v(56), 4, v(vLANE)); k.v_xor_b32(v(55), v(55), v(56))
        k.v_lshl_add_u32(v(vX0), v(55), 4, v(vX0))
        k.v_xor_b32(v(vBW0), 64, v(vX0))
        sC0_ = 99
        k.s_and_b32(s(sT1), s(sR), 1); k.s_mul_i32(s(sT1), s(sT1), 3); k.s_add_u32(s(sC0_), s(sH), s(sT1))
        k.s_cmp_ge_u32(s(sC0_), 7); k.s_cselect_b32(s(sT1), 7, 0); k.s_cmp_ge_u32(s(sC0_), 14); k.s_cselect_b32(s(sT1), 14, s(sT1))
        k.s_sub_u32(s(sC0_), s(sC0_), s(sT1))
        def line(dst, i):
            k.s_add_u32(s(dst), s(sC0_), i)
            k.s_cmp_ge_u32(s(dst), 7); k.s_cselect_b32(s(sT5), 7, 0); k.s_sub_u32(s(dst), s(dst), s(sT5))
        sSL = 16
        def wprep():
            for ii in range(7):
                line(sT4, ii)
                k.s_lshl_b32(s(sT4), s(sT4), 12)
                k.s_add_u32(s(sT4), s(sT4), s(sWPKH))
                k.s_add_u32(s(sSL+ii), s(sT4), WPK[0])
        def wdma(segs, ii):
            for g in segs:
                k.s_add_u32('m0', s(sLDSW), g*SEG + ii*4096)
                so = sSL + ii
                if g:
                    k.s_add_u32(s(sT5), s(sSL+ii), g*28*FR); so = sT5
                k.buffer_load_dwordx4(v(vL14), s(S_WS, 4), s(so), m='offen sc1 lds')
                self.vtag('wq' if g == 2 else f'w{ii}')
        def xload(c):
            line(sT0, c)
            k.s_lshl_b32(s(sT0), s(sT0), 7)
            for g in range(4):
                if g: k.s_add_u32(s(sT0), s(sT0), 8*896)
                k.s_add_u32('m0', s(sLDSW), (4*c+g)*4096)
                k.buffer_load_dwordx4(v(vBW0 if g & 1 else vX0), s(S_AX, 4), s(sT0), m='offen lds')
            self.vtag(f'x{c}', 4)
        def xread(c):
            for sp in range(4):
                k.ds_read_b128(v(vXF+4*(4*c+sp), 4), v((vBR if c < 4 else 84)+sp), m=f'offset:{(c & 3)*16384}')
            self.ltag(f'b{c}', 4)
        ones = 57
        def xstat(c):
            for i in range(16):
                x = vXF + 16*c + i
                k.v_dot2_f32_bf16(v(60), v(x), v(ones), v(60))
                k.v_dot2_f32_bf16(v(61), v(x), v(x), v(61))
        def st1(reg, sb, add, off=0, tag='st', frag=False):
            so = sb
            if add:
                k.s_add_u32(s(sT2), s(sb), add); so = sT2
            k.buffer_store_dwordx4(v(reg, 4), v(vL14 if frag else vL16), s(S_WS, 4), s(so), m=f'offen offset:{off} sc1')
            self.vtag(tag)
        xload(0)
        self.setup2()
        self.stamp('setup2')
        k.v_mov_b32(v(ones), '0x3f803f80')
        for i in range(4): k.v_mov_b32(v(60+i), 0)
        vPK1a, vPK1b = 110, 111
        k.s_cmp_ge_u32(s(sRHO), 80); k.s_cselect_b64('vcc', -1, 0); k.s_cselect_b32(s(sT1), 2, 1); k.s_lshl_b32(s(sT1), s(sT1), 8)
        k.v_cndmask_b32(v(vPK1a), v(vPK8), v(vPK4), 'vcc')
        k.v_add_u32(v(vPK1b), s(sT1), v(vPK1a))
        sPADM = 7
        k.s_sub_u32(s(sT1), s(sRHO), 80); k.s_bitcmp1_b32(s(sT1), 2); k.s_cselect_b32(s(sPADM), -1, 0)
        k.s_cmp_ge_u32(s(sRHO), 80); k.s_cselect_b32(s(sPADM), s(sPADM), 0)
        def pack_out(typ, slot, P, dadd):
            for j in range(2):
                k.ds_read_b64_tr_b16(v(P+2*j, 2), v(vPK8), m=f'offset:{slot*1024 + j*256}')
            k.ds_read_b64_tr_b16(v(P+4, 2), v(vPK1a), m=f'offset:{slot*1024 + 1024}')
            k.ds_read_b64_tr_b16(v(P+6, 2), v(vPK1b), m=f'offset:{slot*1024 + 1024}')
            k.s_waitcnt('lgkmcnt(2)')
            st1(P, sPD, dadd[0], frag=True)
            k.s_waitcnt('lgkmcnt(0)')
            k.s_mov_b32('exec_lo', 0); k.s_mov_b32('exec_hi', s(sPADM))
            k.v_mov_b32(v(P+6), 0); k.v_mov_b32(v(P+7), 0)
            k.s_mov_b64('exec', -1)
            if typ:
                k.s_mov_b32(s(sT3), dadd[0]); k.s_cmp_ge_u32(s(sRHO), 80); k.s_cselect_b32(s(sT3), dadd[1], s(sT3))
                k.s_add_u32(s(sPD+1), s(sPD+1), s(sT3))
            st1(P+4, sPD+1, 0, frag=True)
            A_, B_ = 76, 78
            k.v_mov_b32(v(A_), 0); k.v_mov_b32(v(B_), 0)
            for i in range(4):
                k.v_dot2_f32_bf16(v(A_), v(P+i), v(ones), v(A_)); k.v_dot2_f32_bf16(v(B_), v(P+4+i), v(ones), v(B_))
            k.v_permlane32_swap_b32(v(A_), v(B_))
            k.v_add_f32(v(A_), v(A_), v(B_))
            k.v_and_b32(v(B_), 31, v(vLANE)); k.v_lshlrev_b32(v(B_), 2, v(B_))
            k.s_mov_b32('exec_hi', 0)
            k.buffer_store_dword(v(A_), v(B_), s(S_WS, 4), s(sC0), m='offen sc1')
            k.s_mov_b32('exec_hi', -1); k.s_mov_b32('exec_lo', 0)
            k.buffer_store_dword(v(A_), v(B_), s(S_WS, 4), s(sC1), m='offen sc1')
            k.s_mov_b32('exec_lo', -1)
            self.vtag('st', 2)
            if typ == 0:
                k.s_add_u32(s(sC0), s(sC0), 172032); k.s_add_u32(s(sC1), s(sC1), 172032)
        self.vwait('pack')
        self.stamp('pack in')
        pack_out(0, 0, 64, (0, 0))
        EP = 80
        k.v_mov_b32(v(EP+2), 0)
        k.buffer_load_dwordx2(v(EP, 2), v(EP+2), s(S_DBG, 4), 0, m='offen sc1'); self.vtag('ep')
        self.stamp('pack out')
        def fillall():
            assert XB[1] - XB[0] == 2*MB and OB[0] - XB[0] == 6*MB and OB[1] - XB[0] == 8*MB
            k.v_lshrrev_b32(v(58), 4, v(vLANE)); k.v_lshrrev_b32(v(59), 5, v(vLANE)); k.v_add_u32(v(58), v(58), v(59))
            k.v_lshlrev_b32(v(58), 21, v(58))
            k.v_and_b32(v(59), 15, v(vLANE)); k.v_lshl_add_u32(v(58), v(59), 7, v(58))
            k.buffer_load_dword(a(255), v(58), s(S_WS, 4), s(sOT_P), m='offen sc1'); self.vtag('bg')
        FP = self.opt.get('fp', -1)
        packb_dma()
        def resid():
            for q in range(4):
                k.buffer_load_dwordx2(a(128+2*q, 2), v(vOUT), s(S_AX, 4), 0, m=f'offen offset:{16*q}')
            self.vtag('res', 4)
        RP = self.opt.get('rp', 0)
        NX = self.opt.get('nx', 3)
        xload(1)
        if RP == 0: resid()
        for c in range(2, NX): xload(c)
        self.vwait('x0')
        self.lq = []
        xread(0)
        for j in range(2):
            for jj in range(2):
                k.ds_read_b64_tr_b16(v(vWPHI+4*j+2*jj, 2), v(vPK4), m=f'offset:{5120 + j*1024 + jj*512}')
        self.lwait()
        k.s_mov_b32('exec_lo', 0)
        k.v_mov_b32(v(vWPHI+6), 0); k.v_mov_b32(v(vWPHI+7), 0)
        k.s_mov_b64('exec', s(sP0, 2))
        for i in range(8): k.v_mov_b32(v(vWPHI+i), 0)
        k.s_mov_b64('exec', -1)
        xstat(0)
        wprep()
        self.vwait('ep')
        self.tag_get(EP)
        k.s_barrier()
        self.stamp('acked')
        self.flag_post(0, EP)
        if FP == 1: fillall()
        self.vwait('packb')
        pack_out(1, 2, 64, (WPK[1] - WPK[0], OPT))
        for i in range(4): k.v_mov_b32(v(108+i), -1)
        k.s_lshl_b32(s(97), s(sR), 12); k.s_add_u32(s(97), s(97), s(sKVP_C))
        k.s_lshl_b32(s(98), s(sH), 12); k.s_add_u32(s(98), s(98), s(sLDSW))
        k.s_lshl_b32(s(sT3), s(sR), 16); k.s_add_u32(s(98), s(98), s(sT3))
        k.s_mov_b32(s(sT3), 0x7000000); k.s_cmp_lt_u32(s(sR), 2); k.s_cselect_b32(s(sT3), KVR[0], s(sT3)); k.s_add_u32(s(98), s(98), s(sT3))
        st1(108, 97, KVP[0]); st1(108, 98, 0)
        for c in range(NX, 7): xload(c)
        if RP == 1: resid()
        for c in range(1, 7):
            if c == 3: self.quad_issue(72)
            self.vwait(f'x{c}')
            xread(c)
            if 2 <= c <= 4:
                self.lwait(f'b{c-1}')
                xstat(c-1)
        self.lwait()
        self.stamp('x0 done')
        self.quad_wait(72)
        self.code_pf(1024)
        self.stamp('flags')
        L_CT = L_KVL + 32768 + 4096*4 + 8192
        if self.opt.get('kf'):
            for ii in range(7): wdma((0,), ii)
            self.cs_dma(0, L_CT)
            self.flag_issue(0, 32)
            xstat(4); xstat(5)
            for ii in range(3): wdma((1,), ii)
            xstat(6)
            self.stats_finish(60, 61)
            for ii in range(3, 7): wdma((1,), ii)
            self.vtag('wv', 0)
            self.stamp('W issued')
            self.flag_wait(0, 32)
            k.s_waitcnt('lgkmcnt(0)')
            k.s_barrier()
            self.stamp('K in')
            D = 6
            self.lq = []
            def rdk(st):
                k.ds_read_b128(v(vWF + (st % 8)*4, 4), v(vL16), m=f'offset:{L_WK + st*1024}'); self.ltag(f'w{st}')
            for st in range(D): rdk(st)
            self.flag_post(1, 96)
            self.touch_half(OPK); self.vtag('bg')
            fin = self.cs_ops(0, L_CT, 32, 55)
            rs0 = [self.bg_reset(sKVH_P, KVH[1], 1024*i, 108) for i in range(4)] + [self.bg_reset(97, KVP[2], 0, 108)]
            ex = {}
            KF = self.opt['kf']
            if KF == 1:
                for ii in range(7): ex[6 + 2*ii] = lambda ii=ii: wdma((2,), ii)
                for i in range(5): ex[20 + i] = rs0[i]
            for st in range(28):
                self.lwait(f'w{st}')
                self.mfma(vAK, v(vWF + (st % 8)*4, 4), v(vXF+4*st, 4), v(vAK, 16) if st else 0)
                if st + D < 28: rdk(st + D)
                for _ in range(4):
                    if fin: fin.pop(0)()
                if st in ex: ex[st]()
            assert not fin
            xm, wm = 112, 116
            k.v_mov_b32(v(xm), v(vMB)); k.v_mov_b32(v(wm), v(vCS+1))
            for i in range(1, 4):
                k.v_mov_b32(v(xm+i), 0); k.v_mov_b32(v(wm+i), 0)
            self.mfma(vAK, v(wm, 4), v(xm, 4), v(vAK, 16))
            k.s_add_u32(s(sT1), s(sOT_P), OB[0])
            def st_(fl):
                self.ws_st(108, vL16, sT1, 0, flags=fl); self.ws_st(108, vL16, sT1, 1024, flags=fl)
            self.local_stores(st_); self.vtag('st', 2)
            for q in range(4): k.ds_read_b128(v(32+4*q, 4), v(vRVR), m=f'offset:{32*q}')
            self.rv = 32
            self.vwait('w6')
            k.s_barrier()
            self.stamp('K gemm')
            self.lq = []
            def rdv(st):
                k.ds_read_b128(v(96 + (st % 4)*4, 4), v(vL16), m=f'offset:{L_WV + st*1024}'); self.ltag(f'w{st}')
            for st in range(3): rdv(st)
            if KF >= 2:
                for ii in range(7): wdma((2,), ii)
            self.pack(vAK)
            P, E = 112, 128
            self.feature_mfma(vAK, P)
            def vstep(st):
                def f():
                    self.lwait(f'w{st}')
                    self.mfma(vAV, v(vXF+4*st, 4), v(96 + (st % 4)*4, 4), v(vAV, 16) if st else 0)
                    if st + 3 < 28: rdv(st + 3)
                f.gap = 16; f.vs = True
                return f
            self.bg_wo(0)
            wo = self.bg; self.bg = []
            for st in range(28):
                self.bg.append(vstep(st))
                if st % 3 == 2 and st >= 8 and KF == 1:
                    f = wo.pop(0); f.gap = 0; self.bg.append(f)
            self.burst(3); self.bg_next = 0
            self.bgon()
            self.feature(P, E)
            self.bgoff()
            for sg, X in ((0, P), (1, E)):
                for q in range(4):
                    k.ds_write_b64(v(vPHW), v(X+2*q, 2), m=f'offset:{sg*PHI_SIGN + q*16}'); self.ltag('ph')
            self.drain()
            xm, wm = 120, 124
            k.v_mov_b32(v(xm), v(vMB)); k.v_mov_b32(v(wm), v(vCS+2))
            for i in range(1, 4):
                k.v_mov_b32(v(xm+i), 0); k.v_mov_b32(v(wm+i), 0)
            self.mfma(vAV, v(xm, 4), v(wm, 4), v(vAV, 16))
            self.bg = wo
            self.vwait('wq'); self.vwait('st')
            self.epi_v()
            k.ds_write_b128(v(vVOW), v(vAV, 4)); k.ds_write_b128(v(vVOW), v(vAV+4, 4), m='offset:1024')
            for q in range(4):
                k.buffer_load_dwordx2(v(vXRES+8+2*q, 2), v(vOUT), s(S_AX, 4), 0, m=f'offen offset:{16*q}')
            self.burst(4)
            self.quad_issue(58, stage=1, both=True)
            self.rs0 = []
            if KF >= 2:
                self.rs_late = [self.bg_reset(sKVH_P, KVH[1], 1024*i, 92) for i in range(4)] + [self.bg_reset(97, KVP[2], 0, 92)]
            return
        for ii in range(7):
            wdma((0, 1), ii)
            if ii in (3, 5, 6): xstat({3: 4, 5: 5, 6: 6}[ii])
        self.cs_dma(0, L_CT)
        ET = self.opt.get('et', 0)
        if ET: self.touch_half(OPK); self.vtag('bg')
        self.flag_issue(0, 96)
        if RP == 2: resid()
        self.stats_finish(60, 61)
        D = 3
        def rdw(st):
            b = vWF + (st % 4)*8
            k.ds_read_b128(v(b, 4), v(vL16), m=f'offset:{L_WK + st*1024}')
            k.ds_read_b128(v(b+4, 4), v(vL16), m=f'offset:{L_WV + st*1024}')
            self.ltag(f'w{st}', 2)
        def gemm(s0, s1, extra, fill=None):
            for st in range(s0, s1):
                self.lwait(f'w{st}')
                b = vWF + (st % 4)*8
                x = v(vXF+4*st, 4)
                self.mfma(vAK, v(b, 4), x, v(vAK, 16) if st else 0)
                for _ in range(4):
                    if fill: fill.pop(0)()
                self.mfma(vAV, x, v(b+4, 4), v(vAV, 16) if st else 0)
                if st + D < s1: rdw(st + D)
                for _ in range(3):
                    if fill: fill.pop(0)()
                if extra: extra.pop(0)()
        nop = lambda: None
        self.stamp('W issued')
        self.vwait('w3')
        k.s_waitcnt('lgkmcnt(0)')
        k.s_barrier()
        self.lq = []
        for st in range(D): rdw(st)
        self.flag_post(1, 106)
        self.stamp('W half1')
        def rob():
            k.s_add_u32(s(sT1), s(sOT_P), OB[0])
            def st(fl):
                self.ws_st(108, vL16, sT1, 0, flags=fl); self.ws_st(108, vL16, sT1, 1024, flags=fl)
            self.local_stores(st); self.vtag('st', 2)
        ex = [nop]*self.opt.get('qd', 8)
        for ii in range(7): ex += [lambda ii=ii: wdma((2,), ii)]
        gemm(0, 16, ex)
        self.flag_wait(0, 96)
        k.s_barrier()
        self.stamp('W kv')
        for st in range(16, 16+D): rdw(st)
        if not ET: self.touch_half(OPK); self.vtag('bg')
        rob()
        self.rs0 = [self.bg_reset(sKVH_P, KVH[1], 1024*i, 108) for i in range(4)] + [self.bg_reset(97, KVP[2], 0, 108)]
        for f in self.rs0: f.gap = 60
        fin = self.cs_ops(0, L_CT, 32, 55, segs=(0, 1))
        self.L_CT = L_CT
        early = self.opt.get('rse', 1)
        self.bg_wo(0)
        if ET == 1:
            ex = ex + self.bg[:7] + self.rs0; self.bg = self.bg[7:]
        elif ET == 2:
            ex = ex + self.bg[:12]; self.bg = self.rs0 + self.bg[12:]
        else: ex = ex + self.rs0
        gemm(16, 28, ex, fin)
        assert not ex
        self.rs0 = []
        while fin: fin.pop(0)()
        self.mean_steps(0)

    def tag_get(self, EP):
        k = self.k
        lfe, lfe2, lfe3 = k.newlabel('Lfe'), k.newlabel('Lfe'), k.newlabel('Lfe')
        k.s_mov_b32(s(sTRY), 0)
        k.label(lfe2)
        k.v_readfirstlane_b32(s(sE0), v(EP)); k.v_readfirstlane_b32(s(sE1), v(EP+1))
        k.s_cmp_eq_u32(s(sE1), 0); k.s_cbranch_scc1(lfe)
        k.label(lfe3)
        def cold():
            k.label(lfe)
            k.s_sleep(2)
            k.buffer_load_dwordx2(v(EP, 2), v(EP+2), s(S_DBG, 4), 0, m='offen sc1')
            k.s_add_u32(s(sTRY), s(sTRY), 1)
            k.s_waitcnt('vmcnt(0)')
            k.s_cmp_lt_u32(s(sTRY), MAXTRY); k.s_cbranch_scc1(lfe2)
            k.s_or_b32(s(sERR), s(sERR), 1 << 29)
            k.s_branch(lfe3)
        self.cold.append(cold)
        k.s_or_b32(s(sE0), s(sE0), s(sXCC))

    def flag_post(self, stage, EP):
        k = self.k
        lfx = k.newlabel('Lfx')
        k.s_cmp_lg_u32(s(sW), 3); k.s_cbranch_scc1(lfx)
        k.v_mov_b32(v(EP), s(sE0)); k.v_mov_b32(v(EP+1), s(sE1))
        k.s_and_b32(s(3), s(101), 3); k.s_lshl_b32(s(3), s(3), 9); k.s_lshr_b32(s(6), s(101), 2); k.s_lshl_b32(s(6), s(6), 3)
        k.s_add_u32(s(3), s(3), s(6)); k.s_add_u32(s(3), s(3), FLG + 2048*stage)
        k.s_mov_b64('exec', 1)
        k.buffer_store_dwordx2(v(EP, 2), v(vLANE), s(S_WS, 4), s(3), m='offen sc1')
        k.s_mov_b64('exec', -1)
        k.label(lfx)

    def quad_issue(self, F, stage=0, both=False):
        k = self.k
        A = F + (4 if both else 2)
        k.v_lshlrev_b32(v(A), 3, v(vLANE))
        k.s_lshr_b32(s(6), s(sH), 2); k.s_lshl_b32(s(6), s(6), 9); k.s_add_u32(s(6), s(6), FLG + 2048*stage)
        if both:
            k.s_lshl_b32(s(7), s(sCG), 9); k.s_add_u32(s(7), s(7), FLG + 2048*stage)
        self._quad_ld(F, both)
        self.vtag('quad', 2 if both else 1)

    def _quad_ld(self, F, both):
        k = self.k
        A = F + (4 if both else 2)
        k.buffer_load_dwordx2(v(F, 2), v(A), s(S_WS, 4), s(6), m='offen sc1')
        if both: k.buffer_load_dwordx2(v(F+2, 2), v(A), s(S_WS, 4), s(7), m='offen sc1')

    def quad_wait(self, F, both=False):
        k = self.k
        lp, lr, lgo = k.newlabel('Lqp'), k.newlabel('Lqr'), k.newlabel('Lqo')
        k.s_mov_b32(s(sTRY), 0)
        self.vwait('quad')
        k.label(lp)
        k.v_xor_b32(v(F), s(sE0), v(F)); k.v_xor_b32(v(F+1), s(sE1), v(F+1))
        if both:
            k.v_xor_b32(v(F+2), s(sE0), v(F+2)); k.v_xor_b32(v(F+3), s(sE1), v(F+3))
            k.v_or_b32(v(F), v(F), v(F+2)); k.v_or_b32(v(F+1), v(F+1), v(F+3))
        k.v_and_b32(v(F), -16, v(F)); k.v_or_b32(v(F), v(F), v(F+1))
        k.v_cmp_ne_u32('vcc', 0, v(F))
        k.s_cmp_eq_u64('vcc', 0)
        k.s_cbranch_scc1(lgo)
        k.s_add_u32(s(sTRY), s(sTRY), 1)
        k.s_cmp_ge_u32(s(sTRY), MAXTRY); k.s_cselect_b32(s(sT6), 1 << 28, 0); k.s_or_b32(s(sERR), s(sERR), s(sT6))
        k.s_cmp_lg_u32(s(sT6), 0); k.s_cbranch_scc1(lgo)
        if self.ts: k.s_add_u32(s(sERR), s(sERR), 1 << 24)
        k.s_sleep(4)
        self._quad_ld(F, both)
        k.s_waitcnt('vmcnt(0)')
        k.s_branch(lp)
        k.label(lgo)

    def flag_issue(self, stage, F):
        k = self.k
        k.v_lshlrev_b32(v(F+8), 5, v(vLANE))
        k.s_mov_b32(s(3), FLG + 2048*stage)
        k.buffer_load_dwordx4(v(F, 4), v(F+8), s(S_WS, 4), s(3), m='offen sc1')
        k.buffer_load_dwordx4(v(F+4, 4), v(F+8), s(S_WS, 4), s(3), m='offen offset:16 sc1')
        self.vtag('flg', 2)

    def flag_wait(self, stage, F):
        k = self.k
        lp, lr, lgo = k.newlabel('Lfp'), k.newlabel('Lfr'), k.newlabel('Lgo')
        k.s_mov_b32(s(sTRY), 0)
        self.vwait('flg')
        k.label(lp)
        for i in range(4):
            k.v_xor_b32(v(F+2*i), s(sE0), v(F+2*i)); k.v_xor_b32(v(F+2*i+1), s(sE1), v(F+2*i+1))
        k.v_or3_b32(v(F), v(F), v(F+2), v(F+4)); k.v_or_b32(v(F), v(F), v(F+6))
        k.v_or3_b32(v(F+1), v(F+1), v(F+3), v(F+5)); k.v_or_b32(v(F+1), v(F+1), v(F+7))
        k.v_and_b32(v(F+2), -16, v(F)); k.v_or_b32(v(F+2), v(F+2), v(F+1))
        k.v_cmp_ne_u32('vcc', 0, v(F+2))
        k.s_cmp_eq_u64('vcc', 0)
        k.s_cbranch_scc0(lr)
        k.label(lgo)
        def cold():
            k.label(lr)
            k.s_add_u32(s(sTRY), s(sTRY), 1)
            k.s_cmp_ge_u32(s(sTRY), MAXTRY); k.s_cselect_b32(s(sT6), 1 << 30, 0); k.s_or_b32(s(sERR), s(sERR), s(sT6))
            k.s_cmp_lg_u32(s(sT6), 0); k.s_cbranch_scc1(lgo)
            if self.ts: k.s_add_u32(s(sERR), s(sERR), 1 << 24)
            k.s_sleep(4)
            k.s_mov_b32(s(3), FLG + 2048*stage)
            k.buffer_load_dwordx4(v(F, 4), v(F+8), s(S_WS, 4), s(3), m='offen sc1')
            k.buffer_load_dwordx4(v(F+4, 4), v(F+8), s(S_WS, 4), s(3), m='offen offset:16 sc1')
            k.s_waitcnt('vmcnt(0)')
            k.s_branch(lp)
        self.cold.append(cold)
        if stage == 0:
            k.v_cmp_eq_u32('vcc', 0, v(F))
            k.s_lshr_b64(s(sP0, 2), 'vcc', s(sR))
            k.s_and_b32(s(3), s(sP0), s(sP0+1))
            k.s_and_b32(s(3), s(3), 0x10001)
            k.s_cmp_eq_u32(s(3), 0x10001)
            k.s_cselect_b32(s(sMODE), 0 if self.force_slow else 1, 0)

    def setup2(self):
        k = self.k
        n, hf, r4, ch, c4, l2 = 60, 61, 62, 63, 59, 58
        k.s_getreg_b32(s(sXCC), 'hwreg(HW_REG_XCC_ID)')
        k.s_and_b32(s(sXCC), s(sXCC), 15)
        k.s_mov_b32(s(sSLOT), s(6))
        k.s_lshl_b32(s(sPFO), s(6), 2); k.s_add_u32(s(sPFO), s(sPFO), s(sW)); k.s_lshl_b32(s(sPFO), s(sPFO), 7)
        k.s_lshr_b32(s(3), s(sH), 2)
        k.s_lshl_b32(s(sTT), s(sR), 2)
        k.s_add_u32(s(sTT), s(sTT), s(3))
        k.s_and_b32(s(sCG), s(sH), 3)
        k.s_mov_b32(s(sERR), 0)
        k.s_mov_b32(s(sMODE), 0)
        k.s_lshl_b32(s(sXT), s(sOM), 15)
        k.s_lshl_b32(s(sT1), s(sH), 11); k.s_add_u32(s(sOT_P), s(sXT), s(sT1))
        k.s_lshl_b32(s(sXT_P), s(sTT), 15)
        k.s_lshl_b32(s(sT1), s(sW), 13); k.s_add_u32(s(sOT_C), s(sXT_P), s(sT1))
        k.s_lshl_b32(s(sT1), s(sH), 16)
        k.s_lshl_b32(s(sT2), s(sR), 12); k.s_add_u32(s(sKVP_P), s(sT1), s(sT2))
        k.s_lshl_b32(s(sT2), s(sW), 11); k.s_add_u32(s(sKVP_P), s(sKVP_P), s(sT2))
        k.s_add_u32(s(sKVP_C), s(sT1), s(sLDSW))
        k.s_lshl_b32(s(sT1), s(sH), 18)
        k.s_lshl_b32(s(sT2), s(sOM), 12); k.s_add_u32(s(sKVH_P), s(sT1), s(sT2))
        k.s_add_u32(s(sT2), s(sOM), s(sW))
        k.s_sub_u32(s(sT2), s(sT2), 8); k.s_lshl_b32(s(sT2), s(sT2), 12); k.s_add_u32(s(sKVH_C), s(sT1), s(sT2))
        k.s_mul_i32(s(sWPKH), s(sH), 84*FR); k.s_mul_i32(s(sT1), s(sW), FR); k.s_add_u32(s(sWPKH), s(sWPKH), s(sT1))
        k.s_and_b32(s(sT2), s(sR), 1); k.s_mul_i32(s(sT1), s(sW), 14336); k.s_mul_i32(s(sT3), s(sT2), 7168)
        k.s_add_u32(s(sHA), s(sT1), s(sT3)); k.s_sub_u32(s(sHB), s(sT1), s(sT3)); k.s_add_u32(s(sHB), s(sHB), 7168)
        k.s_mul_i32(s(sT1), s(sW), 7168); k.s_mul_i32(s(sT3), s(sT2), 3072); k.s_add_u32(s(sT1), s(sT1), L_WQ)
        k.s_add_u32(s(sQA), s(sT1), s(sT3)); k.s_sub_u32(s(sQB), s(sT1), s(sT3)); k.s_add_u32(s(sQB), s(sQB), 3072)
        k.s_mul_i32(s(sHEAD), s(sH), 84*FR)
        k.s_lshl_b32(s(sT1), s(sCG), 2); k.s_add_u32(s(sT1), s(sT1), s(sW)); k.s_mul_i32(s(sOPKC), s(sT1), 32*FR)
        k.v_and_b32(v(n), 31, v(vLANE))
        k.v_lshrrev_b32(v(hf), 5, v(vLANE))
        k.v_bfe_u32(v(r4), v(vLANE), 2, 2)
        k.v_bfe_u32(v(ch), v(vLANE), 4, 1)
        vX0, vBW0, vBW1, vBR = 101, 102, 103, 104
        k.v_bfe_u32(v(55), v(n), 1, 3)
        k.v_xor_b32(v(55), v(55), v(hf))
        k.v_and_b32(v(56), 7, v(n)); k.v_lshl_add_u32(v(56), v(56), 7, s(sLDSW))
        k.v_lshrrev_b32(v(57), 3, v(n)); k.v_lshl_add_u32(v(56), v(57), 12, v(56))
        k.v_lshl_add_u32(v(vBR), v(55), 4, v(56))
        for sp in range(1, 4): k.v_xor_b32(v(vBR+sp), 32*sp, v(vBR))
        for sp in range(4): k.v_add_u32(v(84+sp), 65536, v(vBR+sp))
        k.v_lshlrev_b32(v(57), 5, v(ch))
        k.v_lshl_add_u32(v(57), v(c4), 3, v(57))
        k.v_lshl_add_u32(v(56), v(hf), 3, v(r4))
        k.v_lshl_add_u32(v(vWRD0), v(56), 6, v(57))
        k.v_mul_u32_u24(v(vL14), 448, v(hf)); k.v_lshl_add_u32(v(vL14), v(n), 4, v(vL14))
        k.v_mov_b32(v(55), 0x7000000); k.v_cmp_gt_u32('vcc', 28, v(n)); k.v_cndmask_b32(v(vL14), v(55), v(vL14), 'vcc')
        k.v_add_u32(v(vWQ), L_WQ, v(vL16))
        vPK8, vPK4 = 99, 100
        k.v_add_u32(v(vPK8), s(sSTW), v(vWRD0))
        k.v_lshl_add_u32(v(56), v(hf), 2, v(r4))
        k.v_lshl_add_u32(v(vPK4), v(56), 6, v(57))
        k.v_add_u32(v(vPK4), s(sSTW), v(vPK4))
        k.v_mul_u32_u24(v(56), 264, v(hf))
        k.v_lshl_add_u32(v(56), v(r4), 6, v(56))
        k.s_and_b32(s(sT1), s(sW), 1); k.s_mul_i32(s(sT1), s(sT1), PHI_SIGN); k.s_add_u32(s(sT1), s(sT1), L_PHI)
        k.v_add3_u32(v(vPHR), v(56), v(57), s(sT1))
        k.v_lshrrev_b32(v(56), 2, v(n))
        k.s_lshl_b32(s(sT1), s(sW), 3)
        k.v_add_u32(v(56), s(sT1), v(56))
        k.v_mul_u32_u24(v(56), 264, v(56))
        k.v_lshl_add_u32(v(56), v(c4), 6, v(56))
        k.v_lshl_add_u32(v(56), v(hf), 3, v(56))
        k.v_add_u32(v(vPHW), L_PHI, v(56))
        k.s_lshl_b32(s(sT1), s(sW), 7); k.s_add_u32(s(sT1), s(sT1), L_RINV0)
        k.v_lshl_add_u32(v(vRVW), v(n), 2, s(sT1))
        k.v_lshl_add_u32(v(vRVR), v(hf), 4, s(sT1))
        k.s_lshl_b32(s(sT1), s(sW), 12); k.s_add_u32(s(sT1), s(sT1), L_KVL)
        k.v_add_u32(v(vKVL), s(sT1), v(vL16))
        k.s_lshl_b32(s(sT1), s(sW), 13); k.s_add_u32(s(sT1), s(sT1), L_KVL)
        k.v_add_u32(v(vHW), s(sT1), v(vL16))
        k.s_lshl_b32(s(sT1), s(sW), 11); k.s_add_u32(s(sT1), s(sT1), L_VOWN)
        k.v_add_u32(v(vVOW), s(sT1), v(vL16))
        for i, reg in ((0, vGW), (1, vG1), (2, vG2), (3, vG3)):
            k.s_add_u32(s(sT1), s(sW), i); k.s_and_b32(s(sT1), s(sT1), 3); k.s_lshl_b32(s(sT1), s(sT1), 13)
            k.s_sub_u32(s(sT1), L_GATH + 3*8192, s(sT1))
            k.v_add_u32(v(reg), s(sT1), v(vL16))
        k.s_mul_i32(s(sT1), s(sCG), 28); k.s_mul_i32(s(sT2), s(sW), 7); k.s_add_u32(s(sT1), s(sT1), s(sT2))
        k.v_add_u32(v(56), s(sT1), v(hf))
        k.v_lshrrev_b32(v(55), 1, v(56)); k.v_lshlrev_b32(v(55), 9, v(55))
        k.v_and_b32(v(56), 1, v(56)); k.v_lshl_add_u32(v(55), v(56), 3, v(55))
        k.v_lshl_add_u32(v(vXST), v(n), 4, v(55))
        k.s_lshr_b32(s(sT2), s(sCG), 1); k.s_lshl_b32(s(sT2), s(sT2), 9)
        k.s_and_b32(s(sT3), s(sCG), 1); k.s_lshl_b32(s(sT3), s(sT3), 3); k.s_add_u32(s(sT2), s(sT2), s(sT3))
        k.s_add_u32(s(sT2), s(sT2), 28672)
        k.v_lshl_add_u32(v(vSST), v(n), 4, s(sT2))
        k.v_and_b32(v(56), 15, v(vLANE)); k.v_mul_u32_u24(v(56), 7, v(56)); k.v_add_u32(v(56), 6, v(56))
        k.v_lshrrev_b32(v(55), 1, v(56)); k.v_lshlrev_b32(v(55), 9, v(55))
        k.v_and_b32(v(56), 1, v(56)); k.v_lshl_add_u32(v(55), v(56), 3, v(55))
        k.v_lshrrev_b32(v(56), 4, v(vLANE)); k.v_lshl_add_u32(v(55), v(56), 7, v(55))
        k.v_add_u32(v(vSLD), 112, v(55))
        k.s_lshl_b32(s(sT1), s(sTT), 5)
        k.v_add_u32(v(56), s(sT1), v(n)); k.v_mul_u32_u24(v(56), 896, v(56))
        k.s_mul_i32(s(sT1), s(sCG), 224); k.s_mul_i32(s(sT2), s(sW), 56); k.s_add_u32(s(sT1), s(sT1), s(sT2))
        k.v_lshl_add_u32(v(56), v(hf), 3, v(56))
        k.v_add_u32(v(vOUT), s(sT1), v(56))
        k.v_cmp_eq_u32('vcc', 0, v(hf))
        k.v_mov_b32(v(56), 1.0); k.v_mov_b32(v(55), f32(BIGF))
        k.v_cndmask_b32(v(vHFM), 0, v(56), 'vcc')
        k.v_mov_b32(v(56), 0)
        k.v_cndmask_b32(v(vBIG), v(55), v(56), 'vcc')
        k.v_lshlrev_b32(v(56), 2, v(hf)); k.v_sub_u32(v(vII), v(n), v(56))
        k.v_cmp_eq_u32('vcc', 28, v(n)); k.v_mov_b32(v(56), 1.0); k.v_cndmask_b32(v(vONE), 0, v(56), 'vcc')
        k.v_cmp_le_u32(s(sP0, 2), 28, v(n))

    def bg_wpk(self, typ, lo, hi, tag='bg'):
        k = self.k
        if self.opt.get('abl_w'): return
        groups = [(sHA, 0, 4), (sHA, 4096, 3), (sHB, 0, 4), (sHB, 4096, 3)] if lo == 0 else [(sQA, 0, 4), (sQB, 0, 4)]
        for gi, (sb, off, n) in enumerate(groups):
            for i in range(n):
                def f(sb=sb, off=off, i=i):
                    if i == 0 or self.m0_owner != (sb, off):
                        k.s_add_u32('m0', s(sb), off)
                        k.s_add_u32(s(sB0), s(sb), s(sHEAD))
                        k.s_add_u32(s(sB0), s(sB0), WPK[typ] + off)
                    k.buffer_load_dwordx4(v(vL14), s(S_WS, 4), s(sB0), m=f'offen offset:{1024*i} sc1 lds')
                    self.m0_owner = (sb, off); self.k.watch = True
                    self.vtag(tag)
                f.gap = self.gmiss if 2*gi < len(groups) else self.ghit
                self.bg.append(f)

    def bg_wo(self, typ, q0=0, q1=4):
        k = self.k
        if self.opt.get('abl_wo'): return
        for i in range(q0, q1):
            for f_ in range(8):
                def f(i=i, f_=f_):
                    if f_ == 0:
                        k.s_add_u32(s(sB1), s(sW), i); k.s_and_b32(s(sB1), s(sB1), 3); k.s_lshl_b32(s(sB1), s(sB1), 13)
                        k.s_add_u32(s(sB1), s(sB1), s(sOPKC)); k.s_add_u32(s(sB1), s(sB1), OPK + typ*OPT)
                    if f_ == 4: k.s_add_u32(s(sB1), s(sB1), 4096)
                    k.buffer_load_dwordx4(a(typ*128 + i*32 + f_*4, 4), v(vL14), s(S_WS, 4), s(sB1), m=f'offen offset:{(f_ & 3)*FR} sc1')
                    self.vtag('bg')
                f.wo = True; f.gap = self.ghit
                self.bg.append(f)

    def touch(self, base, share, ninstr, w0=0):
        k = self.k
        k.s_mul_i32(s(sB0), s(sSLOT), share); k.s_add_u32(s(sB0), s(sB0), base - w0*ninstr*8192)
        k.s_mul_i32(s(sB1), s(sW), ninstr*8192); k.s_add_u32(s(sB0), s(sB0), s(sB1))
        k.v_lshlrev_b32(v(59), 7, v(vLANE))
        for i in range(ninstr):
            k.buffer_load_dword(a(255), v(59), s(S_WS, 4), s(sB0), m='offen sc1')
            if i + 1 < ninstr: k.s_add_u32(s(sB0), s(sB0), 8192)

    def touch_half(self, base):
        k = self.k
        k.s_lshl_b32(s(sB0), s(sSLOT), 2); k.s_add_u32(s(sB0), s(sB0), s(sW)); k.s_lshl_b32(s(sB0), s(sB0), 12)
        k.s_add_u32(s(sB0), s(sB0), base)
        k.v_lshlrev_b32(v(59), 7, v(vLANE))
        k.s_mov_b64('exec', 0x7f7f7f7f)
        k.buffer_load_dword(a(255), v(59), s(S_WS, 4), s(sB0), m='offen sc1')
        k.s_mov_b64('exec', -1)

    def fill(self, buf):
        k = self.k
        if self.opt.get('nofill'): return
        k.s_add_u32(s(sB0), s(sOT_P), buf)
        k.s_mov_b32('exec_lo', 0x01010101); k.s_mov_b32('exec_hi', 0x01010101)
        k.buffer_load_dword(a(255), v(vL16), s(S_WS, 4), s(sB0), m='offen sc1')
        k.buffer_load_dword(a(255), v(vL16), s(S_WS, 4), s(sB0), m='offen offset:1024 sc1')
        k.s_mov_b64('exec', -1)
        self.vtag('bg', 2)

    def code_pf(self, ahead=0, n=1):
        k = self.k
        if self.opt.get('nocpf'): return
        lb = k.newlabel('Lpf')
        k.label(lb)
        for i in range(n):
            k.s_add_u32(s(6), s(sPFO), f'{lb}-Lstart+{ahead + i*16384}')
            k.s_min_u32(s(6), s(6), 'Lcode_end-Lstart-4')
            k.s_load_dword(s(sJUNK), s(S_CODE, 2), s(6))

    def cs_dma(self, typ, lds):
        k = self.k
        k.s_mul_i32(s(sB0), s(sH), 10752); k.s_mul_i32(s(3), s(sW), 3072); k.s_add_u32(s(sB0), s(sB0), s(3))
        k.s_add_u32(s(sB0), s(sB0), CSP + typ*172032)
        k.s_add_u32('m0', s(3), lds)
        for i in range(3):
            k.buffer_load_dwordx4(v(vL16), s(S_WS, 4), s(sB0), m=f'offen offset:{1024*i} sc1 lds')
        self.vtag('cs', 3)

    def cs_ops(self, typ, lds, R, A, segs=(0, 1, 2)):
        k = self.k
        ops = [lambda: k.v_lshlrev_b32(v(A), 2, v(vLANE)), lambda: k.v_add_u32(v(A), lds, v(A))]
        for seg in segs:
            g = (1, 2, 0)[seg]
            for half in range(2):
                def rd(seg=seg, half=half):
                    for i in range(7*half, 7*half+7):
                        k.ds_read_b32(v(R+i), v(A), m=f'offset:{(seg*28 + 2*i)*128}')
                    self.ltag(f'cs{seg}{half}', 7)
                ops += [rd] + [lambda: None]*5
            ops += [lambda seg=seg: self.lwait(f'cs{seg}1')]
            for i in range(1, 14): ops.append(lambda i=i: k.v_add_f32(v(R), v(R), v(R+i)))
            ops += [lambda: k.v_mov_b32(v(R+1), v(R)), lambda: k.v_permlane32_swap_b32(v(R), v(R+1)), lambda: k.v_add_f32(v(R), v(R), v(R+1)),
                    lambda: k.v_cmp_gt_u32('vcc', 448, v(vL14)), lambda: k.v_sub_f32(v(R), 0, v(R)), lambda: k.v_cndmask_b32(v(R), 0, v(R), 'vcc'), lambda: self.rbf(R+1, R),
                    lambda: k.v_sub_f32(v(R+2), v(R), v(R+1)),
                    lambda g=g: k.v_cvt_pk_bf16_f32(v(vCS + 3*typ + g), v(R+1), v(R+2))]
        return ops

    def stats_finish(self, s1, s2):
        k = self.k
        t = 58
        self.xhalf('v_add_f32', s1, t); self.xhalf('v_add_f32', s2, t)
        k.v_mul_f32(v(s1), f32(1.0/448), v(s1))
        k.v_mul_f32(v(s2), f32(1.0/448), v(s2))
        k.v_fma_f32(v(s2), '-'+v(s1), v(s1), v(s2))
        k.v_max_f32(v(s2), 0, v(s2))
        k.v_cvt_pk_bf16_f32(v(vMB), v(s1), v(s1))
        self.rbf(s2, s2)
        k.v_add_f32(v(s2), f32(1e-5), v(s2))
        self.rbf(s2, s2)
        k.v_sqrt_f32(v(s2), v(s2))
        self.rbf(s2, s2)
        k.v_rcp_f32(v(vRINV), v(s2))
        k.ds_write_b32(v(vRVW), v(vRINV))

    def mean_steps(self, typ):
        k = self.k
        xm, wk, wv = 112, 116, 120
        k.v_mov_b32(v(xm), v(vMB)); k.v_mov_b32(v(wk), v(vCS+3*typ+1)); k.v_mov_b32(v(wv), v(vCS+3*typ+2))
        for i in range(1, 4):
            k.v_mov_b32(v(xm+i), 0); k.v_mov_b32(v(wk+i), 0); k.v_mov_b32(v(wv+i), 0)
        self.mfma(vAK, v(wk, 4), v(xm, 4), v(vAK, 16))
        self.mfma(vAV, v(xm, 4), v(wv, 4), v(vAV, 16))
        for q in range(4):
            k.ds_read_b128(v(128+4*q, 4), v(vRVR), m=f'offset:{32*q}')
        self.rv = 128

    def stats_ops(self, ST):
        k = self.k
        s1, s2, t = 60, 61, 58
        ops = [
            lambda: k.v_pk_add_f32(v(s1, 2), v(ST, 2), v(ST+2, 2)),
            lambda: k.v_mov_b32(v(t), v(s1)), lambda: k.v_mov_b32(v(t+1), v(s2)),
            lambda: k.v_permlane32_swap_b32(v(s1), v(t)), lambda: k.v_permlane32_swap_b32(v(s2), v(t+1)),
            lambda: k.v_add_f32(v(s1), v(s1), v(t)), lambda: k.v_add_f32(v(s2), v(s2), v(t+1)),
            lambda: k.v_mul_f32(v(s1), f32(1.0/448), v(s1)), lambda: k.v_mul_f32(v(s2), f32(1.0/448), v(s2)),
            lambda: k.v_fma_f32(v(s2), '-'+v(s1), v(s1), v(s2)),
            lambda: k.v_max_f32(v(s2), 0, v(s2)),
            lambda: k.v_cvt_pk_bf16_f32(v(vMB), v(s1), v(s1)),
            lambda: self.rbf(s2, s2),
            lambda: k.v_add_f32(v(s2), f32(1e-5), v(s2)),
            lambda: self.rbf(s2, s2),
            lambda: k.v_sqrt_f32(v(s2), v(s2)),
            lambda: self.rbf(s2, s2),
            lambda: k.v_rcp_f32(v(vRINV), v(s2)),
        ]
        return ops

    def load_gemm_kv(self, L):
        k = self.k
        typ = L & 1
        assert not self.bg
        ST = 96
        CH = 63
        SPOS = self.opt.get('spos', 17)
        A0 = self.opt.get('a0', 4)
        AH = self.opt.get('ah', 10)
        k.s_add_u32(s(sT1), s(sXT), XB[L-1])
        seq = []
        for st in range(28):
            if st == SPOS: seq += [('st', ST, 28672)]
            seq.append((f'x{st}', vXF+4*st, 1024*st))
        def ld(i):
            tag, reg, off = seq[i]
            self.ws_ld(reg, vL16, sT1, off); self.vtag(tag)
        D = 3
        def rd(st):
            b = vWF + (st % 4)*8
            k.ds_read_b128(v(b, 4), v(vL16), m=f'offset:{L_WK + st*1024}')
            k.ds_read_b128(v(b+4, 4), v(vL16), m=f'offset:{L_WV + st*1024}')
            self.ltag(f'w{st}', 2)
        k.v_mov_b32(v(60), 0); k.v_mov_b32(v(61), 0)
        k.s_mov_b32(s(sTRY), 0)
        k.s_waitcnt('vmcnt(4) lgkmcnt(0)')
        k.s_barrier()
        lst = k.newlabel('Lst')
        k.s_cmp_lg_u32(s(sW), 0); k.s_cbranch_scc1(lst)
        for i in range(1, 4): k.ds_read_b64(v(124+2*i, 2), v(124), m=f'offset:{512*i}')
        k.s_add_u32(s(sT2), s(sXT_P), XB[L-1])
        k.s_waitcnt('lgkmcnt(0)')
        k.v_pk_add_f32(v(120, 2), v(120, 2), v(126, 2)); k.v_pk_add_f32(v(128, 2), v(128, 2), v(130, 2))
        k.v_pk_add_f32(v(120, 2), v(120, 2), v(128, 2))
        k.v_mov_b32(v(124), v(120)); k.v_mov_b32(v(125), v(121))
        k.v_permlane32_swap_b32(v(120), v(124)); k.v_permlane32_swap_b32(v(121), v(125))
        k.v_pk_add_f32(v(120, 2), v(120, 2), v(124, 2))
        self.sanitize(120, 2)
        def st2(fl):
            k.s_mov_b32('exec_hi', 0)
            self.ws_st(120, vSST, sT2, 0, n=2, flags=fl)
            k.s_mov_b32('exec_hi', -1)
        self.local_stores(st2)
        k.label(lst)
        self.code_pf(1024)
        lg, lok = k.newlabel('Lg'), k.newlabel('Lgok')
        first = [True]
        k.label(lg)
        self.nohi(); self.vq = []
        k.s_mov_b64('exec', 0xffff)
        self.ws_ld(60, vSLD, sT1, 0, n=2)
        k.s_mov_b64('exec', -1)
        for i in range(A0): ld(i)
        k.s_add_u32(s(sTRY), s(sTRY), 1)
        k.s_cmp_ge_u32(s(sTRY), MAXTRY)
        k.s_cselect_b32(s(sT6), 1 << (4*L), 0)
        k.s_or_b32(s(sERR), s(sERR), s(sT6))
        k.s_waitcnt(f'vmcnt({A0})')
        k.v_max_u32(v(62), v(60), v(61))
        k.v_cmp_eq_u32('vcc', -1, v(62))
        k.s_cmp_eq_u64('vcc', 0)
        k.s_cselect_b32(s(sT7), 1, s(sT6))
        k.s_cmp_eq_u32(s(sT7), 0)
        k.s_cbranch_scc1(lg)
        self.stamp(f'L{L} x seen')
        self.lq = []
        for i in range(A0, AH): ld(i)
        for st in range(D): rd(st)
        nxt = AH
        self.vwait(f'x{A0-1}')
        self.check(range(vXF, vXF + 4*A0))
        k.s_cselect_b32(s(sT7), 1, s(sT6))
        k.s_cmp_eq_u32(s(sT7), 0)
        k.s_cbranch_scc1(lg)
        k.v_mov_b32(v(CH), 0)
        fill = []
        xm, wk, wv = ST, ST+4, ST+8
        for st in range(28):
            self.vwait(f'x{st}')
            self.lwait(f'w{st}')
            b = vWF + (st % 4)*8
            xr = vXF + 4*st
            x = v(xr, 4)
            self.mfma(vAK, v(b, 4), x, v(vAK, 16) if st else 0)
            if st >= A0:
                k.v_max3_u32(v(CH), v(xr), v(xr+1), v(CH)); k.v_max3_u32(v(CH), v(xr+2), v(xr+3), v(CH))
            for _ in range(2):
                if fill: fill.pop(0)()
            self.mfma(vAV, x, v(b+4, 4), v(vAV, 16) if st else 0)
            if st + D < 28: rd(st + D)
            for _ in range(self.opt.get('lps', 2) if st < 8 else 1):
                if nxt < len(seq): ld(nxt); nxt += 1
            for _ in range(3):
                if fill: fill.pop(0)()
            if st == SPOS:
                ls1, ls2 = k.newlabel('Lsr'), k.newlabel('Lsb')
                k.v_max3_u32(v(62), v(ST), v(ST+1), v(ST+2)); k.v_max_u32(v(62), v(ST+3), v(62))
                k.v_cmp_eq_u32('vcc', -1, v(62))
                k.s_cmp_eq_u64('vcc', 0)
                k.br('s_cbranch_scc0', ls1)
                k.label(ls2)
                def cold_s():
                    k.label(ls1)
                    if self.ts: k.s_add_u32(s(sERR), s(sERR), 1 << 22)
                    k.s_add_u32(s(sT2), s(sT1), 28672)
                    k.buffer_load_dwordx4(v(ST, 4), v(vL16), s(S_WS, 4), s(sT2), m='offen sc1')
                    k.s_add_u32(s(sTRY), s(sTRY), 1)
                    k.s_cmp_ge_u32(s(sTRY), MAXTRY); k.s_cselect_b32(s(sT6), 8 << (4*L), 0); k.s_or_b32(s(sERR), s(sERR), s(sT6))
                    k.s_waitcnt('vmcnt(0)')
                    k.v_max3_u32(v(62), v(ST), v(ST+1), v(ST+2)); k.v_max_u32(v(62), v(ST+3), v(62))
                    k.v_cmp_eq_u32('vcc', -1, v(62))
                    k.s_cmp_eq_u64('vcc', 0)
                    k.s_cselect_b32(s(sT7), 1, s(sT6))
                    k.s_cmp_eq_u32(s(sT7), 0)
                    k.s_cbranch_scc1(ls1)
                    k.s_branch(ls2)
                self.cold.append(cold_s)
                fill += self.stats_ops(ST)
                def wr():
                    k.ds_write_b32(v(vRVW), v(vRINV)); self.ltag('rw')
                fill += [wr, lambda: k.v_mov_b32(v(xm), v(vMB)), lambda: k.v_mov_b32(v(wk), v(vCS+3*typ+1)), lambda: k.v_mov_b32(v(wv), v(vCS+3*typ+2))]
                for i in range(1, 4):
                    fill += [lambda i=i: k.v_mov_b32(v(xm+i), 0), lambda i=i: k.v_mov_b32(v(wk+i), 0), lambda i=i: k.v_mov_b32(v(wv+i), 0)]
            if st == 25:
                assert not fill
                self.mfma(vAK, v(wk, 4), v(xm, 4), v(vAK, 16))
                self.mfma(vAV, v(xm, 4), v(wv, 4), v(vAV, 16))
                for q in range(4):
                    k.ds_read_b128(v(ST+4*q, 4), v(vRVR), m=f'offset:{32*q}')
                self.ltag('rv', 4)
        k.v_cmp_eq_u32('vcc', -1, v(CH))
        k.s_cmp_eq_u64('vcc', 0)
        lbad = k.newlabel('Lgbad')
        k.br('s_cbranch_scc0', lbad)
        k.label(lok)
        def cold_b():
            k.label(lbad)
            k.s_nop(15)
            k.s_waitcnt('lgkmcnt(0)')
            k.v_mov_b32(v(60), 0); k.v_mov_b32(v(61), 0)
            k.s_add_u32(s(sTRY), s(sTRY), 8)
            if self.ts: k.s_add_u32(s(sERR), s(sERR), 1 << 20)
            k.s_cmp_lt_u32(s(sTRY), MAXTRY)
            k.s_cbranch_scc1(lg)
            k.s_or_b32(s(sERR), s(sERR), 8 << (4*L))
            k.s_branch(lok)
        self.cold.append(cold_b)
        self.vq = []; self.lq = []
        self.rv = ST

    def gemm_q(self, typ, raw, hooks={}, fill=None, f0=8):
        k = self.k
        D = 6
        def rd(st):
            k.ds_read_b128(v(vWF + (st % 8)*4, 4), v(vWQ), m=f'offset:{st*1024}'); self.ltag(f'w{st}')
        self.lq = []
        for st in range(D): rd(st)
        xm, wm = 120, 124
        for st in range(28):
            self.lwait(f'w{st}')
            b = vWF + (st % 8)*4
            self.mfma(vAQ, v(b, 4), v(vXF+4*st, 4), v(vAQ, 16) if st else 0)
            if st + D < 28: rd(st + D)
            if st in hooks: hooks[st]()
            if fill and st >= f0:
                for _ in range(4):
                    if fill: fill.pop(0)()
            if st == 24:
                k.v_mov_b32(v(128), v(vMB)); k.v_mov_b32(v(132), v(vCS+3*typ))
            if st in (25, 26, 27):
                i = st - 24
                k.v_mov_b32(v(128+i), 0); k.v_mov_b32(v(132+i), 0)
        assert not fill
        self.mfma(vAQ, v(132, 4), v(128, 4), v(vAQ, 16))

    def scale_pack(self, acc, mul_lo, mul_hi=None):
        k = self.k
        for i in range(8):
            mreg = mul_hi if (mul_hi is not None and i >= 6) else mul_lo
            assert mreg % 2 == 0
            k.v_pk_mul_f32(v(acc+2*i, 2), v(acc+2*i, 2), v(mreg, 2), m='op_sel_hi:[1,0]')
        for i in range(8):
            k.v_cvt_pk_bf16_f32(v(acc+i), v(acc+2*i), v(acc+2*i+1))

    def pack(self, acc):
        for i in range(8):
            self.k.v_cvt_pk_bf16_f32(v(acc+i), v(acc+2*i), v(acc+2*i+1))

    def epi_v(self):
        k = self.k
        rv = self.rv
        k.s_waitcnt('lgkmcnt(0)')
        for i in range(8):
            k.v_pk_fma_f32(v(vAV+2*i, 2), v(vAV+2*i, 2), v(rv+2*i, 2), v(vONE, 2), m='op_sel_hi:[1,1,0]')
        for i in range(8):
            k.v_cvt_pk_bf16_f32(v(vAV+i), v(vAV+2*i), v(vAV+2*i+1))

    def sanitize(self, base, n):
        for i in range(n):
            self.k.v_min_u32(v(base+i), -2, v(base+i))

    def feature_mfma(self, frag, P):
        self.mfma(P, v(vWPHI, 4), v(frag, 4), 0)
        self.mfma(P, v(vWPHI+4, 4), v(frag+4, 4), v(P, 16))

    def feature(self, P, E, every=1, n=1, late=None, wr=None):
        k = self.k
        cnt = [0]
        def tk():
            cnt[0] += 1
            if cnt[0] % every == 0: self.tick(n)
        mx, mn, t0, t1 = 58, 60, 62, 63
        c = 57
        k.v_mul_f32(v(c), f32(LOG2E), v(vRINV))
        k.v_max3_f32(v(mx), v(P), v(P+1), v(P+2)); k.v_min3_f32(v(mn), v(P), v(P+1), v(P+2))
        for i in range(3, 11, 2):
            k.v_max3_f32(v(mx), v(P+i), v(P+i+1), v(mx)); k.v_min3_f32(v(mn), v(P+i), v(P+i+1), v(mn))
        k.v_max3_f32(v(t0), v(P+12), v(P+13), v(P+14)); k.v_min3_f32(v(t1), v(P+12), v(P+13), v(P+14))
        k.v_max_f32(v(t0), v(t0), v(P+15)); k.v_min_f32(v(t1), v(t1), v(P+15))
        k.v_sub_f32(v(t0), v(t0), v(vBIG)); k.v_add_f32(v(t1), v(t1), v(vBIG))
        k.v_max3_f32(v(mx), v(P+11), v(t0), v(mx)); k.v_min3_f32(v(mn), v(P+11), v(t1), v(mn))
        tk()
        k.v_mov_b32(v(t0), v(mx)); k.v_mov_b32(v(t1), v(mn))
        k.v_permlane32_swap_b32(v(mx), v(t0)); k.v_permlane32_swap_b32(v(mn), v(t1))
        k.v_max_f32(v(mx), v(mx), v(t0)); k.v_min_f32(v(mn), v(mn), v(t1))
        k.v_mul_f32(v(mx), v(c), v(mx)); k.v_mul_f32(v(mn), v(c), v(mn))
        k.v_add_f32(v(mx+1), v(mx), v(vBIG)); k.v_sub_f32(v(mn+1), v(mn), v(vBIG))
        for i in range(0, 16, 2):
            o = 1 if i >= 12 else 0
            k.v_pk_fma_f32(v(E+i, 2), v(P+i, 2), v(56, 2), v(mn, 2), m=f'op_sel:[0,1,{o}] op_sel_hi:[1,1,{o}] neg_lo:[1,0,0] neg_hi:[1,0,0]')
            k.v_pk_fma_f32(v(P+i, 2), v(P+i, 2), v(56, 2), v(mx, 2), m=f'op_sel:[0,1,{o}] op_sel_hi:[1,1,{o}] neg_lo:[0,0,1] neg_hi:[0,0,1]')
            if i % 8 == 6: tk()
        for i in range(16):
            k.v_exp_f32(v(E+i), v(E+i)); k.v_exp_f32(v(P+i), v(P+i))
            if i % 4 == 3: tk()
        if late: late()
        for X, sm in ((P, mx), (E, mn)):
            k.v_pk_add_f32(v(sm, 2), v(X, 2), v(X+2, 2))
            for i in range(4, 16, 2): k.v_pk_add_f32(v(sm, 2), v(sm, 2), v(X+i, 2))
            k.v_add_f32(v(sm), v(sm), v(sm+1))
        tk()
        k.v_mov_b32(v(t0), v(mx)); k.v_mov_b32(v(t1), v(mn))
        k.v_permlane32_swap_b32(v(mx), v(t0)); k.v_permlane32_swap_b32(v(mn), v(t1))
        k.v_add_f32(v(mx), v(mx), v(t0)); k.v_add_f32(v(mn), v(mn), v(t1))
        k.v_rcp_f32(v(mx), v(mx)); k.v_rcp_f32(v(mn), v(mn))
        self.scale_pack(P, mx)
        if wr: wr(0, P)
        self.scale_pack(E, mn)
        if wr: wr(1, E)

    def resets(self, L, z=124, t1=sT1, t2=sT2):
        k = self.k
        if L >= 3 or self.opt.get('abl_r', 0) & 1: return
        for i in range(4): k.v_mov_b32(v(z+i), -1)
        bufs = [XB[L], OB[L+1]]
        if True:
            if L == 0: bufs.append(XB[1])
            if L == 1: bufs = bufs[1:]
        def st(fl):
            for b_ in bufs:
                k.s_add_u32(s(t1), s(sOT_P), b_)
                self.ws_st(z, vL16, t1, 0, flags=fl); self.ws_st(z, vL16, t1, 1024, flags=fl)
        self.local_stores(st)

    def bg_reset_kvh3(self):
        k = self.k
        z = 108
        def f0():
            for i in range(4): k.v_mov_b32(v(z+i), -1)
        for i in range(4):
            def f(i=i):
                k.s_add_u32(s(sB0), s(sKVH_P), KVH[3])
                k.buffer_store_dwordx4(v(z, 4), v(vL16), s(S_WS, 4), s(sB0), m=f'offen offset:{1024*i} sc1')
            self.bg.append(f)
        return f0

    def o_tail(self, L, acc, eps):
        k = self.k
        d0, d1 = 58, 60
        k.v_mov_b32(v(d0), v(acc+12)); k.v_mov_b32(v(d1), v(acc+12))
        k.s_add_u32(s(sT1), s(sOT_P), OB[L])
        k.v_permlane32_swap_b32(v(d0), v(d1))
        if eps: k.v_add_f32(v(d1), f32(1e-6), v(d1))
        k.v_rcp_f32(v(d1), v(d1))
        self.scale_pack(acc, d1)
        def st(fl):
            self.ws_st(acc, vL16, sT1, 0, flags=fl); self.ws_st(acc+4, vL16, sT1, 1024, flags=fl)
        self.local_stores(st)

    def bg_reset(self, sb, add, off, z):
        k = self.k
        def f():
            if off == 0: k.s_add_u32(s(sB2), s(sb), add)
            k.buffer_store_dwordx4(v(z, 4), v(vL16), s(S_WS, 4), s(sB2), m=f'offen offset:{off} sc1')
            self.vtag('bg')
        f.gap = 120
        return f

    def layer_A(self, L):
        k = self.k
        self.stamp(f'L{L} kv gemm')
        if L == 2:
            self.vq = []
            if not self.opt.get('qo'): self.bg_wpk(0, 14, 21, tag='wq')
            self.burst(self.opt.get('bq', 5))
            for f in self.bg: f.gap = 90
            if not self.opt.get('abl_r', 0) & 2:
                self.bg += [self.bg_reset(sKVH_P, KVH[3], 1024*i, 72) for i in range(4)]
            if not self.opt.get('f2'): self.bgon(100 if self.opt.get('qo') else 400)
        sa = self.opt.get('s0a') if L == 0 else self.opt.get('s2a')
        kf = L == 0 and self.opt.get('kf')
        if not kf:
            self.pack(vAK)
            P, E = 112, 128
            self.feature_mfma(vAK, P)
            if L == 2:
                for i in range(4): k.v_mov_b32(v(72+i), -1)
            self.epi_v()
            sa = self.opt.get('s0a') if L == 0 else self.opt.get('s2a')
            if L == 0: self.burst(self.opt.get('bf', 5))
            k.ds_write_b128(v(vVOW), v(vAV, 4)); k.ds_write_b128(v(vVOW), v(vAV+4, 4), m='offset:1024')
            def wr(sg, X):
                for q in range(4):
                    k.ds_write_b64(v(vPHW), v(X+2*q, 2), m=f'offset:{sg*PHI_SIGN + q*16}')
            self.feature(P, E, wr=wr)
            self.bgoff()
            if L == 0:
                self.vwait('wq'); self.vwait('st')
                self.burst(self.opt.get('bb2', 5))
                self.quad_issue(58, stage=1, both=True)
            if L == 2:
                self.drain()
                self.vwait('wq')
        k.s_waitcnt('lgkmcnt(0)')
        k.s_barrier()
        self.stamp(f'L{L} phi_k')
        if L == 0: self.flag_post(2, 92)
        if L == 0:
            wo_rest = self.bg; self.bg = []
            self.bg_wpk(1, 0, 14)
            wb = self.bg; self.bg = []
            while wo_rest or wb:
                self.bg += wo_rest[:2]; wo_rest = wo_rest[2:]
                if wb:
                    f = wb.pop(0); f.gap = self.ghit; self.bg.append(f)
        lq = k.newlabel('Lq')
        k.s_cmp_ge_u32(s(sW), 2); k.s_cbranch_scc1(lq)
        A0, ACC = 112, 96
        B0 = [64, 68, 72, 76, 80, 84, 88, 92]
        k.v_add_u32(v(55), L_VOWN, v(vL16))
        def rdkv(idx):
            u, j = idx >> 1, idx & 1
            for jj in range(2):
                k.ds_read_b64_tr_b16(v(A0+4*idx+2*jj, 2), v(vPHR), m=f'offset:{(u*8+4*j+2*jj)*264}')
            k.ds_read_b128(v(B0[idx], 4), v(55), m=f'offset:{u*2048+j*1024}')
        for idx in range(5): rdkv(idx)
        k.s_add_u32(s(sT1), s(sKVP_P), KVP[L])
        for idx in range(8):
            k.s_waitcnt(f'lgkmcnt({3*min(4, 7-idx)})')
            self.mfma(ACC, v(A0+4*idx, 4), v(B0[idx], 4), v(ACC, 16) if idx else 0)
            if idx + 5 < 8: rdkv(idx + 5)
        for i in range(8): k.v_cvt_pk_bf16_f32(v(64+i), v(ACC+2*i), v(ACC+2*i+1))
        self.nohi()
        self.ws_st(64, vL16, sT1, 0, flags='sc1'); self.ws_st(68, vL16, sT1, 1024, flags='sc1')
        if L == 0:
            lq2 = k.newlabel('Lq')
            k.s_waitcnt('vmcnt(2)')
            k.s_branch(lq2)
            k.label(lq)
            k.s_waitcnt('vmcnt(1)')
            k.s_cmp_eq_u32(s(sW), 3); k.s_cbranch_scc1(lq2)
            k.s_waitcnt('vmcnt(0)')
            k.label(lq2)
        else:
            k.label(lq)
        self.stamp(f'L{L} kvp pub')
        if L == 0:
            assert not any(f in self.bg for f in self.rs0)
            self.vq = []
            if True:
                k.s_lshr_b32(s(6), s(sH), 2); k.s_lshl_b32(s(6), s(6), 9); k.s_add_u32(s(6), s(6), FLG + 2048)
                self.quad_wait(58, both=True)
            k.s_mul_i32(s(sT1), s(sW), 4096 - 128); k.s_add_u32(s(sT1), s(sT1), (L_RINV - L_RINV0) & 0xffffffff)
            k.v_add_u32(v(vRVW), s(sT1), v(vRVW)); k.v_add_u32(v(vRVR), s(sT1), v(vRVR))
        pw = L == 0 and self.opt.get('pw')
        if pw:
            wo = [f for f in self.bg if getattr(f, 'wo', False)]
            rest = [f for f in self.bg if not getattr(f, 'wo', False)]
            if pw == 2:
                k.s_waitcnt('vmcnt(0)'); self.stamp('pre wo')
                for f in wo: f()
                k.s_waitcnt('vmcnt(0)'); self.stamp('wo done')
                self.bg = rest
            else:
                for f in wo: f.gap = 24
                self.bg = wo
        if not pw == 1: self.resets(L)
        if not (L == 0 and sa): self.bg_wpk(1, 0, 14)
        nb1 = self.opt.get('b1', 6)
        if sa:
            if L == 0 and self.opt.get('f0'):
                for f in self.bg: f.gap = self.opt.get('g0', 60)
            if L == 2 and self.opt.get('g2'):
                for f in self.bg: f.gap = self.opt.get('g2')
            self.burst(self.opt.get('bp', 3)); self.bgon()
        G = 144
        k.s_lshl_b32(s(sT1), s(sH), 16); k.s_lshl_b32(s(sT2), s(sOM), 6); k.s_add_u32(s(sT1), s(sT1), s(sT2))
        k.s_add_u32(s(sT1), s(sT1), KVP[L])
        k.v_lshrrev_b32(v(59), 2, v(vLANE)); k.v_lshlrev_b32(v(59), 12, v(59))
        k.v_and_b32(v(58), 3, v(vLANE)); k.v_lshl_add_u32(v(59), v(58), 4, v(59))
        h1 = lambda: self.ws_ld(G, 59, sT1, 0)
        H1 = self.opt.get('h1', 22)
        if pw == 1:
            def endwo():
                self.bgoff(); self.drain(); self.resets(L, z=84, t1=sT4); h1(); self.bg = rest
            self.gemm_q(0, raw=False, hooks={27: endwo})
        else:
          qfill = None
          if L == 0:
              qfill = self.cs_ops(0, self.L_CT, 72, 55, segs=(2,))
              for i in range(8):
                  qfill += [lambda i=i: k.v_accvgpr_read_b32(v(vXRES+2*i+1), a(128+i)), lambda i=i: k.v_lshlrev_b32(v(vXRES+2*i), 16, v(vXRES+2*i+1)),
                            lambda i=i: k.v_and_b32(v(vXRES+2*i+1), '0xffff0000', v(vXRES+2*i+1))]
              def zp():
                  k.s_mov_b32('exec_lo', 0)
                  for i in range(12, 16): k.v_mov_b32(v(vXRES+i), 0)
                  k.s_mov_b32('exec_lo', -1)
              qfill.append(zp)
          self.gemm_q(0, raw=False, fill=qfill, f0=0, hooks=({(self.opt.get('off0', 16) if L == 0 else self.opt.get('off2', 16)): self.bgoff, H1: h1} if sa else {(8 if L == 0 else 2): lambda: self.burst(nb1), H1: h1}))
        k.v_lshrrev_b32(v(60), 4, v(vLANE)); k.v_lshlrev_b32(v(60), 2, v(60)); k.v_lshl_add_u32(v(G+8), v(58), 4, v(60))
        k.v_mov_b32(v(G+10), '0x3f80'); k.v_mov_b32(v(G+11), 1.0)
        k.v_mov_b32(v(G+4), 0); k.v_mov_b32(v(G+5), 0)
        self.pack(vAQ)
        PQ, EQ = 64, 80
        self.feature_mfma(vAQ, PQ)
        self.stamp(f'L{L} q gemm')
        self.poll(h1, range(G, G+4), 2 << (4*L), first_wait=0, sleep=1)
        self.stamp(f'L{L} kvp got')
        k.v_permlane32_swap_b32(v(G), v(G+2)); k.v_permlane32_swap_b32(v(G+1), v(G+3))
        k.v_permlane16_swap_b32(v(G), v(G+1)); k.v_permlane16_swap_b32(v(G+2), v(G+3))
        for i in range(4):
            k.v_dot2_f32_bf16(v(G+4), v(G+i), v(G+10), v(G+4)); k.v_dot2_f32_bf16(v(G+5), v(G+i), v(G+11), v(G+5))
        k.s_lshl_b32(s(sT1), s(sH), 12); k.s_add_u32(s(sT1), s(sT1), KVR[L]); k.s_add_u32(s(sT2), s(sT2), s(sT1))
        for rot in (4, 8):
            for i in (4, 5):
                k.v_add_f32_dpp(v(G+i), v(G+i), v(G+i), m=f'row_ror:{rot} row_mask:0xf bank_mask:0xf')
        k.v_cvt_pk_bf16_f32(v(G+4), v(G+4), v(G+5))
        self.sanitize(G+4, 1)
        k.s_mov_b32('exec_lo', 0x000f000f); k.s_mov_b32('exec_hi', 0x000f000f)
        k.buffer_store_dword(v(G+4), v(G+8), s(S_WS, 4), s(sT2), m='offen sc1')
        k.s_mov_b64('exec', -1)
        self.stamp(f'L{L} kvr pub')
        if kf:
            for i in range(8):
                k.v_lshlrev_b32(v(vXRES+2*i), 16, v(vXRES+8+i)); k.v_and_b32(v(vXRES+2*i+1), '0xffff0000', v(vXRES+8+i))
            k.s_mov_b32('exec_lo', 0)
            for i in range(12, 16): k.v_mov_b32(v(vXRES+i), 0)
            k.s_mov_b32('exec_lo', -1)
        k.s_barrier()
        if sa:
            if L == 0 and kf and kf >= 2:
                for i in range(4): k.v_mov_b32(v(176+i), -1)
                for i in range(4): self.bg_reset(sKVH_P, KVH[1], 1024*i, 176)()
                self.bg_reset(97, KVP[2], 0, 176)()
            if L == 0: self.cs_dma(1, L_KVL)
            self.bg_wpk(1, 14, 21)
            self.burst(self.opt.get('bf2', 5) if L else self.opt.get('bf0', 3))
            if not self.opt.get('nfq'): self.bgon()
            self.feature(PQ, EQ)
            self.bgoff()
            while any(getattr(f, 'wo', False) for f in self.bg): self.bg.pop(0)()
        else:
            rest = self.bg; self.bg = []
            self.bg_wpk(1, 14, 21)
            self.bg = rest[:7-nb1] + self.bg[:4] + rest[7-nb1:] + self.bg[4:]
            if L == 0:
                self.cs_dma(1, L_KVL)
                self.touch_half(OPK + OPT)
            self.burst(11 - nb1)
            self.feature(PQ, EQ)
        if self.opt.get('cpf2'): self.code_pf(512)
        if L == 0:
            self.vq = []
            self.flag_issue(2, 160)
        self.stamp(f'L{L} phi_q')
        def issue():
            for i in range(4): self.ws_ld(128+4*i, vL16, sT1, 1024*i)
        self.poll(issue, range(128, 144), 2 << (4*L), sleep=1)
        self.stamp(f'L{L} kvr got')
        ACC = 96
        for i, B in enumerate((PQ, PQ+4, EQ, EQ+4)):
            self.mfma(ACC, v(128+4*i, 4), v(B, 4), v(ACC, 16) if i else 0)
        self.o_tail(L, ACC, True)
        if L == 0:
            self.vq = []
            self.flag_wait(2, 160)
        self.stamp(f'L{L} o pub')

    def layer_B(self, L):
        k = self.k
        self.stamp(f'L{L} kv gemm')
        s3 = L == 1 and self.opt.get('kf', 0) >= 2
        if s3:
            self.vq = []
            self.quad_issue(112, stage=3, both=True)
        self.nohi()
        k.s_add_u32(s(sT1), s(sKVH_P), KVH[L])
        self.scale_pack(vAK, vRINV)
        for i, rg in enumerate((vAK, vAK+4)): self.ws_st(rg, vL16, sT1, 1024*i, flags='sc1')
        self.epi_v()
        for i, rg in enumerate((vAV, vAV+4)): self.ws_st(rg, vL16, sT1, 2048+1024*i, flags='sc1')
        self.stamp(f'L{L} kvh pub')
        if s3:
            self.vtag('pub', 4)
            self.quad_wait(112, both=True)
        if self.opt.get('early_reset'): self.resets(L)
        for i, rg in enumerate((vAK, vAK+4, vAV, vAV+4)):
            k.ds_write_b128(v(vKVL), v(rg, 4), m=f'offset:{8*4096 + 1024*i}')
        k.s_lshl_b32(s(sT1), s(sR), 1); k.s_add_u32(s(sT1), s(sT1), s(sW))
        k.s_add_u32(s(sT2), s(sKVH_C), KVH[L])
        k.s_cmp_lt_u32(s(sT1), 4); k.s_cselect_b32(s(sT1), 0x7000000, s(sT2))
        k.s_add_u32(s(sT2), s(sT1), 4096)
        k.s_lshl_b32(s(sT3), s(sW), 13); k.s_add_u32(s(sT3), s(sT3), L_KVL)
        def hdma(f0):
            def f():
                for j, so in ((0, sT1), (1, sT2)):
                    k.s_add_u32('m0', s(sT3), j*4096)
                    for fr in (f0, f0+1):
                        k.buffer_load_dwordx4(v(vL16), s(S_WS, 4), s(so), m=f'offen offset:{fr*1024} ' + ('nt sc1 lds' if self.opt.get('hnt') else 'sc1 lds'))
            return f
        def hread(f0, R):
            for j in range(2):
                for i in range(2):
                    k.ds_read_b128(v(R + 8*j + 4*i, 4), v(vHW), m=f'offset:{j*4096 + (f0+i)*1024}')
        def hcheck(f0, R, wait):
            lp, lo, lr = k.newlabel('Lhp'), k.newlabel('Lho'), k.newlabel('Lhr')
            k.s_mov_b32(s(sTRY), 0)
            if wait is not None:
                k.s_waitcnt(f'vmcnt({wait})')
                hread(f0, R)
            k.label(lp)
            k.s_waitcnt('lgkmcnt(0)')
            self.check(range(R, R+16))
            k.s_cbranch_scc1(lo)
            if self.ts: k.s_add_u32(s(sERR), s(sERR), 1 << 16)
            k.s_add_u32(s(sTRY), s(sTRY), 1)
            k.s_cmp_ge_u32(s(sTRY), MAXTRY); k.s_cselect_b32(s(sT6), 2 << (4*L), 0); k.s_or_b32(s(sERR), s(sERR), s(sT6))
            k.s_cmp_lg_u32(s(sT6), 0); k.s_cbranch_scc1(lo)
            k.s_sleep(1)
            hdma(f0)()
            if f0 == 0: hdma(2)()
            k.s_waitcnt('vmcnt(4)' if f0 == 0 else 'vmcnt(0)')
            hread(f0, R)
            k.s_branch(lp)
            k.label(lo)
        SR = [144, 112, 128, 176, 192, 208, 224, 240]
        S0, S8 = 144, 160
        NEG = 57
        M = 88
        mx = 58
        fill = [lambda: k.v_mov_b32(v(NEG), f32(-BIGF)), lambda: k.v_mov_b32(v(60), 0xffff), lambda: k.v_mov_b32(v(61), '0xffff0000')]
        for r in range(0, 16, 2):
            fill += [lambda r=r: k.v_cmp_le_i32(s(sC0, 2), (r & 3) + 8*(r >> 2), v(vII)),
                     lambda r=r: k.v_cmp_le_i32(s(sP0, 2), ((r+1) & 3) + 8*((r+1) >> 2), v(vII)),
                     lambda r=r: k.v_mov_b32(v(mx), f32(-BIGF)) if r == 0 else (k.v_or_b32(v(M + r//2 - 1), v(62), v(63))),
                     lambda r=r: k.v_cndmask_b32(v(S8+r), v(NEG), 0, s(sC0, 2)), lambda r=r: k.v_cndmask_b32(v(S8+r+1), v(NEG), 0, s(sP0, 2)),
                     lambda r=r: k.v_cndmask_b32(v(S0+r), 0, v(NEG), s(sC0, 2)), lambda r=r: k.v_cndmask_b32(v(S0+r+1), 0, v(NEG), s(sP0, 2)),
                     lambda r=r: k.v_cndmask_b32(v(62), 0, v(60), s(sC0, 2)), lambda r=r: k.v_cndmask_b32(v(63), 0, v(61), s(sP0, 2))]
        fill += [lambda: k.v_or_b32(v(M + 7), v(62), v(63)), lambda: k.v_mov_b32(v(mx+1), f32(-BIGF)),
                 lambda: k.v_mul_f32(v(62), f32(28**-0.5 * LOG2E), v(vRINV))]
        NQ = self.opt.get('woq', 0) if L == 1 else 0
        hooks = {self.hk: hdma(0), self.hv: hdma(2)}
        if NQ:
            self.bg_wo(1, 0, NQ)
            wl = self.bg; self.bg = []
            for i, f in enumerate(wl): hooks[1 + i*(self.hk - 3)//len(wl) if len(wl) <= 8 else 1 + i] = f
        self.gemm_q(1, raw=False, hooks=hooks, fill=fill)
        assert not fill
        self.scale_pack(vAQ, 62)
        k.s_mov_b32('exec_lo', 0)
        k.v_mov_b32(v(vAQ+6), 0x3f80)
        k.s_mov_b32('exec_lo', -1)
        self.mfma(S8, v(vAK, 4), v(vAQ, 4), v(S8, 16))
        self.mfma(S8, v(vAK+4, 4), v(vAQ+4, 4), v(S8, 16))
        self.stamp(f'L{L} q')
        hcheck(0, 176, 4)
        lmk = k.newlabel('Lmk')
        k.s_cmp_lg_u32(s(sT1), 0x7000000); k.s_cbranch_scc1(lmk)
        k.v_mov_b32(v(62), 0xff61)
        k.s_mov_b32('exec_lo', 0)
        k.ds_write_b32(v(vHW), v(62), m='offset:1032'); k.ds_write_b32(v(vHW), v(62), m=f'offset:{4096+1032}')
        k.s_mov_b32('exec_lo', -1)
        k.s_waitcnt('lgkmcnt(0)')
        k.label(lmk)
        k.s_barrier()
        self.stamp(f'L{L} halo got')
        KB = 64
        def kb(t): return KB + (t % 3)*8
        def rdk(t):
            k.ds_read_b128(v(kb(t), 4), v(vKVL), m=f'offset:{t*4096}')
            k.ds_read_b128(v(kb(t)+4, 4), v(vKVL), m=f'offset:{t*4096+1024}')
            self.ltag(f'k{t}', 2)
        def rdv(t):
            k.ds_read_b128(v(kb(t), 4), v(vKVL), m=f'offset:{t*4096+2048}')
            k.ds_read_b128(v(kb(t)+4, 4), v(vKVL), m=f'offset:{t*4096+3072}')
            self.ltag(f'v{t}', 2)
        def maxtile(S):
            return [lambda i=i: k.v_max3_f32(v(mx + ((i >> 1) & 1)), v(S+i), v(S+i+1), v(mx + ((i >> 1) & 1))) for i in range(0, 16, 2)]
        def merge():
            return [lambda r=r: k.v_max_f32(v(S0+r), v(S0+r), v(S8+r)) for r in range(16)]
        self.lq = []
        for t in range(3): rdk(t)
        if not self.opt.get('early_reset'): self.resets(L, z=104, t1=sT4, t2=sT5)
        self.vq = []
        if L == 1:
            self.bg_wpk(0, 0, 14)
            if self.opt.get('s1a'):
                ne = self.opt.get('wae', 5)
                late = self.bg[ne:]; self.bg = self.bg[:ne]
                self.bg_wo(1, NQ, 4)
                self.bg += late
                if self.opt.get('qo'): self.bg_wpk(0, 14, 21)
                self.bgon()
            else:
                self.burst(7)
                late = self.bg; self.bg = []
                self.bg_wo(1, 0, 4)
                for f in self.bg: f.gap = 64
                self.bg += late
        def smfma(fast):
            for t in range(8):
                self.lwait(f'k{t}')
                self.mfma(SR[t], v(kb(t), 4), v(vAQ, 4), v(S0, 16) if t == 0 else 0)
                for _ in range(6):
                    if fast: fast.pop(0)()
                self.mfma(SR[t], v(kb(t)+4, 4), v(vAQ+4, 4), v(SR[t], 16))
                if t + 3 < 8: rdk(t + 3)
                if fast is not None:
                    for _ in range(5):
                        if fast: fast.pop(0)()
                    if t == 1: fast += merge() + maxtile(S0)
                    if t >= 2: fast += maxtile(SR[t-1])
        fast = []
        smfma(fast)
        fast += maxtile(SR[7])
        while fast: fast.pop(0)()
        k.v_max_f32(v(mx), v(mx), v(mx+1))
        self.xhalf('v_max_f32', mx, 60)
        k.v_sub_f32(v(mx), 0, v(mx))
        V8 = S8 + 8
        P8 = S8
        ACC = 96
        pend = []
        for t in range(8):
            S = SR[t]
            for i in range(8): k.v_pk_add_f32(v(S+2*i, 2), v(S+2*i, 2), v(mx, 2), m='op_sel_hi:[1,0]')
            for i in range(16):
                k.v_exp_f32(v(S+i), v(S+i))
                if i % 4 == 1 and pend: pend.pop(0)()
                if i % 4 == 3: self.tick()
            if t == 0:
                self.bgoff()
                k.s_waitcnt(f'vmcnt({len(self.vq)})')
                hread(2, 64)
            for i in range(8): k.v_cvt_pk_bf16_f32(v(S+i), v(S+2*i), v(S+2*i+1))
            if t == 0:
                for i in range(8):
                    k.v_and_b32(v(P8+i), v(S+i), v(M+i)); k.v_xor_b32(v(S+i), v(S+i), v(P8+i))
                self.bgoff()
                hcheck(2, 64, None)
                k.s_barrier()
                self.stamp(f'L{L} V ok')
                self.burst(4)
                self.bgon()
                self.lq = []
                for tt in range(3): rdv(tt)
                k.ds_read_b128(v(V8, 4), v(vKVL), m=f'offset:{8*4096+2048}')
                k.ds_read_b128(v(V8+4, 4), v(vKVL), m=f'offset:{8*4096+3072}')
                self.ltag('v8', 2)
            def m1(t=t, S=S):
                self.lwait(f'v{t}')
                self.mfma(ACC, v(kb(t), 4), v(S, 4), v(ACC, 16) if t else 0)
            def m2(t=t, S=S):
                self.mfma(ACC, v(kb(t)+4, 4), v(S+4, 4), v(ACC, 16))
                if t + 3 < 8: rdv(t + 3)
            pend += [m1, m2]
            if t == 0:
                def m3():
                    self.lwait('v8')
                    self.mfma(ACC, v(V8, 4), v(P8, 4), v(ACC, 16))
                pend += [m3, lambda: self.mfma(ACC, v(V8+4, 4), v(P8+4, 4), v(ACC, 16))]
        while pend: pend.pop(0)()
        self.bgoff()
        while any(getattr(f, 'wo', False) for f in self.bg): self.bg.pop(0)()
        self.o_tail(L, ACC, False)
        self.stamp(f'L{L} o pub')

    def outproj(self, L):
        k = self.k
        typ = L & 1
        G = 144
        assert not any(getattr(f, 'wo', False) for f in self.bg)
        if L < 3: self.code_pf(1024)
        k.s_add_u32(s(sT1), s(sOT_C), OB[L])
        k.s_add_u32(s(sT2), s(sT1), 4096)
        k.s_mov_b32(s(sTRY), 0)
        lp = k.newlabel('Lop')
        OW = self.opt.get('ow', 0)
        k.label(lp)
        for i in range(8): self.ws_ld(G+4*i, vL16, sT2 if i >= 4 else sT1, 1024*(i & 3))
        k.s_add_u32(s(sTRY), s(sTRY), 1)
        k.s_cmp_ge_u32(s(sTRY), MAXTRY)
        k.s_cselect_b32(s(sT6), 4 << (4*L), 0)
        k.s_or_b32(s(sERR), s(sERR), s(sT6))
        for i in range(8):
            if OW or i % 2 == 0: k.s_waitcnt(f'vmcnt({7-i if OW else 6-i})')
            if OW: k.ds_write_b128(v(vGW), v(G+4*i, 4), m=f'offset:{1024*i}')
            if i == 0:
                k.v_max3_u32(v(62), v(G), v(G+1), v(G+2)); k.v_max_u32(v(62), v(G+3), v(62))
            else:
                k.v_max3_u32(v(62), v(G+4*i), v(G+4*i+1), v(62)); k.v_max3_u32(v(62), v(G+4*i+2), v(G+4*i+3), v(62))
        k.v_cmp_eq_u32('vcc', -1, v(62))
        k.s_cmp_eq_u64('vcc', 0)
        k.s_cselect_b32(s(sT7), 1, s(sT6))
        k.s_cmp_eq_u32(s(sT7), 0)
        k.s_cbranch_scc1(lp)
        self.stamp(f'L{L} o got')
        NPRE = self.opt.get('npre', 3 if OW else 6)
        for i in range(8):
            if not OW: k.ds_write_b128(v(vGW), v(G+4*i, 4), m=f'offset:{1024*i}')
            if i < NPRE: self.mfma(vXRES, a(typ*128+4*i, 4), v(G+4*i, 4), v(vXRES, 16))
        k.s_waitcnt('lgkmcnt(0)')
        k.s_barrier()
        def breg(f): return (64 if f < 8 else 176 - 32) + 4*f
        def rdo(f):
            k.ds_read_b128(v(breg(f), 4), v((vG1, vG2, vG3)[f >> 3]), m=f'offset:{1024*(f & 7)}')
            self.ltag(f'o{f}')
        D = 8
        self.lq = []
        fill = self.cs_ops(1, L_KVL, 240, 55) if L == 0 else []
        for f in range(4): rdo(f)
        for i in range(NPRE, 8):
            self.mfma(vXRES, a(typ*128+4*i, 4), v(G+4*i, 4), v(vXRES, 16))
        for f in range(4, D): rdo(f)
        if L == 0 and self.opt.get('kf', 0) >= 2: self.flag_post(3, 60)
        if L == 0: self.touch_half(OPK + OPT)
        self.burst(3)
        for f in self.bg: f.gap = min(90, 700 // len(self.bg))
        self.bg_next = 0
        self.bgon()
        for f in range(24):
            self.lwait(f'o{f}')
            self.mfma(vXRES, a(typ*128+32+4*f, 4), v(breg(f), 4), v(vXRES, 16))
            if f + D < 24: rdo(f + D)
            for _ in range(5):
                if fill: fill.pop(0)()
        assert not fill
        self.bgoff()
        PK = 112
        last = L == self.nlayers - 1
        if not last:
            self.drain()
            k.s_add_u32(s(sT1), s(sXT_P), XB[L])
            k.v_mov_b32(v(122), '0x3f803f80'); k.v_mov_b32(v(120), 0); k.v_mov_b32(v(121), 0)
        for i in range(8): k.v_cvt_pk_bf16_f32(v(PK+i), v(vXRES+2*i), v(vXRES+2*i+1))
        if last:
            for q in range(3):
                k.buffer_store_dwordx2(v(PK+2*q, 2), v(vOUT), s(S_OUT, 4), 0, m=f'offen offset:{16*q}')
            k.s_mov_b32('exec_hi', 0)
            k.buffer_store_dwordx2(v(PK+6, 2), v(vOUT), s(S_OUT, 4), 0, m='offen offset:48')
            k.s_mov_b32('exec_hi', -1)
            self.stamp(f'L{L} out')
            return
        def st(fl):
            for q in range(3): self.ws_st(PK+2*q, vXST, sT1, 512*q, n=2, flags=fl)
            k.s_mov_b32('exec_hi', 0)
            self.ws_st(PK+6, vXST, sT1, 512*3, n=2, flags=fl)
            k.s_mov_b32('exec_hi', -1)
        self.local_stores(st)
        s1, s2 = 120, 121
        for i in range(8):
            k.v_dot2_f32_bf16(v(s1), v(PK+i), v(122), v(s1)); k.v_dot2_f32_bf16(v(s2), v(PK+i), v(PK+i), v(s2))
        k.s_lshl_b32(s(sT2), s(sW), 9); k.s_add_u32(s(sT2), s(sT2), L_STAT)
        k.v_lshl_add_u32(v(124), v(vLANE), 3, s(sT2))
        k.ds_write_b64(v(124), v(s1, 2))
        for i in range(8):
            k.v_lshlrev_b32(v(vXRES+2*i), 16, v(PK+i)); k.v_and_b32(v(vXRES+2*i+1), '0xffff0000', v(PK+i))
        self.stamp(f'L{L} x pub')

    def build(self):
        k = self.k
        self.prologue()
        for L in range(self.nlayers):
            if L > 0: self.load_gemm_kv(L)
            if L & 1: self.layer_B(L)
            else: self.layer_A(L)
            self.outproj(L)
        if self.ts:
            k.s_memrealtime(s(sTS, 2)); k.s_waitcnt('lgkmcnt(0)')
            k.v_writelane_b32(v(vNEGB), s(90), 59); k.v_writelane_b32(v(vNEGB), s(sTS), 60); k.v_writelane_b32(v(vNEGB), s(92), 61)
            k.v_writelane_b32(v(vNEGB), s(sERR), 63)
            k.v_writelane_b32(v(vNEGB), s(sMODE), 62)
            k.v_lshlrev_b32(v(60), 2, v(vLANE))
            k.buffer_store_dword(v(vNEGB), v(60), s(S_WS, 4), s(sTSO), m='offen')
        k.label('Lend')
        k.s_endpgm()
        self.bgoff()
        while self.cold: self.cold.pop(0)()
        k.label('Lcode_end')
        body = k.finish()
        hdr = open('cdna_kernels/' + NAME + '.s.ref').read().split('; Override launch')[0]
        return hdr + f"""; Generated by the author's own script (gen/gen.py + gen/asmlib.py); no compiler output.
; One persistent launch: 256 workgroups (one per CU) x 4 waves run all four layers.
;   workgroup = (row block r of 128 tokens, head h) for LN+QKV GEMM / attention core, and
;               (32-token tile, 112-column group) for the output projection + residual.
;   LayerNorm is applied algebraically: (x W - mean * colsum(W)) * rstd, statistics travel with x.
;   Hand-offs between workgroups go through d_ws: buffers are reset to a sentinel in this launch and consumers
;   verify every dword; start-up steps are ordered by flags that carry a launch-unique tag (posted in d_debug).
;   Row blocks whose 16 workgroups really sit on one XCD (checked at run time) exchange through that L2 with plain
;   stores, otherwise write-through (sc1) stores are used.  All spins are bounded.
; @launch grid=(256,1,1) block=(256,1,1) lds={LDS_BYTES}
.amdgcn_target "amdgcn-amd-amdhsa--gfx950"
.text
.globl {NAME}_kernel
.p2align 8
.type {NAME}_kernel,@function
{NAME}_kernel:
{body}.section .rodata,"a"
.p2align 6
.amdhsa_kernel {NAME}_kernel
  .amdhsa_next_free_vgpr 512
  .amdhsa_next_free_sgpr 102
  .amdhsa_accum_offset 256
  .amdhsa_group_segment_fixed_size 0
  .amdhsa_kernarg_size 80
  .amdhsa_user_sgpr_count 2
  .amdhsa_user_sgpr_kernarg_segment_ptr 1
  .amdhsa_system_sgpr_workgroup_id_x 1
.end_amdhsa_kernel
"""

if __name__ == '__main__':
    import argparse
    ap = argparse.ArgumentParser()
    ap.add_argument('-o', default='cdna_kernels/' + NAME + '.s')
    ap.add_argument('--ts', action='store_true')
    ap.add_argument('--slow', action='store_true')
    ap.add_argument('--noalias', action='store_true')
    ap.add_argument('--tlb', action='store_true')
    ap.add_argument('--opt', action='append', default=[])
    ap.add_argument('--gmiss', type=int, default=250)
    ap.add_argument('--ghit', type=int, default=90)
    ap.add_argument('--hk', type=int, default=20)
    ap.add_argument('--hv', type=int, default=27)
    ap.add_argument('--layers', type=int, default=4)
    args = ap.parse_args()
    g = Gen(ts=args.ts, force_slow=args.slow, nlayers=args.layers, alias=not args.noalias, tlb=args.tlb, hk=args.hk, hv=args.hv, gmiss=args.gmiss, ghit=args.ghit, opt={o.split('=')[0]: (int(o.split('=')[1]) if '=' in o else 1) for o in args.opt})
    src = g.build()
    open(args.o, 'w').write(src)
    if args.ts:
        open(args.o + '.tsnames', 'w').write('\n'.join(getattr(g, 'tsnames', [])))
    print('instructions', g.k.nins, 'bytes of source', len(src))
```

```python
import sys, math, struct
from asmlib import *

NAME = "interleave_layers__linear_kernel_hedgehog__sliding_block__prompt"

def f32(x):
    return '0x%08x' % struct.unpack('<I', struct.pack('<f', x))[0]

MB = 1 << 20
XB = [0*MB, 2*MB, 4*MB]
OB = [6*MB, 8*MB, 10*MB, 12*MB]
KVP = {0: 14*MB, 2: 15*MB}
KVH = {1: 16*MB, 3: 20*MB}
TS_BASE = 24*MB
FLG = 24*MB + 768*1024
KVR = {0: 24*MB + 512*1024, 2: 24*MB + 576*1024}
FR = 1024
WPK = [25*MB, 25*MB + 16*84*FR]
OPK = 28*MB
OPT = 512*FR
CSP = 29*MB
WS_BYTES = 30*MB

SEG = 28672
L_WK, L_WV, L_WQ = 0, SEG, 2*SEG
L_KVL = 3*SEG
L_PHI = L_KVL
PHI_SIGN = 32*264
L_VOWN = L_KVL + 17408
L_KVF = L_KVL + 25600
L_CS1 = L_KVL + 29696
L_STAT = L_KVL + 32768 + 1024
L_RINV = L_KVL + 32768
L_GATH = L_KVL + 45056
L_ST = 114688
L_CS0 = L_KVL + 65536
L_RINV0 = L_KVL + 69632
LDS_BYTES = 163840
assert L_GATH + 32768 == LDS_BYTES

S_WS, S_AX, S_WA, S_WB, S_WPHI, S_WOA, S_WOB, S_OUT, S_DBG, S_CODE = 8, 12, 16, 20, 24, 28, 32, 36, 40, 44
sR, sH, sW, sTT, sCG, sMODE, sXCC, sTRY = 48, 49, 50, 51, 52, 53, 54, 55
sXT, sOT_P, sOT_C, sXT_P, sKVP_P, sKVP_C, sKVH_P, sKVH_C = 56, 57, 58, 59, 60, 61, 62, 63
sT0, sT1, sT2, sT3, sT4, sT5 = 64, 65, 66, 67, 68, 69
sM28 = 70
sTMIN = 72
sWPKH = 73
sLDSW = 74
sSTW = 75
sTS = 24
sTSO = 93
sERR = 79
sB0, sB1 = 80, 81
sC0, sC1 = 82, 83
sP0 = 84
sOPKC = 86
sOM = 87
sT6, sT7 = 88, 89
sSLOT = 94
sJUNK = 72
sPFO = 70
sB2 = 75
sHA, sHB = 46, 47
sQA, sQB, sHEAD = 76, 77, 78
sE0, sE1 = 4, 5

vLANE, vL16, vWRD0, vL14, vWQ, vNEGB, vHW, vXST, vSST, vSLD = 0, 1, 2, 3, 4, 5, 6, 7, 8, 9
vPHW, vPHR, vRVW, vRVR, vKVL, vOUT, vG1, vG2, vG3, vHFM, vBIG, vII, vVOW, vGW = 10, 11, 12, 13, 14, 15, 16, 17, 18, 19, 20, 21, 22, 23
vONE = 2
vWPHI = 24
vXRES = 32
vCS = 48
vMB, vRINV = 54, 56
vT = 54
vAK, vAV, vAQ = 64, 80, 96
vWF = 112
vXF = 144
vS = 112

BIGF = 3.0e38
LOG2E = 1.4426950408889634
MAXTRY = 200000
MFMA = 'v_mfma_f32_32x32x16_bf16'

class Gen:
    def __init__(self, ts=False, force_slow=False, nlayers=4, alias=True, tlb=False, hk=20, hv=27, gmiss=250, ghit=90, opt={}):
        self.tlb = tlb
        self.opt = dict(s0a=1, s1a=1, s2a=1, cpf2=1, woq=2, f0=1, off0=21, g0=40, et=1, h1=27, rp=1); self.opt.update(opt)
        self.gmiss, self.ghit = gmiss, ghit
        self.hk, self.hv = hk, hv
        if alias:
            XB[2] = XB[0]; OB[2] = OB[0]; OB[3] = OB[1]
        self.k = Asm()
        self.ts = ts
        self.force_slow = force_slow
        self.nlayers = nlayers
        self.nts = 0
        self.bg = []; self.bg_log = []
        self._owner = None
        self._hi = None
        self.lq = []; self.vq = []
        self.cold = []

    @property
    def m0_owner(self):
        return self._owner if self.k.watch else None
    @m0_owner.setter
    def m0_owner(self, val):
        self._owner = val

    def stamp(self, name):
        if not self.ts or self.opt.get('lite'): return
        k = self.k
        k.c(f'stamp {self.nts}: {name}')
        (k.s_memrealtime if self.opt.get('rt') else k.s_memtime)(s(sTS, 2))
        k.s_waitcnt('lgkmcnt(0)')
        k.v_writelane_b32(v(vNEGB), s(sTS), self.nts)
        self.tsnames = getattr(self, 'tsnames', []) + [name]
        self.nts += 1

    def tick(self, n=1):
        pass

    def _hook(self):
        if self.bg and self.k.est >= self.bg_next:
            f = self.bg.pop(0)
            f()
            self.bg_log.append(f)
            self.bg_next = self.k.est + getattr(f, 'gap', 90)

    def bgon(self, delay=0):
        self.k.hook = self._hook; self.k.hook_ok = True
        self.bg_next = max(getattr(self, 'bg_next', 0), self.k.est + delay)

    def bgoff(self):
        self.k.hook_ok = False

    def burst(self, n):
        for _ in range(n):
            if self.bg:
                f = self.bg.pop(0); f(); self.bg_log.append(f)
        self.bg_next = self.k.est + 200

    def drain(self):
        while self.bg: self.bg.pop(0)()

    def ltag(self, tag, n=1):
        self.lq += [tag]*n
    def lwait(self, tag=None):
        if tag is None:
            self.k.s_waitcnt('lgkmcnt(0)'); self.lq = []; return
        if tag not in self.lq: return
        idx = len(self.lq) - 1 - self.lq[::-1].index(tag)
        n = len(self.lq) - 1 - idx
        self.k.s_waitcnt(f'lgkmcnt({min(n, 15)})')
        self.lq = self.lq[idx+1:]
    def vtag(self, tag, n=1):
        self.vq += [tag]*n
    def vwait(self, tag=None):
        if tag is None:
            self.k.s_waitcnt('vmcnt(0)'); self.vq = []; return
        if tag not in self.vq: return
        idx = len(self.vq) - 1 - self.vq[::-1].index(tag)
        n = len(self.vq) - 1 - idx
        assert n <= 63
        self.k.s_waitcnt(f'vmcnt({n})')
        self.vq = self.vq[idx+1:]

    def mfma(self, d, a_, b_, c):
        self.k(MFMA, v(d, 16), a_, b_, c)

    def srd(self, d, b, n):
        k = self.k
        k.s_mov_b32(s(d), s(b)); k.s_and_b32(s(d+1), s(b+1), '0xffff')
        k.s_mov_b32(s(d+2), n); k.s_mov_b32(s(d+3), '0x20000')

    def _so(self, sbase, off):
        hi = off & ~0xfff
        if not hi: return s(sbase)
        if self._hi != (sbase, hi):
            self.k.s_add_u32(s(sT5), s(sbase), hi); self._hi = (sbase, hi)
        return s(sT5)

    def ws_ld(self, dst, voff, sbase, off, n=4, flags='sc1'):
        op = {1: 'buffer_load_dword', 2: 'buffer_load_dwordx2', 4: 'buffer_load_dwordx4'}[n]
        so = self._so(sbase, off)
        self.k(op, v(dst, n), v(voff), s(S_WS, 4), so, m=f'offen offset:{off & 0xfff} {flags}'.strip())

    def ws_st(self, src, voff, sbase, off, n=4, flags=''):
        op = {1: 'buffer_store_dword', 2: 'buffer_store_dwordx2', 4: 'buffer_store_dwordx4'}[n]
        so = self._so(sbase, off)
        self.k(op, v(src, n), v(voff), s(S_WS, 4), so, m=f'offen offset:{off & 0xfff} {flags}'.strip())

    def nohi(self):
        self._hi = None

    def local_stores(self, fn):
        k = self.k
        ls, ld = k.newlabel('Lslow'), k.newlabel('Ldone')
        k.s_cmp_eq_u32(s(sMODE), 0)
        k.s_cbranch_scc1(ls)
        self.nohi(); fn('')
        k.label(ld)
        self.nohi()
        def cold():
            k.label(ls)
            self.nohi(); fn('sc1'); self.nohi()
            k.s_branch(ld)
        self.cold.append(cold)

    def check(self, regs):
        k = self.k
        t = 62
        regs = list(regs)
        k.v_max3_u32(v(t), v(regs[0]), v(regs[1]), v(regs[2]))
        rest = regs[3:]
        while rest:
            if len(rest) >= 2:
                k.v_max3_u32(v(t), v(rest[0]), v(rest[1]), v(t)); rest = rest[2:]
            else:
                k.v_max_u32(v(t), v(rest[0]), v(t)); rest = rest[1:]
        k.v_cmp_eq_u32('vcc', -1, v(t))
        k.s_cmp_eq_u64('vcc', 0)

    def poll(self, issue, regs, code, first_wait=None, sleep=0):
        k = self.k
        lp, lo = k.newlabel('Lpoll'), k.newlabel('Lok')
        def loop():
            k.s_mov_b32(s(sTRY), 0)
            l2, l3 = k.newlabel('Lp2'), k.newlabel('Lp3')
            k.s_branch(l3) if sleep else None
            k.label(l2)
            if sleep: k.s_sleep(sleep)
            k.label(l3)
            self.nohi(); issue(); self.nohi()
            k.s_add_u32(s(sTRY), s(sTRY), 1)
            k.s_cmp_ge_u32(s(sTRY), MAXTRY)
            k.s_cselect_b32(s(sT6), code, 0)
            k.s_or_b32(s(sERR), s(sERR), s(sT6))
            k.s_waitcnt('vmcnt(0)')
            self.check(regs)
            k.s_cselect_b32(s(sT7), 1, s(sT6))
            k.s_cmp_eq_u32(s(sT7), 0)
            k.s_cbranch_scc1(l2)
        if first_wait is None:
            loop()
        else:
            k.s_mov_b32(s(sTRY), 0)
            k.s_mov_b32(s(sT6), 0)
            l2, l3 = k.newlabel('Lp2'), k.newlabel('Lp3')
            assert first_wait == 0
            k.s_branch(l3)
            k.label(l2)
            if self.ts: k.s_add_u32(s(sERR), s(sERR), 1 << 16)
            if sleep: k.s_sleep(sleep)
            self.nohi(); issue(); self.nohi()
            k.s_add_u32(s(sTRY), s(sTRY), 1)
            k.s_cmp_ge_u32(s(sTRY), MAXTRY)
            k.s_cselect_b32(s(sT6), code, 0)
            k.s_or_b32(s(sERR), s(sERR), s(sT6))
            k.label(l3)
            k.s_waitcnt('vmcnt(0)')
            self.check(regs)
            k.s_cselect_b32(s(sT7), 1, s(sT6))
            k.s_cmp_eq_u32(s(sT7), 0)
            k.s_cbranch_scc1(l2)

    def xhalf(self, op, dst, t):
        k = self.k
        k.v_mov_b32(v(t), v(dst))
        k.v_permlane32_swap_b32(v(dst), v(t))
        k(op, v(dst), v(dst), v(t))

    def rbf(self, dst, src):
        k = self.k
        k.v_cvt_pk_bf16_f32(v(dst), v(src), v(src))
        k.v_and_b32(v(dst), '0xffff0000', v(dst))

    def prologue(self):
        k = self.k
        k.label('Lstart')
        k.s_load_dwordx2(s(S_WA, 2), s(0, 2), 8)
        k.s_load_dwordx2(s(S_WOA, 2), s(0, 2), 24)
        k.s_load_dwordx16(s(64, 16), s(0, 2), 0)
        k.s_load_dwordx4(s(80, 4), s(0, 2), 64)
        k.s_getpc_b64(s(4, 2))
        k.label('Lpc')
        k.s_memrealtime(s(90, 2))
        if self.ts: k.s_memtime(s(92, 2))
        k.s_cmp_ge_u32(s(2), 256)
        k.s_cbranch_scc1('Lend')
        k.s_lshr_b32(s(6), s(2), 3)
        k.s_sub_u32(s(S_CODE), s(4), 'Lpc-Lstart'); k.s_subb_u32(s(5), s(5), 0)
        k.s_and_b32(s(S_CODE+1), s(5), '0xffff')
        k.s_mov_b32(s(S_CODE+2), 'Lcode_end-Lstart'); k.s_mov_b32(s(S_CODE+3), '0x20000')
        k.v_lshrrev_b32(v(1), 6, v(0))
        k.v_and_b32(v(vLANE), 63, v(0))
        k.v_readfirstlane_b32(s(sW), v(1))
        k.s_lshl_b32(s(3), s(6), 11)
        k.v_lshlrev_b32(v(2), 5, v(vLANE))
        lcp = k.newlabel('Lcp')
        k.s_cmp_lg_u32(s(sW), 3); k.s_cbranch_scc1(lcp)
        k.buffer_load_dword(v(240), v(2), s(S_CODE, 4), s(3), m='offen')
        k.label(lcp)
        k.s_and_b32(s(sH), s(6), 15)
        k.s_and_b32(s(3), s(2), 7)
        k.s_lshr_b32(s(7), s(6), 4)
        k.s_lshl_b32(s(3), s(3), 1)
        k.s_add_u32(s(sR), s(3), s(7))
        n, hf, r4, ch, c4, l2 = 60, 61, 62, 63, 59, 58
        k.v_and_b32(v(c4), 3, v(vLANE))
        k.v_lshrrev_b32(v(l2), 2, v(vLANE))
        vODMA, vPDMA = 97, 98
        k.v_mul_u32_u24(v(vPDMA), 2688, v(l2))
        k.v_lshl_add_u32(v(vPDMA), v(c4), 4, v(vPDMA))
        k.v_mul_u32_u24(v(vODMA), 896, v(l2))
        k.v_lshl_add_u32(v(vODMA), v(c4), 4, v(vODMA))
        k.v_mul_u32_u24(v(96), 56, v(l2))
        k.v_lshl_add_u32(v(96), v(c4), 4, v(96))
        k.v_lshlrev_b32(v(vL16), 4, v(vLANE))
        k.s_lshl_b32(s(sOM), s(sR), 2); k.s_add_u32(s(sOM), s(sOM), s(sW))
        sRHO, sPH, sPD = 101, 100, 95
        k.s_lshl_b32(s(sRHO), s(sR), 4); k.s_add_u32(s(sRHO), s(sRHO), s(sH))
        k.s_and_b32(s(sPH), s(sRHO), 3); k.s_lshl_b32(s(sPH), s(sPH), 2); k.s_add_u32(s(sPH), s(sPH), s(sW))
        sPS = 97
        u0, u1, u2, u3, u4, uST = 56, 57, 58, 59, 60, 61
        k.s_mov_b32(s(S_WA+2), 1204224); k.s_mov_b32(s(S_WA+3), '0x20000')
        k.s_mov_b32(s(S_WOA+2), 401408); k.s_mov_b32(s(S_WOA+3), '0x20000')
        k.s_mul_i32(s(uST), s(sW), 7168); k.s_add_u32(s(uST), s(uST), L_ST)
        k.s_lshr_b32(s(u1), s(sRHO), 2)
        k.s_cmp_ge_u32(s(u1), 28); k.s_cselect_b32(s(u2), 1, 0)
        k.s_cmp_ge_u32(s(u1), 56); k.s_cselect_b32(s(u2), 2, s(u2))
        k.s_mul_i32(s(u3), s(u2), 28); k.s_sub_u32(s(u3), s(u1), s(u3)); k.s_mul_i32(s(u3), s(u3), 16*2688)
        k.s_add_u32(s(u2), s(u2), 1); k.s_cmp_eq_u32(s(u2), 3); k.s_cselect_b32(s(u2), 0, s(u2))
        k.s_mul_i32(s(u2), s(u2), 896); k.s_add_u32(s(u3), s(u3), s(u2))
        k.s_mul_i32(s(u0), s(sPH), 56); k.s_add_u32(s(sPS), s(u3), s(u0))
        k.s_add_u32(s(u3), s(u1), 8); k.s_mul_i32(s(u3), s(u3), 16*2688); k.s_add_u32(s(sPS+1), s(u3), s(u0))
        k.s_sub_u32(s(u4), s(sRHO), 80)
        k.s_lshr_b32(s(u2), s(u4), 3); k.s_bfe_u32(s(u4), s(u4), 2 | (1 << 16))
        k.s_mul_i32(s(u3), s(u2), 28*896); k.s_add_u32(s(u0), s(u0), s(u3)); k.s_mul_i32(s(u3), s(u4), 16*896); k.s_add_u32(s(u0), s(u0), s(u3))
        k.s_cmp_ge_u32(s(sRHO), 80); k.s_cselect_b32(s(sPS+1), s(u0), s(sPS+1))
        k.s_mov_b32('m0', s(uST))
        k.s_waitcnt('lgkmcnt(0)')
        self.vq = []
        k.buffer_load_dwordx4(v(vPDMA), s(S_WA, 4), s(sPS), m='offen lds')
        def pack_dma1(typ, slot, sbase):
            la, lb = k.newlabel('La'), k.newlabel('Lb')
            k.s_add_u32('m0', s(sbase), slot*1024)
            k.s_cmp_ge_u32(s(sRHO), 80); k.s_cbranch_scc1(la)
            k.buffer_load_dwordx4(v(vPDMA), s(S_WB if typ else S_WA, 4), s(sPS+1), m='offen lds')
            k.s_branch(lb)
            k.label(la)
            k.buffer_load_dwordx4(v(vODMA), s(S_WOB if typ else S_WOA, 4), s(sPS+1), m='offen lds')
            k.label(lb)
        pack_dma1(0, 1, uST)
        self.vtag('pack', 2)
        self.srd(S_DBG, 80, 256)
        k.s_add_u32(s(7), s(2), s(sW)); k.s_lshl_b32(s(7), s(7), 8)
        k.s_andn2_b32(s(3), s(90), 15); k.s_or_b32(s(4), s(91), 0x40000000)
        k.v_mov_b32(v(56), s(3)); k.v_mov_b32(v(57), s(4))
        k.s_mov_b64('exec', 1)
        k.buffer_store_dwordx2(v(56, 2), v(vLANE), s(S_DBG, 4), s(7), m='offen sc1'); self.vtag('tag')
        k.s_mov_b64('exec', -1)
        self.srd(S_AX, 64, 1835008); self.srd(S_WPHI, 68, 25088)
        self.srd(S_WB, 74, 1204224); self.srd(S_WOB, 76, 401408)
        self.srd(S_OUT, 78, 1835008); self.srd(S_WS, 82, WS_BYTES)
        k.s_lshl_b32(s(sLDSW), s(sW), 10)
        k.s_mov_b32(s(sSTW), s(uST))
        def pack_dst():
            k.s_mul_i32(s(sT2), s(sPH), 84*FR); k.s_mul_i32(s(sT3), s(u1), FR); k.s_add_u32(s(sPD), s(sT2), s(sT3))
            k.s_add_u32(s(sPD), s(sPD), WPK[0])
            k.s_add_u32(s(sPD+1), s(sPD), 64*FR)
            k.s_mul_i32(s(sT3), s(sPH), 32*FR); k.s_mul_i32(s(u2), s(u2), 2*FR); k.s_add_u32(s(sT3), s(sT3), s(u2))
            k.s_mul_i32(s(u4), s(u4), FR); k.s_add_u32(s(sT3), s(sT3), s(u4)); k.s_add_u32(s(sT3), s(sT3), OPK)
            k.s_cmp_ge_u32(s(sRHO), 208); k.s_cselect_b32(s(sT3), 0x7000000, s(sT3))
            k.s_cmp_ge_u32(s(sRHO), 80); k.s_cselect_b32(s(sPD+1), s(sT3), s(sPD+1))
            k.s_mul_i32(s(sC0), s(sPH), 10752); k.s_lshl_b32(s(sT1), s(u1), 7)
            k.s_add_u32(s(sC0), s(sC0), s(sT1)); k.s_add_u32(s(sC0), s(sC0), CSP)
            k.s_add_u32(s(sC1), s(sC0), 64*128)
            k.s_cmp_ge_u32(s(sRHO), 80); k.s_cselect_b32(s(sC1), 0x7000000, s(sC1))
        def packb_dma():
            k.s_add_u32('m0', s(sSTW), 2*1024)
            k.buffer_load_dwordx4(v(vPDMA), s(S_WB, 4), s(sPS), m='offen lds')
            pack_dma1(1, 3, sSTW)
            self.vtag('packb', 2)
        if self.opt.get('s1e'): packb_dma()
        k.s_mul_i32(s(sT1), s(sH), 1568)
        k.s_add_u32('m0', s(sSTW), 5*1024)
        k.buffer_load_dwordx4(v(96), s(S_WPHI, 4), s(sT1), m='offen lds')
        k.s_add_u32(s(sT1), s(sT1), 16*56)
        k.s_add_u32('m0', s(sSTW), 6*1024)
        k.buffer_load_dwordx4(v(96), s(S_WPHI, 4), s(sT1), m='offen lds')
        self.vtag('phi', 2)
        if self.tlb:
            k.v_lshlrev_b32(v(2), 20, v(vLANE))
            k.s_lshl_b32(s(sT1), s(2), 7)
            k.s_mov_b32('exec_hi', 0)
            k.buffer_load_dword(a(255), v(2), s(S_WS, 4), s(sT1), m='offen')
            k.buffer_load_dword(a(254), v(2), s(S_OUT, 4), s(sT1), m='offen')
            k.s_mov_b32('exec_hi', -1)
            self.vtag('tlb', 2)
        if self.ts:
            k.s_lshl_b32(s(sT1), s(2), 2); k.s_add_u32(s(sT1), s(sT1), s(sW)); k.s_lshl_b32(s(sT1), s(sT1), 8)
            k.s_add_u32(s(sTSO), s(sT1), TS_BASE)
            k.v_mov_b32(v(vNEGB), 0)
        self.stamp('pack issued')
        vX0, vBW0, vBW1, vBR = 101, 102, 103, 104
        vPK8, vPK4 = 99, 100
        k.v_lshrrev_b32(v(56), 3, v(vLANE))
        k.s_lshl_b32(s(sT1), s(sOM), 5)
        k.v_add_u32(v(55), s(sT1), v(56)); k.v_mul_u32_u24(v(vX0), 896, v(55))
        k.v_and_b32(v(55), 7, v(vLANE))
        k.v_lshrrev_b32(v(56), 4, v(vLANE)); k.v_xor_b32(v(55), v(55), v(56))
        k.v_lshl_add_u32(v(vX0), v(55), 4, v(vX0))
        k.v_xor_b32(v(vBW0), 64, v(vX0))
        sC0_ = 99
        k.s_and_b32(s(sT1), s(sR), 1); k.s_mul_i32(s(sT1), s(sT1), 3); k.s_add_u32(s(sC0_), s(sH), s(sT1))
        k.s_cmp_ge_u32(s(sC0_), 7); k.s_cselect_b32(s(sT1), 7, 0); k.s_cmp_ge_u32(s(sC0_), 14); k.s_cselect_b32(s(sT1), 14, s(sT1))
        k.s_sub_u32(s(sC0_), s(sC0_), s(sT1))
        def line(dst, i):
            k.s_add_u32(s(dst), s(sC0_), i)
            k.s_cmp_ge_u32(s(dst), 7); k.s_cselect_b32(s(sT5), 7, 0); k.s_sub_u32(s(dst), s(dst), s(sT5))
        sSL = 16
        def wprep():
            for ii in range(7):
                line(sT4, ii)
                k.s_lshl_b32(s(sT4), s(sT4), 12)
                k.s_add_u32(s(sT4), s(sT4), s(sWPKH))
                k.s_add_u32(s(sSL+ii), s(sT4), WPK[0])
        def wdma(segs, ii):
            for g in segs:
                k.s_add_u32('m0', s(sLDSW), g*SEG + ii*4096)
                so = sSL + ii
                if g:
                    k.s_add_u32(s(sT5), s(sSL+ii), g*28*FR); so = sT5
                k.buffer_load_dwordx4(v(vL14), s(S_WS, 4), s(so), m='offen sc1 lds')
                self.vtag('wq' if g == 2 else f'w{ii}')
        def xload(c):
            line(sT0, c)
            k.s_lshl_b32(s(sT0), s(sT0), 7)
            for g in range(4):
                if g: k.s_add_u32(s(sT0), s(sT0), 8*896)
                k.s_add_u32('m0', s(sLDSW), (4*c+g)*4096)
                k.buffer_load_dwordx4(v(vBW0 if g & 1 else vX0), s(S_AX, 4), s(sT0), m='offen lds')
            self.vtag(f'x{c}', 4)
        def xread(c):
            for sp in range(4):
                k.ds_read_b128(v(vXF+4*(4*c+sp), 4), v((vBR if c < 4 else 84)+sp), m=f'offset:{(c & 3)*16384}')
            self.ltag(f'b{c}', 4)
        ones = 57
        def xstat(c):
            for i in range(16):
                x = vXF + 16*c + i
                k.v_dot2_f32_bf16(v(60), v(x), v(ones), v(60))
                k.v_dot2_f32_bf16(v(61), v(x), v(x), v(61))
        def st1(reg, sb, add, off=0, tag='st', frag=False):
            so = sb
            if add:
                k.s_add_u32(s(sT2), s(sb), add); so = sT2
            k.buffer_store_dwordx4(v(reg, 4), v(vL14 if frag else vL16), s(S_WS, 4), s(so), m=f'offen offset:{off} sc1')
            self.vtag(tag)
        xload(0)
        pack_dst()
        self.setup1()
        self.stamp('setup1')
        k.v_mov_b32(v(ones), '0x3f803f80')
        vPK1a, vPK1b = 110, 111
        k.s_cmp_ge_u32(s(sRHO), 80); k.s_cselect_b64('vcc', -1, 0); k.s_cselect_b32(s(sT1), 2, 1); k.s_lshl_b32(s(sT1), s(sT1), 8)
        k.v_cndmask_b32(v(vPK1a), v(vPK8), v(vPK4), 'vcc')
        k.v_add_u32(v(vPK1b), s(sT1), v(vPK1a))
        sPADM = 7
        k.s_sub_u32(s(sT1), s(sRHO), 80); k.s_bitcmp1_b32(s(sT1), 2); k.s_cselect_b32(s(sPADM), -1, 0)
        k.s_cmp_ge_u32(s(sRHO), 80); k.s_cselect_b32(s(sPADM), s(sPADM), 0)
        def pack_out(typ, slot, P, dadd):
            for j in range(2):
                k.ds_read_b64_tr_b16(v(P+2*j, 2), v(vPK8), m=f'offset:{slot*1024 + j*256}')
            k.ds_read_b64_tr_b16(v(P+4, 2), v(vPK1a), m=f'offset:{slot*1024 + 1024}')
            k.ds_read_b64_tr_b16(v(P+6, 2), v(vPK1b), m=f'offset:{slot*1024 + 1024}')
            k.s_waitcnt('lgkmcnt(2)')
            st1(P, sPD, dadd[0], frag=True)
            k.s_waitcnt('lgkmcnt(0)')
            k.s_mov_b32('exec_lo', 0); k.s_mov_b32('exec_hi', s(sPADM))
            k.v_mov_b32(v(P+6), 0); k.v_mov_b32(v(P+7), 0)
            k.s_mov_b64('exec', -1)
            if typ:
                k.s_mov_b32(s(sT3), dadd[0]); k.s_cmp_ge_u32(s(sRHO), 80); k.s_cselect_b32(s(sT3), dadd[1], s(sT3))
                k.s_add_u32(s(sPD+1), s(sPD+1), s(sT3))
            st1(P+4, sPD+1, 0, frag=True)
            A_, B_ = 76, 78
            k.v_mov_b32(v(A_), 0); k.v_mov_b32(v(B_), 0)
            for i in range(4):
                k.v_dot2_f32_bf16(v(A_), v(P+i), v(ones), v(A_)); k.v_dot2_f32_bf16(v(B_), v(P+4+i), v(ones), v(B_))
            k.v_permlane32_swap_b32(v(A_), v(B_))
            k.v_add_f32(v(A_), v(A_), v(B_))
            k.v_and_b32(v(B_), 31, v(vLANE)); k.v_lshlrev_b32(v(B_), 2, v(B_))
            k.s_mov_b32('exec_hi', 0)
            k.buffer_store_dword(v(A_), v(B_), s(S_WS, 4), s(sC0), m='offen sc1')
            k.s_mov_b32('exec_hi', -1); k.s_mov_b32('exec_lo', 0)
            k.buffer_store_dword(v(A_), v(B_), s(S_WS, 4), s(sC1), m='offen sc1')
            k.s_mov_b32('exec_lo', -1)
            self.vtag('st', 2)
            if typ == 0:
                k.s_add_u32(s(sC0), s(sC0), 172032); k.s_add_u32(s(sC1), s(sC1), 172032)
        self.vwait('pack')
        self.stamp('pack in')
        pack_out(0, 0, 64, (0, 0))
        EP = 80
        k.v_mov_b32(v(EP+2), 0)
        k.buffer_load_dwordx2(v(EP, 2), v(EP+2), s(S_DBG, 4), 0, m='offen sc1'); self.vtag('ep')
        self.stamp('pack out')
        def resid():
            for q in range(4):
                k.buffer_load_dwordx2(a(128+2*q, 2), v(vOUT), s(S_AX, 4), 0, m=f'offen offset:{16*q}')
            self.vtag('res', 4)
        RP = 1
        NX = self.opt.get('nx', 3)
        S1E = self.opt.get('s1e', 0)
        def s1_frags():
            self.vwait('packb')
            pack_out(1, 2, 64, (WPK[1] - WPK[0], OPT))
        def s1_resets():
            for i in range(4): k.v_mov_b32(v(108+i), -1)
            k.s_lshl_b32(s(97), s(sR), 12); k.s_add_u32(s(97), s(97), s(sKVP_C))
            k.s_lshl_b32(s(98), s(sH), 12); k.s_add_u32(s(98), s(98), s(sLDSW))
            k.s_lshl_b32(s(sT3), s(sR), 16); k.s_add_u32(s(98), s(98), s(sT3))
            k.s_mov_b32(s(sT3), 0x7000000); k.s_cmp_lt_u32(s(sR), 2); k.s_cselect_b32(s(sT3), KVR[0], s(sT3)); k.s_add_u32(s(98), s(98), s(sT3))
            st1(108, 97, KVP[0]); st1(108, 98, 0)
        def x0work():
            self.vwait('x0')
            self.lq = []
            xread(0)
            for j in range(2):
                for jj in range(2):
                    k.ds_read_b64_tr_b16(v(vWPHI+4*j+2*jj, 2), v(vPK4), m=f'offset:{5120 + j*1024 + jj*512}')
            self.lwait()
            k.s_mov_b32('exec_lo', 0)
            k.v_mov_b32(v(vWPHI+6), 0); k.v_mov_b32(v(vWPHI+7), 0)
            k.s_mov_b64('exec', s(sP0, 2))
            for i in range(8): k.v_mov_b32(v(vWPHI+i), 0)
            k.s_mov_b64('exec', -1)
            xstat(0)
            wprep()
        if S1E: s1_frags()
        else: packb_dma()
        xload(1)
        self.setup2()
        for i in range(4): k.v_mov_b32(v(60+i), 0)
        if S1E: s1_resets()
        for c in range(2, NX): xload(c)
        LATE = self.opt.get('xl', 0)
        if not LATE: x0work()
        self.vwait('ep')
        self.tag_get(EP)
        k.s_barrier()
        self.stamp('acked')
        self.flag_post(0, EP)
        if not S1E:
            s1_frags(); s1_resets()
        for c in range(NX, 7): xload(c)
        resid()
        if LATE: x0work()
        for c in range(1, 7):
            if c == self.opt.get('qi', 3): self.quad_issue(72)
            self.vwait(f'x{c}')
            xread(c)
            if 2 <= c <= 4:
                self.lwait(f'b{c-1}')
                xstat(c-1)
        self.lwait()
        self.stamp('x0 done')
        self.quad_wait(72)
        self.code_pf(1024)
        self.stamp('flags')
        L_CT = L_KVL + 32768 + 4096*4 + 8192
        if self.opt.get('kf'):
            for ii in range(7): wdma((0,), ii)
            self.cs_dma(0, L_CT)
            self.flag_issue(0, 32)
            xstat(4); xstat(5)
            for ii in range(3): wdma((1,), ii)
            xstat(6)
            self.stats_finish(60, 61)
            for ii in range(3, 7): wdma((1,), ii)
            self.vtag('wv', 0)
            self.stamp('W issued')
            self.flag_wait(0, 32)
            k.s_waitcnt('lgkmcnt(0)')
            k.s_barrier()
            self.stamp('K in')
            D = 6
            self.lq = []
            def rdk(st):
                k.ds_read_b128(v(vWF + (st % 8)*4, 4), v(vL16), m=f'offset:{L_WK + st*1024}'); self.ltag(f'w{st}')
            for st in range(D): rdk(st)
            self.flag_post(1, 96)
            self.touch_half(OPK); self.vtag('bg')
            fin = self.cs_ops(0, L_CT, 32, 55)
            rs0 = [self.bg_reset(sKVH_P, KVH[1], 1024*i, 108) for i in range(4)] + [self.bg_reset(97, KVP[2], 0, 108)]
            ex = {}
            KF = self.opt['kf']
            if KF == 1:
                for ii in range(7): ex[6 + 2*ii] = lambda ii=ii: wdma((2,), ii)
                for i in range(5): ex[20 + i] = rs0[i]
            for st in range(28):
                self.lwait(f'w{st}')
                self.mfma(vAK, v(vWF + (st % 8)*4, 4), v(vXF+4*st, 4), v(vAK, 16) if st else 0)
                if st + D < 28: rdk(st + D)
                for _ in range(4):
                    if fin: fin.pop(0)()
                if st in ex: ex[st]()
            assert not fin
            xm, wm = 112, 116
            k.v_mov_b32(v(xm), v(vMB)); k.v_mov_b32(v(wm), v(vCS+1))
            for i in range(1, 4):
                k.v_mov_b32(v(xm+i), 0); k.v_mov_b32(v(wm+i), 0)
            self.mfma(vAK, v(wm, 4), v(xm, 4), v(vAK, 16))
            k.s_add_u32(s(sT1), s(sOT_P), OB[0])
            def st_(fl):
                self.ws_st(108, vL16, sT1, 0, flags=fl); self.ws_st(108, vL16, sT1, 1024, flags=fl)
            self.local_stores(st_); self.vtag('st', 2)
            for q in range(4): k.ds_read_b128(v(32+4*q, 4), v(vRVR), m=f'offset:{32*q}')
            self.rv = 32
            self.vwait('w6')
            k.s_barrier()
            self.stamp('K gemm')
            self.lq = []
            def rdv(st):
                k.ds_read_b128(v(96 + (st % 4)*4, 4), v(vL16), m=f'offset:{L_WV + st*1024}'); self.ltag(f'w{st}')
            for st in range(3): rdv(st)
            if KF >= 2:
                for ii in range(7): wdma((2,), ii)
            self.pack(vAK)
            P, E = 112, 128
            self.feature_mfma(vAK, P)
            def vstep(st):
                def f():
                    self.lwait(f'w{st}')
                    self.mfma(vAV, v(vXF+4*st, 4), v(96 + (st % 4)*4, 4), v(vAV, 16) if st else 0)
                    if st + 3 < 28: rdv(st + 3)
                f.gap = 16; f.vs = True
                return f
            self.bg_wo(0)
            wo = self.bg; self.bg = []
            for st in range(28):
                self.bg.append(vstep(st))
                if st % 3 == 2 and st >= 8 and KF == 1:
                    f = wo.pop(0); f.gap = 0; self.bg.append(f)
            self.burst(3); self.bg_next = 0
            self.bgon()
            self.feature(P, E)
            self.bgoff()
            for sg, X in ((0, P), (1, E)):
                for q in range(4):
                    k.ds_write_b64(v(vPHW), v(X+2*q, 2), m=f'offset:{sg*PHI_SIGN + q*16}'); self.ltag('ph')
            self.drain()
            xm, wm = 120, 124
            k.v_mov_b32(v(xm), v(vMB)); k.v_mov_b32(v(wm), v(vCS+2))
            for i in range(1, 4):
                k.v_mov_b32(v(xm+i), 0); k.v_mov_b32(v(wm+i), 0)
            self.mfma(vAV, v(xm, 4), v(wm, 4), v(vAV, 16))
            self.bg = wo
            self.vwait('wq'); self.vwait('st')
            self.epi_v()
            k.ds_write_b128(v(vVOW), v(vAV, 4)); k.ds_write_b128(v(vVOW), v(vAV+4, 4), m='offset:1024')
            for q in range(4):
                k.buffer_load_dwordx2(v(vXRES+8+2*q, 2), v(vOUT), s(S_AX, 4), 0, m=f'offen offset:{16*q}')
            self.burst(4)
            self.quad_issue(58, stage=1, both=True)
            self.rs0 = []
            if KF >= 2:
                self.rs_late = [self.bg_reset(sKVH_P, KVH[1], 1024*i, 92) for i in range(4)] + [self.bg_reset(97, KVP[2], 0, 92)]
            return
        for ii in range(7):
            wdma((0, 1), ii)
            if ii in (3, 5, 6): xstat({3: 4, 5: 5, 6: 6}[ii])
        self.cs_dma(0, L_CT)
        ET = self.opt.get('et', 0)
        if ET: self.touch_half(OPK); self.vtag('bg')
        self.flag_issue(0, 96)
        if RP == 2: resid()
        self.stats_finish(60, 61)
        D = 3
        def rdw(st):
            b = vWF + (st % 4)*8
            k.ds_read_b128(v(b, 4), v(vL16), m=f'offset:{L_WK + st*1024}')
            k.ds_read_b128(v(b+4, 4), v(vL16), m=f'offset:{L_WV + st*1024}')
            self.ltag(f'w{st}', 2)
        def gemm(s0, s1, extra, fill=None):
            for st in range(s0, s1):
                self.lwait(f'w{st}')
                b = vWF + (st % 4)*8
                x = v(vXF+4*st, 4)
                self.mfma(vAK, v(b, 4), x, v(vAK, 16) if st else 0)
                for _ in range(4):
                    if fill: fill.pop(0)()
                self.mfma(vAV, x, v(b+4, 4), v(vAV, 16) if st else 0)
                if st + D < s1: rdw(st + D)
                for _ in range(3):
                    if fill: fill.pop(0)()
                if extra: extra.pop(0)()
        nop = lambda: None
        self.stamp('W issued')
        self.vwait('w3')
        k.s_waitcnt('lgkmcnt(0)')
        k.s_barrier()
        self.lq = []
        for st in range(D): rdw(st)
        self.flag_post(1, 106)
        self.stamp('W half1')
        def rob():
            k.s_add_u32(s(sT1), s(sOT_P), OB[0])
            def st(fl):
                self.ws_st(108, vL16, sT1, 0, flags=fl); self.ws_st(108, vL16, sT1, 1024, flags=fl)
            self.local_stores(st); self.vtag('st', 2)
        ex = [nop]*self.opt.get('qd', 8)
        for ii in range(7): ex += [lambda ii=ii: wdma((2,), ii)]
        gemm(0, 16, ex)
        self.flag_wait(0, 96)
        k.s_barrier()
        self.stamp('W kv')
        for st in range(16, 16+D): rdw(st)
        if not ET: self.touch_half(OPK); self.vtag('bg')
        rob()
        self.rs0 = [self.bg_reset(sKVH_P, KVH[1], 1024*i, 108) for i in range(4)] + [self.bg_reset(97, KVP[2], 0, 108)]
        for f in self.rs0: f.gap = 60
        fin = self.cs_ops(0, L_CT, 32, 55, segs=(0, 1))
        self.L_CT = L_CT
        early = self.opt.get('rse', 1)
        self.bg_wo(0)
        if ET == 1:
            ex = ex + self.bg[:7] + self.rs0; self.bg = self.bg[7:]
        elif ET == 2:
            ex = ex + self.bg[:12]; self.bg = self.rs0 + self.bg[12:]
        else: ex = ex + self.rs0
        gemm(16, 28, ex, fin)
        assert not ex
        self.rs0 = []
        while fin: fin.pop(0)()
        self.mean_steps(0)

    def tag_get(self, EP):
        k = self.k
        lfe, lfe2, lfe3 = k.newlabel('Lfe'), k.newlabel('Lfe'), k.newlabel('Lfe')
        k.s_mov_b32(s(sTRY), 0)
        k.label(lfe2)
        k.v_readfirstlane_b32(s(sE0), v(EP)); k.v_readfirstlane_b32(s(sE1), v(EP+1))
        k.s_cmp_eq_u32(s(sE1), 0); k.s_cbranch_scc1(lfe)
        k.label(lfe3)
        def cold():
            k.label(lfe)
            k.s_sleep(2)
            k.buffer_load_dwordx2(v(EP, 2), v(EP+2), s(S_DBG, 4), 0, m='offen sc1')
            k.s_add_u32(s(sTRY), s(sTRY), 1)
            k.s_waitcnt('vmcnt(0)')
            k.s_cmp_lt_u32(s(sTRY), MAXTRY); k.s_cbranch_scc1(lfe2)
            k.s_or_b32(s(sERR), s(sERR), 1 << 29)
            k.s_branch(lfe3)
        self.cold.append(cold)
        k.s_or_b32(s(sE0), s(sE0), s(sXCC))

    def flag_post(self, stage, EP):
        k = self.k
        lfx = k.newlabel('Lfx')
        k.s_cmp_lg_u32(s(sW), 3); k.s_cbranch_scc1(lfx)
        k.v_mov_b32(v(EP), s(sE0)); k.v_mov_b32(v(EP+1), s(sE1))
        k.s_and_b32(s(3), s(101), 3); k.s_lshl_b32(s(3), s(3), 9); k.s_lshr_b32(s(6), s(101), 2); k.s_lshl_b32(s(6), s(6), 3)
        k.s_add_u32(s(3), s(3), s(6)); k.s_add_u32(s(3), s(3), FLG + 2048*stage)
        k.s_mov_b64('exec', 1)
        k.buffer_store_dwordx2(v(EP, 2), v(vLANE), s(S_WS, 4), s(3), m='offen sc1')
        k.s_mov_b64('exec', -1)
        k.label(lfx)

    def quad_issue(self, F, stage=0, both=False):
        k = self.k
        A = F + (4 if both else 2)
        k.v_lshlrev_b32(v(A), 3, v(vLANE))
        k.s_lshr_b32(s(6), s(sH), 2); k.s_lshl_b32(s(6), s(6), 9); k.s_add_u32(s(6), s(6), FLG + 2048*stage)
        if both:
            k.s_lshl_b32(s(7), s(sCG), 9); k.s_add_u32(s(7), s(7), FLG + 2048*stage)
        self._quad_ld(F, both)
        self.vtag('quad', 2 if both else 1)

    def _quad_ld(self, F, both):
        k = self.k
        A = F + (4 if both else 2)
        k.buffer_load_dwordx2(v(F, 2), v(A), s(S_WS, 4), s(6), m='offen sc1')
        if both: k.buffer_load_dwordx2(v(F+2, 2), v(A), s(S_WS, 4), s(7), m='offen sc1')

    def quad_wait(self, F, both=False):
        k = self.k
        lp, lr, lgo = k.newlabel('Lqp'), k.newlabel('Lqr'), k.newlabel('Lqo')
        k.s_mov_b32(s(sTRY), 0)
        self.vwait('quad')
        k.label(lp)
        k.v_xor_b32(v(F), s(sE0), v(F)); k.v_xor_b32(v(F+1), s(sE1), v(F+1))
        if both:
            k.v_xor_b32(v(F+2), s(sE0), v(F+2)); k.v_xor_b32(v(F+3), s(sE1), v(F+3))
            k.v_or_b32(v(F), v(F), v(F+2)); k.v_or_b32(v(F+1), v(F+1), v(F+3))
        k.v_and_b32(v(F), -16, v(F)); k.v_or_b32(v(F), v(F), v(F+1))
        k.v_cmp_ne_u32('vcc', 0, v(F))
        k.s_cmp_eq_u64('vcc', 0)
        k.s_cbranch_scc1(lgo)
        k.s_add_u32(s(sTRY), s(sTRY), 1)
        k.s_cmp_ge_u32(s(sTRY), MAXTRY); k.s_cselect_b32(s(sT6), 1 << 28, 0); k.s_or_b32(s(sERR), s(sERR), s(sT6))
        k.s_cmp_lg_u32(s(sT6), 0); k.s_cbranch_scc1(lgo)
        if self.ts: k.s_add_u32(s(sERR), s(sERR), 1 << 24)
        k.s_sleep(4)
        self._quad_ld(F, both)
        k.s_waitcnt('vmcnt(0)')
        k.s_branch(lp)
        k.label(lgo)

    def flag_issue(self, stage, F):
        k = self.k
        k.v_lshlrev_b32(v(F+8), 5, v(vLANE))
        k.s_mov_b32(s(3), FLG + 2048*stage)
        k.buffer_load_dwordx4(v(F, 4), v(F+8), s(S_WS, 4), s(3), m='offen sc1')
        k.buffer_load_dwordx4(v(F+4, 4), v(F+8), s(S_WS, 4), s(3), m='offen offset:16 sc1')
        self.vtag('flg', 2)

    def flag_wait(self, stage, F):
        k = self.k
        lp, lr, lgo = k.newlabel('Lfp'), k.newlabel('Lfr'), k.newlabel('Lgo')
        k.s_mov_b32(s(sTRY), 0)
        self.vwait('flg')
        k.label(lp)
        for i in range(4):
            k.v_xor_b32(v(F+2*i), s(sE0), v(F+2*i)); k.v_xor_b32(v(F+2*i+1), s(sE1), v(F+2*i+1))
        k.v_or3_b32(v(F), v(F), v(F+2), v(F+4)); k.v_or_b32(v(F), v(F), v(F+6))
        k.v_or3_b32(v(F+1), v(F+1), v(F+3), v(F+5)); k.v_or_b32(v(F+1), v(F+1), v(F+7))
        k.v_and_b32(v(F+2), -16, v(F)); k.v_or_b32(v(F+2), v(F+2), v(F+1))
        k.v_cmp_ne_u32('vcc', 0, v(F+2))
        k.s_cmp_eq_u64('vcc', 0)
        k.s_cbranch_scc0(lr)
        k.label(lgo)
        def cold():
            k.label(lr)
            k.s_add_u32(s(sTRY), s(sTRY), 1)
            k.s_cmp_ge_u32(s(sTRY), MAXTRY); k.s_cselect_b32(s(sT6), 1 << 30, 0); k.s_or_b32(s(sERR), s(sERR), s(sT6))
            k.s_cmp_lg_u32(s(sT6), 0); k.s_cbranch_scc1(lgo)
            if self.ts: k.s_add_u32(s(sERR), s(sERR), 1 << 24)
            k.s_sleep(4)
            k.s_mov_b32(s(3), FLG + 2048*stage)
            k.buffer_load_dwordx4(v(F, 4), v(F+8), s(S_WS, 4), s(3), m='offen sc1')
            k.buffer_load_dwordx4(v(F+4, 4), v(F+8), s(S_WS, 4), s(3), m='offen offset:16 sc1')
            k.s_waitcnt('vmcnt(0)')
            k.s_branch(lp)
        self.cold.append(cold)
        if stage == 0:
            k.v_cmp_eq_u32('vcc', 0, v(F))
            k.s_lshr_b64(s(sP0, 2), 'vcc', s(sR))
            k.s_and_b32(s(3), s(sP0), s(sP0+1))
            k.s_and_b32(s(3), s(3), 0x10001)
            k.s_cmp_eq_u32(s(3), 0x10001)
            k.s_cselect_b32(s(sMODE), 0 if self.force_slow else 1, 0)

    def setup1(self):
        k = self.k
        n, hf, r4, ch, c4, l2 = 60, 61, 62, 63, 59, 58
        k.v_and_b32(v(n), 31, v(vLANE))
        k.v_lshrrev_b32(v(hf), 5, v(vLANE))
        k.v_bfe_u32(v(r4), v(vLANE), 2, 2)
        k.v_bfe_u32(v(ch), v(vLANE), 4, 1)
        k.v_lshlrev_b32(v(57), 5, v(ch))
        k.v_lshl_add_u32(v(57), v(c4), 3, v(57))
        k.v_lshl_add_u32(v(56), v(hf), 3, v(r4))
        k.v_lshl_add_u32(v(vWRD0), v(56), 6, v(57))
        k.v_mul_u32_u24(v(vL14), 448, v(hf)); k.v_lshl_add_u32(v(vL14), v(n), 4, v(vL14))
        k.v_mov_b32(v(55), 0x7000000); k.v_cmp_gt_u32('vcc', 28, v(n)); k.v_cndmask_b32(v(vL14), v(55), v(vL14), 'vcc')
        k.v_add_u32(v(vWQ), L_WQ, v(vL16))
        vPK8, vPK4 = 99, 100
        k.v_add_u32(v(vPK8), s(sSTW), v(vWRD0))
        k.v_lshl_add_u32(v(56), v(hf), 2, v(r4))
        k.v_lshl_add_u32(v(vPK4), v(56), 6, v(57))
        k.v_add_u32(v(vPK4), s(sSTW), v(vPK4))
        k.v_mul_u32_u24(v(56), 264, v(hf))
        k.v_lshl_add_u32(v(56), v(r4), 6, v(56))
        k.s_and_b32(s(sT1), s(sW), 1); k.s_mul_i32(s(sT1), s(sT1), PHI_SIGN); k.s_add_u32(s(sT1), s(sT1), L_PHI)
        k.v_add3_u32(v(vPHR), v(56), v(57), s(sT1))

    def setup2(self):
        k = self.k
        n, hf, r4, ch, c4, l2 = 60, 61, 62, 63, 59, 58
        k.s_getreg_b32(s(sXCC), 'hwreg(HW_REG_XCC_ID)')
        k.s_and_b32(s(sXCC), s(sXCC), 15)
        k.s_mov_b32(s(sSLOT), s(6))
        k.s_lshl_b32(s(sPFO), s(6), 2); k.s_add_u32(s(sPFO), s(sPFO), s(sW)); k.s_lshl_b32(s(sPFO), s(sPFO), 7)
        k.s_lshr_b32(s(3), s(sH), 2)
        k.s_lshl_b32(s(sTT), s(sR), 2)
        k.s_add_u32(s(sTT), s(sTT), s(3))
        k.s_and_b32(s(sCG), s(sH), 3)
        k.s_mov_b32(s(sERR), 0)
        k.s_mov_b32(s(sMODE), 0)
        k.s_lshl_b32(s(sXT), s(sOM), 15)
        k.s_lshl_b32(s(sT1), s(sH), 11); k.s_add_u32(s(sOT_P), s(sXT), s(sT1))
        k.s_lshl_b32(s(sXT_P), s(sTT), 15)
        k.s_lshl_b32(s(sT1), s(sW), 13); k.s_add_u32(s(sOT_C), s(sXT_P), s(sT1))
        k.s_lshl_b32(s(sT1), s(sH), 16)
        k.s_lshl_b32(s(sT2), s(sR), 12); k.s_add_u32(s(sKVP_P), s(sT1), s(sT2))
        k.s_lshl_b32(s(sT2), s(sW), 11); k.s_add_u32(s(sKVP_P), s(sKVP_P), s(sT2))
        k.s_add_u32(s(sKVP_C), s(sT1), s(sLDSW))
        k.s_lshl_b32(s(sT1), s(sH), 18)
        k.s_lshl_b32(s(sT2), s(sOM), 12); k.s_add_u32(s(sKVH_P), s(sT1), s(sT2))
        k.s_add_u32(s(sT2), s(sOM), s(sW))
        k.s_sub_u32(s(sT2), s(sT2), 8); k.s_lshl_b32(s(sT2), s(sT2), 12); k.s_add_u32(s(sKVH_C), s(sT1), s(sT2))
        k.s_mul_i32(s(sWPKH), s(sH), 84*FR); k.s_mul_i32(s(sT1), s(sW), FR); k.s_add_u32(s(sWPKH), s(sWPKH), s(sT1))
        k.s_and_b32(s(sT2), s(sR), 1); k.s_mul_i32(s(sT1), s(sW), 14336); k.s_mul_i32(s(sT3), s(sT2), 7168)
        k.s_add_u32(s(sHA), s(sT1), s(sT3)); k.s_sub_u32(s(sHB), s(sT1), s(sT3)); k.s_add_u32(s(sHB), s(sHB), 7168)
        k.s_mul_i32(s(sT1), s(sW), 7168); k.s_mul_i32(s(sT3), s(sT2), 3072); k.s_add_u32(s(sT1), s(sT1), L_WQ)
        k.s_add_u32(s(sQA), s(sT1), s(sT3)); k.s_sub_u32(s(sQB), s(sT1), s(sT3)); k.s_add_u32(s(sQB), s(sQB), 3072)
        k.s_mul_i32(s(sHEAD), s(sH), 84*FR)
        k.s_lshl_b32(s(sT1), s(sCG), 2); k.s_add_u32(s(sT1), s(sT1), s(sW)); k.s_mul_i32(s(sOPKC), s(sT1), 32*FR)
        vX0, vBW0, vBW1, vBR = 101, 102, 103, 104
        k.v_bfe_u32(v(55), v(n), 1, 3)
        k.v_xor_b32(v(55), v(55), v(hf))
        k.v_and_b32(v(56), 7, v(n)); k.v_lshl_add_u32(v(56), v(56), 7, s(sLDSW))
        k.v_lshrrev_b32(v(58), 3, v(n)); k.v_lshl_add_u32(v(56), v(58), 12, v(56))
        k.v_lshl_add_u32(v(vBR), v(55), 4, v(56))
        for sp in range(1, 4): k.v_xor_b32(v(vBR+sp), 32*sp, v(vBR))
        for sp in range(4): k.v_add_u32(v(84+sp), 65536, v(vBR+sp))
        k.v_lshrrev_b32(v(56), 2, v(n))
        k.s_lshl_b32(s(sT1), s(sW), 3)
        k.v_add_u32(v(56), s(sT1), v(56))
        k.v_mul_u32_u24(v(56), 264, v(56))
        k.v_lshl_add_u32(v(56), v(c4), 6, v(56))
        k.v_lshl_add_u32(v(56), v(hf), 3, v(56))
        k.v_add_u32(v(vPHW), L_PHI, v(56))
        k.s_lshl_b32(s(sT1), s(sW), 7); k.s_add_u32(s(sT1), s(sT1), L_RINV0)
        k.v_lshl_add_u32(v(vRVW), v(n), 2, s(sT1))
        k.v_lshl_add_u32(v(vRVR), v(hf), 4, s(sT1))
        k.s_lshl_b32(s(sT1), s(sW), 12); k.s_add_u32(s(sT1), s(sT1), L_KVL)
        k.v_add_u32(v(vKVL), s(sT1), v(vL16))
        k.s_lshl_b32(s(sT1), s(sW), 13); k.s_add_u32(s(sT1), s(sT1), L_KVL)
        k.v_add_u32(v(vHW), s(sT1), v(vL16))
        k.s_lshl_b32(s(sT1), s(sW), 11); k.s_add_u32(s(sT1), s(sT1), L_VOWN)
        k.v_add_u32(v(vVOW), s(sT1), v(vL16))
        for i, reg in ((0, vGW), (1, vG1), (2, vG2), (3, vG3)):
            k.s_add_u32(s(sT1), s(sW), i); k.s_and_b32(s(sT1), s(sT1), 3); k.s_lshl_b32(s(sT1), s(sT1), 13)
            k.s_sub_u32(s(sT1), L_GATH + 3*8192, s(sT1))
            k.v_add_u32(v(reg), s(sT1), v(vL16))
        k.s_mul_i32(s(sT1), s(sCG), 28); k.s_mul_i32(s(sT2), s(sW), 7); k.s_add_u32(s(sT1), s(sT1), s(sT2))
        k.v_add_u32(v(56), s(sT1), v(hf))
        k.v_lshrrev_b32(v(55), 1, v(56)); k.v_lshlrev_b32(v(55), 9, v(55))
        k.v_and_b32(v(56), 1, v(56)); k.v_lshl_add_u32(v(55), v(56), 3, v(55))
        k.v_lshl_add_u32(v(vXST), v(n), 4, v(55))
        k.s_lshr_b32(s(sT2), s(sCG), 1); k.s_lshl_b32(s(sT2), s(sT2), 9)
        k.s_and_b32(s(sT3), s(sCG), 1); k.s_lshl_b32(s(sT3), s(sT3), 3); k.s_add_u32(s(sT2), s(sT2), s(sT3))
        k.s_add_u32(s(sT2), s(sT2), 28672)
        k.v_lshl_add_u32(v(vSST), v(n), 4, s(sT2))
        k.v_and_b32(v(56), 15, v(vLANE)); k.v_mul_u32_u24(v(56), 7, v(56)); k.v_add_u32(v(56), 6, v(56))
        k.v_lshrrev_b32(v(55), 1, v(56)); k.v_lshlrev_b32(v(55), 9, v(55))
        k.v_and_b32(v(56), 1, v(56)); k.v_lshl_add_u32(v(55), v(56), 3, v(55))
        k.v_lshrrev_b32(v(56), 4, v(vLANE)); k.v_lshl_add_u32(v(55), v(56), 7, v(55))
        k.v_add_u32(v(vSLD), 112, v(55))
        k.s_lshl_b32(s(sT1), s(sTT), 5)
        k.v_add_u32(v(56), s(sT1), v(n)); k.v_mul_u32_u24(v(56), 896, v(56))
        k.s_mul_i32(s(sT1), s(sCG), 224); k.s_mul_i32(s(sT2), s(sW), 56); k.s_add_u32(s(sT1), s(sT1), s(sT2))
        k.v_lshl_add_u32(v(56), v(hf), 3, v(56))
        k.v_add_u32(v(vOUT), s(sT1), v(56))
        k.v_cmp_eq_u32('vcc', 0, v(hf))
        k.v_mov_b32(v(56), 1.0); k.v_mov_b32(v(55), f32(BIGF))
        k.v_cndmask_b32(v(vHFM), 0, v(56), 'vcc')
        k.v_mov_b32(v(56), 0)
        k.v_cndmask_b32(v(vBIG), v(55), v(56), 'vcc')
        k.v_lshlrev_b32(v(56), 2, v(hf)); k.v_sub_u32(v(vII), v(n), v(56))
        k.v_cmp_eq_u32('vcc', 28, v(n)); k.v_mov_b32(v(56), 1.0); k.v_cndmask_b32(v(vONE), 0, v(56), 'vcc')
        k.v_cmp_le_u32(s(sP0, 2), 28, v(n))

    def bg_wpk(self, typ, lo, hi, tag='bg'):
        k = self.k
        if self.opt.get('abl_w'): return
        groups = [(sHA, 0, 4), (sHA, 4096, 3), (sHB, 0, 4), (sHB, 4096, 3)] if lo == 0 else [(sQA, 0, 4), (sQB, 0, 4)]
        for gi, (sb, off, n) in enumerate(groups):
            for i in range(n):
                def f(sb=sb, off=off, i=i):
                    if i == 0 or self.m0_owner != (sb, off):
                        k.s_add_u32('m0', s(sb), off)
                        k.s_add_u32(s(sB0), s(sb), s(sHEAD))
                        k.s_add_u32(s(sB0), s(sB0), WPK[typ] + off)
                    k.buffer_load_dwordx4(v(vL14), s(S_WS, 4), s(sB0), m=f'offen offset:{1024*i} sc1 lds')
                    self.m0_owner = (sb, off); self.k.watch = True
                    self.vtag(tag)
                f.gap = self.gmiss if 2*gi < len(groups) else self.ghit
                self.bg.append(f)

    def bg_wo(self, typ, q0=0, q1=4):
        k = self.k
        if self.opt.get('abl_wo'): return
        for i in range(q0, q1):
            for f_ in range(8):
                def f(i=i, f_=f_):
                    if f_ == 0:
                        k.s_add_u32(s(sB1), s(sW), i); k.s_and_b32(s(sB1), s(sB1), 3); k.s_lshl_b32(s(sB1), s(sB1), 13)
                        k.s_add_u32(s(sB1), s(sB1), s(sOPKC)); k.s_add_u32(s(sB1), s(sB1), OPK + typ*OPT)
                    if f_ == 4: k.s_add_u32(s(sB1), s(sB1), 4096)
                    k.buffer_load_dwordx4(a(typ*128 + i*32 + f_*4, 4), v(vL14), s(S_WS, 4), s(sB1), m=f'offen offset:{(f_ & 3)*FR} sc1')
                    self.vtag('bg')
                f.wo = True; f.gap = self.ghit
                self.bg.append(f)

    def touch(self, base, share, ninstr, w0=0):
        k = self.k
        k.s_mul_i32(s(sB0), s(sSLOT), share); k.s_add_u32(s(sB0), s(sB0), base - w0*ninstr*8192)
        k.s_mul_i32(s(sB1), s(sW), ninstr*8192); k.s_add_u32(s(sB0), s(sB0), s(sB1))
        k.v_lshlrev_b32(v(59), 7, v(vLANE))
        for i in range(ninstr):
            k.buffer_load_dword(a(255), v(59), s(S_WS, 4), s(sB0), m='offen sc1')
            if i + 1 < ninstr: k.s_add_u32(s(sB0), s(sB0), 8192)

    def touch_half(self, base):
        k = self.k
        k.s_lshl_b32(s(sB0), s(sSLOT), 2); k.s_add_u32(s(sB0), s(sB0), s(sW)); k.s_lshl_b32(s(sB0), s(sB0), 12)
        k.s_add_u32(s(sB0), s(sB0), base)
        k.v_lshlrev_b32(v(59), 7, v(vLANE))
        k.s_mov_b64('exec', 0x7f7f7f7f)
        k.buffer_load_dword(a(255), v(59), s(S_WS, 4), s(sB0), m='offen sc1')
        k.s_mov_b64('exec', -1)

    def fill(self, buf):
        k = self.k
        if self.opt.get('nofill'): return
        k.s_add_u32(s(sB0), s(sOT_P), buf)
        k.s_mov_b32('exec_lo', 0x01010101); k.s_mov_b32('exec_hi', 0x01010101)
        k.buffer_load_dword(a(255), v(vL16), s(S_WS, 4), s(sB0), m='offen sc1')
        k.buffer_load_dword(a(255), v(vL16), s(S_WS, 4), s(sB0), m='offen offset:1024 sc1')
        k.s_mov_b64('exec', -1)
        self.vtag('bg', 2)

    def code_pf(self, ahead=0, n=1):
        k = self.k
        if self.opt.get('nocpf'): return
        lb = k.newlabel('Lpf')
        k.label(lb)
        for i in range(n):
            k.s_add_u32(s(6), s(sPFO), f'{lb}-Lstart+{ahead + i*16384}')
            k.s_min_u32(s(6), s(6), 'Lcode_end-Lstart-4')
            k.s_load_dword(s(sJUNK), s(S_CODE, 2), s(6))

    def cs_dma(self, typ, lds):
        k = self.k
        k.s_mul_i32(s(sB0), s(sH), 10752); k.s_mul_i32(s(3), s(sW), 3072); k.s_add_u32(s(sB0), s(sB0), s(3))
        k.s_add_u32(s(sB0), s(sB0), CSP + typ*172032)
        k.s_add_u32('m0', s(3), lds)
        for i in range(3):
            k.buffer_load_dwordx4(v(vL16), s(S_WS, 4), s(sB0), m=f'offen offset:{1024*i} sc1 lds')
        self.vtag('cs', 3)

    def cs_ops(self, typ, lds, R, A, segs=(0, 1, 2)):
        k = self.k
        ops = [lambda: k.v_lshlrev_b32(v(A), 2, v(vLANE)), lambda: k.v_add_u32(v(A), lds, v(A))]
        for seg in segs:
            g = (1, 2, 0)[seg]
            for half in range(2):
                def rd(seg=seg, half=half):
                    for i in range(7*half, 7*half+7):
                        k.ds_read_b32(v(R+i), v(A), m=f'offset:{(seg*28 + 2*i)*128}')
                    self.ltag(f'cs{seg}{half}', 7)
                ops += [rd] + [lambda: None]*5
            ops += [lambda seg=seg: self.lwait(f'cs{seg}1')]
            for i in range(1, 14): ops.append(lambda i=i: k.v_add_f32(v(R), v(R), v(R+i)))
            ops += [lambda: k.v_mov_b32(v(R+1), v(R)), lambda: k.v_permlane32_swap_b32(v(R), v(R+1)), lambda: k.v_add_f32(v(R), v(R), v(R+1)),
                    lambda: k.v_cmp_gt_u32('vcc', 448, v(vL14)), lambda: k.v_sub_f32(v(R), 0, v(R)), lambda: k.v_cndmask_b32(v(R), 0, v(R), 'vcc'), lambda: self.rbf(R+1, R),
                    lambda: k.v_sub_f32(v(R+2), v(R), v(R+1)),
                    lambda g=g: k.v_cvt_pk_bf16_f32(v(vCS + 3*typ + g), v(R+1), v(R+2))]
        return ops

    def stats_finish(self, s1, s2):
        k = self.k
        t = 58
        self.xhalf('v_add_f32', s1, t); self.xhalf('v_add_f32', s2, t)
        k.v_mul_f32(v(s1), f32(1.0/448), v(s1))
        k.v_mul_f32(v(s2), f32(1.0/448), v(s2))
        k.v_fma_f32(v(s2), '-'+v(s1), v(s1), v(s2))
        k.v_max_f32(v(s2), 0, v(s2))
        k.v_cvt_pk_bf16_f32(v(vMB), v(s1), v(s1))
        self.rbf(s2, s2)
        k.v_add_f32(v(s2), f32(1e-5), v(s2))
        self.rbf(s2, s2)
        k.v_sqrt_f32(v(s2), v(s2))
        self.rbf(s2, s2)
        k.v_rcp_f32(v(vRINV), v(s2))
        k.ds_write_b32(v(vRVW), v(vRINV))

    def mean_steps(self, typ):
        k = self.k
        xm, wk, wv = 112, 116, 120
        k.v_mov_b32(v(xm), v(vMB)); k.v_mov_b32(v(wk), v(vCS+3*typ+1)); k.v_mov_b32(v(wv), v(vCS+3*typ+2))
        for i in range(1, 4):
            k.v_mov_b32(v(xm+i), 0); k.v_mov_b32(v(wk+i), 0); k.v_mov_b32(v(wv+i), 0)
        self.mfma(vAK, v(wk, 4), v(xm, 4), v(vAK, 16))
        self.mfma(vAV, v(xm, 4), v(wv, 4), v(vAV, 16))
        for q in range(4):
            k.ds_read_b128(v(128+4*q, 4), v(vRVR), m=f'offset:{32*q}')
        self.rv = 128

    def stats_ops(self, ST):
        k = self.k
        s1, s2, t = 60, 61, 58
        ops = [
            lambda: k.v_pk_add_f32(v(s1, 2), v(ST, 2), v(ST+2, 2)),
            lambda: k.v_mov_b32(v(t), v(s1)), lambda: k.v_mov_b32(v(t+1), v(s2)),
            lambda: k.v_permlane32_swap_b32(v(s1), v(t)), lambda: k.v_permlane32_swap_b32(v(s2), v(t+1)),
            lambda: k.v_add_f32(v(s1), v(s1), v(t)), lambda: k.v_add_f32(v(s2), v(s2), v(t+1)),
            lambda: k.v_mul_f32(v(s1), f32(1.0/448), v(s1)), lambda: k.v_mul_f32(v(s2), f32(1.0/448), v(s2)),
            lambda: k.v_fma_f32(v(s2), '-'+v(s1), v(s1), v(s2)),
            lambda: k.v_max_f32(v(s2), 0, v(s2)),
            lambda: k.v_cvt_pk_bf16_f32(v(vMB), v(s1), v(s1)),
            lambda: self.rbf(s2, s2),
            lambda: k.v_add_f32(v(s2), f32(1e-5), v(s2)),
            lambda: self.rbf(s2, s2),
            lambda: k.v_sqrt_f32(v(s2), v(s2)),
            lambda: self.rbf(s2, s2),
            lambda: k.v_rcp_f32(v(vRINV), v(s2)),
        ]
        return ops

    def load_gemm_kv(self, L):
        k = self.k
        typ = L & 1
        assert not self.bg
        ST = 96
        CH = 63
        SPOS = self.opt.get('spos', 17)
        A0 = self.opt.get('a0', 4)
        AH = self.opt.get('ah', 10)
        k.s_add_u32(s(sT1), s(sXT), XB[L-1])
        seq = []
        for st in range(28):
            if st == SPOS: seq += [('st', ST, 28672)]
            seq.append((f'x{st}', vXF+4*st, 1024*st))
        def ld(i):
            tag, reg, off = seq[i]
            self.ws_ld(reg, vL16, sT1, off); self.vtag(tag)
        D = 3
        def rd(st):
            b = vWF + (st % 4)*8
            k.ds_read_b128(v(b, 4), v(vL16), m=f'offset:{L_WK + st*1024}')
            k.ds_read_b128(v(b+4, 4), v(vL16), m=f'offset:{L_WV + st*1024}')
            self.ltag(f'w{st}', 2)
        k.v_mov_b32(v(60), 0); k.v_mov_b32(v(61), 0)
        k.s_mov_b32(s(sTRY), 0)
        k.s_waitcnt('vmcnt(4) lgkmcnt(0)')
        k.s_barrier()
        lst = k.newlabel('Lst')
        k.s_cmp_lg_u32(s(sW), 0); k.s_cbranch_scc1(lst)
        for i in range(1, 4): k.ds_read_b64(v(124+2*i, 2), v(124), m=f'offset:{512*i}')
        k.s_add_u32(s(sT2), s(sXT_P), XB[L-1])
        k.s_waitcnt('lgkmcnt(0)')
        k.v_pk_add_f32(v(120, 2), v(120, 2), v(126, 2)); k.v_pk_add_f32(v(128, 2), v(128, 2), v(130, 2))
        k.v_pk_add_f32(v(120, 2), v(120, 2), v(128, 2))
        k.v_mov_b32(v(124), v(120)); k.v_mov_b32(v(125), v(121))
        k.v_permlane32_swap_b32(v(120), v(124)); k.v_permlane32_swap_b32(v(121), v(125))
        k.v_pk_add_f32(v(120, 2), v(120, 2), v(124, 2))
        self.sanitize(120, 2)
        def st2(fl):
            k.s_mov_b32('exec_hi', 0)
            self.ws_st(120, vSST, sT2, 0, n=2, flags=fl)
            k.s_mov_b32('exec_hi', -1)
        self.local_stores(st2)
        k.label(lst)
        self.code_pf(1024)
        lg, lok = k.newlabel('Lg'), k.newlabel('Lgok')
        first = [True]
        k.label(lg)
        self.nohi(); self.vq = []
        k.s_mov_b64('exec', 0xffff)
        self.ws_ld(60, vSLD, sT1, 0, n=2)
        k.s_mov_b64('exec', -1)
        for i in range(A0): ld(i)
        k.s_add_u32(s(sTRY), s(sTRY), 1)
        k.s_cmp_ge_u32(s(sTRY), MAXTRY)
        k.s_cselect_b32(s(sT6), 1 << (4*L), 0)
        k.s_or_b32(s(sERR), s(sERR), s(sT6))
        k.s_waitcnt(f'vmcnt({A0})')
        k.v_max_u32(v(62), v(60), v(61))
        k.v_cmp_eq_u32('vcc', -1, v(62))
        k.s_cmp_eq_u64('vcc', 0)
        k.s_cselect_b32(s(sT7), 1, s(sT6))
        k.s_cmp_eq_u32(s(sT7), 0)
        k.s_cbranch_scc1(lg)
        self.stamp(f'L{L} x seen')
        self.lq = []
        for i in range(A0, AH): ld(i)
        for st in range(D): rd(st)
        nxt = AH
        self.vwait(f'x{A0-1}')
        self.check(range(vXF, vXF + 4*A0))
        k.s_cselect_b32(s(sT7), 1, s(sT6))
        k.s_cmp_eq_u32(s(sT7), 0)
        k.s_cbranch_scc1(lg)
        k.v_mov_b32(v(CH), 0)
        fill = []
        xm, wk, wv = ST, ST+4, ST+8
        for st in range(28):
            self.vwait(f'x{st}')
            self.lwait(f'w{st}')
            b = vWF + (st % 4)*8
            xr = vXF + 4*st
            x = v(xr, 4)
            self.mfma(vAK, v(b, 4), x, v(vAK, 16) if st else 0)
            if st >= A0:
                k.v_max3_u32(v(CH), v(xr), v(xr+1), v(CH)); k.v_max3_u32(v(CH), v(xr+2), v(xr+3), v(CH))
            for _ in range(2):
                if fill: fill.pop(0)()
            self.mfma(vAV, x, v(b+4, 4), v(vAV, 16) if st else 0)
            if st + D < 28: rd(st + D)
            for _ in range(self.opt.get('lps', 2) if st < 8 else 1):
                if nxt < len(seq): ld(nxt); nxt += 1
            for _ in range(3):
                if fill: fill.pop(0)()
            if st == SPOS:
                ls1, ls2 = k.newlabel('Lsr'), k.newlabel('Lsb')
                k.v_max3_u32(v(62), v(ST), v(ST+1), v(ST+2)); k.v_max_u32(v(62), v(ST+3), v(62))
                k.v_cmp_eq_u32('vcc', -1, v(62))
                k.s_cmp_eq_u64('vcc', 0)
                k.br('s_cbranch_scc0', ls1)
                k.label(ls2)
                def cold_s():
                    k.label(ls1)
                    if self.ts: k.s_add_u32(s(sERR), s(sERR), 1 << 22)
                    k.s_add_u32(s(sT2), s(sT1), 28672)
                    k.buffer_load_dwordx4(v(ST, 4), v(vL16), s(S_WS, 4), s(sT2), m='offen sc1')
                    k.s_add_u32(s(sTRY), s(sTRY), 1)
                    k.s_cmp_ge_u32(s(sTRY), MAXTRY); k.s_cselect_b32(s(sT6), 8 << (4*L), 0); k.s_or_b32(s(sERR), s(sERR), s(sT6))
                    k.s_waitcnt('vmcnt(0)')
                    k.v_max3_u32(v(62), v(ST), v(ST+1), v(ST+2)); k.v_max_u32(v(62), v(ST+3), v(62))
                    k.v_cmp_eq_u32('vcc', -1, v(62))
                    k.s_cmp_eq_u64('vcc', 0)
                    k.s_cselect_b32(s(sT7), 1, s(sT6))
                    k.s_cmp_eq_u32(s(sT7), 0)
                    k.s_cbranch_scc1(ls1)
                    k.s_branch(ls2)
                self.cold.append(cold_s)
                fill += self.stats_ops(ST)
                def wr():
                    k.ds_write_b32(v(vRVW), v(vRINV)); self.ltag('rw')
                fill += [wr, lambda: k.v_mov_b32(v(xm), v(vMB)), lambda: k.v_mov_b32(v(wk), v(vCS+3*typ+1)), lambda: k.v_mov_b32(v(wv), v(vCS+3*typ+2))]
                for i in range(1, 4):
                    fill += [lambda i=i: k.v_mov_b32(v(xm+i), 0), lambda i=i: k.v_mov_b32(v(wk+i), 0), lambda i=i: k.v_mov_b32(v(wv+i), 0)]
            if st == 25:
                assert not fill
                self.mfma(vAK, v(wk, 4), v(xm, 4), v(vAK, 16))
                self.mfma(vAV, v(xm, 4), v(wv, 4), v(vAV, 16))
                for q in range(4):
                    k.ds_read_b128(v(ST+4*q, 4), v(vRVR), m=f'offset:{32*q}')
                self.ltag('rv', 4)
        k.v_cmp_eq_u32('vcc', -1, v(CH))
        k.s_cmp_eq_u64('vcc', 0)
        lbad = k.newlabel('Lgbad')
        k.br('s_cbranch_scc0', lbad)
        k.label(lok)
        def cold_b():
            k.label(lbad)
            k.s_nop(15)
            k.s_waitcnt('lgkmcnt(0)')
            k.v_mov_b32(v(60), 0); k.v_mov_b32(v(61), 0)
            k.s_add_u32(s(sTRY), s(sTRY), 8)
            if self.ts: k.s_add_u32(s(sERR), s(sERR), 1 << 20)
            k.s_cmp_lt_u32(s(sTRY), MAXTRY)
            k.s_cbranch_scc1(lg)
            k.s_or_b32(s(sERR), s(sERR), 8 << (4*L))
            k.s_branch(lok)
        self.cold.append(cold_b)
        self.vq = []; self.lq = []
        self.rv = ST

    def gemm_q(self, typ, raw, hooks={}, fill=None, f0=8):
        k = self.k
        D = 6
        def rd(st):
            k.ds_read_b128(v(vWF + (st % 8)*4, 4), v(vWQ), m=f'offset:{st*1024}'); self.ltag(f'w{st}')
        self.lq = []
        for st in range(D): rd(st)
        xm, wm = 120, 124
        for st in range(28):
            self.lwait(f'w{st}')
            b = vWF + (st % 8)*4
            self.mfma(vAQ, v(b, 4), v(vXF+4*st, 4), v(vAQ, 16) if st else 0)
            if st + D < 28: rd(st + D)
            if st in hooks: hooks[st]()
            if fill and st >= f0:
                for _ in range(4):
                    if fill: fill.pop(0)()
            if st == 24:
                k.v_mov_b32(v(128), v(vMB)); k.v_mov_b32(v(132), v(vCS+3*typ))
            if st in (25, 26, 27):
                i = st - 24
                k.v_mov_b32(v(128+i), 0); k.v_mov_b32(v(132+i), 0)
        assert not fill
        self.mfma(vAQ, v(132, 4), v(128, 4), v(vAQ, 16))

    def scale_pack(self, acc, mul_lo, mul_hi=None):
        k = self.k
        for i in range(8):
            mreg = mul_hi if (mul_hi is not None and i >= 6) else mul_lo
            assert mreg % 2 == 0
            k.v_pk_mul_f32(v(acc+2*i, 2), v(acc+2*i, 2), v(mreg, 2), m='op_sel_hi:[1,0]')
        for i in range(8):
            k.v_cvt_pk_bf16_f32(v(acc+i), v(acc+2*i), v(acc+2*i+1))

    def pack(self, acc):
        for i in range(8):
            self.k.v_cvt_pk_bf16_f32(v(acc+i), v(acc+2*i), v(acc+2*i+1))

    def epi_v(self):
        k = self.k
        rv = self.rv
        k.s_waitcnt('lgkmcnt(0)')
        for i in range(8):
            k.v_pk_fma_f32(v(vAV+2*i, 2), v(vAV+2*i, 2), v(rv+2*i, 2), v(vONE, 2), m='op_sel_hi:[1,1,0]')
        for i in range(8):
            k.v_cvt_pk_bf16_f32(v(vAV+i), v(vAV+2*i), v(vAV+2*i+1))

    def sanitize(self, base, n):
        for i in range(n):
            self.k.v_min_u32(v(base+i), -2, v(base+i))

    def feature_mfma(self, frag, P):
        self.mfma(P, v(vWPHI, 4), v(frag, 4), 0)
        self.mfma(P, v(vWPHI+4, 4), v(frag+4, 4), v(P, 16))

    def feature(self, P, E, every=1, n=1, late=None, wr=None):
        k = self.k
        cnt = [0]
        def tk():
            cnt[0] += 1
            if cnt[0] % every == 0: self.tick(n)
        mx, mn, t0, t1 = 58, 60, 62, 63
        c = 57
        k.v_mul_f32(v(c), f32(LOG2E), v(vRINV))
        k.v_max3_f32(v(mx), v(P), v(P+1), v(P+2)); k.v_min3_f32(v(mn), v(P), v(P+1), v(P+2))
        for i in range(3, 11, 2):
            k.v_max3_f32(v(mx), v(P+i), v(P+i+1), v(mx)); k.v_min3_f32(v(mn), v(P+i), v(P+i+1), v(mn))
        k.v_max3_f32(v(t0), v(P+12), v(P+13), v(P+14)); k.v_min3_f32(v(t1), v(P+12), v(P+13), v(P+14))
        k.v_max_f32(v(t0), v(t0), v(P+15)); k.v_min_f32(v(t1), v(t1), v(P+15))
        k.v_sub_f32(v(t0), v(t0), v(vBIG)); k.v_add_f32(v(t1), v(t1), v(vBIG))
        k.v_max3_f32(v(mx), v(P+11), v(t0), v(mx)); k.v_min3_f32(v(mn), v(P+11), v(t1), v(mn))
        tk()
        k.v_mov_b32(v(t0), v(mx)); k.v_mov_b32(v(t1), v(mn))
        k.v_permlane32_swap_b32(v(mx), v(t0)); k.v_permlane32_swap_b32(v(mn), v(t1))
        k.v_max_f32(v(mx), v(mx), v(t0)); k.v_min_f32(v(mn), v(mn), v(t1))
        k.v_mul_f32(v(mx), v(c), v(mx)); k.v_mul_f32(v(mn), v(c), v(mn))
        k.v_add_f32(v(mx+1), v(mx), v(vBIG)); k.v_sub_f32(v(mn+1), v(mn), v(vBIG))
        for i in range(0, 16, 2):
            o = 1 if i >= 12 else 0
            k.v_pk_fma_f32(v(E+i, 2), v(P+i, 2), v(56, 2), v(mn, 2), m=f'op_sel:[0,1,{o}] op_sel_hi:[1,1,{o}] neg_lo:[1,0,0] neg_hi:[1,0,0]')
            k.v_pk_fma_f32(v(P+i, 2), v(P+i, 2), v(56, 2), v(mx, 2), m=f'op_sel:[0,1,{o}] op_sel_hi:[1,1,{o}] neg_lo:[0,0,1] neg_hi:[0,0,1]')
            if i % 8 == 6: tk()
        for i in range(16):
            k.v_exp_f32(v(E+i), v(E+i)); k.v_exp_f32(v(P+i), v(P+i))
            if i % 4 == 3: tk()
        if late: late()
        for X, sm in ((P, mx), (E, mn)):
            k.v_pk_add_f32(v(sm, 2), v(X, 2), v(X+2, 2))
            for i in range(4, 16, 2): k.v_pk_add_f32(v(sm, 2), v(sm, 2), v(X+i, 2))
            k.v_add_f32(v(sm), v(sm), v(sm+1))
        tk()
        k.v_mov_b32(v(t0), v(mx)); k.v_mov_b32(v(t1), v(mn))
        k.v_permlane32_swap_b32(v(mx), v(t0)); k.v_permlane32_swap_b32(v(mn), v(t1))
        k.v_add_f32(v(mx), v(mx), v(t0)); k.v_add_f32(v(mn), v(mn), v(t1))
        k.v_rcp_f32(v(mx), v(mx)); k.v_rcp_f32(v(mn), v(mn))
        self.scale_pack(P, mx)
        if wr: wr(0, P)
        self.scale_pack(E, mn)
        if wr: wr(1, E)

    def resets(self, L, z=124, t1=sT1, t2=sT2):
        k = self.k
        if L >= 3 or self.opt.get('abl_r', 0) & 1: return
        for i in range(4): k.v_mov_b32(v(z+i), -1)
        bufs = [XB[L], OB[L+1]]
        if True:
            if L == 0: bufs.append(XB[1])
            if L == 1: bufs = bufs[1:]
        def st(fl):
            for b_ in bufs:
                k.s_add_u32(s(t1), s(sOT_P), b_)
                self.ws_st(z, vL16, t1, 0, flags=fl); self.ws_st(z, vL16, t1, 1024, flags=fl)
        self.local_stores(st)

    def bg_reset_kvh3(self):
        k = self.k
        z = 108
        def f0():
            for i in range(4): k.v_mov_b32(v(z+i), -1)
        for i in range(4):
            def f(i=i):
                k.s_add_u32(s(sB0), s(sKVH_P), KVH[3])
                k.buffer_store_dwordx4(v(z, 4), v(vL16), s(S_WS, 4), s(sB0), m=f'offen offset:{1024*i} sc1')
            self.bg.append(f)
        return f0

    def o_tail(self, L, acc, eps):
        k = self.k
        d0, d1 = 58, 60
        k.v_mov_b32(v(d0), v(acc+12)); k.v_mov_b32(v(d1), v(acc+12))
        k.s_add_u32(s(sT1), s(sOT_P), OB[L])
        k.v_permlane32_swap_b32(v(d0), v(d1))
        if eps: k.v_add_f32(v(d1), f32(1e-6), v(d1))
        k.v_rcp_f32(v(d1), v(d1))
        self.scale_pack(acc, d1)
        def st(fl):
            self.ws_st(acc, vL16, sT1, 0, flags=fl); self.ws_st(acc+4, vL16, sT1, 1024, flags=fl)
        self.local_stores(st)

    def bg_reset(self, sb, add, off, z):
        k = self.k
        def f():
            if off == 0: k.s_add_u32(s(sB2), s(sb), add)
            k.buffer_store_dwordx4(v(z, 4), v(vL16), s(S_WS, 4), s(sB2), m=f'offen offset:{off} sc1')
            self.vtag('bg')
        f.gap = 120
        return f

    def layer_A(self, L):
        k = self.k
        self.stamp(f'L{L} kv gemm')
        if L == 2:
            self.vq = []
            if not self.opt.get('qo'): self.bg_wpk(0, 14, 21, tag='wq')
            self.burst(self.opt.get('bq', 5))
            for f in self.bg: f.gap = 90
            if not self.opt.get('abl_r', 0) & 2:
                self.bg += [self.bg_reset(sKVH_P, KVH[3], 1024*i, 72) for i in range(4)]
            if not self.opt.get('f2'): self.bgon(100 if self.opt.get('qo') else 400)
        sa = self.opt.get('s0a') if L == 0 else self.opt.get('s2a')
        kf = L == 0 and self.opt.get('kf')
        if not kf:
            self.pack(vAK)
            P, E = 112, 128
            self.feature_mfma(vAK, P)
            if L == 2:
                for i in range(4): k.v_mov_b32(v(72+i), -1)
            self.epi_v()
            sa = self.opt.get('s0a') if L == 0 else self.opt.get('s2a')
            if L == 0: self.burst(self.opt.get('bf', 5))
            k.ds_write_b128(v(vVOW), v(vAV, 4)); k.ds_write_b128(v(vVOW), v(vAV+4, 4), m='offset:1024')
            def wr(sg, X):
                for q in range(4):
                    k.ds_write_b64(v(vPHW), v(X+2*q, 2), m=f'offset:{sg*PHI_SIGN + q*16}')
            self.feature(P, E, wr=wr)
            self.bgoff()
            if L == 0:
                self.vwait('wq'); self.vwait('st')
                self.burst(self.opt.get('bb2', 5))
                self.quad_issue(58, stage=1, both=True)
            if L == 2:
                self.drain()
                self.vwait('wq')
        k.s_waitcnt('lgkmcnt(0)')
        k.s_barrier()
        self.stamp(f'L{L} phi_k')
        if L == 0: self.flag_post(2, 92)
        if L == 0:
            wo_rest = self.bg; self.bg = []
            self.bg_wpk(1, 0, 14)
            wb = self.bg; self.bg = []
            while wo_rest or wb:
                self.bg += wo_rest[:2]; wo_rest = wo_rest[2:]
                if wb:
                    f = wb.pop(0); f.gap = self.ghit; self.bg.append(f)
        lq = k.newlabel('Lq')
        k.s_cmp_ge_u32(s(sW), 2); k.s_cbranch_scc1(lq)
        A0, ACC = 112, 96
        B0 = [64, 68, 72, 76, 80, 84, 88, 92]
        k.v_add_u32(v(55), L_VOWN, v(vL16))
        def rdkv(idx):
            u, j = idx >> 1, idx & 1
            for jj in range(2):
                k.ds_read_b64_tr_b16(v(A0+4*idx+2*jj, 2), v(vPHR), m=f'offset:{(u*8+4*j+2*jj)*264}')
            k.ds_read_b128(v(B0[idx], 4), v(55), m=f'offset:{u*2048+j*1024}')
        for idx in range(5): rdkv(idx)
        k.s_add_u32(s(sT1), s(sKVP_P), KVP[L])
        for idx in range(8):
            k.s_waitcnt(f'lgkmcnt({3*min(4, 7-idx)})')
            self.mfma(ACC, v(A0+4*idx, 4), v(B0[idx], 4), v(ACC, 16) if idx else 0)
            if idx + 5 < 8: rdkv(idx + 5)
        for i in range(8): k.v_cvt_pk_bf16_f32(v(64+i), v(ACC+2*i), v(ACC+2*i+1))
        self.nohi()
        self.ws_st(64, vL16, sT1, 0, flags='sc1'); self.ws_st(68, vL16, sT1, 1024, flags='sc1')
        if L == 0:
            lq2 = k.newlabel('Lq')
            k.s_waitcnt('vmcnt(2)')
            k.s_branch(lq2)
            k.label(lq)
            k.s_waitcnt('vmcnt(1)')
            k.s_cmp_eq_u32(s(sW), 3); k.s_cbranch_scc1(lq2)
            k.s_waitcnt('vmcnt(0)')
            k.label(lq2)
        else:
            k.label(lq)
        self.stamp(f'L{L} kvp pub')
        if L == 0:
            assert not any(f in self.bg for f in self.rs0)
            self.vq = []
            if True:
                k.s_lshr_b32(s(6), s(sH), 2); k.s_lshl_b32(s(6), s(6), 9); k.s_add_u32(s(6), s(6), FLG + 2048)
                self.quad_wait(58, both=True)
            k.s_mul_i32(s(sT1), s(sW), 4096 - 128); k.s_add_u32(s(sT1), s(sT1), (L_RINV - L_RINV0) & 0xffffffff)
            k.v_add_u32(v(vRVW), s(sT1), v(vRVW)); k.v_add_u32(v(vRVR), s(sT1), v(vRVR))
        pw = L == 0 and self.opt.get('pw')
        if pw:
            wo = [f for f in self.bg if getattr(f, 'wo', False)]
            rest = [f for f in self.bg if not getattr(f, 'wo', False)]
            if pw == 2:
                k.s_waitcnt('vmcnt(0)'); self.stamp('pre wo')
                for f in wo: f()
                k.s_waitcnt('vmcnt(0)'); self.stamp('wo done')
                self.bg = rest
            else:
                for f in wo: f.gap = 24
                self.bg = wo
        if not pw == 1: self.resets(L)
        if not (L == 0 and sa): self.bg_wpk(1, 0, 14)
        nb1 = self.opt.get('b1', 6)
        if sa:
            if L == 0 and self.opt.get('f0'):
                for f in self.bg: f.gap = self.opt.get('g0', 60)
            if L == 2 and self.opt.get('g2'):
                for f in self.bg: f.gap = self.opt.get('g2')
            self.burst(self.opt.get('bp', 3)); self.bgon()
        G = 144
        k.s_lshl_b32(s(sT1), s(sH), 16); k.s_lshl_b32(s(sT2), s(sOM), 6); k.s_add_u32(s(sT1), s(sT1), s(sT2))
        k.s_add_u32(s(sT1), s(sT1), KVP[L])
        k.v_lshrrev_b32(v(59), 2, v(vLANE)); k.v_lshlrev_b32(v(59), 12, v(59))
        k.v_and_b32(v(58), 3, v(vLANE)); k.v_lshl_add_u32(v(59), v(58), 4, v(59))
        h1 = lambda: self.ws_ld(G, 59, sT1, 0)
        H1 = self.opt.get('h1', 22)
        if pw == 1:
            def endwo():
                self.bgoff(); self.drain(); self.resets(L, z=84, t1=sT4); h1(); self.bg = rest
            self.gemm_q(0, raw=False, hooks={27: endwo})
        else:
          qfill = None
          if L == 0:
              qfill = self.cs_ops(0, self.L_CT, 72, 55, segs=(2,))
              for i in range(8):
                  qfill += [lambda i=i: k.v_accvgpr_read_b32(v(vXRES+2*i+1), a(128+i)), lambda i=i: k.v_lshlrev_b32(v(vXRES+2*i), 16, v(vXRES+2*i+1)),
                            lambda i=i: k.v_and_b32(v(vXRES+2*i+1), '0xffff0000', v(vXRES+2*i+1))]
              def zp():
                  k.s_mov_b32('exec_lo', 0)
                  for i in range(12, 16): k.v_mov_b32(v(vXRES+i), 0)
                  k.s_mov_b32('exec_lo', -1)
              qfill.append(zp)
          self.gemm_q(0, raw=False, fill=qfill, f0=0, hooks=({(self.opt.get('off0', 16) if L == 0 else self.opt.get('off2', 16)): self.bgoff, H1: h1} if sa else {(8 if L == 0 else 2): lambda: self.burst(nb1), H1: h1}))
        k.v_lshrrev_b32(v(60), 4, v(vLANE)); k.v_lshlrev_b32(v(60), 2, v(60)); k.v_lshl_add_u32(v(G+8), v(58), 4, v(60))
        k.v_mov_b32(v(G+10), '0x3f80'); k.v_mov_b32(v(G+11), 1.0)
        k.v_mov_b32(v(G+4), 0); k.v_mov_b32(v(G+5), 0)
        self.pack(vAQ)
        PQ, EQ = 64, 80
        self.feature_mfma(vAQ, PQ)
        self.stamp(f'L{L} q gemm')
        self.poll(h1, range(G, G+4), 2 << (4*L), first_wait=0, sleep=1)
        self.stamp(f'L{L} kvp got')
        k.v_permlane32_swap_b32(v(G), v(G+2)); k.v_permlane32_swap_b32(v(G+1), v(G+3))
        k.v_permlane16_swap_b32(v(G), v(G+1)); k.v_permlane16_swap_b32(v(G+2), v(G+3))
        for i in range(4):
            k.v_dot2_f32_bf16(v(G+4), v(G+i), v(G+10), v(G+4)); k.v_dot2_f32_bf16(v(G+5), v(G+i), v(G+11), v(G+5))
        k.s_lshl_b32(s(sT1), s(sH), 12); k.s_add_u32(s(sT1), s(sT1), KVR[L]); k.s_add_u32(s(sT2), s(sT2), s(sT1))
        for rot in (4, 8):
            for i in (4, 5):
                k.v_add_f32_dpp(v(G+i), v(G+i), v(G+i), m=f'row_ror:{rot} row_mask:0xf bank_mask:0xf')
        k.v_cvt_pk_bf16_f32(v(G+4), v(G+4), v(G+5))
        self.sanitize(G+4, 1)
        k.s_mov_b32('exec_lo', 0x000f000f); k.s_mov_b32('exec_hi', 0x000f000f)
        k.buffer_store_dword(v(G+4), v(G+8), s(S_WS, 4), s(sT2), m='offen sc1')
        k.s_mov_b64('exec', -1)
        self.stamp(f'L{L} kvr pub')
        if kf:
            for i in range(8):
                k.v_lshlrev_b32(v(vXRES+2*i), 16, v(vXRES+8+i)); k.v_and_b32(v(vXRES+2*i+1), '0xffff0000', v(vXRES+8+i))
            k.s_mov_b32('exec_lo', 0)
            for i in range(12, 16): k.v_mov_b32(v(vXRES+i), 0)
            k.s_mov_b32('exec_lo', -1)
        k.s_barrier()
        if sa:
            if L == 0 and kf and kf >= 2:
                for i in range(4): k.v_mov_b32(v(176+i), -1)
                for i in range(4): self.bg_reset(sKVH_P, KVH[1], 1024*i, 176)()
                self.bg_reset(97, KVP[2], 0, 176)()
            if L == 0: self.cs_dma(1, L_KVL)
            self.bg_wpk(1, 14, 21)
            self.burst(self.opt.get('bf2', 5) if L else self.opt.get('bf0', 3))
            if not self.opt.get('nfq'): self.bgon()
            self.feature(PQ, EQ)
            self.bgoff()
            while any(getattr(f, 'wo', False) for f in self.bg): self.bg.pop(0)()
        else:
            rest = self.bg; self.bg = []
            self.bg_wpk(1, 14, 21)
            self.bg = rest[:7-nb1] + self.bg[:4] + rest[7-nb1:] + self.bg[4:]
            if L == 0:
                self.cs_dma(1, L_KVL)
                self.touch_half(OPK + OPT)
            self.burst(11 - nb1)
            self.feature(PQ, EQ)
        if self.opt.get('cpf2'): self.code_pf(512)
        if L == 0:
            self.vq = []
            self.flag_issue(2, 160)
        self.stamp(f'L{L} phi_q')
        def issue():
            for i in range(4): self.ws_ld(128+4*i, vL16, sT1, 1024*i)
        self.poll(issue, range(128, 144), 2 << (4*L), sleep=1)
        self.stamp(f'L{L} kvr got')
        ACC = 96
        for i, B in enumerate((PQ, PQ+4, EQ, EQ+4)):
            self.mfma(ACC, v(128+4*i, 4), v(B, 4), v(ACC, 16) if i else 0)
        self.o_tail(L, ACC, True)
        if L == 0:
            self.vq = []
            self.flag_wait(2, 160)
        self.stamp(f'L{L} o pub')

    def layer_B(self, L):
        k = self.k
        self.stamp(f'L{L} kv gemm')
        s3 = L == 1 and self.opt.get('kf', 0) >= 2
        if s3:
            self.vq = []
            self.quad_issue(112, stage=3, both=True)
        self.nohi()
        k.s_add_u32(s(sT1), s(sKVH_P), KVH[L])
        self.scale_pack(vAK, vRINV)
        for i, rg in enumerate((vAK, vAK+4)): self.ws_st(rg, vL16, sT1, 1024*i, flags='sc1')
        self.epi_v()
        for i, rg in enumerate((vAV, vAV+4)): self.ws_st(rg, vL16, sT1, 2048+1024*i, flags='sc1')
        self.stamp(f'L{L} kvh pub')
        if s3:
            self.vtag('pub', 4)
            self.quad_wait(112, both=True)
        if self.opt.get('early_reset'): self.resets(L)
        for i, rg in enumerate((vAK, vAK+4, vAV, vAV+4)):
            k.ds_write_b128(v(vKVL), v(rg, 4), m=f'offset:{8*4096 + 1024*i}')
        k.s_lshl_b32(s(sT1), s(sR), 1); k.s_add_u32(s(sT1), s(sT1), s(sW))
        k.s_add_u32(s(sT2), s(sKVH_C), KVH[L])
        k.s_cmp_lt_u32(s(sT1), 4); k.s_cselect_b32(s(sT1), 0x7000000, s(sT2))
        k.s_add_u32(s(sT2), s(sT1), 4096)
        k.s_lshl_b32(s(sT3), s(sW), 13); k.s_add_u32(s(sT3), s(sT3), L_KVL)
        def hdma(f0):
            def f():
                for j, so in ((0, sT1), (1, sT2)):
                    k.s_add_u32('m0', s(sT3), j*4096)
                    for fr in (f0, f0+1):
                        k.buffer_load_dwordx4(v(vL16), s(S_WS, 4), s(so), m=f'offen offset:{fr*1024} ' + ('nt sc1 lds' if self.opt.get('hnt') else 'sc1 lds'))
            return f
        def hread(f0, R):
            for j in range(2):
                for i in range(2):
                    k.ds_read_b128(v(R + 8*j + 4*i, 4), v(vHW), m=f'offset:{j*4096 + (f0+i)*1024}')
        def hcheck(f0, R, wait):
            lp, lo, lr = k.newlabel('Lhp'), k.newlabel('Lho'), k.newlabel('Lhr')
            k.s_mov_b32(s(sTRY), 0)
            if wait is not None:
                k.s_waitcnt(f'vmcnt({wait})')
                hread(f0, R)
            k.label(lp)
            k.s_waitcnt('lgkmcnt(0)')
            self.check(range(R, R+16))
            k.s_cbranch_scc1(lo)
            if self.ts: k.s_add_u32(s(sERR), s(sERR), 1 << 16)
            k.s_add_u32(s(sTRY), s(sTRY), 1)
            k.s_cmp_ge_u32(s(sTRY), MAXTRY); k.s_cselect_b32(s(sT6), 2 << (4*L), 0); k.s_or_b32(s(sERR), s(sERR), s(sT6))
            k.s_cmp_lg_u32(s(sT6), 0); k.s_cbranch_scc1(lo)
            k.s_sleep(1)
            hdma(f0)()
            if f0 == 0: hdma(2)()
            k.s_waitcnt('vmcnt(4)' if f0 == 0 else 'vmcnt(0)')
            hread(f0, R)
            k.s_branch(lp)
            k.label(lo)
        SR = [144, 112, 128, 176, 192, 208, 224, 240]
        S0, S8 = 144, 160
        NEG = 57
        M = 88
        mx = 58
        fill = [lambda: k.v_mov_b32(v(NEG), f32(-BIGF)), lambda: k.v_mov_b32(v(60), 0xffff), lambda: k.v_mov_b32(v(61), '0xffff0000')]
        for r in range(0, 16, 2):
            fill += [lambda r=r: k.v_cmp_le_i32(s(sC0, 2), (r & 3) + 8*(r >> 2), v(vII)),
                     lambda r=r: k.v_cmp_le_i32(s(sP0, 2), ((r+1) & 3) + 8*((r+1) >> 2), v(vII)),
                     lambda r=r: k.v_mov_b32(v(mx), f32(-BIGF)) if r == 0 else (k.v_or_b32(v(M + r//2 - 1), v(62), v(63))),
                     lambda r=r: k.v_cndmask_b32(v(S8+r), v(NEG), 0, s(sC0, 2)), lambda r=r: k.v_cndmask_b32(v(S8+r+1), v(NEG), 0, s(sP0, 2)),
                     lambda r=r: k.v_cndmask_b32(v(S0+r), 0, v(NEG), s(sC0, 2)), lambda r=r: k.v_cndmask_b32(v(S0+r+1), 0, v(NEG), s(sP0, 2)),
                     lambda r=r: k.v_cndmask_b32(v(62), 0, v(60), s(sC0, 2)), lambda r=r: k.v_cndmask_b32(v(63), 0, v(61), s(sP0, 2))]
        fill += [lambda: k.v_or_b32(v(M + 7), v(62), v(63)), lambda: k.v_mov_b32(v(mx+1), f32(-BIGF)),
                 lambda: k.v_mul_f32(v(62), f32(28**-0.5 * LOG2E), v(vRINV))]
        NQ = self.opt.get('woq', 0) if L == 1 else 0
        hooks = {self.hk: hdma(0), self.hv: hdma(2)}
        if NQ:
            self.bg_wo(1, 0, NQ)
            wl = self.bg; self.bg = []
            for i, f in enumerate(wl): hooks[1 + i*(self.hk - 3)//len(wl) if len(wl) <= 8 else 1 + i] = f
        self.gemm_q(1, raw=False, hooks=hooks, fill=fill)
        assert not fill
        self.scale_pack(vAQ, 62)
        k.s_mov_b32('exec_lo', 0)
        k.v_mov_b32(v(vAQ+6), 0x3f80)
        k.s_mov_b32('exec_lo', -1)
        self.mfma(S8, v(vAK, 4), v(vAQ, 4), v(S8, 16))
        self.mfma(S8, v(vAK+4, 4), v(vAQ+4, 4), v(S8, 16))
        self.stamp(f'L{L} q')
        hcheck(0, 176, 4)
        lmk = k.newlabel('Lmk')
        k.s_cmp_lg_u32(s(sT1), 0x7000000); k.s_cbranch_scc1(lmk)
        k.v_mov_b32(v(62), 0xff61)
        k.s_mov_b32('exec_lo', 0)
        k.ds_write_b32(v(vHW), v(62), m='offset:1032'); k.ds_write_b32(v(vHW), v(62), m=f'offset:{4096+1032}')
        k.s_mov_b32('exec_lo', -1)
        k.s_waitcnt('lgkmcnt(0)')
        k.label(lmk)
        k.s_barrier()
        self.stamp(f'L{L} halo got')
        KB = 64
        def kb(t): return KB + (t % 3)*8
        def rdk(t):
            k.ds_read_b128(v(kb(t), 4), v(vKVL), m=f'offset:{t*4096}')
            k.ds_read_b128(v(kb(t)+4, 4), v(vKVL), m=f'offset:{t*4096+1024}')
            self.ltag(f'k{t}', 2)
        def rdv(t):
            k.ds_read_b128(v(kb(t), 4), v(vKVL), m=f'offset:{t*4096+2048}')
            k.ds_read_b128(v(kb(t)+4, 4), v(vKVL), m=f'offset:{t*4096+3072}')
            self.ltag(f'v{t}', 2)
        def maxtile(S):
            return [lambda i=i: k.v_max3_f32(v(mx + ((i >> 1) & 1)), v(S+i), v(S+i+1), v(mx + ((i >> 1) & 1))) for i in range(0, 16, 2)]
        def merge():
            return [lambda r=r: k.v_max_f32(v(S0+r), v(S0+r), v(S8+r)) for r in range(16)]
        self.lq = []
        for t in range(3): rdk(t)
        if not self.opt.get('early_reset'): self.resets(L, z=104, t1=sT4, t2=sT5)
        self.vq = []
        if L == 1:
            self.bg_wpk(0, 0, 14)
            if self.opt.get('s1a'):
                ne = self.opt.get('wae', 5)
                late = self.bg[ne:]; self.bg = self.bg[:ne]
                self.bg_wo(1, NQ, 4)
                self.bg += late
                if self.opt.get('qo'): self.bg_wpk(0, 14, 21)
                self.bgon()
            else:
                self.burst(7)
                late = self.bg; self.bg = []
                self.bg_wo(1, 0, 4)
                for f in self.bg: f.gap = 64
                self.bg += late
        def smfma(fast):
            for t in range(8):
                self.lwait(f'k{t}')
                self.mfma(SR[t], v(kb(t), 4), v(vAQ, 4), v(S0, 16) if t == 0 else 0)
                for _ in range(6):
                    if fast: fast.pop(0)()
                self.mfma(SR[t], v(kb(t)+4, 4), v(vAQ+4, 4), v(SR[t], 16))
                if t + 3 < 8: rdk(t + 3)
                if fast is not None:
                    for _ in range(5):
                        if fast: fast.pop(0)()
                    if t == 1: fast += merge() + maxtile(S0)
                    if t >= 2: fast += maxtile(SR[t-1])
        fast = []
        smfma(fast)
        fast += maxtile(SR[7])
        while fast: fast.pop(0)()
        k.v_max_f32(v(mx), v(mx), v(mx+1))
        self.xhalf('v_max_f32', mx, 60)
        k.v_sub_f32(v(mx), 0, v(mx))
        V8 = S8 + 8
        P8 = S8
        ACC = 96
        pend = []
        for t in range(8):
            S = SR[t]
            for i in range(8): k.v_pk_add_f32(v(S+2*i, 2), v(S+2*i, 2), v(mx, 2), m='op_sel_hi:[1,0]')
            for i in range(16):
                k.v_exp_f32(v(S+i), v(S+i))
                if i % 4 == 1 and pend: pend.pop(0)()
                if i % 4 == 3: self.tick()
            if t == 0:
                self.bgoff()
                k.s_waitcnt(f'vmcnt({len(self.vq)})')
                hread(2, 64)
            for i in range(8): k.v_cvt_pk_bf16_f32(v(S+i), v(S+2*i), v(S+2*i+1))
            if t == 0:
                for i in range(8):
                    k.v_and_b32(v(P8+i), v(S+i), v(M+i)); k.v_xor_b32(v(S+i), v(S+i), v(P8+i))
                self.bgoff()
                hcheck(2, 64, None)
                k.s_barrier()
                self.stamp(f'L{L} V ok')
                self.burst(4)
                self.bgon()
                self.lq = []
                for tt in range(3): rdv(tt)
                k.ds_read_b128(v(V8, 4), v(vKVL), m=f'offset:{8*4096+2048}')
                k.ds_read_b128(v(V8+4, 4), v(vKVL), m=f'offset:{8*4096+3072}')
                self.ltag('v8', 2)
            def m1(t=t, S=S):
                self.lwait(f'v{t}')
                self.mfma(ACC, v(kb(t), 4), v(S, 4), v(ACC, 16) if t else 0)
            def m2(t=t, S=S):
                self.mfma(ACC, v(kb(t)+4, 4), v(S+4, 4), v(ACC, 16))
                if t + 3 < 8: rdv(t + 3)
            pend += [m1, m2]
            if t == 0:
                def m3():
                    self.lwait('v8')
                    self.mfma(ACC, v(V8, 4), v(P8, 4), v(ACC, 16))
                pend += [m3, lambda: self.mfma(ACC, v(V8+4, 4), v(P8+4, 4), v(ACC, 16))]
        while pend: pend.pop(0)()
        self.bgoff()
        while any(getattr(f, 'wo', False) for f in self.bg): self.bg.pop(0)()
        self.o_tail(L, ACC, False)
        self.stamp(f'L{L} o pub')

    def outproj(self, L):
        k = self.k
        typ = L & 1
        G = 144
        assert not any(getattr(f, 'wo', False) for f in self.bg)
        if L < 3: self.code_pf(1024)
        k.s_add_u32(s(sT1), s(sOT_C), OB[L])
        k.s_add_u32(s(sT2), s(sT1), 4096)
        k.s_mov_b32(s(sTRY), 0)
        lp = k.newlabel('Lop')
        OW = self.opt.get('ow', 0)
        k.label(lp)
        for i in range(8): self.ws_ld(G+4*i, vL16, sT2 if i >= 4 else sT1, 1024*(i & 3))
        k.s_add_u32(s(sTRY), s(sTRY), 1)
        k.s_cmp_ge_u32(s(sTRY), MAXTRY)
        k.s_cselect_b32(s(sT6), 4 << (4*L), 0)
        k.s_or_b32(s(sERR), s(sERR), s(sT6))
        for i in range(8):
            if OW or i % 2 == 0: k.s_waitcnt(f'vmcnt({7-i if OW else 6-i})')
            if OW: k.ds_write_b128(v(vGW), v(G+4*i, 4), m=f'offset:{1024*i}')
            if i == 0:
                k.v_max3_u32(v(62), v(G), v(G+1), v(G+2)); k.v_max_u32(v(62), v(G+3), v(62))
            else:
                k.v_max3_u32(v(62), v(G+4*i), v(G+4*i+1), v(62)); k.v_max3_u32(v(62), v(G+4*i+2), v(G+4*i+3), v(62))
        k.v_cmp_eq_u32('vcc', -1, v(62))
        k.s_cmp_eq_u64('vcc', 0)
        k.s_cselect_b32(s(sT7), 1, s(sT6))
        k.s_cmp_eq_u32(s(sT7), 0)
        k.s_cbranch_scc1(lp)
        self.stamp(f'L{L} o got')
        NPRE = self.opt.get('npre', 3 if OW else 6)
        for i in range(8):
            if not OW: k.ds_write_b128(v(vGW), v(G+4*i, 4), m=f'offset:{1024*i}')
            if i < NPRE: self.mfma(vXRES, a(typ*128+4*i, 4), v(G+4*i, 4), v(vXRES, 16))
        k.s_waitcnt('lgkmcnt(0)')
        k.s_barrier()
        def breg(f): return (64 if f < 8 else 176 - 32) + 4*f
        def rdo(f):
            k.ds_read_b128(v(breg(f), 4), v((vG1, vG2, vG3)[f >> 3]), m=f'offset:{1024*(f & 7)}')
            self.ltag(f'o{f}')
        D = 8
        self.lq = []
        fill = self.cs_ops(1, L_KVL, 240, 55) if L == 0 else []
        for f in range(4): rdo(f)
        for i in range(NPRE, 8):
            self.mfma(vXRES, a(typ*128+4*i, 4), v(G+4*i, 4), v(vXRES, 16))
        for f in range(4, D): rdo(f)
        if L == 0 and self.opt.get('kf', 0) >= 2: self.flag_post(3, 60)
        if L == 0: self.touch_half(OPK + OPT)
        self.burst(3)
        for f in self.bg: f.gap = min(90, 700 // len(self.bg))
        self.bg_next = 0
        self.bgon()
        for f in range(24):
            self.lwait(f'o{f}')
            self.mfma(vXRES, a(typ*128+32+4*f, 4), v(breg(f), 4), v(vXRES, 16))
            if f + D < 24: rdo(f + D)
            for _ in range(5):
                if fill: fill.pop(0)()
        assert not fill
        self.bgoff()
        PK = 112
        last = L == self.nlayers - 1
        if not last:
            self.drain()
            k.s_add_u32(s(sT1), s(sXT_P), XB[L])
            k.v_mov_b32(v(122), '0x3f803f80'); k.v_mov_b32(v(120), 0); k.v_mov_b32(v(121), 0)
        for i in range(8): k.v_cvt_pk_bf16_f32(v(PK+i), v(vXRES+2*i), v(vXRES+2*i+1))
        if last:
            for q in range(3):
                k.buffer_store_dwordx2(v(PK+2*q, 2), v(vOUT), s(S_OUT, 4), 0, m=f'offen offset:{16*q}')
            k.s_mov_b32('exec_hi', 0)
            k.buffer_store_dwordx2(v(PK+6, 2), v(vOUT), s(S_OUT, 4), 0, m='offen offset:48')
            k.s_mov_b32('exec_hi', -1)
            self.stamp(f'L{L} out')
            return
        def st(fl):
            for q in range(3): self.ws_st(PK+2*q, vXST, sT1, 512*q, n=2, flags=fl)
            k.s_mov_b32('exec_hi', 0)
            self.ws_st(PK+6, vXST, sT1, 512*3, n=2, flags=fl)
            k.s_mov_b32('exec_hi', -1)
        self.local_stores(st)
        s1, s2 = 120, 121
        for i in range(8):
            k.v_dot2_f32_bf16(v(s1), v(PK+i), v(122), v(s1)); k.v_dot2_f32_bf16(v(s2), v(PK+i), v(PK+i), v(s2))
        k.s_lshl_b32(s(sT2), s(sW), 9); k.s_add_u32(s(sT2), s(sT2), L_STAT)
        k.v_lshl_add_u32(v(124), v(vLANE), 3, s(sT2))
        k.ds_write_b64(v(124), v(s1, 2))
        for i in range(8):
            k.v_lshlrev_b32(v(vXRES+2*i), 16, v(PK+i)); k.v_and_b32(v(vXRES+2*i+1), '0xffff0000', v(PK+i))
        self.stamp(f'L{L} x pub')

    def build(self):
        k = self.k
        self.prologue()
        for L in range(self.nlayers):
            if L > 0: self.load_gemm_kv(L)
            if L & 1: self.layer_B(L)
            else: self.layer_A(L)
            self.outproj(L)
        if self.ts:
            k.s_memrealtime(s(sTS, 2)); k.s_waitcnt('lgkmcnt(0)')
            k.v_writelane_b32(v(vNEGB), s(90), 59); k.v_writelane_b32(v(vNEGB), s(sTS), 60); k.v_writelane_b32(v(vNEGB), s(92), 61)
            k.v_writelane_b32(v(vNEGB), s(sERR), 63)
            k.v_writelane_b32(v(vNEGB), s(sMODE), 62)
            k.v_lshlrev_b32(v(60), 2, v(vLANE))
            k.buffer_store_dword(v(vNEGB), v(60), s(S_WS, 4), s(sTSO), m='offen')
        k.label('Lend')
        k.s_endpgm()
        self.bgoff()
        while self.cold: self.cold.pop(0)()
        k.label('Lcode_end')
        body = k.finish()
        hdr = open('cdna_kernels/' + NAME + '.s.ref').read().split('; Override launch')[0]
        return hdr + f"""; Generated by the author's own script (gen/gen.py + gen/asmlib.py); no compiler output.
; One persistent launch: 256 workgroups (one per CU) x 4 waves run all four layers.
;   workgroup = (row block r of 128 tokens, head h) for LN+QKV GEMM / attention core, and
;               (32-token tile, 112-column group) for the output projection + residual.
;   LayerNorm is applied algebraically: (x W - mean * colsum(W)) * rstd, statistics travel with x.
;   Hand-offs between workgroups go through d_ws: buffers are reset to a sentinel in this launch and consumers
;   verify every dword; start-up steps are ordered by flags that carry a launch-unique tag (posted in d_debug).
;   Row blocks whose 16 workgroups really sit on one XCD (checked at run time) exchange through that L2 with plain
;   stores, otherwise write-through (sc1) stores are used.  All spins are bounded.
; @launch grid=(256,1,1) block=(256,1,1) lds={LDS_BYTES}
.amdgcn_target "amdgcn-amd-amdhsa--gfx950"
.text
.globl {NAME}_kernel
.p2align 8
.type {NAME}_kernel,@function
{NAME}_kernel:
{body}.section .rodata,"a"
.p2align 6
.amdhsa_kernel {NAME}_kernel
  .amdhsa_next_free_vgpr 512
  .amdhsa_next_free_sgpr 102
  .amdhsa_accum_offset 256
  .amdhsa_group_segment_fixed_size 0
  .amdhsa_kernarg_size 80
  .amdhsa_user_sgpr_count 2
  .amdhsa_user_sgpr_kernarg_segment_ptr 1
  .amdhsa_system_sgpr_workgroup_id_x 1
.end_amdhsa_kernel
"""

if __name__ == '__main__':
    import argparse
    ap = argparse.ArgumentParser()
    ap.add_argument('-o', default='cdna_kernels/' + NAME + '.s')
    ap.add_argument('--ts', action='store_true')
    ap.add_argument('--slow', action='store_true')
    ap.add_argument('--noalias', action='store_true')
    ap.add_argument('--tlb', action='store_true')
    ap.add_argument('--opt', action='append', default=[])
    ap.add_argument('--gmiss', type=int, default=250)
    ap.add_argument('--ghit', type=int, default=90)
    ap.add_argument('--hk', type=int, default=20)
    ap.add_argument('--hv', type=int, default=27)
    ap.add_argument('--layers', type=int, default=4)
    args = ap.parse_args()
    g = Gen(ts=args.ts, force_slow=args.slow, nlayers=args.layers, alias=not args.noalias, tlb=args.tlb, hk=args.hk, hv=args.hv, gmiss=args.gmiss, ghit=args.ghit, opt={o.split('=')[0]: (int(o.split('=')[1]) if '=' in o else 1) for o in args.opt})
    src = g.build()
    if not g.opt.get('noalign'):
        from alignpass import align
        src, nw, nn = align(src, g.opt.get('minrun', 2), g.opt.get('noprun', 4))
        print('aligned: widened', nw, 'nops', nn)
    open(args.o, 'w').write(src)
    if args.ts:
        open(args.o + '.tsnames', 'w').write('\n'.join(getattr(g, 'tsnames', [])))
    print('instructions', g.k.nins, 'bytes of source', len(src))
```

```python
import sys, math, struct
from asmlib import *

NAME = "interleave_layers__linear_kernel_hedgehog__sliding_block__prompt"

def f32(x):
    return '0x%08x' % struct.unpack('<I', struct.pack('<f', x))[0]

MB = 1 << 20
XB = [0*MB, 2*MB, 4*MB]
OB = [6*MB, 8*MB, 10*MB, 12*MB]
KVP = {0: 14*MB, 2: 15*MB}
KVH = {1: 16*MB, 3: 20*MB}
TS_BASE = 24*MB
FLG = 24*MB + 768*1024
KVR = {0: 24*MB + 512*1024, 2: 24*MB + 576*1024}
FR = 1024
WPK = [25*MB, 25*MB + 16*84*FR]
OPK = 28*MB
OPT = 512*FR
CSP = 29*MB
WS_BYTES = 30*MB

SEG = 28672
L_WK, L_WV, L_WQ = 0, SEG, 2*SEG
L_KVL = 3*SEG
L_PHI = L_KVL
PHI_SIGN = 32*264
L_VOWN = L_KVL + 17408
L_KVF = L_KVL + 25600
L_CS1 = L_KVL + 29696
L_STAT = L_KVL + 32768 + 1024
L_RINV = L_KVL + 32768
L_GATH = L_KVL + 45056
L_ST = 114688
L_CS0 = L_KVL + 65536
L_RINV0 = L_KVL + 69632
LDS_BYTES = 163840
assert L_GATH + 32768 == LDS_BYTES

S_WS, S_AX, S_WA, S_WB, S_WPHI, S_WOA, S_WOB, S_OUT, S_DBG, S_CODE = 8, 12, 16, 20, 24, 28, 32, 36, 40, 44
sR, sH, sW, sTT, sCG, sMODE, sXCC, sTRY = 48, 49, 50, 51, 52, 53, 54, 55
sXT, sOT_P, sOT_C, sXT_P, sKVP_P, sKVP_C, sKVH_P, sKVH_C = 56, 57, 58, 59, 60, 61, 62, 63
sT0, sT1, sT2, sT3, sT4, sT5 = 64, 65, 66, 67, 68, 69
sM28 = 70
sTMIN = 72
sWPKH = 73
sLDSW = 74
sSTW = 75
sTS = 24
sTSO = 93
sERR = 79
sB0, sB1 = 80, 81
sC0, sC1 = 82, 83
sP0 = 84
sOPKC = 86
sOM = 87
sT6, sT7 = 88, 89
sSLOT = 94
sJUNK = 72
sPFO = 70
sB2 = 75
sHA, sHB = 46, 47
sQA, sQB, sHEAD = 76, 77, 78
sE0, sE1 = 4, 5

vLANE, vL16, vWRD0, vL14, vWQ, vNEGB, vHW, vXST, vSST, vSLD = 0, 1, 2, 3, 4, 5, 6, 7, 8, 9
vPHW, vPHR, vRVW, vRVR, vKVL, vOUT, vG1, vG2, vG3, vHFM, vBIG, vII, vVOW, vGW = 10, 11, 12, 13, 14, 15, 16, 17, 18, 19, 20, 21, 22, 23
vONE = 2
vWPHI = 24
vXRES = 32
vCS = 48
vMB, vRINV = 54, 56
vT = 54
vAK, vAV, vAQ = 64, 80, 96
vWF = 112
vXF = 144
vS = 112

BIGF = 3.0e38
LOG2E = 1.4426950408889634
MAXTRY = 200000
MFMA = 'v_mfma_f32_32x32x16_bf16'

class Gen:
    def __init__(self, ts=False, force_slow=False, nlayers=4, alias=True, tlb=False, hk=20, hv=27, gmiss=250, ghit=90, opt={}):
        self.tlb = tlb
        self.opt = dict(s0a=1, s1a=1, s2a=1, cpf2=1, woq=2, f0=1, off0=21, g0=40, et=1, h1=27, rp=1, s1l=1, qi=2, we=1); self.opt.update(opt)
        self.gmiss, self.ghit = gmiss, ghit
        self.hk, self.hv = hk, hv
        if alias:
            XB[2] = XB[0]; OB[2] = OB[0]; OB[3] = OB[1]
        self.k = Asm()
        self.ts = ts
        self.force_slow = force_slow
        self.nlayers = nlayers
        self.nts = 0
        self.bg = []; self.bg_log = []
        self._owner = None
        self._hi = None
        self.lq = []; self.vq = []
        self.cold = []

    @property
    def m0_owner(self):
        return self._owner if self.k.watch else None
    @m0_owner.setter
    def m0_owner(self, val):
        self._owner = val

    def stamp(self, name):
        if not self.ts or self.opt.get('lite'): return
        k = self.k
        k.c(f'stamp {self.nts}: {name}')
        (k.s_memrealtime if self.opt.get('rt') else k.s_memtime)(s(sTS, 2))
        k.s_waitcnt('lgkmcnt(0)')
        k.v_writelane_b32(v(vNEGB), s(sTS), self.nts)
        self.tsnames = getattr(self, 'tsnames', []) + [name]
        self.nts += 1

    def tick(self, n=1):
        pass

    def _hook(self):
        if self.bg and self.k.est >= self.bg_next:
            f = self.bg.pop(0)
            f()
            self.bg_log.append(f)
            self.bg_next = self.k.est + getattr(f, 'gap', 90)

    def bgon(self, delay=0):
        self.k.hook = self._hook; self.k.hook_ok = True
        self.bg_next = max(getattr(self, 'bg_next', 0), self.k.est + delay)

    def bgoff(self):
        self.k.hook_ok = False

    def burst(self, n):
        for _ in range(n):
            if self.bg:
                f = self.bg.pop(0); f(); self.bg_log.append(f)
        self.bg_next = self.k.est + 200

    def drain(self):
        while self.bg: self.bg.pop(0)()

    def ltag(self, tag, n=1):
        self.lq += [tag]*n
    def lwait(self, tag=None):
        if tag is None:
            self.k.s_waitcnt('lgkmcnt(0)'); self.lq = []; return
        if tag not in self.lq: return
        idx = len(self.lq) - 1 - self.lq[::-1].index(tag)
        n = len(self.lq) - 1 - idx
        self.k.s_waitcnt(f'lgkmcnt({min(n, 15)})')
        self.lq = self.lq[idx+1:]
    def vtag(self, tag, n=1):
        self.vq += [tag]*n
    def vwait(self, tag=None):
        if tag is None:
            self.k.s_waitcnt('vmcnt(0)'); self.vq = []; return
        if tag not in self.vq: return
        idx = len(self.vq) - 1 - self.vq[::-1].index(tag)
        n = len(self.vq) - 1 - idx
        assert n <= 63
        self.k.s_waitcnt(f'vmcnt({n})')
        self.vq = self.vq[idx+1:]

    def mfma(self, d, a_, b_, c):
        self.k(MFMA, v(d, 16), a_, b_, c)

    def srd(self, d, b, n):
        k = self.k
        k.s_mov_b32(s(d), s(b)); k.s_and_b32(s(d+1), s(b+1), '0xffff')
        k.s_mov_b32(s(d+2), n); k.s_mov_b32(s(d+3), '0x20000')

    def _so(self, sbase, off):
        hi = off & ~0xfff
        if not hi: return s(sbase)
        if self._hi != (sbase, hi):
            self.k.s_add_u32(s(sT5), s(sbase), hi); self._hi = (sbase, hi)
        return s(sT5)

    def ws_ld(self, dst, voff, sbase, off, n=4, flags='sc1'):
        op = {1: 'buffer_load_dword', 2: 'buffer_load_dwordx2', 4: 'buffer_load_dwordx4'}[n]
        so = self._so(sbase, off)
        self.k(op, v(dst, n), v(voff), s(S_WS, 4), so, m=f'offen offset:{off & 0xfff} {flags}'.strip())

    def ws_st(self, src, voff, sbase, off, n=4, flags=''):
        op = {1: 'buffer_store_dword', 2: 'buffer_store_dwordx2', 4: 'buffer_store_dwordx4'}[n]
        so = self._so(sbase, off)
        self.k(op, v(src, n), v(voff), s(S_WS, 4), so, m=f'offen offset:{off & 0xfff} {flags}'.strip())

    def nohi(self):
        self._hi = None

    def local_stores(self, fn):
        k = self.k
        ls, ld = k.newlabel('Lslow'), k.newlabel('Ldone')
        k.s_cmp_eq_u32(s(sMODE), 0)
        k.s_cbranch_scc1(ls)
        self.nohi(); fn('')
        k.label(ld)
        self.nohi()
        def cold():
            k.label(ls)
            self.nohi(); fn('sc1'); self.nohi()
            k.s_branch(ld)
        self.cold.append(cold)

    def check(self, regs):
        k = self.k
        t = 62
        regs = list(regs)
        k.v_max3_u32(v(t), v(regs[0]), v(regs[1]), v(regs[2]))
        rest = regs[3:]
        while rest:
            if len(rest) >= 2:
                k.v_max3_u32(v(t), v(rest[0]), v(rest[1]), v(t)); rest = rest[2:]
            else:
                k.v_max_u32(v(t), v(rest[0]), v(t)); rest = rest[1:]
        k.v_cmp_eq_u32('vcc', -1, v(t))
        k.s_cmp_eq_u64('vcc', 0)

    def poll(self, issue, regs, code, first_wait=None, sleep=0):
        k = self.k
        lp, lo = k.newlabel('Lpoll'), k.newlabel('Lok')
        def loop():
            k.s_mov_b32(s(sTRY), 0)
            l2, l3 = k.newlabel('Lp2'), k.newlabel('Lp3')
            k.s_branch(l3) if sleep else None
            k.label(l2)
            if sleep: k.s_sleep(sleep)
            k.label(l3)
            self.nohi(); issue(); self.nohi()
            k.s_add_u32(s(sTRY), s(sTRY), 1)
            k.s_cmp_ge_u32(s(sTRY), MAXTRY)
            k.s_cselect_b32(s(sT6), code, 0)
            k.s_or_b32(s(sERR), s(sERR), s(sT6))
            k.s_waitcnt('vmcnt(0)')
            self.check(regs)
            k.s_cselect_b32(s(sT7), 1, s(sT6))
            k.s_cmp_eq_u32(s(sT7), 0)
            k.s_cbranch_scc1(l2)
        if first_wait is None:
            loop()
        else:
            k.s_mov_b32(s(sTRY), 0)
            k.s_mov_b32(s(sT6), 0)
            l2, l3 = k.newlabel('Lp2'), k.newlabel('Lp3')
            assert first_wait == 0
            k.s_branch(l3)
            k.label(l2)
            if self.ts: k.s_add_u32(s(sERR), s(sERR), 1 << 16)
            if sleep: k.s_sleep(sleep)
            self.nohi(); issue(); self.nohi()
            k.s_add_u32(s(sTRY), s(sTRY), 1)
            k.s_cmp_ge_u32(s(sTRY), MAXTRY)
            k.s_cselect_b32(s(sT6), code, 0)
            k.s_or_b32(s(sERR), s(sERR), s(sT6))
            k.label(l3)
            k.s_waitcnt('vmcnt(0)')
            self.check(regs)
            k.s_cselect_b32(s(sT7), 1, s(sT6))
            k.s_cmp_eq_u32(s(sT7), 0)
            k.s_cbranch_scc1(l2)

    def xhalf(self, op, dst, t):
        k = self.k
        k.v_mov_b32(v(t), v(dst))
        k.v_permlane32_swap_b32(v(dst), v(t))
        k(op, v(dst), v(dst), v(t))

    def rbf(self, dst, src):
        k = self.k
        k.v_cvt_pk_bf16_f32(v(dst), v(src), v(src))
        k.v_and_b32(v(dst), '0xffff0000', v(dst))

    def prologue(self):
        k = self.k
        k.label('Lstart')
        k.s_load_dwordx2(s(S_WA, 2), s(0, 2), 8)
        k.s_load_dwordx2(s(S_WOA, 2), s(0, 2), 24)
        k.s_load_dwordx16(s(64, 16), s(0, 2), 0)
        k.s_load_dwordx4(s(80, 4), s(0, 2), 64)
        k.s_getpc_b64(s(4, 2))
        k.label('Lpc')
        k.s_memrealtime(s(90, 2))
        if self.ts: k.s_memtime(s(92, 2))
        k.s_cmp_ge_u32(s(2), 256)
        k.s_cbranch_scc1('Lend')
        k.s_lshr_b32(s(6), s(2), 3)
        k.s_sub_u32(s(S_CODE), s(4), 'Lpc-Lstart'); k.s_subb_u32(s(5), s(5), 0)
        k.s_and_b32(s(S_CODE+1), s(5), '0xffff')
        k.s_mov_b32(s(S_CODE+2), 'Lcode_end-Lstart'); k.s_mov_b32(s(S_CODE+3), '0x20000')
        k.v_lshrrev_b32(v(1), 6, v(0))
        k.v_and_b32(v(vLANE), 63, v(0))
        k.v_readfirstlane_b32(s(sW), v(1))
        k.s_lshl_b32(s(3), s(6), 11)
        k.v_lshlrev_b32(v(2), 5, v(vLANE))
        lcp = k.newlabel('Lcp')
        k.s_cmp_lg_u32(s(sW), 3); k.s_cbranch_scc1(lcp)
        k.buffer_load_dword(v(240), v(2), s(S_CODE, 4), s(3), m='offen')
        k.label(lcp)
        k.s_and_b32(s(sH), s(6), 15)
        k.s_and_b32(s(3), s(2), 7)
        k.s_lshr_b32(s(7), s(6), 4)
        k.s_lshl_b32(s(3), s(3), 1)
        k.s_add_u32(s(sR), s(3), s(7))
        n, hf, r4, ch, c4, l2 = 60, 61, 62, 63, 59, 58
        k.v_and_b32(v(c4), 3, v(vLANE))
        k.v_lshrrev_b32(v(l2), 2, v(vLANE))
        vODMA, vPDMA = 97, 98
        k.v_mul_u32_u24(v(vPDMA), 2688, v(l2))
        k.v_lshl_add_u32(v(vPDMA), v(c4), 4, v(vPDMA))
        k.v_mul_u32_u24(v(vODMA), 896, v(l2))
        k.v_lshl_add_u32(v(vODMA), v(c4), 4, v(vODMA))
        k.v_mul_u32_u24(v(96), 56, v(l2))
        k.v_lshl_add_u32(v(96), v(c4), 4, v(96))
        k.v_lshlrev_b32(v(vL16), 4, v(vLANE))
        k.s_lshl_b32(s(sOM), s(sR), 2); k.s_add_u32(s(sOM), s(sOM), s(sW))
        sRHO, sPH, sPD = 101, 100, 95
        k.s_lshl_b32(s(sRHO), s(sR), 4); k.s_add_u32(s(sRHO), s(sRHO), s(sH))
        k.s_and_b32(s(sPH), s(sRHO), 3); k.s_lshl_b32(s(sPH), s(sPH), 2); k.s_add_u32(s(sPH), s(sPH), s(sW))
        sPS = 97
        u0, u1, u2, u3, u4, uST = 56, 57, 58, 59, 60, 61
        k.s_mov_b32(s(S_WA+2), 1204224); k.s_mov_b32(s(S_WA+3), '0x20000')
        k.s_mov_b32(s(S_WOA+2), 401408); k.s_mov_b32(s(S_WOA+3), '0x20000')
        k.s_mul_i32(s(uST), s(sW), 7168); k.s_add_u32(s(uST), s(uST), L_ST)
        k.s_lshr_b32(s(u1), s(sRHO), 2)
        k.s_cmp_ge_u32(s(u1), 28); k.s_cselect_b32(s(u2), 1, 0)
        k.s_cmp_ge_u32(s(u1), 56); k.s_cselect_b32(s(u2), 2, s(u2))
        k.s_mul_i32(s(u3), s(u2), 28); k.s_sub_u32(s(u3), s(u1), s(u3)); k.s_mul_i32(s(u3), s(u3), 16*2688)
        k.s_add_u32(s(u2), s(u2), 1); k.s_cmp_eq_u32(s(u2), 3); k.s_cselect_b32(s(u2), 0, s(u2))
        k.s_mul_i32(s(u2), s(u2), 896); k.s_add_u32(s(u3), s(u3), s(u2))
        k.s_mul_i32(s(u0), s(sPH), 56); k.s_add_u32(s(sPS), s(u3), s(u0))
        k.s_add_u32(s(u3), s(u1), 8); k.s_mul_i32(s(u3), s(u3), 16*2688); k.s_add_u32(s(sPS+1), s(u3), s(u0))
        k.s_sub_u32(s(u4), s(sRHO), 80)
        k.s_lshr_b32(s(u2), s(u4), 3); k.s_bfe_u32(s(u4), s(u4), 2 | (1 << 16))
        k.s_mul_i32(s(u3), s(u2), 28*896); k.s_add_u32(s(u0), s(u0), s(u3)); k.s_mul_i32(s(u3), s(u4), 16*896); k.s_add_u32(s(u0), s(u0), s(u3))
        k.s_cmp_ge_u32(s(sRHO), 80); k.s_cselect_b32(s(sPS+1), s(u0), s(sPS+1))
        k.s_mov_b32('m0', s(uST))
        k.s_waitcnt('lgkmcnt(0)')
        self.vq = []
        k.buffer_load_dwordx4(v(vPDMA), s(S_WA, 4), s(sPS), m='offen lds')
        def pack_dma1(typ, slot, sbase):
            la, lb = k.newlabel('La'), k.newlabel('Lb')
            k.s_add_u32('m0', s(sbase), slot*1024)
            k.s_cmp_ge_u32(s(sRHO), 80); k.s_cbranch_scc1(la)
            k.buffer_load_dwordx4(v(vPDMA), s(S_WB if typ else S_WA, 4), s(sPS+1), m='offen lds')
            k.s_branch(lb)
            k.label(la)
            k.buffer_load_dwordx4(v(vODMA), s(S_WOB if typ else S_WOA, 4), s(sPS+1), m='offen lds')
            k.label(lb)
        pack_dma1(0, 1, uST)
        self.vtag('pack', 2)
        self.srd(S_DBG, 80, 256)
        k.s_add_u32(s(7), s(2), s(sW)); k.s_lshl_b32(s(7), s(7), 8)
        k.s_andn2_b32(s(3), s(90), 15); k.s_or_b32(s(4), s(91), 0x40000000)
        k.v_mov_b32(v(56), s(3)); k.v_mov_b32(v(57), s(4))
        k.s_mov_b64('exec', 1)
        k.buffer_store_dwordx2(v(56, 2), v(vLANE), s(S_DBG, 4), s(7), m='offen sc1'); self.vtag('tag')
        k.s_mov_b64('exec', -1)
        self.srd(S_AX, 64, 1835008); self.srd(S_WPHI, 68, 25088)
        self.srd(S_WB, 74, 1204224); self.srd(S_WOB, 76, 401408)
        self.srd(S_OUT, 78, 1835008); self.srd(S_WS, 82, WS_BYTES)
        k.s_lshl_b32(s(sLDSW), s(sW), 10)
        k.s_mov_b32(s(sSTW), s(uST))
        def pack_dst():
            k.s_mul_i32(s(sT2), s(sPH), 84*FR); k.s_mul_i32(s(sT3), s(u1), FR); k.s_add_u32(s(sPD), s(sT2), s(sT3))
            k.s_add_u32(s(sPD), s(sPD), WPK[0])
            k.s_add_u32(s(sPD+1), s(sPD), 64*FR)
            k.s_mul_i32(s(sT3), s(sPH), 32*FR); k.s_mul_i32(s(u2), s(u2), 2*FR); k.s_add_u32(s(sT3), s(sT3), s(u2))
            k.s_mul_i32(s(u4), s(u4), FR); k.s_add_u32(s(sT3), s(sT3), s(u4)); k.s_add_u32(s(sT3), s(sT3), OPK)
            k.s_cmp_ge_u32(s(sRHO), 208); k.s_cselect_b32(s(sT3), 0x7000000, s(sT3))
            k.s_cmp_ge_u32(s(sRHO), 80); k.s_cselect_b32(s(sPD+1), s(sT3), s(sPD+1))
            k.s_mul_i32(s(sC0), s(sPH), 10752); k.s_lshl_b32(s(sT1), s(u1), 7)
            k.s_add_u32(s(sC0), s(sC0), s(sT1)); k.s_add_u32(s(sC0), s(sC0), CSP)
            k.s_add_u32(s(sC1), s(sC0), 64*128)
            k.s_cmp_ge_u32(s(sRHO), 80); k.s_cselect_b32(s(sC1), 0x7000000, s(sC1))
        def packb_dma():
            k.s_add_u32('m0', s(sSTW), 2*1024)
            k.buffer_load_dwordx4(v(vPDMA), s(S_WB, 4), s(sPS), m='offen lds')
            pack_dma1(1, 3, sSTW)
            self.vtag('packb', 2)
        if self.opt.get('s1e'): packb_dma()
        k.s_mul_i32(s(sT1), s(sH), 1568)
        k.s_add_u32('m0', s(sSTW), 5*1024)
        k.buffer_load_dwordx4(v(96), s(S_WPHI, 4), s(sT1), m='offen lds')
        k.s_add_u32(s(sT1), s(sT1), 16*56)
        k.s_add_u32('m0', s(sSTW), 6*1024)
        k.buffer_load_dwordx4(v(96), s(S_WPHI, 4), s(sT1), m='offen lds')
        self.vtag('phi', 2)
        if self.tlb:
            k.v_lshlrev_b32(v(2), 20, v(vLANE))
            k.s_lshl_b32(s(sT1), s(2), 7)
            k.s_mov_b32('exec_hi', 0)
            k.buffer_load_dword(a(255), v(2), s(S_WS, 4), s(sT1), m='offen')
            k.buffer_load_dword(a(254), v(2), s(S_OUT, 4), s(sT1), m='offen')
            k.s_mov_b32('exec_hi', -1)
            self.vtag('tlb', 2)
        if self.ts:
            k.s_lshl_b32(s(sT1), s(2), 2); k.s_add_u32(s(sT1), s(sT1), s(sW)); k.s_lshl_b32(s(sT1), s(sT1), 8)
            k.s_add_u32(s(sTSO), s(sT1), TS_BASE)
            k.v_mov_b32(v(vNEGB), 0)
        self.stamp('pack issued')
        vX0, vBW0, vBW1, vBR = 101, 102, 103, 104
        vPK8, vPK4 = 99, 100
        k.v_lshrrev_b32(v(56), 3, v(vLANE))
        k.s_lshl_b32(s(sT1), s(sOM), 5)
        k.v_add_u32(v(55), s(sT1), v(56)); k.v_mul_u32_u24(v(vX0), 896, v(55))
        k.v_and_b32(v(55), 7, v(vLANE))
        k.v_lshrrev_b32(v(56), 4, v(vLANE)); k.v_xor_b32(v(55), v(55), v(56))
        k.v_lshl_add_u32(v(vX0), v(55), 4, v(vX0))
        k.v_xor_b32(v(vBW0), 64, v(vX0))
        sC0_ = 99
        k.s_and_b32(s(sT1), s(sR), 1); k.s_mul_i32(s(sT1), s(sT1), 3); k.s_add_u32(s(sC0_), s(sH), s(sT1))
        k.s_cmp_ge_u32(s(sC0_), 7); k.s_cselect_b32(s(sT1), 7, 0); k.s_cmp_ge_u32(s(sC0_), 14); k.s_cselect_b32(s(sT1), 14, s(sT1))
        k.s_sub_u32(s(sC0_), s(sC0_), s(sT1))
        def line(dst, i):
            k.s_add_u32(s(dst), s(sC0_), i)
            k.s_cmp_ge_u32(s(dst), 7); k.s_cselect_b32(s(sT5), 7, 0); k.s_sub_u32(s(dst), s(dst), s(sT5))
        sSL = 16
        def wprep():
            for ii in range(7):
                line(sT4, ii)
                k.s_lshl_b32(s(sT4), s(sT4), 12)
                k.s_add_u32(s(sT4), s(sT4), s(sWPKH))
                k.s_add_u32(s(sSL+ii), s(sT4), WPK[0])
        def wdma(segs, ii):
            for g in segs:
                k.s_add_u32('m0', s(sLDSW), g*SEG + ii*4096)
                so = sSL + ii
                if g:
                    k.s_add_u32(s(sT5), s(sSL+ii), g*28*FR); so = sT5
                k.buffer_load_dwordx4(v(vL14), s(S_WS, 4), s(so), m='offen sc1 lds')
                self.vtag('wq' if g == 2 else f'w{ii}')
        def xload(c):
            line(sT0, c)
            k.s_lshl_b32(s(sT0), s(sT0), 7)
            for g in range(4):
                if g: k.s_add_u32(s(sT0), s(sT0), 8*896)
                k.s_add_u32('m0', s(sLDSW), (4*c+g)*4096)
                k.buffer_load_dwordx4(v(vBW0 if g & 1 else vX0), s(S_AX, 4), s(sT0), m='offen lds')
            self.vtag(f'x{c}', 4)
        def xread(c):
            for sp in range(4):
                k.ds_read_b128(v(vXF+4*(4*c+sp), 4), v((vBR if c < 4 else 84)+sp), m=f'offset:{(c & 3)*16384}')
            self.ltag(f'b{c}', 4)
        ones = 57
        def xstat(c):
            for i in range(16):
                x = vXF + 16*c + i
                k.v_dot2_f32_bf16(v(60), v(x), v(ones), v(60))
                k.v_dot2_f32_bf16(v(61), v(x), v(x), v(61))
        def st1(reg, sb, add, off=0, tag='st', frag=False):
            so = sb
            if add:
                k.s_add_u32(s(sT2), s(sb), add); so = sT2
            k.buffer_store_dwordx4(v(reg, 4), v(vL14 if frag else vL16), s(S_WS, 4), s(so), m=f'offen offset:{off} sc1')
            self.vtag(tag)
        X0L = self.opt.get('x0l', 0)
        if not X0L: xload(0)
        pack_dst()
        self.setup1()
        self.stamp('setup1')
        k.v_mov_b32(v(ones), '0x3f803f80')
        vPK1a, vPK1b = 110, 111
        k.s_cmp_ge_u32(s(sRHO), 80); k.s_cselect_b64('vcc', -1, 0); k.s_cselect_b32(s(sT1), 2, 1); k.s_lshl_b32(s(sT1), s(sT1), 8)
        k.v_cndmask_b32(v(vPK1a), v(vPK8), v(vPK4), 'vcc')
        k.v_add_u32(v(vPK1b), s(sT1), v(vPK1a))
        sPADM = 7
        k.s_sub_u32(s(sT1), s(sRHO), 80); k.s_bitcmp1_b32(s(sT1), 2); k.s_cselect_b32(s(sPADM), -1, 0)
        k.s_cmp_ge_u32(s(sRHO), 80); k.s_cselect_b32(s(sPADM), s(sPADM), 0)
        def pack_out(typ, slot, P, dadd):
            for j in range(2):
                k.ds_read_b64_tr_b16(v(P+2*j, 2), v(vPK8), m=f'offset:{slot*1024 + j*256}')
            k.ds_read_b64_tr_b16(v(P+4, 2), v(vPK1a), m=f'offset:{slot*1024 + 1024}')
            k.ds_read_b64_tr_b16(v(P+6, 2), v(vPK1b), m=f'offset:{slot*1024 + 1024}')
            k.s_waitcnt('lgkmcnt(2)')
            st1(P, sPD, dadd[0], frag=True)
            k.s_waitcnt('lgkmcnt(0)')
            k.s_mov_b32('exec_lo', 0); k.s_mov_b32('exec_hi', s(sPADM))
            k.v_mov_b32(v(P+6), 0); k.v_mov_b32(v(P+7), 0)
            k.s_mov_b64('exec', -1)
            if typ:
                k.s_mov_b32(s(sT3), dadd[0]); k.s_cmp_ge_u32(s(sRHO), 80); k.s_cselect_b32(s(sT3), dadd[1], s(sT3))
                k.s_add_u32(s(sPD+1), s(sPD+1), s(sT3))
            st1(P+4, sPD+1, 0, frag=True)
            A_, B_ = 76, 78
            k.v_mov_b32(v(A_), 0); k.v_mov_b32(v(B_), 0)
            for i in range(4):
                k.v_dot2_f32_bf16(v(A_), v(P+i), v(ones), v(A_)); k.v_dot2_f32_bf16(v(B_), v(P+4+i), v(ones), v(B_))
            k.v_permlane32_swap_b32(v(A_), v(B_))
            k.v_add_f32(v(A_), v(A_), v(B_))
            k.v_and_b32(v(B_), 31, v(vLANE)); k.v_lshlrev_b32(v(B_), 2, v(B_))
            k.s_mov_b32('exec_hi', 0)
            k.buffer_store_dword(v(A_), v(B_), s(S_WS, 4), s(sC0), m='offen sc1')
            k.s_mov_b32('exec_hi', -1); k.s_mov_b32('exec_lo', 0)
            k.buffer_store_dword(v(A_), v(B_), s(S_WS, 4), s(sC1), m='offen sc1')
            k.s_mov_b32('exec_lo', -1)
            self.vtag('st', 2)
            if typ == 0:
                k.s_add_u32(s(sC0), s(sC0), 172032); k.s_add_u32(s(sC1), s(sC1), 172032)
        self.vwait('pack')
        self.stamp('pack in')
        pack_out(0, 0, 64, (0, 0))
        EP = 80
        k.v_mov_b32(v(EP+2), 0)
        k.buffer_load_dwordx2(v(EP, 2), v(EP+2), s(S_DBG, 4), 0, m='offen sc1'); self.vtag('ep')
        self.stamp('pack out')
        def resid():
            for q in range(4):
                k.buffer_load_dwordx2(a(128+2*q, 2), v(vOUT), s(S_AX, 4), 0, m=f'offen offset:{16*q}')
            self.vtag('res', 4)
        RP = 1
        NX = self.opt.get('nx', 3)
        S1E = self.opt.get('s1e', 0)
        def s1_frags():
            self.vwait('packb')
            pack_out(1, 2, 64, (WPK[1] - WPK[0], OPT))
        def s1_resets():
            for i in range(4): k.v_mov_b32(v(108+i), -1)
            k.s_lshl_b32(s(97), s(sR), 12); k.s_add_u32(s(97), s(97), s(sKVP_C))
            k.s_lshl_b32(s(98), s(sH), 12); k.s_add_u32(s(98), s(98), s(sLDSW))
            k.s_lshl_b32(s(sT3), s(sR), 16); k.s_add_u32(s(98), s(98), s(sT3))
            k.s_mov_b32(s(sT3), 0x7000000); k.s_cmp_lt_u32(s(sR), 2); k.s_cselect_b32(s(sT3), KVR[0], s(sT3)); k.s_add_u32(s(98), s(98), s(sT3))
            st1(108, 97, KVP[0]); st1(108, 98, 0)
        def x0work():
            self.vwait('x0')
            self.lq = []
            xread(0)
            for j in range(2):
                for jj in range(2):
                    k.ds_read_b64_tr_b16(v(vWPHI+4*j+2*jj, 2), v(vPK4), m=f'offset:{5120 + j*1024 + jj*512}')
            self.lwait()
            k.s_mov_b32('exec_lo', 0)
            k.v_mov_b32(v(vWPHI+6), 0); k.v_mov_b32(v(vWPHI+7), 0)
            k.s_mov_b64('exec', s(sP0, 2))
            for i in range(8): k.v_mov_b32(v(vWPHI+i), 0)
            k.s_mov_b64('exec', -1)
            xstat(0)
            wprep()
        if X0L == 1: xload(0)
        if X0L != 2:
            if S1E: s1_frags()
            else: packb_dma()
            xload(1)
        self.setup2()
        if X0L == 2:
            packb_dma(); xload(0); xload(1)
        for i in range(4): k.v_mov_b32(v(60+i), 0)
        if S1E: s1_resets()
        for c in range(2, NX): xload(c)
        LATE = self.opt.get('xl', 0) or X0L
        if not LATE: x0work()
        self.vwait('ep')
        self.tag_get(EP)
        k.s_barrier()
        self.stamp('acked')
        self.flag_post(0, EP)
        S1L = self.opt.get('s1l', 0)
        XA = self.opt.get('xa', 0)
        if not S1E and not S1L:
            s1_frags(); s1_resets()
        for c in range(NX, 7): xload(c)
        if not self.opt.get('rl'): resid()
        if LATE: x0work()
        WE = self.opt.get('we', 0)
        for c in range(1, 4 if WE else 7):
            if c == self.opt.get('qi', 3):
                self.quad_issue(72)
                if S1L == 1:
                    self.lwait(); s1_frags(); s1_resets()
            self.vwait(f'x{c}')
            xread(c)
            if 2 <= c <= (6 if XA else 4):
                self.lwait(f'b{c-1}')
                xstat(c-1)
        self.lwait()
        self.stamp('x0 done')
        self.quad_wait(72)
        self.code_pf(1024)
        self.stamp('flags')
        L_CT = L_KVL + 32768 + 4096*4 + 8192
        if self.opt.get('kf'):
            for ii in range(7): wdma((0,), ii)
            self.cs_dma(0, L_CT)
            self.flag_issue(0, 32)
            xstat(4); xstat(5)
            for ii in range(3): wdma((1,), ii)
            xstat(6)
            self.stats_finish(60, 61)
            for ii in range(3, 7): wdma((1,), ii)
            self.vtag('wv', 0)
            self.stamp('W issued')
            self.flag_wait(0, 32)
            k.s_waitcnt('lgkmcnt(0)')
            k.s_barrier()
            self.stamp('K in')
            D = 6
            self.lq = []
            def rdk(st):
                k.ds_read_b128(v(vWF + (st % 8)*4, 4), v(vL16), m=f'offset:{L_WK + st*1024}'); self.ltag(f'w{st}')
            for st in range(D): rdk(st)
            self.flag_post(1, 96)
            self.touch_half(OPK); self.vtag('bg')
            fin = self.cs_ops(0, L_CT, 32, 55)
            rs0 = [self.bg_reset(sKVH_P, KVH[1], 1024*i, 108) for i in range(4)] + [self.bg_reset(97, KVP[2], 0, 108)]
            ex = {}
            KF = self.opt['kf']
            if KF == 1:
                for ii in range(7): ex[6 + 2*ii] = lambda ii=ii: wdma((2,), ii)
                for i in range(5): ex[20 + i] = rs0[i]
            for st in range(28):
                self.lwait(f'w{st}')
                self.mfma(vAK, v(vWF + (st % 8)*4, 4), v(vXF+4*st, 4), v(vAK, 16) if st else 0)
                if st + D < 28: rdk(st + D)
                for _ in range(4):
                    if fin: fin.pop(0)()
                if st in ex: ex[st]()
            assert not fin
            xm, wm = 112, 116
            k.v_mov_b32(v(xm), v(vMB)); k.v_mov_b32(v(wm), v(vCS+1))
            for i in range(1, 4):
                k.v_mov_b32(v(xm+i), 0); k.v_mov_b32(v(wm+i), 0)
            self.mfma(vAK, v(wm, 4), v(xm, 4), v(vAK, 16))
            k.s_add_u32(s(sT1), s(sOT_P), OB[0])
            def st_(fl):
                self.ws_st(108, vL16, sT1, 0, flags=fl); self.ws_st(108, vL16, sT1, 1024, flags=fl)
            self.local_stores(st_); self.vtag('st', 2)
            for q in range(4): k.ds_read_b128(v(32+4*q, 4), v(vRVR), m=f'offset:{32*q}')
            self.rv = 32
            self.vwait('w6')
            k.s_barrier()
            self.stamp('K gemm')
            self.lq = []
            def rdv(st):
                k.ds_read_b128(v(96 + (st % 4)*4, 4), v(vL16), m=f'offset:{L_WV + st*1024}'); self.ltag(f'w{st}')
            for st in range(3): rdv(st)
            if KF >= 2:
                for ii in range(7): wdma((2,), ii)
            self.pack(vAK)
            P, E = 112, 128
            self.feature_mfma(vAK, P)
            def vstep(st):
                def f():
                    self.lwait(f'w{st}')
                    self.mfma(vAV, v(vXF+4*st, 4), v(96 + (st % 4)*4, 4), v(vAV, 16) if st else 0)
                    if st + 3 < 28: rdv(st + 3)
                f.gap = 16; f.vs = True
                return f
            self.bg_wo(0)
            wo = self.bg; self.bg = []
            for st in range(28):
                self.bg.append(vstep(st))
                if st % 3 == 2 and st >= 8 and KF == 1:
                    f = wo.pop(0); f.gap = 0; self.bg.append(f)
            self.burst(3); self.bg_next = 0
            self.bgon()
            self.feature(P, E)
            self.bgoff()
            for sg, X in ((0, P), (1, E)):
                for q in range(4):
                    k.ds_write_b64(v(vPHW), v(X+2*q, 2), m=f'offset:{sg*PHI_SIGN + q*16}'); self.ltag('ph')
            self.drain()
            xm, wm = 120, 124
            k.v_mov_b32(v(xm), v(vMB)); k.v_mov_b32(v(wm), v(vCS+2))
            for i in range(1, 4):
                k.v_mov_b32(v(xm+i), 0); k.v_mov_b32(v(wm+i), 0)
            self.mfma(vAV, v(xm, 4), v(wm, 4), v(vAV, 16))
            self.bg = wo
            self.vwait('wq'); self.vwait('st')
            self.epi_v()
            k.ds_write_b128(v(vVOW), v(vAV, 4)); k.ds_write_b128(v(vVOW), v(vAV+4, 4), m='offset:1024')
            for q in range(4):
                k.buffer_load_dwordx2(v(vXRES+8+2*q, 2), v(vOUT), s(S_AX, 4), 0, m=f'offen offset:{16*q}')
            self.burst(4)
            self.quad_issue(58, stage=1, both=True)
            self.rs0 = []
            if KF >= 2:
                self.rs_late = [self.bg_reset(sKVH_P, KVH[1], 1024*i, 92) for i in range(4)] + [self.bg_reset(97, KVP[2], 0, 92)]
            return
        for ii in range(7):
            wdma((0, 1), ii)
            if WE:
                if ii == 3:
                    for c in (4, 5, 6):
                        self.vwait(f'x{c}'); xread(c)
                    xstat(3)
                    self.lwait()
                    if S1L == 2: s1_frags(); s1_resets()
                if ii == 6 and S1L == 3: s1_frags(); s1_resets()
                if ii >= 4: xstat(ii)
            elif XA:
                if ii == 5: xstat(6)
            elif ii in (3, 5, 6): xstat({3: 4, 5: 5, 6: 6}[ii])
        self.cs_dma(0, L_CT)
        ET = self.opt.get('et', 0)
        if ET: self.touch_half(OPK); self.vtag('bg')
        self.flag_issue(0, 96)
        if self.opt.get('rl'): resid()
        self.stats_finish(60, 61)
        D = 3
        def rdw(st):
            b = vWF + (st % 4)*8
            k.ds_read_b128(v(b, 4), v(vL16), m=f'offset:{L_WK + st*1024}')
            k.ds_read_b128(v(b+4, 4), v(vL16), m=f'offset:{L_WV + st*1024}')
            self.ltag(f'w{st}', 2)
        def gemm(s0, s1, extra, fill=None):
            for st in range(s0, s1):
                self.lwait(f'w{st}')
                b = vWF + (st % 4)*8
                x = v(vXF+4*st, 4)
                self.mfma(vAK, v(b, 4), x, v(vAK, 16) if st else 0)
                for _ in range(4):
                    if fill: fill.pop(0)()
                self.mfma(vAV, x, v(b+4, 4), v(vAV, 16) if st else 0)
                if st + D < s1: rdw(st + D)
                for _ in range(3):
                    if fill: fill.pop(0)()
                if extra: extra.pop(0)()
        nop = lambda: None
        self.stamp('W issued')
        self.vwait('w3')
        k.s_waitcnt('lgkmcnt(0)')
        k.s_barrier()
        self.lq = []
        for st in range(D): rdw(st)
        if S1L < 2: self.flag_post(1, 106)
        self.stamp('W half1')
        def rob():
            k.s_add_u32(s(sT1), s(sOT_P), OB[0])
            def st(fl):
                self.ws_st(108, vL16, sT1, 0, flags=fl); self.ws_st(108, vL16, sT1, 1024, flags=fl)
            self.local_stores(st); self.vtag('st', 2)
        ex = [nop]*self.opt.get('qd', 8)
        for ii in range(7): ex += [lambda ii=ii: wdma((2,), ii)]
        gemm(0, 16, ex)
        self.flag_wait(0, 96)
        k.s_barrier()
        self.stamp('W kv')
        for st in range(16, 16+D): rdw(st)
        if S1L >= 2: self.flag_post(1, 106)
        if not ET: self.touch_half(OPK); self.vtag('bg')
        rob()
        self.rs0 = [self.bg_reset(sKVH_P, KVH[1], 1024*i, 108) for i in range(4)] + [self.bg_reset(97, KVP[2], 0, 108)]
        for f in self.rs0: f.gap = 60
        fin = self.cs_ops(0, L_CT, 32, 55, segs=(0, 1))
        self.L_CT = L_CT
        early = self.opt.get('rse', 1)
        self.bg_wo(0)
        if ET == 1:
            ex = ex + self.bg[:7] + self.rs0; self.bg = self.bg[7:]
        elif ET == 2:
            ex = ex + self.bg[:12]; self.bg = self.rs0 + self.bg[12:]
        else: ex = ex + self.rs0
        gemm(16, 28, ex, fin)
        assert not ex
        self.rs0 = []
        while fin: fin.pop(0)()
        self.mean_steps(0)

    def tag_get(self, EP):
        k = self.k
        lfe, lfe2, lfe3 = k.newlabel('Lfe'), k.newlabel('Lfe'), k.newlabel('Lfe')
        k.s_mov_b32(s(sTRY), 0)
        k.label(lfe2)
        k.v_readfirstlane_b32(s(sE0), v(EP)); k.v_readfirstlane_b32(s(sE1), v(EP+1))
        k.s_cmp_eq_u32(s(sE1), 0); k.s_cbranch_scc1(lfe)
        k.label(lfe3)
        def cold():
            k.label(lfe)
            k.s_sleep(2)
            k.buffer_load_dwordx2(v(EP, 2), v(EP+2), s(S_DBG, 4), 0, m='offen sc1')
            k.s_add_u32(s(sTRY), s(sTRY), 1)
            k.s_waitcnt('vmcnt(0)')
            k.s_cmp_lt_u32(s(sTRY), MAXTRY); k.s_cbranch_scc1(lfe2)
            k.s_or_b32(s(sERR), s(sERR), 1 << 29)
            k.s_branch(lfe3)
        self.cold.append(cold)
        k.s_or_b32(s(sE0), s(sE0), s(sXCC))

    def flag_post(self, stage, EP):
        k = self.k
        lfx = k.newlabel('Lfx')
        k.s_cmp_lg_u32(s(sW), 3); k.s_cbranch_scc1(lfx)
        k.v_mov_b32(v(EP), s(sE0)); k.v_mov_b32(v(EP+1), s(sE1))
        k.s_and_b32(s(3), s(101), 3); k.s_lshl_b32(s(3), s(3), 9); k.s_lshr_b32(s(6), s(101), 2); k.s_lshl_b32(s(6), s(6), 3)
        k.s_add_u32(s(3), s(3), s(6)); k.s_add_u32(s(3), s(3), FLG + 2048*stage)
        k.s_mov_b64('exec', 1)
        k.buffer_store_dwordx2(v(EP, 2), v(vLANE), s(S_WS, 4), s(3), m='offen sc1')
        k.s_mov_b64('exec', -1)
        k.label(lfx)

    def quad_issue(self, F, stage=0, both=False):
        k = self.k
        A = F + (4 if both else 2)
        k.v_lshlrev_b32(v(A), 3, v(vLANE))
        k.s_lshr_b32(s(6), s(sH), 2); k.s_lshl_b32(s(6), s(6), 9); k.s_add_u32(s(6), s(6), FLG + 2048*stage)
        if both:
            k.s_lshl_b32(s(7), s(sCG), 9); k.s_add_u32(s(7), s(7), FLG + 2048*stage)
        self._quad_ld(F, both)
        self.vtag('quad', 2 if both else 1)

    def _quad_ld(self, F, both):
        k = self.k
        A = F + (4 if both else 2)
        k.buffer_load_dwordx2(v(F, 2), v(A), s(S_WS, 4), s(6), m='offen sc1')
        if both: k.buffer_load_dwordx2(v(F+2, 2), v(A), s(S_WS, 4), s(7), m='offen sc1')

    def quad_wait(self, F, both=False):
        k = self.k
        lp, lr, lgo = k.newlabel('Lqp'), k.newlabel('Lqr'), k.newlabel('Lqo')
        k.s_mov_b32(s(sTRY), 0)
        self.vwait('quad')
        k.label(lp)
        k.v_xor_b32(v(F), s(sE0), v(F)); k.v_xor_b32(v(F+1), s(sE1), v(F+1))
        if both:
            k.v_xor_b32(v(F+2), s(sE0), v(F+2)); k.v_xor_b32(v(F+3), s(sE1), v(F+3))
            k.v_or_b32(v(F), v(F), v(F+2)); k.v_or_b32(v(F+1), v(F+1), v(F+3))
        k.v_and_b32(v(F), -16, v(F)); k.v_or_b32(v(F), v(F), v(F+1))
        k.v_cmp_ne_u32('vcc', 0, v(F))
        k.s_cmp_eq_u64('vcc', 0)
        k.s_cbranch_scc1(lgo)
        k.s_add_u32(s(sTRY), s(sTRY), 1)
        k.s_cmp_ge_u32(s(sTRY), MAXTRY); k.s_cselect_b32(s(sT6), 1 << 28, 0); k.s_or_b32(s(sERR), s(sERR), s(sT6))
        k.s_cmp_lg_u32(s(sT6), 0); k.s_cbranch_scc1(lgo)
        if self.ts: k.s_add_u32(s(sERR), s(sERR), 1 << 24)
        k.s_sleep(4)
        self._quad_ld(F, both)
        k.s_waitcnt('vmcnt(0)')
        k.s_branch(lp)
        k.label(lgo)

    def flag_issue(self, stage, F):
        k = self.k
        k.v_lshlrev_b32(v(F+8), 5, v(vLANE))
        k.s_mov_b32(s(3), FLG + 2048*stage)
        k.buffer_load_dwordx4(v(F, 4), v(F+8), s(S_WS, 4), s(3), m='offen sc1')
        k.buffer_load_dwordx4(v(F+4, 4), v(F+8), s(S_WS, 4), s(3), m='offen offset:16 sc1')
        self.vtag('flg', 2)

    def flag_wait(self, stage, F):
        k = self.k
        lp, lr, lgo = k.newlabel('Lfp'), k.newlabel('Lfr'), k.newlabel('Lgo')
        k.s_mov_b32(s(sTRY), 0)
        self.vwait('flg')
        k.label(lp)
        for i in range(4):
            k.v_xor_b32(v(F+2*i), s(sE0), v(F+2*i)); k.v_xor_b32(v(F+2*i+1), s(sE1), v(F+2*i+1))
        k.v_or3_b32(v(F), v(F), v(F+2), v(F+4)); k.v_or_b32(v(F), v(F), v(F+6))
        k.v_or3_b32(v(F+1), v(F+1), v(F+3), v(F+5)); k.v_or_b32(v(F+1), v(F+1), v(F+7))
        k.v_and_b32(v(F+2), -16, v(F)); k.v_or_b32(v(F+2), v(F+2), v(F+1))
        k.v_cmp_ne_u32('vcc', 0, v(F+2))
        k.s_cmp_eq_u64('vcc', 0)
        k.s_cbranch_scc0(lr)
        k.label(lgo)
        def cold():
            k.label(lr)
            k.s_add_u32(s(sTRY), s(sTRY), 1)
            k.s_cmp_ge_u32(s(sTRY), MAXTRY); k.s_cselect_b32(s(sT6), 1 << 30, 0); k.s_or_b32(s(sERR), s(sERR), s(sT6))
            k.s_cmp_lg_u32(s(sT6), 0); k.s_cbranch_scc1(lgo)
            if self.ts: k.s_add_u32(s(sERR), s(sERR), 1 << 24)
            k.s_sleep(4)
            k.s_mov_b32(s(3), FLG + 2048*stage)
            k.buffer_load_dwordx4(v(F, 4), v(F+8), s(S_WS, 4), s(3), m='offen sc1')
            k.buffer_load_dwordx4(v(F+4, 4), v(F+8), s(S_WS, 4), s(3), m='offen offset:16 sc1')
            k.s_waitcnt('vmcnt(0)')
            k.s_branch(lp)
        self.cold.append(cold)
        if stage == 0:
            k.v_cmp_eq_u32('vcc', 0, v(F))
            k.s_lshr_b64(s(sP0, 2), 'vcc', s(sR))
            k.s_and_b32(s(3), s(sP0), s(sP0+1))
            k.s_and_b32(s(3), s(3), 0x10001)
            k.s_cmp_eq_u32(s(3), 0x10001)
            k.s_cselect_b32(s(sMODE), 0 if self.force_slow else 1, 0)

    def setup1(self):
        k = self.k
        n, hf, r4, ch, c4, l2 = 60, 61, 62, 63, 59, 58
        k.v_and_b32(v(n), 31, v(vLANE))
        k.v_lshrrev_b32(v(hf), 5, v(vLANE))
        k.v_bfe_u32(v(r4), v(vLANE), 2, 2)
        k.v_bfe_u32(v(ch), v(vLANE), 4, 1)
        k.v_lshlrev_b32(v(57), 5, v(ch))
        k.v_lshl_add_u32(v(57), v(c4), 3, v(57))
        k.v_lshl_add_u32(v(56), v(hf), 3, v(r4))
        k.v_lshl_add_u32(v(vWRD0), v(56), 6, v(57))
        k.v_mul_u32_u24(v(vL14), 448, v(hf)); k.v_lshl_add_u32(v(vL14), v(n), 4, v(vL14))
        k.v_mov_b32(v(55), 0x7000000); k.v_cmp_gt_u32('vcc', 28, v(n)); k.v_cndmask_b32(v(vL14), v(55), v(vL14), 'vcc')
        k.v_add_u32(v(vWQ), L_WQ, v(vL16))
        vPK8, vPK4 = 99, 100
        k.v_add_u32(v(vPK8), s(sSTW), v(vWRD0))
        k.v_lshl_add_u32(v(56), v(hf), 2, v(r4))
        k.v_lshl_add_u32(v(vPK4), v(56), 6, v(57))
        k.v_add_u32(v(vPK4), s(sSTW), v(vPK4))
        k.v_mul_u32_u24(v(56), 264, v(hf))
        k.v_lshl_add_u32(v(56), v(r4), 6, v(56))
        k.s_and_b32(s(sT1), s(sW), 1); k.s_mul_i32(s(sT1), s(sT1), PHI_SIGN); k.s_add_u32(s(sT1), s(sT1), L_PHI)
        k.v_add3_u32(v(vPHR), v(56), v(57), s(sT1))

    def setup2(self):
        k = self.k
        n, hf, r4, ch, c4, l2 = 60, 61, 62, 63, 59, 58
        k.s_getreg_b32(s(sXCC), 'hwreg(HW_REG_XCC_ID)')
        k.s_and_b32(s(sXCC), s(sXCC), 15)
        k.s_mov_b32(s(sSLOT), s(6))
        k.s_lshl_b32(s(sPFO), s(6), 2); k.s_add_u32(s(sPFO), s(sPFO), s(sW)); k.s_lshl_b32(s(sPFO), s(sPFO), 7)
        k.s_lshr_b32(s(3), s(sH), 2)
        k.s_lshl_b32(s(sTT), s(sR), 2)
        k.s_add_u32(s(sTT), s(sTT), s(3))
        k.s_and_b32(s(sCG), s(sH), 3)
        k.s_mov_b32(s(sERR), 0)
        k.s_mov_b32(s(sMODE), 0)
        k.s_lshl_b32(s(sXT), s(sOM), 15)
        k.s_lshl_b32(s(sT1), s(sH), 11); k.s_add_u32(s(sOT_P), s(sXT), s(sT1))
        k.s_lshl_b32(s(sXT_P), s(sTT), 15)
        k.s_lshl_b32(s(sT1), s(sW), 13); k.s_add_u32(s(sOT_C), s(sXT_P), s(sT1))
        k.s_lshl_b32(s(sT1), s(sH), 16)
        k.s_lshl_b32(s(sT2), s(sR), 12); k.s_add_u32(s(sKVP_P), s(sT1), s(sT2))
        k.s_lshl_b32(s(sT2), s(sW), 11); k.s_add_u32(s(sKVP_P), s(sKVP_P), s(sT2))
        k.s_add_u32(s(sKVP_C), s(sT1), s(sLDSW))
        k.s_lshl_b32(s(sT1), s(sH), 18)
        k.s_lshl_b32(s(sT2), s(sOM), 12); k.s_add_u32(s(sKVH_P), s(sT1), s(sT2))
        k.s_add_u32(s(sT2), s(sOM), s(sW))
        k.s_sub_u32(s(sT2), s(sT2), 8); k.s_lshl_b32(s(sT2), s(sT2), 12); k.s_add_u32(s(sKVH_C), s(sT1), s(sT2))
        k.s_mul_i32(s(sWPKH), s(sH), 84*FR); k.s_mul_i32(s(sT1), s(sW), FR); k.s_add_u32(s(sWPKH), s(sWPKH), s(sT1))
        k.s_and_b32(s(sT2), s(sR), 1); k.s_mul_i32(s(sT1), s(sW), 14336); k.s_mul_i32(s(sT3), s(sT2), 7168)
        k.s_add_u32(s(sHA), s(sT1), s(sT3)); k.s_sub_u32(s(sHB), s(sT1), s(sT3)); k.s_add_u32(s(sHB), s(sHB), 7168)
        k.s_mul_i32(s(sT1), s(sW), 7168); k.s_mul_i32(s(sT3), s(sT2), 3072); k.s_add_u32(s(sT1), s(sT1), L_WQ)
        k.s_add_u32(s(sQA), s(sT1), s(sT3)); k.s_sub_u32(s(sQB), s(sT1), s(sT3)); k.s_add_u32(s(sQB), s(sQB), 3072)
        k.s_mul_i32(s(sHEAD), s(sH), 84*FR)
        k.s_lshl_b32(s(sT1), s(sCG), 2); k.s_add_u32(s(sT1), s(sT1), s(sW)); k.s_mul_i32(s(sOPKC), s(sT1), 32*FR)
        vX0, vBW0, vBW1, vBR = 101, 102, 103, 104
        k.v_bfe_u32(v(55), v(n), 1, 3)
        k.v_xor_b32(v(55), v(55), v(hf))
        k.v_and_b32(v(56), 7, v(n)); k.v_lshl_add_u32(v(56), v(56), 7, s(sLDSW))
        k.v_lshrrev_b32(v(58), 3, v(n)); k.v_lshl_add_u32(v(56), v(58), 12, v(56))
        k.v_lshl_add_u32(v(vBR), v(55), 4, v(56))
        for sp in range(1, 4): k.v_xor_b32(v(vBR+sp), 32*sp, v(vBR))
        for sp in range(4): k.v_add_u32(v(84+sp), 65536, v(vBR+sp))
        k.v_lshrrev_b32(v(56), 2, v(n))
        k.s_lshl_b32(s(sT1), s(sW), 3)
        k.v_add_u32(v(56), s(sT1), v(56))
        k.v_mul_u32_u24(v(56), 264, v(56))
        k.v_lshl_add_u32(v(56), v(c4), 6, v(56))
        k.v_lshl_add_u32(v(56), v(hf), 3, v(56))
        k.v_add_u32(v(vPHW), L_PHI, v(56))
        k.s_lshl_b32(s(sT1), s(sW), 7); k.s_add_u32(s(sT1), s(sT1), L_RINV0)
        k.v_lshl_add_u32(v(vRVW), v(n), 2, s(sT1))
        k.v_lshl_add_u32(v(vRVR), v(hf), 4, s(sT1))
        k.s_lshl_b32(s(sT1), s(sW), 12); k.s_add_u32(s(sT1), s(sT1), L_KVL)
        k.v_add_u32(v(vKVL), s(sT1), v(vL16))
        k.s_lshl_b32(s(sT1), s(sW), 13); k.s_add_u32(s(sT1), s(sT1), L_KVL)
        k.v_add_u32(v(vHW), s(sT1), v(vL16))
        k.s_lshl_b32(s(sT1), s(sW), 11); k.s_add_u32(s(sT1), s(sT1), L_VOWN)
        k.v_add_u32(v(vVOW), s(sT1), v(vL16))
        for i, reg in ((0, vGW), (1, vG1), (2, vG2), (3, vG3)):
            k.s_add_u32(s(sT1), s(sW), i); k.s_and_b32(s(sT1), s(sT1), 3); k.s_lshl_b32(s(sT1), s(sT1), 13)
            k.s_sub_u32(s(sT1), L_GATH + 3*8192, s(sT1))
            k.v_add_u32(v(reg), s(sT1), v(vL16))
        k.s_mul_i32(s(sT1), s(sCG), 28); k.s_mul_i32(s(sT2), s(sW), 7); k.s_add_u32(s(sT1), s(sT1), s(sT2))
        k.v_add_u32(v(56), s(sT1), v(hf))
        k.v_lshrrev_b32(v(55), 1, v(56)); k.v_lshlrev_b32(v(55), 9, v(55))
        k.v_and_b32(v(56), 1, v(56)); k.v_lshl_add_u32(v(55), v(56), 3, v(55))
        k.v_lshl_add_u32(v(vXST), v(n), 4, v(55))
        k.s_lshr_b32(s(sT2), s(sCG), 1); k.s_lshl_b32(s(sT2), s(sT2), 9)
        k.s_and_b32(s(sT3), s(sCG), 1); k.s_lshl_b32(s(sT3), s(sT3), 3); k.s_add_u32(s(sT2), s(sT2), s(sT3))
        k.s_add_u32(s(sT2), s(sT2), 28672)
        k.v_lshl_add_u32(v(vSST), v(n), 4, s(sT2))
        k.v_and_b32(v(56), 15, v(vLANE)); k.v_mul_u32_u24(v(56), 7, v(56)); k.v_add_u32(v(56), 6, v(56))
        k.v_lshrrev_b32(v(55), 1, v(56)); k.v_lshlrev_b32(v(55), 9, v(55))
        k.v_and_b32(v(56), 1, v(56)); k.v_lshl_add_u32(v(55), v(56), 3, v(55))
        k.v_lshrrev_b32(v(56), 4, v(vLANE)); k.v_lshl_add_u32(v(55), v(56), 7, v(55))
        k.v_add_u32(v(vSLD), 112, v(55))
        k.s_lshl_b32(s(sT1), s(sTT), 5)
        k.v_add_u32(v(56), s(sT1), v(n)); k.v_mul_u32_u24(v(56), 896, v(56))
        k.s_mul_i32(s(sT1), s(sCG), 224); k.s_mul_i32(s(sT2), s(sW), 56); k.s_add_u32(s(sT1), s(sT1), s(sT2))
        k.v_lshl_add_u32(v(56), v(hf), 3, v(56))
        k.v_add_u32(v(vOUT), s(sT1), v(56))
        k.v_cmp_eq_u32('vcc', 0, v(hf))
        k.v_mov_b32(v(56), 1.0); k.v_mov_b32(v(55), f32(BIGF))
        k.v_cndmask_b32(v(vHFM), 0, v(56), 'vcc')
        k.v_mov_b32(v(56), 0)
        k.v_cndmask_b32(v(vBIG), v(55), v(56), 'vcc')
        k.v_lshlrev_b32(v(56), 2, v(hf)); k.v_sub_u32(v(vII), v(n), v(56))
        k.v_cmp_eq_u32('vcc', 28, v(n)); k.v_mov_b32(v(56), 1.0); k.v_cndmask_b32(v(vONE), 0, v(56), 'vcc')
        k.v_cmp_le_u32(s(sP0, 2), 28, v(n))

    def bg_wpk(self, typ, lo, hi, tag='bg'):
        k = self.k
        if self.opt.get('abl_w'): return
        groups = [(sHA, 0, 4), (sHA, 4096, 3), (sHB, 0, 4), (sHB, 4096, 3)] if lo == 0 else [(sQA, 0, 4), (sQB, 0, 4)]
        for gi, (sb, off, n) in enumerate(groups):
            for i in range(n):
                def f(sb=sb, off=off, i=i):
                    if i == 0 or self.m0_owner != (sb, off):
                        k.s_add_u32('m0', s(sb), off)
                        k.s_add_u32(s(sB0), s(sb), s(sHEAD))
                        k.s_add_u32(s(sB0), s(sB0), WPK[typ] + off)
                    k.buffer_load_dwordx4(v(vL14), s(S_WS, 4), s(sB0), m=f'offen offset:{1024*i} sc1 lds')
                    self.m0_owner = (sb, off); self.k.watch = True
                    self.vtag(tag)
                f.gap = self.gmiss if 2*gi < len(groups) else self.ghit
                self.bg.append(f)

    def bg_wo(self, typ, q0=0, q1=4):
        k = self.k
        if self.opt.get('abl_wo'): return
        for i in range(q0, q1):
            for f_ in range(8):
                def f(i=i, f_=f_):
                    if f_ == 0:
                        k.s_add_u32(s(sB1), s(sW), i); k.s_and_b32(s(sB1), s(sB1), 3); k.s_lshl_b32(s(sB1), s(sB1), 13)
                        k.s_add_u32(s(sB1), s(sB1), s(sOPKC)); k.s_add_u32(s(sB1), s(sB1), OPK + typ*OPT)
                    if f_ == 4: k.s_add_u32(s(sB1), s(sB1), 4096)
                    k.buffer_load_dwordx4(a(typ*128 + i*32 + f_*4, 4), v(vL14), s(S_WS, 4), s(sB1), m=f'offen offset:{(f_ & 3)*FR} sc1')
                    self.vtag('bg')
                f.wo = True; f.gap = self.ghit
                self.bg.append(f)

    def touch(self, base, share, ninstr, w0=0):
        k = self.k
        k.s_mul_i32(s(sB0), s(sSLOT), share); k.s_add_u32(s(sB0), s(sB0), base - w0*ninstr*8192)
        k.s_mul_i32(s(sB1), s(sW), ninstr*8192); k.s_add_u32(s(sB0), s(sB0), s(sB1))
        k.v_lshlrev_b32(v(59), 7, v(vLANE))
        for i in range(ninstr):
            k.buffer_load_dword(a(255), v(59), s(S_WS, 4), s(sB0), m='offen sc1')
            if i + 1 < ninstr: k.s_add_u32(s(sB0), s(sB0), 8192)

    def touch_half(self, base):
        k = self.k
        k.s_lshl_b32(s(sB0), s(sSLOT), 2); k.s_add_u32(s(sB0), s(sB0), s(sW)); k.s_lshl_b32(s(sB0), s(sB0), 12)
        k.s_add_u32(s(sB0), s(sB0), base)
        k.v_lshlrev_b32(v(59), 7, v(vLANE))
        k.s_mov_b64('exec', 0x7f7f7f7f)
        k.buffer_load_dword(a(255), v(59), s(S_WS, 4), s(sB0), m='offen sc1')
        k.s_mov_b64('exec', -1)

    def fill(self, buf):
        k = self.k
        if self.opt.get('nofill'): return
        k.s_add_u32(s(sB0), s(sOT_P), buf)
        k.s_mov_b32('exec_lo', 0x01010101); k.s_mov_b32('exec_hi', 0x01010101)
        k.buffer_load_dword(a(255), v(vL16), s(S_WS, 4), s(sB0), m='offen sc1')
        k.buffer_load_dword(a(255), v(vL16), s(S_WS, 4), s(sB0), m='offen offset:1024 sc1')
        k.s_mov_b64('exec', -1)
        self.vtag('bg', 2)

    def code_pf(self, ahead=0, n=1):
        k = self.k
        if self.opt.get('nocpf'): return
        lb = k.newlabel('Lpf')
        k.label(lb)
        for i in range(n):
            k.s_add_u32(s(6), s(sPFO), f'{lb}-Lstart+{ahead + i*16384}')
            k.s_min_u32(s(6), s(6), 'Lcode_end-Lstart-4')
            k.s_load_dword(s(sJUNK), s(S_CODE, 2), s(6))

    def cs_dma(self, typ, lds):
        k = self.k
        k.s_mul_i32(s(sB0), s(sH), 10752); k.s_mul_i32(s(3), s(sW), 3072); k.s_add_u32(s(sB0), s(sB0), s(3))
        k.s_add_u32(s(sB0), s(sB0), CSP + typ*172032)
        k.s_add_u32('m0', s(3), lds)
        for i in range(3):
            k.buffer_load_dwordx4(v(vL16), s(S_WS, 4), s(sB0), m=f'offen offset:{1024*i} sc1 lds')
        self.vtag('cs', 3)

    def cs_ops(self, typ, lds, R, A, segs=(0, 1, 2)):
        k = self.k
        ops = [lambda: k.v_lshlrev_b32(v(A), 2, v(vLANE)), lambda: k.v_add_u32(v(A), lds, v(A))]
        for seg in segs:
            g = (1, 2, 0)[seg]
            for half in range(2):
                def rd(seg=seg, half=half):
                    for i in range(7*half, 7*half+7):
                        k.ds_read_b32(v(R+i), v(A), m=f'offset:{(seg*28 + 2*i)*128}')
                    self.ltag(f'cs{seg}{half}', 7)
                ops += [rd] + [lambda: None]*5
            ops += [lambda seg=seg: self.lwait(f'cs{seg}1')]
            for i in range(1, 14): ops.append(lambda i=i: k.v_add_f32(v(R), v(R), v(R+i)))
            ops += [lambda: k.v_mov_b32(v(R+1), v(R)), lambda: k.v_permlane32_swap_b32(v(R), v(R+1)), lambda: k.v_add_f32(v(R), v(R), v(R+1)),
                    lambda: k.v_cmp_gt_u32('vcc', 448, v(vL14)), lambda: k.v_sub_f32(v(R), 0, v(R)), lambda: k.v_cndmask_b32(v(R), 0, v(R), 'vcc'), lambda: self.rbf(R+1, R),
                    lambda: k.v_sub_f32(v(R+2), v(R), v(R+1)),
                    lambda g=g: k.v_cvt_pk_bf16_f32(v(vCS + 3*typ + g), v(R+1), v(R+2))]
        return ops

    def stats_finish(self, s1, s2):
        k = self.k
        t = 58
        self.xhalf('v_add_f32', s1, t); self.xhalf('v_add_f32', s2, t)
        k.v_mul_f32(v(s1), f32(1.0/448), v(s1))
        k.v_mul_f32(v(s2), f32(1.0/448), v(s2))
        k.v_fma_f32(v(s2), '-'+v(s1), v(s1), v(s2))
        k.v_max_f32(v(s2), 0, v(s2))
        k.v_cvt_pk_bf16_f32(v(vMB), v(s1), v(s1))
        self.rbf(s2, s2)
        k.v_add_f32(v(s2), f32(1e-5), v(s2))
        self.rbf(s2, s2)
        k.v_sqrt_f32(v(s2), v(s2))
        self.rbf(s2, s2)
        k.v_rcp_f32(v(vRINV), v(s2))
        k.ds_write_b32(v(vRVW), v(vRINV))

    def mean_steps(self, typ):
        k = self.k
        xm, wk, wv = 112, 116, 120
        k.v_mov_b32(v(xm), v(vMB)); k.v_mov_b32(v(wk), v(vCS+3*typ+1)); k.v_mov_b32(v(wv), v(vCS+3*typ+2))
        for i in range(1, 4):
            k.v_mov_b32(v(xm+i), 0); k.v_mov_b32(v(wk+i), 0); k.v_mov_b32(v(wv+i), 0)
        self.mfma(vAK, v(wk, 4), v(xm, 4), v(vAK, 16))
        self.mfma(vAV, v(xm, 4), v(wv, 4), v(vAV, 16))
        for q in range(4):
            k.ds_read_b128(v(128+4*q, 4), v(vRVR), m=f'offset:{32*q}')
        self.rv = 128

    def stats_ops(self, ST):
        k = self.k
        s1, s2, t = 60, 61, 58
        ops = [
            lambda: k.v_pk_add_f32(v(s1, 2), v(ST, 2), v(ST+2, 2)),
            lambda: k.v_mov_b32(v(t), v(s1)), lambda: k.v_mov_b32(v(t+1), v(s2)),
            lambda: k.v_permlane32_swap_b32(v(s1), v(t)), lambda: k.v_permlane32_swap_b32(v(s2), v(t+1)),
            lambda: k.v_add_f32(v(s1), v(s1), v(t)), lambda: k.v_add_f32(v(s2), v(s2), v(t+1)),
            lambda: k.v_mul_f32(v(s1), f32(1.0/448), v(s1)), lambda: k.v_mul_f32(v(s2), f32(1.0/448), v(s2)),
            lambda: k.v_fma_f32(v(s2), '-'+v(s1), v(s1), v(s2)),
            lambda: k.v_max_f32(v(s2), 0, v(s2)),
            lambda: k.v_cvt_pk_bf16_f32(v(vMB), v(s1), v(s1)),
            lambda: self.rbf(s2, s2),
            lambda: k.v_add_f32(v(s2), f32(1e-5), v(s2)),
            lambda: self.rbf(s2, s2),
            lambda: k.v_sqrt_f32(v(s2), v(s2)),
            lambda: self.rbf(s2, s2),
            lambda: k.v_rcp_f32(v(vRINV), v(s2)),
        ]
        return ops

    def load_gemm_kv(self, L):
        k = self.k
        typ = L & 1
        assert not self.bg
        ST = 96
        CH = 63
        SPOS = self.opt.get('spos', 17)
        A0 = self.opt.get('a0', 4)
        AH = self.opt.get('ah', 10)
        k.s_add_u32(s(sT1), s(sXT), XB[L-1])
        seq = []
        for st in range(28):
            if st == SPOS: seq += [('st', ST, 28672)]
            seq.append((f'x{st}', vXF+4*st, 1024*st))
        def ld(i):
            tag, reg, off = seq[i]
            self.ws_ld(reg, vL16, sT1, off); self.vtag(tag)
        D = 3
        def rd(st):
            b = vWF + (st % 4)*8
            k.ds_read_b128(v(b, 4), v(vL16), m=f'offset:{L_WK + st*1024}')
            k.ds_read_b128(v(b+4, 4), v(vL16), m=f'offset:{L_WV + st*1024}')
            self.ltag(f'w{st}', 2)
        k.v_mov_b32(v(60), 0); k.v_mov_b32(v(61), 0)
        k.s_mov_b32(s(sTRY), 0)
        k.s_waitcnt('vmcnt(4) lgkmcnt(0)')
        k.s_barrier()
        lst = k.newlabel('Lst')
        k.s_cmp_lg_u32(s(sW), 0); k.s_cbranch_scc1(lst)
        for i in range(1, 4): k.ds_read_b64(v(124+2*i, 2), v(124), m=f'offset:{512*i}')
        k.s_add_u32(s(sT2), s(sXT_P), XB[L-1])
        k.s_waitcnt('lgkmcnt(0)')
        k.v_pk_add_f32(v(120, 2), v(120, 2), v(126, 2)); k.v_pk_add_f32(v(128, 2), v(128, 2), v(130, 2))
        k.v_pk_add_f32(v(120, 2), v(120, 2), v(128, 2))
        k.v_mov_b32(v(124), v(120)); k.v_mov_b32(v(125), v(121))
        k.v_permlane32_swap_b32(v(120), v(124)); k.v_permlane32_swap_b32(v(121), v(125))
        k.v_pk_add_f32(v(120, 2), v(120, 2), v(124, 2))
        self.sanitize(120, 2)
        def st2(fl):
            k.s_mov_b32('exec_hi', 0)
            self.ws_st(120, vSST, sT2, 0, n=2, flags=fl)
            k.s_mov_b32('exec_hi', -1)
        self.local_stores(st2)
        k.label(lst)
        self.code_pf(1024)
        lg, lok = k.newlabel('Lg'), k.newlabel('Lgok')
        first = [True]
        k.label(lg)
        self.nohi(); self.vq = []
        k.s_mov_b64('exec', 0xffff)
        self.ws_ld(60, vSLD, sT1, 0, n=2)
        k.s_mov_b64('exec', -1)
        for i in range(A0): ld(i)
        k.s_add_u32(s(sTRY), s(sTRY), 1)
        k.s_cmp_ge_u32(s(sTRY), MAXTRY)
        k.s_cselect_b32(s(sT6), 1 << (4*L), 0)
        k.s_or_b32(s(sERR), s(sERR), s(sT6))
        k.s_waitcnt(f'vmcnt({A0})')
        k.v_max_u32(v(62), v(60), v(61))
        k.v_cmp_eq_u32('vcc', -1, v(62))
        k.s_cmp_eq_u64('vcc', 0)
        k.s_cselect_b32(s(sT7), 1, s(sT6))
        k.s_cmp_eq_u32(s(sT7), 0)
        k.s_cbranch_scc1(lg)
        self.stamp(f'L{L} x seen')
        self.lq = []
        for i in range(A0, AH): ld(i)
        for st in range(D): rd(st)
        nxt = AH
        self.vwait(f'x{A0-1}')
        self.check(range(vXF, vXF + 4*A0))
        k.s_cselect_b32(s(sT7), 1, s(sT6))
        k.s_cmp_eq_u32(s(sT7), 0)
        k.s_cbranch_scc1(lg)
        k.v_mov_b32(v(CH), 0)
        fill = []
        xm, wk, wv = ST, ST+4, ST+8
        for st in range(28):
            self.vwait(f'x{st}')
            self.lwait(f'w{st}')
            b = vWF + (st % 4)*8
            xr = vXF + 4*st
            x = v(xr, 4)
            self.mfma(vAK, v(b, 4), x, v(vAK, 16) if st else 0)
            if st >= A0:
                k.v_max3_u32(v(CH), v(xr), v(xr+1), v(CH)); k.v_max3_u32(v(CH), v(xr+2), v(xr+3), v(CH))
            for _ in range(2):
                if fill: fill.pop(0)()
            self.mfma(vAV, x, v(b+4, 4), v(vAV, 16) if st else 0)
            if st + D < 28: rd(st + D)
            for _ in range(self.opt.get('lps', 2) if st < 8 else 1):
                if nxt < len(seq): ld(nxt); nxt += 1
            for _ in range(3):
                if fill: fill.pop(0)()
            if st == SPOS:
                ls1, ls2 = k.newlabel('Lsr'), k.newlabel('Lsb')
                k.v_max3_u32(v(62), v(ST), v(ST+1), v(ST+2)); k.v_max_u32(v(62), v(ST+3), v(62))
                k.v_cmp_eq_u32('vcc', -1, v(62))
                k.s_cmp_eq_u64('vcc', 0)
                k.br('s_cbranch_scc0', ls1)
                k.label(ls2)
                def cold_s():
                    k.label(ls1)
                    if self.ts: k.s_add_u32(s(sERR), s(sERR), 1 << 22)
                    k.s_add_u32(s(sT2), s(sT1), 28672)
                    k.buffer_load_dwordx4(v(ST, 4), v(vL16), s(S_WS, 4), s(sT2), m='offen sc1')
                    k.s_add_u32(s(sTRY), s(sTRY), 1)
                    k.s_cmp_ge_u32(s(sTRY), MAXTRY); k.s_cselect_b32(s(sT6), 8 << (4*L), 0); k.s_or_b32(s(sERR), s(sERR), s(sT6))
                    k.s_waitcnt('vmcnt(0)')
                    k.v_max3_u32(v(62), v(ST), v(ST+1), v(ST+2)); k.v_max_u32(v(62), v(ST+3), v(62))
                    k.v_cmp_eq_u32('vcc', -1, v(62))
                    k.s_cmp_eq_u64('vcc', 0)
                    k.s_cselect_b32(s(sT7), 1, s(sT6))
                    k.s_cmp_eq_u32(s(sT7), 0)
                    k.s_cbranch_scc1(ls1)
                    k.s_branch(ls2)
                self.cold.append(cold_s)
                fill += self.stats_ops(ST)
                def wr():
                    k.ds_write_b32(v(vRVW), v(vRINV)); self.ltag('rw')
                fill += [wr, lambda: k.v_mov_b32(v(xm), v(vMB)), lambda: k.v_mov_b32(v(wk), v(vCS+3*typ+1)), lambda: k.v_mov_b32(v(wv), v(vCS+3*typ+2))]
                for i in range(1, 4):
                    fill += [lambda i=i: k.v_mov_b32(v(xm+i), 0), lambda i=i: k.v_mov_b32(v(wk+i), 0), lambda i=i: k.v_mov_b32(v(wv+i), 0)]
            if st == 25:
                assert not fill
                self.mfma(vAK, v(wk, 4), v(xm, 4), v(vAK, 16))
                self.mfma(vAV, v(xm, 4), v(wv, 4), v(vAV, 16))
                for q in range(4):
                    k.ds_read_b128(v(ST+4*q, 4), v(vRVR), m=f'offset:{32*q}')
                self.ltag('rv', 4)
        k.v_cmp_eq_u32('vcc', -1, v(CH))
        k.s_cmp_eq_u64('vcc', 0)
        lbad = k.newlabel('Lgbad')
        k.br('s_cbranch_scc0', lbad)
        k.label(lok)
        def cold_b():
            k.label(lbad)
            k.s_nop(15)
            k.s_waitcnt('lgkmcnt(0)')
            k.v_mov_b32(v(60), 0); k.v_mov_b32(v(61), 0)
            k.s_add_u32(s(sTRY), s(sTRY), 8)
            if self.ts: k.s_add_u32(s(sERR), s(sERR), 1 << 20)
            k.s_cmp_lt_u32(s(sTRY), MAXTRY)
            k.s_cbranch_scc1(lg)
            k.s_or_b32(s(sERR), s(sERR), 8 << (4*L))
            k.s_branch(lok)
        self.cold.append(cold_b)
        self.vq = []; self.lq = []
        self.rv = ST

    def gemm_q(self, typ, raw, hooks={}, fill=None, f0=8):
        k = self.k
        D = 6
        def rd(st):
            k.ds_read_b128(v(vWF + (st % 8)*4, 4), v(vWQ), m=f'offset:{st*1024}'); self.ltag(f'w{st}')
        self.lq = []
        for st in range(D): rd(st)
        xm, wm = 120, 124
        for st in range(28):
            self.lwait(f'w{st}')
            b = vWF + (st % 8)*4
            self.mfma(vAQ, v(b, 4), v(vXF+4*st, 4), v(vAQ, 16) if st else 0)
            if st + D < 28: rd(st + D)
            if st in hooks: hooks[st]()
            if fill and st >= f0:
                for _ in range(4):
                    if fill: fill.pop(0)()
            if st == 24:
                k.v_mov_b32(v(128), v(vMB)); k.v_mov_b32(v(132), v(vCS+3*typ))
            if st in (25, 26, 27):
                i = st - 24
                k.v_mov_b32(v(128+i), 0); k.v_mov_b32(v(132+i), 0)
        assert not fill
        self.mfma(vAQ, v(132, 4), v(128, 4), v(vAQ, 16))

    def scale_pack(self, acc, mul_lo, mul_hi=None):
        k = self.k
        for i in range(8):
            mreg = mul_hi if (mul_hi is not None and i >= 6) else mul_lo
            assert mreg % 2 == 0
            k.v_pk_mul_f32(v(acc+2*i, 2), v(acc+2*i, 2), v(mreg, 2), m='op_sel_hi:[1,0]')
        for i in range(8):
            k.v_cvt_pk_bf16_f32(v(acc+i), v(acc+2*i), v(acc+2*i+1))

    def pack(self, acc):
        for i in range(8):
            self.k.v_cvt_pk_bf16_f32(v(acc+i), v(acc+2*i), v(acc+2*i+1))

    def epi_v(self):
        k = self.k
        rv = self.rv
        k.s_waitcnt('lgkmcnt(0)')
        for i in range(8):
            k.v_pk_fma_f32(v(vAV+2*i, 2), v(vAV+2*i, 2), v(rv+2*i, 2), v(vONE, 2), m='op_sel_hi:[1,1,0]')
        for i in range(8):
            k.v_cvt_pk_bf16_f32(v(vAV+i), v(vAV+2*i), v(vAV+2*i+1))

    def sanitize(self, base, n):
        for i in range(n):
            self.k.v_min_u32(v(base+i), -2, v(base+i))

    def feature_mfma(self, frag, P):
        self.mfma(P, v(vWPHI, 4), v(frag, 4), 0)
        self.mfma(P, v(vWPHI+4, 4), v(frag+4, 4), v(P, 16))

    def feature(self, P, E, every=1, n=1, late=None, wr=None):
        k = self.k
        cnt = [0]
        def tk():
            cnt[0] += 1
            if cnt[0] % every == 0: self.tick(n)
        mx, mn, t0, t1 = 58, 60, 62, 63
        c = 57
        k.v_mul_f32(v(c), f32(LOG2E), v(vRINV))
        k.v_max3_f32(v(mx), v(P), v(P+1), v(P+2)); k.v_min3_f32(v(mn), v(P), v(P+1), v(P+2))
        for i in range(3, 11, 2):
            k.v_max3_f32(v(mx), v(P+i), v(P+i+1), v(mx)); k.v_min3_f32(v(mn), v(P+i), v(P+i+1), v(mn))
        k.v_max3_f32(v(t0), v(P+12), v(P+13), v(P+14)); k.v_min3_f32(v(t1), v(P+12), v(P+13), v(P+14))
        k.v_max_f32(v(t0), v(t0), v(P+15)); k.v_min_f32(v(t1), v(t1), v(P+15))
        k.v_sub_f32(v(t0), v(t0), v(vBIG)); k.v_add_f32(v(t1), v(t1), v(vBIG))
        k.v_max3_f32(v(mx), v(P+11), v(t0), v(mx)); k.v_min3_f32(v(mn), v(P+11), v(t1), v(mn))
        tk()
        k.v_mov_b32(v(t0), v(mx)); k.v_mov_b32(v(t1), v(mn))
        k.v_permlane32_swap_b32(v(mx), v(t0)); k.v_permlane32_swap_b32(v(mn), v(t1))
        k.v_max_f32(v(mx), v(mx), v(t0)); k.v_min_f32(v(mn), v(mn), v(t1))
        k.v_mul_f32(v(mx), v(c), v(mx)); k.v_mul_f32(v(mn), v(c), v(mn))
        k.v_add_f32(v(mx+1), v(mx), v(vBIG)); k.v_sub_f32(v(mn+1), v(mn), v(vBIG))
        for i in range(0, 16, 2):
            o = 1 if i >= 12 else 0
            k.v_pk_fma_f32(v(E+i, 2), v(P+i, 2), v(56, 2), v(mn, 2), m=f'op_sel:[0,1,{o}] op_sel_hi:[1,1,{o}] neg_lo:[1,0,0] neg_hi:[1,0,0]')
            k.v_pk_fma_f32(v(P+i, 2), v(P+i, 2), v(56, 2), v(mx, 2), m=f'op_sel:[0,1,{o}] op_sel_hi:[1,1,{o}] neg_lo:[0,0,1] neg_hi:[0,0,1]')
            if i % 8 == 6: tk()
        for i in range(16):
            k.v_exp_f32(v(E+i), v(E+i)); k.v_exp_f32(v(P+i), v(P+i))
            if i % 4 == 3: tk()
        if late: late()
        for X, sm in ((P, mx), (E, mn)):
            k.v_pk_add_f32(v(sm, 2), v(X, 2), v(X+2, 2))
            for i in range(4, 16, 2): k.v_pk_add_f32(v(sm, 2), v(sm, 2), v(X+i, 2))
            k.v_add_f32(v(sm), v(sm), v(sm+1))
        tk()
        k.v_mov_b32(v(t0), v(mx)); k.v_mov_b32(v(t1), v(mn))
        k.v_permlane32_swap_b32(v(mx), v(t0)); k.v_permlane32_swap_b32(v(mn), v(t1))
        k.v_add_f32(v(mx), v(mx), v(t0)); k.v_add_f32(v(mn), v(mn), v(t1))
        k.v_rcp_f32(v(mx), v(mx)); k.v_rcp_f32(v(mn), v(mn))
        self.scale_pack(P, mx)
        if wr: wr(0, P)
        self.scale_pack(E, mn)
        if wr: wr(1, E)

    def resets(self, L, z=124, t1=sT1, t2=sT2):
        k = self.k
        if L >= 3 or self.opt.get('abl_r', 0) & 1: return
        for i in range(4): k.v_mov_b32(v(z+i), -1)
        bufs = [XB[L], OB[L+1]]
        if True:
            if L == 0: bufs.append(XB[1])
            if L == 1: bufs = bufs[1:]
        def st(fl):
            for b_ in bufs:
                k.s_add_u32(s(t1), s(sOT_P), b_)
                self.ws_st(z, vL16, t1, 0, flags=fl); self.ws_st(z, vL16, t1, 1024, flags=fl)
        self.local_stores(st)

    def bg_reset_kvh3(self):
        k = self.k
        z = 108
        def f0():
            for i in range(4): k.v_mov_b32(v(z+i), -1)
        for i in range(4):
            def f(i=i):
                k.s_add_u32(s(sB0), s(sKVH_P), KVH[3])
                k.buffer_store_dwordx4(v(z, 4), v(vL16), s(S_WS, 4), s(sB0), m=f'offen offset:{1024*i} sc1')
            self.bg.append(f)
        return f0

    def o_tail(self, L, acc, eps):
        k = self.k
        d0, d1 = 58, 60
        k.v_mov_b32(v(d0), v(acc+12)); k.v_mov_b32(v(d1), v(acc+12))
        k.s_add_u32(s(sT1), s(sOT_P), OB[L])
        k.v_permlane32_swap_b32(v(d0), v(d1))
        if eps: k.v_add_f32(v(d1), f32(1e-6), v(d1))
        k.v_rcp_f32(v(d1), v(d1))
        self.scale_pack(acc, d1)
        def st(fl):
            self.ws_st(acc, vL16, sT1, 0, flags=fl); self.ws_st(acc+4, vL16, sT1, 1024, flags=fl)
        self.local_stores(st)

    def bg_reset(self, sb, add, off, z):
        k = self.k
        def f():
            if off == 0: k.s_add_u32(s(sB2), s(sb), add)
            k.buffer_store_dwordx4(v(z, 4), v(vL16), s(S_WS, 4), s(sB2), m=f'offen offset:{off} sc1')
            self.vtag('bg')
        f.gap = 120
        return f

    def layer_A(self, L):
        k = self.k
        self.stamp(f'L{L} kv gemm')
        if L == 2:
            self.vq = []
            if not self.opt.get('qo'): self.bg_wpk(0, 14, 21, tag='wq')
            self.burst(self.opt.get('bq', 5))
            for f in self.bg: f.gap = 90
            if not self.opt.get('abl_r', 0) & 2:
                self.bg += [self.bg_reset(sKVH_P, KVH[3], 1024*i, 72) for i in range(4)]
            if not self.opt.get('f2'): self.bgon(100 if self.opt.get('qo') else 400)
        sa = self.opt.get('s0a') if L == 0 else self.opt.get('s2a')
        kf = L == 0 and self.opt.get('kf')
        if not kf:
            self.pack(vAK)
            P, E = 112, 128
            self.feature_mfma(vAK, P)
            if L == 2:
                for i in range(4): k.v_mov_b32(v(72+i), -1)
            self.epi_v()
            sa = self.opt.get('s0a') if L == 0 else self.opt.get('s2a')
            if L == 0: self.burst(self.opt.get('bf', 5))
            k.ds_write_b128(v(vVOW), v(vAV, 4)); k.ds_write_b128(v(vVOW), v(vAV+4, 4), m='offset:1024')
            def wr(sg, X):
                for q in range(4):
                    k.ds_write_b64(v(vPHW), v(X+2*q, 2), m=f'offset:{sg*PHI_SIGN + q*16}')
            self.feature(P, E, wr=wr)
            self.bgoff()
            if L == 0:
                self.vwait('wq'); self.vwait('st')
                self.burst(self.opt.get('bb2', 5))
                self.quad_issue(58, stage=1, both=True)
            if L == 2:
                self.drain()
                self.vwait('wq')
        k.s_waitcnt('lgkmcnt(0)')
        k.s_barrier()
        self.stamp(f'L{L} phi_k')
        if L == 0: self.flag_post(2, 92)
        if L == 0:
            wo_rest = self.bg; self.bg = []
            self.bg_wpk(1, 0, 14)
            wb = self.bg; self.bg = []
            while wo_rest or wb:
                self.bg += wo_rest[:2]; wo_rest = wo_rest[2:]
                if wb:
                    f = wb.pop(0); f.gap = self.ghit; self.bg.append(f)
        lq = k.newlabel('Lq')
        k.s_cmp_ge_u32(s(sW), 2); k.s_cbranch_scc1(lq)
        A0, ACC = 112, 96
        B0 = [64, 68, 72, 76, 80, 84, 88, 92]
        k.v_add_u32(v(55), L_VOWN, v(vL16))
        def rdkv(idx):
            u, j = idx >> 1, idx & 1
            for jj in range(2):
                k.ds_read_b64_tr_b16(v(A0+4*idx+2*jj, 2), v(vPHR), m=f'offset:{(u*8+4*j+2*jj)*264}')
            k.ds_read_b128(v(B0[idx], 4), v(55), m=f'offset:{u*2048+j*1024}')
        for idx in range(5): rdkv(idx)
        k.s_add_u32(s(sT1), s(sKVP_P), KVP[L])
        for idx in range(8):
            k.s_waitcnt(f'lgkmcnt({3*min(4, 7-idx)})')
            self.mfma(ACC, v(A0+4*idx, 4), v(B0[idx], 4), v(ACC, 16) if idx else 0)
            if idx + 5 < 8: rdkv(idx + 5)
        for i in range(8): k.v_cvt_pk_bf16_f32(v(64+i), v(ACC+2*i), v(ACC+2*i+1))
        self.nohi()
        self.ws_st(64, vL16, sT1, 0, flags='sc1'); self.ws_st(68, vL16, sT1, 1024, flags='sc1')
        if L == 0:
            lq2 = k.newlabel('Lq')
            k.s_waitcnt('vmcnt(2)')
            k.s_branch(lq2)
            k.label(lq)
            k.s_waitcnt('vmcnt(1)')
            k.s_cmp_eq_u32(s(sW), 3); k.s_cbranch_scc1(lq2)
            k.s_waitcnt('vmcnt(0)')
            k.label(lq2)
        else:
            k.label(lq)
        self.stamp(f'L{L} kvp pub')
        if L == 0:
            assert not any(f in self.bg for f in self.rs0)
            self.vq = []
            if True:
                k.s_lshr_b32(s(6), s(sH), 2); k.s_lshl_b32(s(6), s(6), 9); k.s_add_u32(s(6), s(6), FLG + 2048)
                self.quad_wait(58, both=True)
            k.s_mul_i32(s(sT1), s(sW), 4096 - 128); k.s_add_u32(s(sT1), s(sT1), (L_RINV - L_RINV0) & 0xffffffff)
            k.v_add_u32(v(vRVW), s(sT1), v(vRVW)); k.v_add_u32(v(vRVR), s(sT1), v(vRVR))
        pw = L == 0 and self.opt.get('pw')
        if pw:
            wo = [f for f in self.bg if getattr(f, 'wo', False)]
            rest = [f for f in self.bg if not getattr(f, 'wo', False)]
            if pw == 2:
                k.s_waitcnt('vmcnt(0)'); self.stamp('pre wo')
                for f in wo: f()
                k.s_waitcnt('vmcnt(0)'); self.stamp('wo done')
                self.bg = rest
            else:
                for f in wo: f.gap = 24
                self.bg = wo
        if not pw == 1: self.resets(L)
        if not (L == 0 and sa): self.bg_wpk(1, 0, 14)
        nb1 = self.opt.get('b1', 6)
        if sa:
            if L == 0 and self.opt.get('f0'):
                for f in self.bg: f.gap = self.opt.get('g0', 60)
            if L == 2 and self.opt.get('g2'):
                for f in self.bg: f.gap = self.opt.get('g2')
            self.burst(self.opt.get('bp', 3)); self.bgon()
        G = 144
        k.s_lshl_b32(s(sT1), s(sH), 16); k.s_lshl_b32(s(sT2), s(sOM), 6); k.s_add_u32(s(sT1), s(sT1), s(sT2))
        k.s_add_u32(s(sT1), s(sT1), KVP[L])
        k.v_lshrrev_b32(v(59), 2, v(vLANE)); k.v_lshlrev_b32(v(59), 12, v(59))
        k.v_and_b32(v(58), 3, v(vLANE)); k.v_lshl_add_u32(v(59), v(58), 4, v(59))
        h1 = lambda: self.ws_ld(G, 59, sT1, 0)
        H1 = self.opt.get('h1', 22)
        if pw == 1:
            def endwo():
                self.bgoff(); self.drain(); self.resets(L, z=84, t1=sT4); h1(); self.bg = rest
            self.gemm_q(0, raw=False, hooks={27: endwo})
        else:
          qfill = None
          if L == 0:
              qfill = self.cs_ops(0, self.L_CT, 72, 55, segs=(2,))
              for i in range(8):
                  qfill += [lambda i=i: k.v_accvgpr_read_b32(v(vXRES+2*i+1), a(128+i)), lambda i=i: k.v_lshlrev_b32(v(vXRES+2*i), 16, v(vXRES+2*i+1)),
                            lambda i=i: k.v_and_b32(v(vXRES+2*i+1), '0xffff0000', v(vXRES+2*i+1))]
              def zp():
                  k.s_mov_b32('exec_lo', 0)
                  for i in range(12, 16): k.v_mov_b32(v(vXRES+i), 0)
                  k.s_mov_b32('exec_lo', -1)
              qfill.append(zp)
          self.gemm_q(0, raw=False, fill=qfill, f0=0, hooks=({(self.opt.get('off0', 16) if L == 0 else self.opt.get('off2', 16)): self.bgoff, H1: h1} if sa else {(8 if L == 0 else 2): lambda: self.burst(nb1), H1: h1}))
        k.v_lshrrev_b32(v(60), 4, v(vLANE)); k.v_lshlrev_b32(v(60), 2, v(60)); k.v_lshl_add_u32(v(G+8), v(58), 4, v(60))
        k.v_mov_b32(v(G+10), '0x3f80'); k.v_mov_b32(v(G+11), 1.0)
        k.v_mov_b32(v(G+4), 0); k.v_mov_b32(v(G+5), 0)
        self.pack(vAQ)
        PQ, EQ = 64, 80
        self.feature_mfma(vAQ, PQ)
        self.stamp(f'L{L} q gemm')
        self.poll(h1, range(G, G+4), 2 << (4*L), first_wait=0, sleep=1)
        self.stamp(f'L{L} kvp got')
        k.v_permlane32_swap_b32(v(G), v(G+2)); k.v_permlane32_swap_b32(v(G+1), v(G+3))
        k.v_permlane16_swap_b32(v(G), v(G+1)); k.v_permlane16_swap_b32(v(G+2), v(G+3))
        for i in range(4):
            k.v_dot2_f32_bf16(v(G+4), v(G+i), v(G+10), v(G+4)); k.v_dot2_f32_bf16(v(G+5), v(G+i), v(G+11), v(G+5))
        k.s_lshl_b32(s(sT1), s(sH), 12); k.s_add_u32(s(sT1), s(sT1), KVR[L]); k.s_add_u32(s(sT2), s(sT2), s(sT1))
        for rot in (4, 8):
            for i in (4, 5):
                k.v_add_f32_dpp(v(G+i), v(G+i), v(G+i), m=f'row_ror:{rot} row_mask:0xf bank_mask:0xf')
        k.v_cvt_pk_bf16_f32(v(G+4), v(G+4), v(G+5))
        self.sanitize(G+4, 1)
        k.s_mov_b32('exec_lo', 0x000f000f); k.s_mov_b32('exec_hi', 0x000f000f)
        k.buffer_store_dword(v(G+4), v(G+8), s(S_WS, 4), s(sT2), m='offen sc1')
        k.s_mov_b64('exec', -1)
        self.stamp(f'L{L} kvr pub')
        if kf:
            for i in range(8):
                k.v_lshlrev_b32(v(vXRES+2*i), 16, v(vXRES+8+i)); k.v_and_b32(v(vXRES+2*i+1), '0xffff0000', v(vXRES+8+i))
            k.s_mov_b32('exec_lo', 0)
            for i in range(12, 16): k.v_mov_b32(v(vXRES+i), 0)
            k.s_mov_b32('exec_lo', -1)
        k.s_barrier()
        if sa:
            if L == 0 and kf and kf >= 2:
                for i in range(4): k.v_mov_b32(v(176+i), -1)
                for i in range(4): self.bg_reset(sKVH_P, KVH[1], 1024*i, 176)()
                self.bg_reset(97, KVP[2], 0, 176)()
            if L == 0: self.cs_dma(1, L_KVL)
            self.bg_wpk(1, 14, 21)
            self.burst(self.opt.get('bf2', 5) if L else self.opt.get('bf0', 3))
            if not self.opt.get('nfq'): self.bgon()
            self.feature(PQ, EQ)
            self.bgoff()
            while any(getattr(f, 'wo', False) for f in self.bg): self.bg.pop(0)()
        else:
            rest = self.bg; self.bg = []
            self.bg_wpk(1, 14, 21)
            self.bg = rest[:7-nb1] + self.bg[:4] + rest[7-nb1:] + self.bg[4:]
            if L == 0:
                self.cs_dma(1, L_KVL)
                self.touch_half(OPK + OPT)
            self.burst(11 - nb1)
            self.feature(PQ, EQ)
        if self.opt.get('cpf2'): self.code_pf(512)
        if L == 0:
            self.vq = []
            self.flag_issue(2, 160)
        self.stamp(f'L{L} phi_q')
        def issue():
            for i in range(4): self.ws_ld(128+4*i, vL16, sT1, 1024*i)
        self.poll(issue, range(128, 144), 2 << (4*L), sleep=1)
        self.stamp(f'L{L} kvr got')
        ACC = 96
        for i, B in enumerate((PQ, PQ+4, EQ, EQ+4)):
            self.mfma(ACC, v(128+4*i, 4), v(B, 4), v(ACC, 16) if i else 0)
        self.o_tail(L, ACC, True)
        if L == 0:
            self.vq = []
            self.flag_wait(2, 160)
        self.stamp(f'L{L} o pub')

    def layer_B(self, L):
        k = self.k
        self.stamp(f'L{L} kv gemm')
        s3 = L == 1 and self.opt.get('kf', 0) >= 2
        if s3:
            self.vq = []
            self.quad_issue(112, stage=3, both=True)
        self.nohi()
        k.s_add_u32(s(sT1), s(sKVH_P), KVH[L])
        self.scale_pack(vAK, vRINV)
        for i, rg in enumerate((vAK, vAK+4)): self.ws_st(rg, vL16, sT1, 1024*i, flags='sc1')
        self.epi_v()
        for i, rg in enumerate((vAV, vAV+4)): self.ws_st(rg, vL16, sT1, 2048+1024*i, flags='sc1')
        self.stamp(f'L{L} kvh pub')
        if s3:
            self.vtag('pub', 4)
            self.quad_wait(112, both=True)
        if self.opt.get('early_reset'): self.resets(L)
        for i, rg in enumerate((vAK, vAK+4, vAV, vAV+4)):
            k.ds_write_b128(v(vKVL), v(rg, 4), m=f'offset:{8*4096 + 1024*i}')
        k.s_lshl_b32(s(sT1), s(sR), 1); k.s_add_u32(s(sT1), s(sT1), s(sW))
        k.s_add_u32(s(sT2), s(sKVH_C), KVH[L])
        k.s_cmp_lt_u32(s(sT1), 4); k.s_cselect_b32(s(sT1), 0x7000000, s(sT2))
        k.s_add_u32(s(sT2), s(sT1), 4096)
        k.s_lshl_b32(s(sT3), s(sW), 13); k.s_add_u32(s(sT3), s(sT3), L_KVL)
        def hdma(f0):
            def f():
                for j, so in ((0, sT1), (1, sT2)):
                    k.s_add_u32('m0', s(sT3), j*4096)
                    for fr in (f0, f0+1):
                        k.buffer_load_dwordx4(v(vL16), s(S_WS, 4), s(so), m=f'offen offset:{fr*1024} ' + ('nt sc1 lds' if self.opt.get('hnt') else 'sc1 lds'))
            return f
        def hread(f0, R):
            for j in range(2):
                for i in range(2):
                    k.ds_read_b128(v(R + 8*j + 4*i, 4), v(vHW), m=f'offset:{j*4096 + (f0+i)*1024}')
        def hcheck(f0, R, wait):
            lp, lo, lr = k.newlabel('Lhp'), k.newlabel('Lho'), k.newlabel('Lhr')
            k.s_mov_b32(s(sTRY), 0)
            if wait is not None:
                k.s_waitcnt(f'vmcnt({wait})')
                hread(f0, R)
            k.label(lp)
            k.s_waitcnt('lgkmcnt(0)')
            self.check(range(R, R+16))
            k.s_cbranch_scc1(lo)
            if self.ts: k.s_add_u32(s(sERR), s(sERR), 1 << 16)
            k.s_add_u32(s(sTRY), s(sTRY), 1)
            k.s_cmp_ge_u32(s(sTRY), MAXTRY); k.s_cselect_b32(s(sT6), 2 << (4*L), 0); k.s_or_b32(s(sERR), s(sERR), s(sT6))
            k.s_cmp_lg_u32(s(sT6), 0); k.s_cbranch_scc1(lo)
            k.s_sleep(1)
            hdma(f0)()
            if f0 == 0: hdma(2)()
            k.s_waitcnt('vmcnt(4)' if f0 == 0 else 'vmcnt(0)')
            hread(f0, R)
            k.s_branch(lp)
            k.label(lo)
        SR = [144, 112, 128, 176, 192, 208, 224, 240]
        S0, S8 = 144, 160
        NEG = 57
        M = 88
        mx = 58
        fill = [lambda: k.v_mov_b32(v(NEG), f32(-BIGF)), lambda: k.v_mov_b32(v(60), 0xffff), lambda: k.v_mov_b32(v(61), '0xffff0000')]
        for r in range(0, 16, 2):
            fill += [lambda r=r: k.v_cmp_le_i32(s(sC0, 2), (r & 3) + 8*(r >> 2), v(vII)),
                     lambda r=r: k.v_cmp_le_i32(s(sP0, 2), ((r+1) & 3) + 8*((r+1) >> 2), v(vII)),
                     lambda r=r: k.v_mov_b32(v(mx), f32(-BIGF)) if r == 0 else (k.v_or_b32(v(M + r//2 - 1), v(62), v(63))),
                     lambda r=r: k.v_cndmask_b32(v(S8+r), v(NEG), 0, s(sC0, 2)), lambda r=r: k.v_cndmask_b32(v(S8+r+1), v(NEG), 0, s(sP0, 2)),
                     lambda r=r: k.v_cndmask_b32(v(S0+r), 0, v(NEG), s(sC0, 2)), lambda r=r: k.v_cndmask_b32(v(S0+r+1), 0, v(NEG), s(sP0, 2)),
                     lambda r=r: k.v_cndmask_b32(v(62), 0, v(60), s(sC0, 2)), lambda r=r: k.v_cndmask_b32(v(63), 0, v(61), s(sP0, 2))]
        fill += [lambda: k.v_or_b32(v(M + 7), v(62), v(63)), lambda: k.v_mov_b32(v(mx+1), f32(-BIGF)),
                 lambda: k.v_mul_f32(v(62), f32(28**-0.5 * LOG2E), v(vRINV))]
        NQ = self.opt.get('woq', 0) if L == 1 else 0
        hooks = {self.hk: hdma(0), self.hv: hdma(2)}
        if NQ:
            self.bg_wo(1, 0, NQ)
            wl = self.bg; self.bg = []
            for i, f in enumerate(wl): hooks[1 + i*(self.hk - 3)//len(wl) if len(wl) <= 8 else 1 + i] = f
        self.gemm_q(1, raw=False, hooks=hooks, fill=fill)
        assert not fill
        self.scale_pack(vAQ, 62)
        k.s_mov_b32('exec_lo', 0)
        k.v_mov_b32(v(vAQ+6), 0x3f80)
        k.s_mov_b32('exec_lo', -1)
        self.mfma(S8, v(vAK, 4), v(vAQ, 4), v(S8, 16))
        self.mfma(S8, v(vAK+4, 4), v(vAQ+4, 4), v(S8, 16))
        self.stamp(f'L{L} q')
        hcheck(0, 176, 4)
        lmk = k.newlabel('Lmk')
        k.s_cmp_lg_u32(s(sT1), 0x7000000); k.s_cbranch_scc1(lmk)
        k.v_mov_b32(v(62), 0xff61)
        k.s_mov_b32('exec_lo', 0)
        k.ds_write_b32(v(vHW), v(62), m='offset:1032'); k.ds_write_b32(v(vHW), v(62), m=f'offset:{4096+1032}')
        k.s_mov_b32('exec_lo', -1)
        k.s_waitcnt('lgkmcnt(0)')
        k.label(lmk)
        k.s_barrier()
        self.stamp(f'L{L} halo got')
        KB = 64
        def kb(t): return KB + (t % 3)*8
        def rdk(t):
            k.ds_read_b128(v(kb(t), 4), v(vKVL), m=f'offset:{t*4096}')
            k.ds_read_b128(v(kb(t)+4, 4), v(vKVL), m=f'offset:{t*4096+1024}')
            self.ltag(f'k{t}', 2)
        def rdv(t):
            k.ds_read_b128(v(kb(t), 4), v(vKVL), m=f'offset:{t*4096+2048}')
            k.ds_read_b128(v(kb(t)+4, 4), v(vKVL), m=f'offset:{t*4096+3072}')
            self.ltag(f'v{t}', 2)
        def maxtile(S):
            return [lambda i=i: k.v_max3_f32(v(mx + ((i >> 1) & 1)), v(S+i), v(S+i+1), v(mx + ((i >> 1) & 1))) for i in range(0, 16, 2)]
        def merge():
            return [lambda r=r: k.v_max_f32(v(S0+r), v(S0+r), v(S8+r)) for r in range(16)]
        self.lq = []
        for t in range(3): rdk(t)
        if not self.opt.get('early_reset'): self.resets(L, z=104, t1=sT4, t2=sT5)
        self.vq = []
        if L == 1:
            self.bg_wpk(0, 0, 14)
            if self.opt.get('s1a'):
                ne = self.opt.get('wae', 5)
                late = self.bg[ne:]; self.bg = self.bg[:ne]
                self.bg_wo(1, NQ, 4)
                self.bg += late
                if self.opt.get('qo'): self.bg_wpk(0, 14, 21)
                self.bgon()
            else:
                self.burst(7)
                late = self.bg; self.bg = []
                self.bg_wo(1, 0, 4)
                for f in self.bg: f.gap = 64
                self.bg += late
        def smfma(fast):
            for t in range(8):
                self.lwait(f'k{t}')
                self.mfma(SR[t], v(kb(t), 4), v(vAQ, 4), v(S0, 16) if t == 0 else 0)
                for _ in range(6):
                    if fast: fast.pop(0)()
                self.mfma(SR[t], v(kb(t)+4, 4), v(vAQ+4, 4), v(SR[t], 16))
                if t + 3 < 8: rdk(t + 3)
                if fast is not None:
                    for _ in range(5):
                        if fast: fast.pop(0)()
                    if t == 1: fast += merge() + maxtile(S0)
                    if t >= 2: fast += maxtile(SR[t-1])
        fast = []
        smfma(fast)
        fast += maxtile(SR[7])
        while fast: fast.pop(0)()
        k.v_max_f32(v(mx), v(mx), v(mx+1))
        self.xhalf('v_max_f32', mx, 60)
        k.v_sub_f32(v(mx), 0, v(mx))
        V8 = S8 + 8
        P8 = S8
        ACC = 96
        pend = []
        for t in range(8):
            S = SR[t]
            for i in range(8): k.v_pk_add_f32(v(S+2*i, 2), v(S+2*i, 2), v(mx, 2), m='op_sel_hi:[1,0]')
            for i in range(16):
                k.v_exp_f32(v(S+i), v(S+i))
                if i % 4 == 1 and pend: pend.pop(0)()
                if i % 4 == 3: self.tick()
            if t == 0:
                self.bgoff()
                k.s_waitcnt(f'vmcnt({len(self.vq)})')
                hread(2, 64)
            for i in range(8): k.v_cvt_pk_bf16_f32(v(S+i), v(S+2*i), v(S+2*i+1))
            if t == 0:
                for i in range(8):
                    k.v_and_b32(v(P8+i), v(S+i), v(M+i)); k.v_xor_b32(v(S+i), v(S+i), v(P8+i))
                self.bgoff()
                hcheck(2, 64, None)
                k.s_barrier()
                self.stamp(f'L{L} V ok')
                self.burst(4)
                self.bgon()
                self.lq = []
                for tt in range(3): rdv(tt)
                k.ds_read_b128(v(V8, 4), v(vKVL), m=f'offset:{8*4096+2048}')
                k.ds_read_b128(v(V8+4, 4), v(vKVL), m=f'offset:{8*4096+3072}')
                self.ltag('v8', 2)
            def m1(t=t, S=S):
                self.lwait(f'v{t}')
                self.mfma(ACC, v(kb(t), 4), v(S, 4), v(ACC, 16) if t else 0)
            def m2(t=t, S=S):
                self.mfma(ACC, v(kb(t)+4, 4), v(S+4, 4), v(ACC, 16))
                if t + 3 < 8: rdv(t + 3)
            pend += [m1, m2]
            if t == 0:
                def m3():
                    self.lwait('v8')
                    self.mfma(ACC, v(V8, 4), v(P8, 4), v(ACC, 16))
                pend += [m3, lambda: self.mfma(ACC, v(V8+4, 4), v(P8+4, 4), v(ACC, 16))]
        while pend: pend.pop(0)()
        self.bgoff()
        while any(getattr(f, 'wo', False) for f in self.bg): self.bg.pop(0)()
        self.o_tail(L, ACC, False)
        self.stamp(f'L{L} o pub')

    def outproj(self, L):
        k = self.k
        typ = L & 1
        G = 144
        assert not any(getattr(f, 'wo', False) for f in self.bg)
        if L < 3: self.code_pf(1024)
        k.s_add_u32(s(sT1), s(sOT_C), OB[L])
        k.s_add_u32(s(sT2), s(sT1), 4096)
        k.s_mov_b32(s(sTRY), 0)
        lp = k.newlabel('Lop')
        OW = self.opt.get('ow', 0)
        k.label(lp)
        for i in range(8): self.ws_ld(G+4*i, vL16, sT2 if i >= 4 else sT1, 1024*(i & 3))
        k.s_add_u32(s(sTRY), s(sTRY), 1)
        k.s_cmp_ge_u32(s(sTRY), MAXTRY)
        k.s_cselect_b32(s(sT6), 4 << (4*L), 0)
        k.s_or_b32(s(sERR), s(sERR), s(sT6))
        for i in range(8):
            if OW or i % 2 == 0: k.s_waitcnt(f'vmcnt({7-i if OW else 6-i})')
            if OW: k.ds_write_b128(v(vGW), v(G+4*i, 4), m=f'offset:{1024*i}')
            if i == 0:
                k.v_max3_u32(v(62), v(G), v(G+1), v(G+2)); k.v_max_u32(v(62), v(G+3), v(62))
            else:
                k.v_max3_u32(v(62), v(G+4*i), v(G+4*i+1), v(62)); k.v_max3_u32(v(62), v(G+4*i+2), v(G+4*i+3), v(62))
        k.v_cmp_eq_u32('vcc', -1, v(62))
        k.s_cmp_eq_u64('vcc', 0)
        k.s_cselect_b32(s(sT7), 1, s(sT6))
        k.s_cmp_eq_u32(s(sT7), 0)
        k.s_cbranch_scc1(lp)
        self.stamp(f'L{L} o got')
        NPRE = self.opt.get('npre', 3 if OW else 6)
        for i in range(8):
            if not OW: k.ds_write_b128(v(vGW), v(G+4*i, 4), m=f'offset:{1024*i}')
            if i < NPRE: self.mfma(vXRES, a(typ*128+4*i, 4), v(G+4*i, 4), v(vXRES, 16))
        k.s_waitcnt('lgkmcnt(0)')
        k.s_barrier()
        def breg(f): return (64 if f < 8 else 176 - 32) + 4*f
        def rdo(f):
            k.ds_read_b128(v(breg(f), 4), v((vG1, vG2, vG3)[f >> 3]), m=f'offset:{1024*(f & 7)}')
            self.ltag(f'o{f}')
        D = 8
        self.lq = []
        fill = self.cs_ops(1, L_KVL, 240, 55) if L == 0 else []
        for f in range(4): rdo(f)
        for i in range(NPRE, 8):
            self.mfma(vXRES, a(typ*128+4*i, 4), v(G+4*i, 4), v(vXRES, 16))
        for f in range(4, D): rdo(f)
        if L == 0 and self.opt.get('kf', 0) >= 2: self.flag_post(3, 60)
        if L == 0: self.touch_half(OPK + OPT)
        self.burst(3)
        for f in self.bg: f.gap = min(90, 700 // len(self.bg))
        self.bg_next = 0
        self.bgon()
        for f in range(24):
            self.lwait(f'o{f}')
            self.mfma(vXRES, a(typ*128+32+4*f, 4), v(breg(f), 4), v(vXRES, 16))
            if f + D < 24: rdo(f + D)
            for _ in range(5):
                if fill: fill.pop(0)()
        assert not fill
        self.bgoff()
        PK = 112
        last = L == self.nlayers - 1
        if not last:
            self.drain()
            k.s_add_u32(s(sT1), s(sXT_P), XB[L])
            k.v_mov_b32(v(122), '0x3f803f80'); k.v_mov_b32(v(120), 0); k.v_mov_b32(v(121), 0)
        for i in range(8): k.v_cvt_pk_bf16_f32(v(PK+i), v(vXRES+2*i), v(vXRES+2*i+1))
        if last:
            for q in range(3):
                k.buffer_store_dwordx2(v(PK+2*q, 2), v(vOUT), s(S_OUT, 4), 0, m=f'offen offset:{16*q}')
            k.s_mov_b32('exec_hi', 0)
            k.buffer_store_dwordx2(v(PK+6, 2), v(vOUT), s(S_OUT, 4), 0, m='offen offset:48')
            k.s_mov_b32('exec_hi', -1)
            self.stamp(f'L{L} out')
            return
        def st(fl):
            for q in range(3): self.ws_st(PK+2*q, vXST, sT1, 512*q, n=2, flags=fl)
            k.s_mov_b32('exec_hi', 0)
            self.ws_st(PK+6, vXST, sT1, 512*3, n=2, flags=fl)
            k.s_mov_b32('exec_hi', -1)
        self.local_stores(st)
        s1, s2 = 120, 121
        for i in range(8):
            k.v_dot2_f32_bf16(v(s1), v(PK+i), v(122), v(s1)); k.v_dot2_f32_bf16(v(s2), v(PK+i), v(PK+i), v(s2))
        k.s_lshl_b32(s(sT2), s(sW), 9); k.s_add_u32(s(sT2), s(sT2), L_STAT)
        k.v_lshl_add_u32(v(124), v(vLANE), 3, s(sT2))
        k.ds_write_b64(v(124), v(s1, 2))
        for i in range(8):
            k.v_lshlrev_b32(v(vXRES+2*i), 16, v(PK+i)); k.v_and_b32(v(vXRES+2*i+1), '0xffff0000', v(PK+i))
        self.stamp(f'L{L} x pub')

    def build(self):
        k = self.k
        self.prologue()
        for L in range(self.nlayers):
            if L > 0: self.load_gemm_kv(L)
            if L & 1: self.layer_B(L)
            else: self.layer_A(L)
            self.outproj(L)
        if self.ts:
            k.s_memrealtime(s(sTS, 2)); k.s_waitcnt('lgkmcnt(0)')
            k.v_writelane_b32(v(vNEGB), s(90), 59); k.v_writelane_b32(v(vNEGB), s(sTS), 60); k.v_writelane_b32(v(vNEGB), s(92), 61)
            k.v_writelane_b32(v(vNEGB), s(sERR), 63)
            k.v_writelane_b32(v(vNEGB), s(sMODE), 62)
            k.v_lshlrev_b32(v(60), 2, v(vLANE))
            k.buffer_store_dword(v(vNEGB), v(60), s(S_WS, 4), s(sTSO), m='offen')
        k.label('Lend')
        k.s_endpgm()
        self.bgoff()
        while self.cold: self.cold.pop(0)()
        k.label('Lcode_end')
        body = k.finish()
        hdr = open('cdna_kernels/' + NAME + '.s.ref').read().split('; Override launch')[0]
        return hdr + f"""; Generated by the author's own script (gen/gen.py + gen/asmlib.py); no compiler output.
; One persistent launch: 256 workgroups (one per CU) x 4 waves run all four layers.
;   workgroup = (row block r of 128 tokens, head h) for LN+QKV GEMM / attention core, and
;               (32-token tile, 112-column group) for the output projection + residual.
;   LayerNorm is applied algebraically: (x W - mean * colsum(W)) * rstd, statistics travel with x.
;   Hand-offs between workgroups go through d_ws: buffers are reset to a sentinel in this launch and consumers
;   verify every dword; start-up steps are ordered by flags that carry a launch-unique tag (posted in d_debug).
;   Row blocks whose 16 workgroups really sit on one XCD (checked at run time) exchange through that L2 with plain
;   stores, otherwise write-through (sc1) stores are used.  All spins are bounded.
; @launch grid=(256,1,1) block=(256,1,1) lds={LDS_BYTES}
.amdgcn_target "amdgcn-amd-amdhsa--gfx950"
.text
.globl {NAME}_kernel
.p2align 8
.type {NAME}_kernel,@function
{NAME}_kernel:
{body}.section .rodata,"a"
.p2align 6
.amdhsa_kernel {NAME}_kernel
  .amdhsa_next_free_vgpr 512
  .amdhsa_next_free_sgpr 102
  .amdhsa_accum_offset 256
  .amdhsa_group_segment_fixed_size 0
  .amdhsa_kernarg_size 80
  .amdhsa_user_sgpr_count 2
  .amdhsa_user_sgpr_kernarg_segment_ptr 1
  .amdhsa_system_sgpr_workgroup_id_x 1
.end_amdhsa_kernel
"""

if __name__ == '__main__':
    import argparse
    ap = argparse.ArgumentParser()
    ap.add_argument('-o', default='cdna_kernels/' + NAME + '.s')
    ap.add_argument('--ts', action='store_true')
    ap.add_argument('--slow', action='store_true')
    ap.add_argument('--noalias', action='store_true')
    ap.add_argument('--tlb', action='store_true')
    ap.add_argument('--opt', action='append', default=[])
    ap.add_argument('--gmiss', type=int, default=250)
    ap.add_argument('--ghit', type=int, default=90)
    ap.add_argument('--hk', type=int, default=20)
    ap.add_argument('--hv', type=int, default=27)
    ap.add_argument('--layers', type=int, default=4)
    args = ap.parse_args()
    g = Gen(ts=args.ts, force_slow=args.slow, nlayers=args.layers, alias=not args.noalias, tlb=args.tlb, hk=args.hk, hv=args.hv, gmiss=args.gmiss, ghit=args.ghit, opt={o.split('=')[0]: (int(o.split('=')[1]) if '=' in o else 1) for o in args.opt})
    src = g.build()
    if not g.opt.get('noalign'):
        from alignpass import align
        src, nw, nn = align(src, g.opt.get('minrun', 2), g.opt.get('noprun', 4))
        print('aligned: widened', nw, 'nops', nn)
    open(args.o, 'w').write(src)
    if args.ts:
        open(args.o + '.tsnames', 'w').write('\n'.join(getattr(g, 'tsnames', [])))
    print('instructions', g.k.nins, 'bytes of source', len(src))
```

```python
import sys, math, struct
from asmlib import *

NAME = "interleave_layers__linear_kernel_hedgehog__sliding_block__prompt"

def f32(x):
    return '0x%08x' % struct.unpack('<I', struct.pack('<f', x))[0]

MB = 1 << 20
XB = [0*MB, 2*MB, 4*MB]
OB = [6*MB, 8*MB, 10*MB, 12*MB]
KVP = {0: 14*MB, 2: 15*MB}
KVH = {1: 16*MB, 3: 20*MB}
TS_BASE = 24*MB
FLG = 24*MB + 768*1024
KVR = {0: 24*MB + 512*1024, 2: 24*MB + 576*1024}
FR = 1024
WPK = [25*MB, 25*MB + 16*84*FR]
OPK = 28*MB
OPT = 512*FR
CSP = 29*MB
WS_BYTES = 30*MB

SEG = 28672
L_WK, L_WV, L_WQ = 0, SEG, 2*SEG
L_KVL = 3*SEG
L_PHI = L_KVL
PHI_SIGN = 32*264
L_VOWN = L_KVL + 17408
L_KVF = L_KVL + 25600
L_CS1 = L_KVL + 29696
L_STAT = L_KVL + 32768 + 1024
L_RINV = L_KVL + 32768
L_GATH = L_KVL + 45056
L_ST = 114688
L_CS0 = L_KVL + 65536
L_RINV0 = L_KVL + 69632
LDS_BYTES = 163840
assert L_GATH + 32768 == LDS_BYTES

S_WS, S_AX, S_WA, S_WB, S_WPHI, S_WOA, S_WOB, S_OUT, S_DBG, S_CODE = 8, 12, 16, 20, 24, 28, 32, 36, 40, 44
sR, sH, sW, sTT, sCG, sMODE, sXCC, sTRY = 48, 49, 50, 51, 52, 53, 54, 55
sXT, sOT_P, sOT_C, sXT_P, sKVP_P, sKVP_C, sKVH_P, sKVH_C = 56, 57, 58, 59, 60, 61, 62, 63
sT0, sT1, sT2, sT3, sT4, sT5 = 64, 65, 66, 67, 68, 69
sM28 = 70
sTMIN = 72
sWPKH = 73
sLDSW = 74
sSTW = 75
sTS = 24
sTSO = 93
sERR = 79
sB0, sB1 = 80, 81
sC0, sC1 = 82, 83
sP0 = 84
sOPKC = 86
sOM = 87
sT6, sT7 = 88, 89
sSLOT = 94
sJUNK = 72
sPFO = 70
sB2 = 75
sHA, sHB = 46, 47
sQA, sQB, sHEAD = 76, 77, 78
sE0, sE1 = 4, 5

vLANE, vL16, vWRD0, vL14, vWQ, vNEGB, vHW, vXST, vSST, vSLD = 0, 1, 2, 3, 4, 5, 6, 7, 8, 9
vPHW, vPHR, vRVW, vRVR, vKVL, vOUT, vG1, vG2, vG3, vHFM, vBIG, vII, vVOW, vGW = 10, 11, 12, 13, 14, 15, 16, 17, 18, 19, 20, 21, 22, 23
vONE = 2
vWPHI = 24
vXRES = 32
vCS = 48
vMB, vRINV = 54, 56
vT = 54
vAK, vAV, vAQ = 64, 80, 96
vWF = 112
vXF = 144
vS = 112

BIGF = 3.0e38
LOG2E = 1.4426950408889634
MAXTRY = 200000
MFMA = 'v_mfma_f32_32x32x16_bf16'

class Gen:
    def __init__(self, ts=False, force_slow=False, nlayers=4, alias=True, tlb=False, hk=20, hv=27, gmiss=250, ghit=90, opt={}):
        self.tlb = tlb
        self.opt = dict(s0a=1, s1a=1, s2a=1, cpf2=1, woq=2, f0=1, off0=21, g0=40, et=1, h1=27, rp=1, s1l=1, qi=2, we=1); self.opt.update(opt)
        self.gmiss, self.ghit = gmiss, ghit
        self.hk, self.hv = hk, hv
        if alias:
            XB[2] = XB[0]; OB[2] = OB[0]; OB[3] = OB[1]
        self.k = Asm()
        self.ts = ts
        self.force_slow = force_slow
        self.nlayers = nlayers
        self.nts = 0
        self.bg = []; self.bg_log = []
        self._owner = None
        self._hi = None
        self.lq = []; self.vq = []
        self.cold = []

    @property
    def m0_owner(self):
        return self._owner if self.k.watch else None
    @m0_owner.setter
    def m0_owner(self, val):
        self._owner = val

    def stamp(self, name):
        if getattr(self, 'spin_at', None) == name:
            k = self.k
            k.s_and_b32(s(26), s(sE0), '0xfffffff0')
            k.label('Lspin')
            k.s_memrealtime(s(24, 2)); k.s_waitcnt('lgkmcnt(0)')
            k.s_sub_u32(s(27), s(24), s(26)); k.s_cmp_lt_u32(s(27), self.spin_t); k.s_cbranch_scc1('Lspin')
        if not self.ts or self.opt.get('lite'): return
        k = self.k
        k.c(f'stamp {self.nts}: {name}')
        (k.s_memrealtime if self.opt.get('rt') else k.s_memtime)(s(sTS, 2))
        k.s_waitcnt('lgkmcnt(0)')
        k.v_writelane_b32(v(vNEGB), s(sTS), self.nts)
        self.tsnames = getattr(self, 'tsnames', []) + [name]
        self.nts += 1

    def tick(self, n=1):
        pass

    def _hook(self):
        if self.bg and self.k.est >= self.bg_next:
            f = self.bg.pop(0)
            f()
            self.bg_log.append(f)
            self.bg_next = self.k.est + getattr(f, 'gap', 90)

    def bgon(self, delay=0):
        self.k.hook = self._hook; self.k.hook_ok = True
        self.bg_next = max(getattr(self, 'bg_next', 0), self.k.est + delay)

    def bgoff(self):
        self.k.hook_ok = False

    def burst(self, n):
        for _ in range(n):
            if self.bg:
                f = self.bg.pop(0); f(); self.bg_log.append(f)
        self.bg_next = self.k.est + 200

    def drain(self):
        while self.bg: self.bg.pop(0)()

    def ltag(self, tag, n=1):
        self.lq += [tag]*n
    def lwait(self, tag=None):
        if tag is None:
            self.k.s_waitcnt('lgkmcnt(0)'); self.lq = []; return
        if tag not in self.lq: return
        idx = len(self.lq) - 1 - self.lq[::-1].index(tag)
        n = len(self.lq) - 1 - idx
        self.k.s_waitcnt(f'lgkmcnt({min(n, 15)})')
        self.lq = self.lq[idx+1:]
    def vtag(self, tag, n=1):
        self.vq += [tag]*n
    def vwait(self, tag=None):
        if tag is None:
            self.k.s_waitcnt('vmcnt(0)'); self.vq = []; return
        if tag not in self.vq: return
        idx = len(self.vq) - 1 - self.vq[::-1].index(tag)
        n = len(self.vq) - 1 - idx
        assert n <= 63
        self.k.s_waitcnt(f'vmcnt({n})')
        self.vq = self.vq[idx+1:]

    def mfma(self, d, a_, b_, c):
        self.k(MFMA, v(d, 16), a_, b_, c)

    def srd(self, d, b, n):
        k = self.k
        k.s_mov_b32(s(d), s(b)); k.s_and_b32(s(d+1), s(b+1), '0xffff')
        k.s_mov_b32(s(d+2), n); k.s_mov_b32(s(d+3), '0x20000')

    def _so(self, sbase, off):
        hi = off & ~0xfff
        if not hi: return s(sbase)
        if self._hi != (sbase, hi):
            self.k.s_add_u32(s(sT5), s(sbase), hi); self._hi = (sbase, hi)
        return s(sT5)

    def ws_ld(self, dst, voff, sbase, off, n=4, flags='sc1'):
        op = {1: 'buffer_load_dword', 2: 'buffer_load_dwordx2', 4: 'buffer_load_dwordx4'}[n]
        so = self._so(sbase, off)
        self.k(op, v(dst, n), v(voff), s(S_WS, 4), so, m=f'offen offset:{off & 0xfff} {flags}'.strip())

    def ws_st(self, src, voff, sbase, off, n=4, flags=''):
        op = {1: 'buffer_store_dword', 2: 'buffer_store_dwordx2', 4: 'buffer_store_dwordx4'}[n]
        so = self._so(sbase, off)
        self.k(op, v(src, n), v(voff), s(S_WS, 4), so, m=f'offen offset:{off & 0xfff} {flags}'.strip())

    def nohi(self):
        self._hi = None

    def local_stores(self, fn):
        k = self.k
        ls, ld = k.newlabel('Lslow'), k.newlabel('Ldone')
        k.s_cmp_eq_u32(s(sMODE), 0)
        k.s_cbranch_scc1(ls)
        self.nohi(); fn('')
        k.label(ld)
        self.nohi()
        def cold():
            k.label(ls)
            self.nohi(); fn('sc1'); self.nohi()
            k.s_branch(ld)
        self.cold.append(cold)

    def check(self, regs):
        k = self.k
        t = 62
        regs = list(regs)
        k.v_max3_u32(v(t), v(regs[0]), v(regs[1]), v(regs[2]))
        rest = regs[3:]
        while rest:
            if len(rest) >= 2:
                k.v_max3_u32(v(t), v(rest[0]), v(rest[1]), v(t)); rest = rest[2:]
            else:
                k.v_max_u32(v(t), v(rest[0]), v(t)); rest = rest[1:]
        k.v_cmp_eq_u32('vcc', -1, v(t))
        k.s_cmp_eq_u64('vcc', 0)

    def poll(self, issue, regs, code, first_wait=None, sleep=0):
        k = self.k
        lp, lo = k.newlabel('Lpoll'), k.newlabel('Lok')
        def loop():
            k.s_mov_b32(s(sTRY), 0)
            l2, l3 = k.newlabel('Lp2'), k.newlabel('Lp3')
            k.s_branch(l3) if sleep else None
            k.label(l2)
            if sleep: k.s_sleep(sleep)
            k.label(l3)
            self.nohi(); issue(); self.nohi()
            k.s_add_u32(s(sTRY), s(sTRY), 1)
            k.s_cmp_ge_u32(s(sTRY), MAXTRY)
            k.s_cselect_b32(s(sT6), code, 0)
            k.s_or_b32(s(sERR), s(sERR), s(sT6))
            k.s_waitcnt('vmcnt(0)')
            self.check(regs)
            k.s_cselect_b32(s(sT7), 1, s(sT6))
            k.s_cmp_eq_u32(s(sT7), 0)
            k.s_cbranch_scc1(l2)
        if first_wait is None:
            loop()
        else:
            k.s_mov_b32(s(sTRY), 0)
            k.s_mov_b32(s(sT6), 0)
            l2, l3 = k.newlabel('Lp2'), k.newlabel('Lp3')
            assert first_wait == 0
            k.s_branch(l3)
            k.label(l2)
            if self.ts: k.s_add_u32(s(sERR), s(sERR), 1 << 16)
            if sleep: k.s_sleep(sleep)
            self.nohi(); issue(); self.nohi()
            k.s_add_u32(s(sTRY), s(sTRY), 1)
            k.s_cmp_ge_u32(s(sTRY), MAXTRY)
            k.s_cselect_b32(s(sT6), code, 0)
            k.s_or_b32(s(sERR), s(sERR), s(sT6))
            k.label(l3)
            k.s_waitcnt('vmcnt(0)')
            self.check(regs)
            k.s_cselect_b32(s(sT7), 1, s(sT6))
            k.s_cmp_eq_u32(s(sT7), 0)
            k.s_cbranch_scc1(l2)

    def xhalf(self, op, dst, t):
        k = self.k
        k.v_mov_b32(v(t), v(dst))
        k.v_permlane32_swap_b32(v(dst), v(t))
        k(op, v(dst), v(dst), v(t))

    def rbf(self, dst, src):
        k = self.k
        k.v_cvt_pk_bf16_f32(v(dst), v(src), v(src))
        k.v_and_b32(v(dst), '0xffff0000', v(dst))

    def prologue(self):
        k = self.k
        k.label('Lstart')
        k.s_load_dwordx2(s(S_WA, 2), s(0, 2), 8)
        k.s_load_dwordx2(s(S_WOA, 2), s(0, 2), 24)
        k.s_load_dwordx16(s(64, 16), s(0, 2), 0)
        k.s_load_dwordx4(s(80, 4), s(0, 2), 64)
        k.s_getpc_b64(s(4, 2))
        k.label('Lpc')
        k.s_memrealtime(s(90, 2))
        if self.ts: k.s_memtime(s(92, 2))
        k.s_cmp_ge_u32(s(2), 256)
        k.s_cbranch_scc1('Lend')
        k.s_lshr_b32(s(6), s(2), 3)
        k.s_sub_u32(s(S_CODE), s(4), 'Lpc-Lstart'); k.s_subb_u32(s(5), s(5), 0)
        k.s_and_b32(s(S_CODE+1), s(5), '0xffff')
        k.s_mov_b32(s(S_CODE+2), 'Lcode_end-Lstart'); k.s_mov_b32(s(S_CODE+3), '0x20000')
        k.v_lshrrev_b32(v(1), 6, v(0))
        k.v_and_b32(v(vLANE), 63, v(0))
        k.v_readfirstlane_b32(s(sW), v(1))
        k.s_lshl_b32(s(3), s(6), 11)
        k.v_lshlrev_b32(v(2), 5, v(vLANE))
        lcp = k.newlabel('Lcp')
        k.s_cmp_lg_u32(s(sW), 3); k.s_cbranch_scc1(lcp)
        k.buffer_load_dword(v(240), v(2), s(S_CODE, 4), s(3), m='offen')
        k.label(lcp)
        k.s_and_b32(s(sH), s(6), 15)
        k.s_and_b32(s(3), s(2), 7)
        k.s_lshr_b32(s(7), s(6), 4)
        k.s_lshl_b32(s(3), s(3), 1)
        k.s_add_u32(s(sR), s(3), s(7))
        n, hf, r4, ch, c4, l2 = 60, 61, 62, 63, 59, 58
        k.v_and_b32(v(c4), 3, v(vLANE))
        k.v_lshrrev_b32(v(l2), 2, v(vLANE))
        vODMA, vPDMA = 97, 98
        k.v_mul_u32_u24(v(vPDMA), 2688, v(l2))
        k.v_lshl_add_u32(v(vPDMA), v(c4), 4, v(vPDMA))
        k.v_mul_u32_u24(v(vODMA), 896, v(l2))
        k.v_lshl_add_u32(v(vODMA), v(c4), 4, v(vODMA))
        k.v_mul_u32_u24(v(96), 56, v(l2))
        k.v_lshl_add_u32(v(96), v(c4), 4, v(96))
        k.v_lshlrev_b32(v(vL16), 4, v(vLANE))
        k.s_lshl_b32(s(sOM), s(sR), 2); k.s_add_u32(s(sOM), s(sOM), s(sW))
        sRHO, sPH, sPD = 101, 100, 95
        k.s_lshl_b32(s(sRHO), s(sR), 4); k.s_add_u32(s(sRHO), s(sRHO), s(sH))
        k.s_and_b32(s(sPH), s(sRHO), 3); k.s_lshl_b32(s(sPH), s(sPH), 2); k.s_add_u32(s(sPH), s(sPH), s(sW))
        sPS = 97
        u0, u1, u2, u3, u4, uST = 56, 57, 58, 59, 60, 61
        k.s_mov_b32(s(S_WA+2), 1204224); k.s_mov_b32(s(S_WA+3), '0x20000')
        k.s_mov_b32(s(S_WOA+2), 401408); k.s_mov_b32(s(S_WOA+3), '0x20000')
        k.s_mul_i32(s(uST), s(sW), 7168); k.s_add_u32(s(uST), s(uST), L_ST)
        k.s_lshr_b32(s(u1), s(sRHO), 2)
        k.s_cmp_ge_u32(s(u1), 28); k.s_cselect_b32(s(u2), 1, 0)
        k.s_cmp_ge_u32(s(u1), 56); k.s_cselect_b32(s(u2), 2, s(u2))
        k.s_mul_i32(s(u3), s(u2), 28); k.s_sub_u32(s(u3), s(u1), s(u3)); k.s_mul_i32(s(u3), s(u3), 16*2688)
        k.s_add_u32(s(u2), s(u2), 1); k.s_cmp_eq_u32(s(u2), 3); k.s_cselect_b32(s(u2), 0, s(u2))
        k.s_mul_i32(s(u2), s(u2), 896); k.s_add_u32(s(u3), s(u3), s(u2))
        k.s_mul_i32(s(u0), s(sPH), 56); k.s_add_u32(s(sPS), s(u3), s(u0))
        k.s_add_u32(s(u3), s(u1), 8); k.s_mul_i32(s(u3), s(u3), 16*2688); k.s_add_u32(s(sPS+1), s(u3), s(u0))
        k.s_sub_u32(s(u4), s(sRHO), 80)
        k.s_lshr_b32(s(u2), s(u4), 3); k.s_bfe_u32(s(u4), s(u4), 2 | (1 << 16))
        k.s_mul_i32(s(u3), s(u2), 28*896); k.s_add_u32(s(u0), s(u0), s(u3)); k.s_mul_i32(s(u3), s(u4), 16*896); k.s_add_u32(s(u0), s(u0), s(u3))
        k.s_cmp_ge_u32(s(sRHO), 80); k.s_cselect_b32(s(sPS+1), s(u0), s(sPS+1))
        k.s_mov_b32('m0', s(uST))
        k.s_waitcnt('lgkmcnt(0)')
        self.vq = []
        k.buffer_load_dwordx4(v(vPDMA), s(S_WA, 4), s(sPS), m='offen lds')
        def pack_dma1(typ, slot, sbase):
            la, lb = k.newlabel('La'), k.newlabel('Lb')
            k.s_add_u32('m0', s(sbase), slot*1024)
            k.s_cmp_ge_u32(s(sRHO), 80); k.s_cbranch_scc1(la)
            k.buffer_load_dwordx4(v(vPDMA), s(S_WB if typ else S_WA, 4), s(sPS+1), m='offen lds')
            k.s_branch(lb)
            k.label(la)
            k.buffer_load_dwordx4(v(vODMA), s(S_WOB if typ else S_WOA, 4), s(sPS+1), m='offen lds')
            k.label(lb)
        pack_dma1(0, 1, uST)
        self.vtag('pack', 2)
        self.srd(S_DBG, 80, 256)
        k.s_add_u32(s(7), s(2), s(sW)); k.s_lshl_b32(s(7), s(7), 8)
        k.s_andn2_b32(s(3), s(90), 15); k.s_or_b32(s(4), s(91), 0x40000000)
        k.v_mov_b32(v(56), s(3)); k.v_mov_b32(v(57), s(4))
        k.s_mov_b64('exec', 1)
        k.buffer_store_dwordx2(v(56, 2), v(vLANE), s(S_DBG, 4), s(7), m='offen sc1'); self.vtag('tag')
        k.s_mov_b64('exec', -1)
        self.srd(S_AX, 64, 1835008); self.srd(S_WPHI, 68, 25088)
        self.srd(S_WB, 74, 1204224); self.srd(S_WOB, 76, 401408)
        self.srd(S_OUT, 78, 1835008); self.srd(S_WS, 82, WS_BYTES)
        k.s_lshl_b32(s(sLDSW), s(sW), 10)
        k.s_mov_b32(s(sSTW), s(uST))
        def pack_dst():
            k.s_mul_i32(s(sT2), s(sPH), 84*FR); k.s_mul_i32(s(sT3), s(u1), FR); k.s_add_u32(s(sPD), s(sT2), s(sT3))
            k.s_add_u32(s(sPD), s(sPD), WPK[0])
            k.s_add_u32(s(sPD+1), s(sPD), 64*FR)
            k.s_mul_i32(s(sT3), s(sPH), 32*FR); k.s_mul_i32(s(u2), s(u2), 2*FR); k.s_add_u32(s(sT3), s(sT3), s(u2))
            k.s_mul_i32(s(u4), s(u4), FR); k.s_add_u32(s(sT3), s(sT3), s(u4)); k.s_add_u32(s(sT3), s(sT3), OPK)
            k.s_cmp_ge_u32(s(sRHO), 208); k.s_cselect_b32(s(sT3), 0x7000000, s(sT3))
            k.s_cmp_ge_u32(s(sRHO), 80); k.s_cselect_b32(s(sPD+1), s(sT3), s(sPD+1))
            k.s_mul_i32(s(sC0), s(sPH), 10752); k.s_lshl_b32(s(sT1), s(u1), 7)
            k.s_add_u32(s(sC0), s(sC0), s(sT1)); k.s_add_u32(s(sC0), s(sC0), CSP)
            k.s_add_u32(s(sC1), s(sC0), 64*128)
            k.s_cmp_ge_u32(s(sRHO), 80); k.s_cselect_b32(s(sC1), 0x7000000, s(sC1))
        def packb_dma():
            k.s_add_u32('m0', s(sSTW), 2*1024)
            k.buffer_load_dwordx4(v(vPDMA), s(S_WB, 4), s(sPS), m='offen lds')
            pack_dma1(1, 3, sSTW)
            self.vtag('packb', 2)
        if self.opt.get('s1e'): packb_dma()
        k.s_mul_i32(s(sT1), s(sH), 1568)
        k.s_add_u32('m0', s(sSTW), 5*1024)
        k.buffer_load_dwordx4(v(96), s(S_WPHI, 4), s(sT1), m='offen lds')
        k.s_add_u32(s(sT1), s(sT1), 16*56)
        k.s_add_u32('m0', s(sSTW), 6*1024)
        k.buffer_load_dwordx4(v(96), s(S_WPHI, 4), s(sT1), m='offen lds')
        self.vtag('phi', 2)
        if self.tlb:
            k.v_lshlrev_b32(v(2), 20, v(vLANE))
            k.s_lshl_b32(s(sT1), s(2), 7)
            k.s_mov_b32('exec_hi', 0)
            k.buffer_load_dword(a(255), v(2), s(S_WS, 4), s(sT1), m='offen')
            k.buffer_load_dword(a(254), v(2), s(S_OUT, 4), s(sT1), m='offen')
            k.s_mov_b32('exec_hi', -1)
            self.vtag('tlb', 2)
        if self.ts:
            k.s_lshl_b32(s(sT1), s(2), 2); k.s_add_u32(s(sT1), s(sT1), s(sW)); k.s_lshl_b32(s(sT1), s(sT1), 8)
            k.s_add_u32(s(sTSO), s(sT1), TS_BASE)
            k.v_mov_b32(v(vNEGB), 0)
        self.stamp('pack issued')
        vX0, vBW0, vBW1, vBR = 101, 102, 103, 104
        vPK8, vPK4 = 99, 100
        k.v_lshrrev_b32(v(56), 3, v(vLANE))
        k.s_lshl_b32(s(sT1), s(sOM), 5)
        k.v_add_u32(v(55), s(sT1), v(56)); k.v_mul_u32_u24(v(vX0), 896, v(55))
        k.v_and_b32(v(55), 7, v(vLANE))
        k.v_lshrrev_b32(v(56), 4, v(vLANE)); k.v_xor_b32(v(55), v(55), v(56))
        k.v_lshl_add_u32(v(vX0), v(55), 4, v(vX0))
        k.v_xor_b32(v(vBW0), 64, v(vX0))
        sC0_ = 99
        k.s_and_b32(s(sT1), s(sR), 1); k.s_mul_i32(s(sT1), s(sT1), 3); k.s_add_u32(s(sC0_), s(sH), s(sT1))
        k.s_cmp_ge_u32(s(sC0_), 7); k.s_cselect_b32(s(sT1), 7, 0); k.s_cmp_ge_u32(s(sC0_), 14); k.s_cselect_b32(s(sT1), 14, s(sT1))
        k.s_sub_u32(s(sC0_), s(sC0_), s(sT1))
        def line(dst, i):
            k.s_add_u32(s(dst), s(sC0_), i)
            k.s_cmp_ge_u32(s(dst), 7); k.s_cselect_b32(s(sT5), 7, 0); k.s_sub_u32(s(dst), s(dst), s(sT5))
        sSL = 16
        def wprep():
            for ii in range(7):
                line(sT4, ii)
                k.s_lshl_b32(s(sT4), s(sT4), 12)
                k.s_add_u32(s(sT4), s(sT4), s(sWPKH))
                k.s_add_u32(s(sSL+ii), s(sT4), WPK[0])
        def wdma(segs, ii):
            for g in segs:
                k.s_add_u32('m0', s(sLDSW), g*SEG + ii*4096)
                so = sSL + ii
                if g:
                    k.s_add_u32(s(sT5), s(sSL+ii), g*28*FR); so = sT5
                k.buffer_load_dwordx4(v(vL14), s(S_WS, 4), s(so), m='offen sc1 lds')
                self.vtag('wq' if g == 2 else f'w{ii}')
        def xload(c):
            line(sT0, c)
            k.s_lshl_b32(s(sT0), s(sT0), 7)
            for g in range(4):
                if g: k.s_add_u32(s(sT0), s(sT0), 8*896)
                k.s_add_u32('m0', s(sLDSW), (4*c+g)*4096)
                k.buffer_load_dwordx4(v(vBW0 if g & 1 else vX0), s(S_AX, 4), s(sT0), m='offen lds')
            self.vtag(f'x{c}', 4)
        def xread(c):
            for sp in range(4):
                k.ds_read_b128(v(vXF+4*(4*c+sp), 4), v((vBR if c < 4 else 84)+sp), m=f'offset:{(c & 3)*16384}')
            self.ltag(f'b{c}', 4)
        ones = 57
        def xstat(c):
            for i in range(16):
                x = vXF + 16*c + i
                k.v_dot2_f32_bf16(v(60), v(x), v(ones), v(60))
                k.v_dot2_f32_bf16(v(61), v(x), v(x), v(61))
        def st1(reg, sb, add, off=0, tag='st', frag=False):
            so = sb
            if add:
                k.s_add_u32(s(sT2), s(sb), add); so = sT2
            k.buffer_store_dwordx4(v(reg, 4), v(vL14 if frag else vL16), s(S_WS, 4), s(so), m=f'offen offset:{off} sc1')
            self.vtag(tag)
        X0L = self.opt.get('x0l', 0)
        if not X0L: xload(0)
        pack_dst()
        self.setup1()
        self.stamp('setup1')
        k.v_mov_b32(v(ones), '0x3f803f80')
        vPK1a, vPK1b = 110, 111
        k.s_cmp_ge_u32(s(sRHO), 80); k.s_cselect_b64('vcc', -1, 0); k.s_cselect_b32(s(sT1), 2, 1); k.s_lshl_b32(s(sT1), s(sT1), 8)
        k.v_cndmask_b32(v(vPK1a), v(vPK8), v(vPK4), 'vcc')
        k.v_add_u32(v(vPK1b), s(sT1), v(vPK1a))
        sPADM = 7
        k.s_sub_u32(s(sT1), s(sRHO), 80); k.s_bitcmp1_b32(s(sT1), 2); k.s_cselect_b32(s(sPADM), -1, 0)
        k.s_cmp_ge_u32(s(sRHO), 80); k.s_cselect_b32(s(sPADM), s(sPADM), 0)
        def pack_out(typ, slot, P, dadd):
            for j in range(2):
                k.ds_read_b64_tr_b16(v(P+2*j, 2), v(vPK8), m=f'offset:{slot*1024 + j*256}')
            k.ds_read_b64_tr_b16(v(P+4, 2), v(vPK1a), m=f'offset:{slot*1024 + 1024}')
            k.ds_read_b64_tr_b16(v(P+6, 2), v(vPK1b), m=f'offset:{slot*1024 + 1024}')
            k.s_waitcnt('lgkmcnt(2)')
            st1(P, sPD, dadd[0], frag=True)
            k.s_waitcnt('lgkmcnt(0)')
            k.s_mov_b32('exec_lo', 0); k.s_mov_b32('exec_hi', s(sPADM))
            k.v_mov_b32(v(P+6), 0); k.v_mov_b32(v(P+7), 0)
            k.s_mov_b64('exec', -1)
            if typ:
                k.s_mov_b32(s(sT3), dadd[0]); k.s_cmp_ge_u32(s(sRHO), 80); k.s_cselect_b32(s(sT3), dadd[1], s(sT3))
                k.s_add_u32(s(sPD+1), s(sPD+1), s(sT3))
            st1(P+4, sPD+1, 0, frag=True)
            A_, B_ = 76, 78
            k.v_mov_b32(v(A_), 0); k.v_mov_b32(v(B_), 0)
            for i in range(4):
                k.v_dot2_f32_bf16(v(A_), v(P+i), v(ones), v(A_)); k.v_dot2_f32_bf16(v(B_), v(P+4+i), v(ones), v(B_))
            k.v_permlane32_swap_b32(v(A_), v(B_))
            k.v_add_f32(v(A_), v(A_), v(B_))
            k.v_and_b32(v(B_), 31, v(vLANE)); k.v_lshlrev_b32(v(B_), 2, v(B_))
            k.s_mov_b32('exec_hi', 0)
            k.buffer_store_dword(v(A_), v(B_), s(S_WS, 4), s(sC0), m='offen sc1')
            k.s_mov_b32('exec_hi', -1); k.s_mov_b32('exec_lo', 0)
            k.buffer_store_dword(v(A_), v(B_), s(S_WS, 4), s(sC1), m='offen sc1')
            k.s_mov_b32('exec_lo', -1)
            self.vtag('st', 2)
            if typ == 0:
                k.s_add_u32(s(sC0), s(sC0), 172032); k.s_add_u32(s(sC1), s(sC1), 172032)
        self.vwait('pack')
        self.stamp('pack in')
        pack_out(0, 0, 64, (0, 0))
        EP = 80
        k.v_mov_b32(v(EP+2), 0)
        k.buffer_load_dwordx2(v(EP, 2), v(EP+2), s(S_DBG, 4), 0, m='offen sc1'); self.vtag('ep')
        self.stamp('pack out')
        def resid():
            for q in range(4):
                k.buffer_load_dwordx2(a(128+2*q, 2), v(vOUT), s(S_AX, 4), 0, m=f'offen offset:{16*q}')
            self.vtag('res', 4)
        RP = 1
        NX = self.opt.get('nx', 3)
        S1E = self.opt.get('s1e', 0)
        def s1_frags():
            self.vwait('packb')
            pack_out(1, 2, 64, (WPK[1] - WPK[0], OPT))
        def s1_resets():
            for i in range(4): k.v_mov_b32(v(108+i), -1)
            k.s_lshl_b32(s(97), s(sR), 12); k.s_add_u32(s(97), s(97), s(sKVP_C))
            k.s_lshl_b32(s(98), s(sH), 12); k.s_add_u32(s(98), s(98), s(sLDSW))
            k.s_lshl_b32(s(sT3), s(sR), 16); k.s_add_u32(s(98), s(98), s(sT3))
            k.s_mov_b32(s(sT3), 0x7000000); k.s_cmp_lt_u32(s(sR), 2); k.s_cselect_b32(s(sT3), KVR[0], s(sT3)); k.s_add_u32(s(98), s(98), s(sT3))
            st1(108, 97, KVP[0]); st1(108, 98, 0)
        def x0work():
            self.vwait('x0')
            self.lq = []
            xread(0)
            for j in range(2):
                for jj in range(2):
                    k.ds_read_b64_tr_b16(v(vWPHI+4*j+2*jj, 2), v(vPK4), m=f'offset:{5120 + j*1024 + jj*512}')
            self.lwait()
            k.s_mov_b32('exec_lo', 0)
            k.v_mov_b32(v(vWPHI+6), 0); k.v_mov_b32(v(vWPHI+7), 0)
            k.s_mov_b64('exec', s(sP0, 2))
            for i in range(8): k.v_mov_b32(v(vWPHI+i), 0)
            k.s_mov_b64('exec', -1)
            xstat(0)
            wprep()
        if X0L == 1: xload(0)
        if X0L != 2:
            if S1E: s1_frags()
            else: packb_dma()
            xload(1)
        self.setup2()
        if X0L == 2:
            packb_dma(); xload(0); xload(1)
        for i in range(4): k.v_mov_b32(v(60+i), 0)
        if S1E: s1_resets()
        for c in range(2, NX): xload(c)
        LATE = self.opt.get('xl', 0) or X0L
        if not LATE: x0work()
        self.vwait('ep')
        self.tag_get(EP)
        k.s_barrier()
        self.stamp('acked')
        self.flag_post(0, EP)
        S1L = self.opt.get('s1l', 0)
        XA = self.opt.get('xa', 0)
        if not S1E and not S1L:
            s1_frags(); s1_resets()
        for c in range(NX, 7): xload(c)
        if not self.opt.get('rl'): resid()
        if LATE: x0work()
        WE = self.opt.get('we', 0)
        for c in range(1, 4 if WE else 7):
            if c == self.opt.get('qi', 3):
                self.quad_issue(72)
                if S1L == 1:
                    self.lwait(); s1_frags(); s1_resets()
            self.vwait(f'x{c}')
            xread(c)
            if 2 <= c <= (6 if XA else 4):
                self.lwait(f'b{c-1}')
                xstat(c-1)
        self.lwait()
        self.stamp('x0 done')
        self.quad_wait(72)
        self.code_pf(1024)
        self.stamp('flags')
        L_CT = L_KVL + 32768 + 4096*4 + 8192
        if self.opt.get('kf'):
            for ii in range(7): wdma((0,), ii)
            self.cs_dma(0, L_CT)
            self.flag_issue(0, 32)
            xstat(4); xstat(5)
            for ii in range(3): wdma((1,), ii)
            xstat(6)
            self.stats_finish(60, 61)
            for ii in range(3, 7): wdma((1,), ii)
            self.vtag('wv', 0)
            self.stamp('W issued')
            self.flag_wait(0, 32)
            k.s_waitcnt('lgkmcnt(0)')
            k.s_barrier()
            self.stamp('K in')
            D = 6
            self.lq = []
            def rdk(st):
                k.ds_read_b128(v(vWF + (st % 8)*4, 4), v(vL16), m=f'offset:{L_WK + st*1024}'); self.ltag(f'w{st}')
            for st in range(D): rdk(st)
            self.flag_post(1, 96)
            self.touch_half(OPK); self.vtag('bg')
            fin = self.cs_ops(0, L_CT, 32, 55)
            rs0 = [self.bg_reset(sKVH_P, KVH[1], 1024*i, 108) for i in range(4)] + [self.bg_reset(97, KVP[2], 0, 108)]
            ex = {}
            KF = self.opt['kf']
            if KF == 1:
                for ii in range(7): ex[6 + 2*ii] = lambda ii=ii: wdma((2,), ii)
                for i in range(5): ex[20 + i] = rs0[i]
            for st in range(28):
                self.lwait(f'w{st}')
                self.mfma(vAK, v(vWF + (st % 8)*4, 4), v(vXF+4*st, 4), v(vAK, 16) if st else 0)
                if st + D < 28: rdk(st + D)
                for _ in range(4):
                    if fin: fin.pop(0)()
                if st in ex: ex[st]()
            assert not fin
            xm, wm = 112, 116
            k.v_mov_b32(v(xm), v(vMB)); k.v_mov_b32(v(wm), v(vCS+1))
            for i in range(1, 4):
                k.v_mov_b32(v(xm+i), 0); k.v_mov_b32(v(wm+i), 0)
            self.mfma(vAK, v(wm, 4), v(xm, 4), v(vAK, 16))
            k.s_add_u32(s(sT1), s(sOT_P), OB[0])
            def st_(fl):
                self.ws_st(108, vL16, sT1, 0, flags=fl); self.ws_st(108, vL16, sT1, 1024, flags=fl)
            self.local_stores(st_); self.vtag('st', 2)
            for q in range(4): k.ds_read_b128(v(32+4*q, 4), v(vRVR), m=f'offset:{32*q}')
            self.rv = 32
            self.vwait('w6')
            k.s_barrier()
            self.stamp('K gemm')
            self.lq = []
            def rdv(st):
                k.ds_read_b128(v(96 + (st % 4)*4, 4), v(vL16), m=f'offset:{L_WV + st*1024}'); self.ltag(f'w{st}')
            for st in range(3): rdv(st)
            if KF >= 2:
                for ii in range(7): wdma((2,), ii)
            self.pack(vAK)
            P, E = 112, 128
            self.feature_mfma(vAK, P)
            def vstep(st):
                def f():
                    self.lwait(f'w{st}')
                    self.mfma(vAV, v(vXF+4*st, 4), v(96 + (st % 4)*4, 4), v(vAV, 16) if st else 0)
                    if st + 3 < 28: rdv(st + 3)
                f.gap = 16; f.vs = True
                return f
            self.bg_wo(0)
            wo = self.bg; self.bg = []
            for st in range(28):
                self.bg.append(vstep(st))
                if st % 3 == 2 and st >= 8 and KF == 1:
                    f = wo.pop(0); f.gap = 0; self.bg.append(f)
            self.burst(3); self.bg_next = 0
            self.bgon()
            self.feature(P, E)
            self.bgoff()
            for sg, X in ((0, P), (1, E)):
                for q in range(4):
                    k.ds_write_b64(v(vPHW), v(X+2*q, 2), m=f'offset:{sg*PHI_SIGN + q*16}'); self.ltag('ph')
            self.drain()
            xm, wm = 120, 124
            k.v_mov_b32(v(xm), v(vMB)); k.v_mov_b32(v(wm), v(vCS+2))
            for i in range(1, 4):
                k.v_mov_b32(v(xm+i), 0); k.v_mov_b32(v(wm+i), 0)
            self.mfma(vAV, v(xm, 4), v(wm, 4), v(vAV, 16))
            self.bg = wo
            self.vwait('wq'); self.vwait('st')
            self.epi_v()
            k.ds_write_b128(v(vVOW), v(vAV, 4)); k.ds_write_b128(v(vVOW), v(vAV+4, 4), m='offset:1024')
            for q in range(4):
                k.buffer_load_dwordx2(v(vXRES+8+2*q, 2), v(vOUT), s(S_AX, 4), 0, m=f'offen offset:{16*q}')
            self.burst(4)
            self.quad_issue(58, stage=1, both=True)
            self.rs0 = []
            if KF >= 2:
                self.rs_late = [self.bg_reset(sKVH_P, KVH[1], 1024*i, 92) for i in range(4)] + [self.bg_reset(97, KVP[2], 0, 92)]
            return
        for ii in range(7):
            wdma((0, 1), ii)
            if WE:
                if ii == 3:
                    for c in (4, 5, 6):
                        self.vwait(f'x{c}'); xread(c)
                    xstat(3)
                    self.lwait()
                    if S1L == 2: s1_frags(); s1_resets()
                if ii == 6 and S1L == 3: s1_frags(); s1_resets()
                if ii >= 4: xstat(ii)
            elif XA:
                if ii == 5: xstat(6)
            elif ii in (3, 5, 6): xstat({3: 4, 5: 5, 6: 6}[ii])
        self.cs_dma(0, L_CT)
        ET = self.opt.get('et', 0)
        if ET: self.touch_half(OPK); self.vtag('bg')
        self.flag_issue(0, 96)
        if self.opt.get('rl'): resid()
        self.stats_finish(60, 61)
        D = 3
        def rdw(st):
            b = vWF + (st % 4)*8
            k.ds_read_b128(v(b, 4), v(vL16), m=f'offset:{L_WK + st*1024}')
            k.ds_read_b128(v(b+4, 4), v(vL16), m=f'offset:{L_WV + st*1024}')
            self.ltag(f'w{st}', 2)
        def gemm(s0, s1, extra, fill=None):
            for st in range(s0, s1):
                self.lwait(f'w{st}')
                b = vWF + (st % 4)*8
                x = v(vXF+4*st, 4)
                self.mfma(vAK, v(b, 4), x, v(vAK, 16) if st else 0)
                for _ in range(4):
                    if fill: fill.pop(0)()
                self.mfma(vAV, x, v(b+4, 4), v(vAV, 16) if st else 0)
                if st + D < s1: rdw(st + D)
                for _ in range(3):
                    if fill: fill.pop(0)()
                if extra: extra.pop(0)()
        nop = lambda: None
        self.stamp('W issued')
        self.vwait('w3')
        k.s_waitcnt('lgkmcnt(0)')
        k.s_barrier()
        self.lq = []
        for st in range(D): rdw(st)
        if S1L < 2: self.flag_post(1, 106)
        self.stamp('W half1')
        def rob():
            k.s_add_u32(s(sT1), s(sOT_P), OB[0])
            def st(fl):
                self.ws_st(108, vL16, sT1, 0, flags=fl); self.ws_st(108, vL16, sT1, 1024, flags=fl)
            self.local_stores(st); self.vtag('st', 2)
        ex = [nop]*self.opt.get('qd', 8)
        for ii in range(7): ex += [lambda ii=ii: wdma((2,), ii)]
        gemm(0, 16, ex)
        self.flag_wait(0, 96)
        k.s_barrier()
        self.stamp('W kv')
        for st in range(16, 16+D): rdw(st)
        if S1L >= 2: self.flag_post(1, 106)
        if not ET: self.touch_half(OPK); self.vtag('bg')
        rob()
        self.rs0 = [self.bg_reset(sKVH_P, KVH[1], 1024*i, 108) for i in range(4)] + [self.bg_reset(97, KVP[2], 0, 108)]
        for f in self.rs0: f.gap = 60
        fin = self.cs_ops(0, L_CT, 32, 55, segs=(0, 1))
        self.L_CT = L_CT
        early = self.opt.get('rse', 1)
        self.bg_wo(0)
        if ET == 1:
            ex = ex + self.bg[:7] + self.rs0; self.bg = self.bg[7:]
        elif ET == 2:
            ex = ex + self.bg[:12]; self.bg = self.rs0 + self.bg[12:]
        else: ex = ex + self.rs0
        gemm(16, 28, ex, fin)
        assert not ex
        self.rs0 = []
        while fin: fin.pop(0)()
        self.mean_steps(0)

    def tag_get(self, EP):
        k = self.k
        lfe, lfe2, lfe3 = k.newlabel('Lfe'), k.newlabel('Lfe'), k.newlabel('Lfe')
        k.s_mov_b32(s(sTRY), 0)
        k.label(lfe2)
        k.v_readfirstlane_b32(s(sE0), v(EP)); k.v_readfirstlane_b32(s(sE1), v(EP+1))
        k.s_cmp_eq_u32(s(sE1), 0); k.s_cbranch_scc1(lfe)
        k.label(lfe3)
        def cold():
            k.label(lfe)
            k.s_sleep(2)
            k.buffer_load_dwordx2(v(EP, 2), v(EP+2), s(S_DBG, 4), 0, m='offen sc1')
            k.s_add_u32(s(sTRY), s(sTRY), 1)
            k.s_waitcnt('vmcnt(0)')
            k.s_cmp_lt_u32(s(sTRY), MAXTRY); k.s_cbranch_scc1(lfe2)
            k.s_or_b32(s(sERR), s(sERR), 1 << 29)
            k.s_branch(lfe3)
        self.cold.append(cold)
        k.s_or_b32(s(sE0), s(sE0), s(sXCC))

    def flag_post(self, stage, EP):
        k = self.k
        lfx = k.newlabel('Lfx')
        k.s_cmp_lg_u32(s(sW), 3); k.s_cbranch_scc1(lfx)
        k.v_mov_b32(v(EP), s(sE0)); k.v_mov_b32(v(EP+1), s(sE1))
        k.s_and_b32(s(3), s(101), 3); k.s_lshl_b32(s(3), s(3), 9); k.s_lshr_b32(s(6), s(101), 2); k.s_lshl_b32(s(6), s(6), 3)
        k.s_add_u32(s(3), s(3), s(6)); k.s_add_u32(s(3), s(3), FLG + 2048*stage)
        k.s_mov_b64('exec', 1)
        k.buffer_store_dwordx2(v(EP, 2), v(vLANE), s(S_WS, 4), s(3), m='offen sc1')
        k.s_mov_b64('exec', -1)
        k.label(lfx)

    def quad_issue(self, F, stage=0, both=False):
        k = self.k
        A = F + (4 if both else 2)
        k.v_lshlrev_b32(v(A), 3, v(vLANE))
        k.s_lshr_b32(s(6), s(sH), 2); k.s_lshl_b32(s(6), s(6), 9); k.s_add_u32(s(6), s(6), FLG + 2048*stage)
        if both:
            k.s_lshl_b32(s(7), s(sCG), 9); k.s_add_u32(s(7), s(7), FLG + 2048*stage)
        self._quad_ld(F, both)
        self.vtag('quad', 2 if both else 1)

    def _quad_ld(self, F, both):
        k = self.k
        A = F + (4 if both else 2)
        k.buffer_load_dwordx2(v(F, 2), v(A), s(S_WS, 4), s(6), m='offen sc1')
        if both: k.buffer_load_dwordx2(v(F+2, 2), v(A), s(S_WS, 4), s(7), m='offen sc1')

    def quad_wait(self, F, both=False):
        k = self.k
        lp, lr, lgo = k.newlabel('Lqp'), k.newlabel('Lqr'), k.newlabel('Lqo')
        k.s_mov_b32(s(sTRY), 0)
        self.vwait('quad')
        k.label(lp)
        k.v_xor_b32(v(F), s(sE0), v(F)); k.v_xor_b32(v(F+1), s(sE1), v(F+1))
        if both:
            k.v_xor_b32(v(F+2), s(sE0), v(F+2)); k.v_xor_b32(v(F+3), s(sE1), v(F+3))
            k.v_or_b32(v(F), v(F), v(F+2)); k.v_or_b32(v(F+1), v(F+1), v(F+3))
        k.v_and_b32(v(F), -16, v(F)); k.v_or_b32(v(F), v(F), v(F+1))
        k.v_cmp_ne_u32('vcc', 0, v(F))
        k.s_cmp_eq_u64('vcc', 0)
        k.s_cbranch_scc1(lgo)
        k.s_add_u32(s(sTRY), s(sTRY), 1)
        k.s_cmp_ge_u32(s(sTRY), MAXTRY); k.s_cselect_b32(s(sT6), 1 << 28, 0); k.s_or_b32(s(sERR), s(sERR), s(sT6))
        k.s_cmp_lg_u32(s(sT6), 0); k.s_cbranch_scc1(lgo)
        if self.ts: k.s_add_u32(s(sERR), s(sERR), 1 << 24)
        k.s_sleep(4)
        self._quad_ld(F, both)
        k.s_waitcnt('vmcnt(0)')
        k.s_branch(lp)
        k.label(lgo)

    def flag_issue(self, stage, F):
        k = self.k
        k.v_lshlrev_b32(v(F+8), 5, v(vLANE))
        k.s_mov_b32(s(3), FLG + 2048*stage)
        k.buffer_load_dwordx4(v(F, 4), v(F+8), s(S_WS, 4), s(3), m='offen sc1')
        k.buffer_load_dwordx4(v(F+4, 4), v(F+8), s(S_WS, 4), s(3), m='offen offset:16 sc1')
        self.vtag('flg', 2)

    def flag_wait(self, stage, F):
        k = self.k
        lp, lr, lgo = k.newlabel('Lfp'), k.newlabel('Lfr'), k.newlabel('Lgo')
        k.s_mov_b32(s(sTRY), 0)
        self.vwait('flg')
        k.label(lp)
        for i in range(4):
            k.v_xor_b32(v(F+2*i), s(sE0), v(F+2*i)); k.v_xor_b32(v(F+2*i+1), s(sE1), v(F+2*i+1))
        k.v_or3_b32(v(F), v(F), v(F+2), v(F+4)); k.v_or_b32(v(F), v(F), v(F+6))
        k.v_or3_b32(v(F+1), v(F+1), v(F+3), v(F+5)); k.v_or_b32(v(F+1), v(F+1), v(F+7))
        k.v_and_b32(v(F+2), -16, v(F)); k.v_or_b32(v(F+2), v(F+2), v(F+1))
        k.v_cmp_ne_u32('vcc', 0, v(F+2))
        k.s_cmp_eq_u64('vcc', 0)
        k.s_cbranch_scc0(lr)
        k.label(lgo)
        def cold():
            k.label(lr)
            k.s_add_u32(s(sTRY), s(sTRY), 1)
            k.s_cmp_ge_u32(s(sTRY), MAXTRY); k.s_cselect_b32(s(sT6), 1 << 30, 0); k.s_or_b32(s(sERR), s(sERR), s(sT6))
            k.s_cmp_lg_u32(s(sT6), 0); k.s_cbranch_scc1(lgo)
            if self.ts: k.s_add_u32(s(sERR), s(sERR), 1 << 24)
            k.s_sleep(4)
            k.s_mov_b32(s(3), FLG + 2048*stage)
            k.buffer_load_dwordx4(v(F, 4), v(F+8), s(S_WS, 4), s(3), m='offen sc1')
            k.buffer_load_dwordx4(v(F+4, 4), v(F+8), s(S_WS, 4), s(3), m='offen offset:16 sc1')
            k.s_waitcnt('vmcnt(0)')
            k.s_branch(lp)
        self.cold.append(cold)
        if stage == 0:
            k.v_cmp_eq_u32('vcc', 0, v(F))
            k.s_lshr_b64(s(sP0, 2), 'vcc', s(sR))
            k.s_and_b32(s(3), s(sP0), s(sP0+1))
            k.s_and_b32(s(3), s(3), 0x10001)
            k.s_cmp_eq_u32(s(3), 0x10001)
            k.s_cselect_b32(s(sMODE), 0 if self.force_slow else 1, 0)

    def setup1(self):
        k = self.k
        n, hf, r4, ch, c4, l2 = 60, 61, 62, 63, 59, 58
        k.v_and_b32(v(n), 31, v(vLANE))
        k.v_lshrrev_b32(v(hf), 5, v(vLANE))
        k.v_bfe_u32(v(r4), v(vLANE), 2, 2)
        k.v_bfe_u32(v(ch), v(vLANE), 4, 1)
        k.v_lshlrev_b32(v(57), 5, v(ch))
        k.v_lshl_add_u32(v(57), v(c4), 3, v(57))
        k.v_lshl_add_u32(v(56), v(hf), 3, v(r4))
        k.v_lshl_add_u32(v(vWRD0), v(56), 6, v(57))
        k.v_mul_u32_u24(v(vL14), 448, v(hf)); k.v_lshl_add_u32(v(vL14), v(n), 4, v(vL14))
        k.v_mov_b32(v(55), 0x7000000); k.v_cmp_gt_u32('vcc', 28, v(n)); k.v_cndmask_b32(v(vL14), v(55), v(vL14), 'vcc')
        k.v_add_u32(v(vWQ), L_WQ, v(vL16))
        vPK8, vPK4 = 99, 100
        k.v_add_u32(v(vPK8), s(sSTW), v(vWRD0))
        k.v_lshl_add_u32(v(56), v(hf), 2, v(r4))
        k.v_lshl_add_u32(v(vPK4), v(56), 6, v(57))
        k.v_add_u32(v(vPK4), s(sSTW), v(vPK4))
        k.v_mul_u32_u24(v(56), 264, v(hf))
        k.v_lshl_add_u32(v(56), v(r4), 6, v(56))
        k.s_and_b32(s(sT1), s(sW), 1); k.s_mul_i32(s(sT1), s(sT1), PHI_SIGN); k.s_add_u32(s(sT1), s(sT1), L_PHI)
        k.v_add3_u32(v(vPHR), v(56), v(57), s(sT1))

    def setup2(self):
        k = self.k
        n, hf, r4, ch, c4, l2 = 60, 61, 62, 63, 59, 58
        k.s_getreg_b32(s(sXCC), 'hwreg(HW_REG_XCC_ID)')
        k.s_and_b32(s(sXCC), s(sXCC), 15)
        k.s_mov_b32(s(sSLOT), s(6))
        k.s_lshl_b32(s(sPFO), s(6), 2); k.s_add_u32(s(sPFO), s(sPFO), s(sW)); k.s_lshl_b32(s(sPFO), s(sPFO), 7)
        k.s_lshr_b32(s(3), s(sH), 2)
        k.s_lshl_b32(s(sTT), s(sR), 2)
        k.s_add_u32(s(sTT), s(sTT), s(3))
        k.s_and_b32(s(sCG), s(sH), 3)
        k.s_mov_b32(s(sERR), 0)
        k.s_mov_b32(s(sMODE), 0)
        k.s_lshl_b32(s(sXT), s(sOM), 15)
        k.s_lshl_b32(s(sT1), s(sH), 11); k.s_add_u32(s(sOT_P), s(sXT), s(sT1))
        k.s_lshl_b32(s(sXT_P), s(sTT), 15)
        k.s_lshl_b32(s(sT1), s(sW), 13); k.s_add_u32(s(sOT_C), s(sXT_P), s(sT1))
        k.s_lshl_b32(s(sT1), s(sH), 16)
        k.s_lshl_b32(s(sT2), s(sR), 12); k.s_add_u32(s(sKVP_P), s(sT1), s(sT2))
        k.s_lshl_b32(s(sT2), s(sW), 11); k.s_add_u32(s(sKVP_P), s(sKVP_P), s(sT2))
        k.s_add_u32(s(sKVP_C), s(sT1), s(sLDSW))
        k.s_lshl_b32(s(sT1), s(sH), 18)
        k.s_lshl_b32(s(sT2), s(sOM), 12); k.s_add_u32(s(sKVH_P), s(sT1), s(sT2))
        k.s_add_u32(s(sT2), s(sOM), s(sW))
        k.s_sub_u32(s(sT2), s(sT2), 8); k.s_lshl_b32(s(sT2), s(sT2), 12); k.s_add_u32(s(sKVH_C), s(sT1), s(sT2))
        k.s_mul_i32(s(sWPKH), s(sH), 84*FR); k.s_mul_i32(s(sT1), s(sW), FR); k.s_add_u32(s(sWPKH), s(sWPKH), s(sT1))
        k.s_and_b32(s(sT2), s(sR), 1); k.s_mul_i32(s(sT1), s(sW), 14336); k.s_mul_i32(s(sT3), s(sT2), 7168)
        k.s_add_u32(s(sHA), s(sT1), s(sT3)); k.s_sub_u32(s(sHB), s(sT1), s(sT3)); k.s_add_u32(s(sHB), s(sHB), 7168)
        k.s_mul_i32(s(sT1), s(sW), 7168); k.s_mul_i32(s(sT3), s(sT2), 3072); k.s_add_u32(s(sT1), s(sT1), L_WQ)
        k.s_add_u32(s(sQA), s(sT1), s(sT3)); k.s_sub_u32(s(sQB), s(sT1), s(sT3)); k.s_add_u32(s(sQB), s(sQB), 3072)
        k.s_mul_i32(s(sHEAD), s(sH), 84*FR)
        k.s_lshl_b32(s(sT1), s(sCG), 2); k.s_add_u32(s(sT1), s(sT1), s(sW)); k.s_mul_i32(s(sOPKC), s(sT1), 32*FR)
        vX0, vBW0, vBW1, vBR = 101, 102, 103, 104
        k.v_bfe_u32(v(55), v(n), 1, 3)
        k.v_xor_b32(v(55), v(55), v(hf))
        k.v_and_b32(v(56), 7, v(n)); k.v_lshl_add_u32(v(56), v(56), 7, s(sLDSW))
        k.v_lshrrev_b32(v(58), 3, v(n)); k.v_lshl_add_u32(v(56), v(58), 12, v(56))
        k.v_lshl_add_u32(v(vBR), v(55), 4, v(56))
        for sp in range(1, 4): k.v_xor_b32(v(vBR+sp), 32*sp, v(vBR))
        for sp in range(4): k.v_add_u32(v(84+sp), 65536, v(vBR+sp))
        k.v_lshrrev_b32(v(56), 2, v(n))
        k.s_lshl_b32(s(sT1), s(sW), 3)
        k.v_add_u32(v(56), s(sT1), v(56))
        k.v_mul_u32_u24(v(56), 264, v(56))
        k.v_lshl_add_u32(v(56), v(c4), 6, v(56))
        k.v_lshl_add_u32(v(56), v(hf), 3, v(56))
        k.v_add_u32(v(vPHW), L_PHI, v(56))
        k.s_lshl_b32(s(sT1), s(sW), 7); k.s_add_u32(s(sT1), s(sT1), L_RINV0)
        k.v_lshl_add_u32(v(vRVW), v(n), 2, s(sT1))
        k.v_lshl_add_u32(v(vRVR), v(hf), 4, s(sT1))
        k.s_lshl_b32(s(sT1), s(sW), 12); k.s_add_u32(s(sT1), s(sT1), L_KVL)
        k.v_add_u32(v(vKVL), s(sT1), v(vL16))
        k.s_lshl_b32(s(sT1), s(sW), 13); k.s_add_u32(s(sT1), s(sT1), L_KVL)
        k.v_add_u32(v(vHW), s(sT1), v(vL16))
        k.s_lshl_b32(s(sT1), s(sW), 11); k.s_add_u32(s(sT1), s(sT1), L_VOWN)
        k.v_add_u32(v(vVOW), s(sT1), v(vL16))
        for i, reg in ((0, vGW), (1, vG1), (2, vG2), (3, vG3)):
            k.s_add_u32(s(sT1), s(sW), i); k.s_and_b32(s(sT1), s(sT1), 3); k.s_lshl_b32(s(sT1), s(sT1), 13)
            k.s_sub_u32(s(sT1), L_GATH + 3*8192, s(sT1))
            k.v_add_u32(v(reg), s(sT1), v(vL16))
        k.s_mul_i32(s(sT1), s(sCG), 28); k.s_mul_i32(s(sT2), s(sW), 7); k.s_add_u32(s(sT1), s(sT1), s(sT2))
        k.v_add_u32(v(56), s(sT1), v(hf))
        k.v_lshrrev_b32(v(55), 1, v(56)); k.v_lshlrev_b32(v(55), 9, v(55))
        k.v_and_b32(v(56), 1, v(56)); k.v_lshl_add_u32(v(55), v(56), 3, v(55))
        k.v_lshl_add_u32(v(vXST), v(n), 4, v(55))
        k.s_lshr_b32(s(sT2), s(sCG), 1); k.s_lshl_b32(s(sT2), s(sT2), 9)
        k.s_and_b32(s(sT3), s(sCG), 1); k.s_lshl_b32(s(sT3), s(sT3), 3); k.s_add_u32(s(sT2), s(sT2), s(sT3))
        k.s_add_u32(s(sT2), s(sT2), 28672)
        k.v_lshl_add_u32(v(vSST), v(n), 4, s(sT2))
        k.v_and_b32(v(56), 15, v(vLANE)); k.v_mul_u32_u24(v(56), 7, v(56)); k.v_add_u32(v(56), 6, v(56))
        k.v_lshrrev_b32(v(55), 1, v(56)); k.v_lshlrev_b32(v(55), 9, v(55))
        k.v_and_b32(v(56), 1, v(56)); k.v_lshl_add_u32(v(55), v(56), 3, v(55))
        k.v_lshrrev_b32(v(56), 4, v(vLANE)); k.v_lshl_add_u32(v(55), v(56), 7, v(55))
        k.v_add_u32(v(vSLD), 112, v(55))
        k.s_lshl_b32(s(sT1), s(sTT), 5)
        k.v_add_u32(v(56), s(sT1), v(n)); k.v_mul_u32_u24(v(56), 896, v(56))
        k.s_mul_i32(s(sT1), s(sCG), 224); k.s_mul_i32(s(sT2), s(sW), 56); k.s_add_u32(s(sT1), s(sT1), s(sT2))
        k.v_lshl_add_u32(v(56), v(hf), 3, v(56))
        k.v_add_u32(v(vOUT), s(sT1), v(56))
        k.v_cmp_eq_u32('vcc', 0, v(hf))
        k.v_mov_b32(v(56), 1.0); k.v_mov_b32(v(55), f32(BIGF))
        k.v_cndmask_b32(v(vHFM), 0, v(56), 'vcc')
        k.v_mov_b32(v(56), 0)
        k.v_cndmask_b32(v(vBIG), v(55), v(56), 'vcc')
        k.v_lshlrev_b32(v(56), 2, v(hf)); k.v_sub_u32(v(vII), v(n), v(56))
        k.v_cmp_eq_u32('vcc', 28, v(n)); k.v_mov_b32(v(56), 1.0); k.v_cndmask_b32(v(vONE), 0, v(56), 'vcc')
        k.v_cmp_le_u32(s(sP0, 2), 28, v(n))

    def bg_wpk(self, typ, lo, hi, tag='bg'):
        k = self.k
        if self.opt.get('abl_w'): return
        groups = [(sHA, 0, 4), (sHA, 4096, 3), (sHB, 0, 4), (sHB, 4096, 3)] if lo == 0 else [(sQA, 0, 4), (sQB, 0, 4)]
        for gi, (sb, off, n) in enumerate(groups):
            for i in range(n):
                def f(sb=sb, off=off, i=i):
                    if i == 0 or self.m0_owner != (sb, off):
                        k.s_add_u32('m0', s(sb), off)
                        k.s_add_u32(s(sB0), s(sb), s(sHEAD))
                        k.s_add_u32(s(sB0), s(sB0), WPK[typ] + off)
                    k.buffer_load_dwordx4(v(vL14), s(S_WS, 4), s(sB0), m=f'offen offset:{1024*i} sc1 lds')
                    self.m0_owner = (sb, off); self.k.watch = True
                    self.vtag(tag)
                f.gap = self.gmiss if 2*gi < len(groups) else self.ghit
                self.bg.append(f)

    def bg_wo(self, typ, q0=0, q1=4):
        k = self.k
        if self.opt.get('abl_wo'): return
        for i in range(q0, q1):
            for f_ in range(8):
                def f(i=i, f_=f_):
                    if f_ == 0:
                        k.s_add_u32(s(sB1), s(sW), i); k.s_and_b32(s(sB1), s(sB1), 3); k.s_lshl_b32(s(sB1), s(sB1), 13)
                        k.s_add_u32(s(sB1), s(sB1), s(sOPKC)); k.s_add_u32(s(sB1), s(sB1), OPK + typ*OPT)
                    if f_ == 4: k.s_add_u32(s(sB1), s(sB1), 4096)
                    k.buffer_load_dwordx4(a(typ*128 + i*32 + f_*4, 4), v(vL14), s(S_WS, 4), s(sB1), m=f'offen offset:{(f_ & 3)*FR} sc1')
                    self.vtag('bg')
                f.wo = True; f.gap = self.ghit
                self.bg.append(f)

    def touch(self, base, share, ninstr, w0=0):
        k = self.k
        k.s_mul_i32(s(sB0), s(sSLOT), share); k.s_add_u32(s(sB0), s(sB0), base - w0*ninstr*8192)
        k.s_mul_i32(s(sB1), s(sW), ninstr*8192); k.s_add_u32(s(sB0), s(sB0), s(sB1))
        k.v_lshlrev_b32(v(59), 7, v(vLANE))
        for i in range(ninstr):
            k.buffer_load_dword(a(255), v(59), s(S_WS, 4), s(sB0), m='offen sc1')
            if i + 1 < ninstr: k.s_add_u32(s(sB0), s(sB0), 8192)

    def touch_half(self, base):
        k = self.k
        k.s_lshl_b32(s(sB0), s(sSLOT), 2); k.s_add_u32(s(sB0), s(sB0), s(sW)); k.s_lshl_b32(s(sB0), s(sB0), 12)
        k.s_add_u32(s(sB0), s(sB0), base)
        k.v_lshlrev_b32(v(59), 7, v(vLANE))
        k.s_mov_b64('exec', 0x7f7f7f7f)
        k.buffer_load_dword(a(255), v(59), s(S_WS, 4), s(sB0), m='offen sc1')
        k.s_mov_b64('exec', -1)

    def fill(self, buf):
        k = self.k
        if self.opt.get('nofill'): return
        k.s_add_u32(s(sB0), s(sOT_P), buf)
        k.s_mov_b32('exec_lo', 0x01010101); k.s_mov_b32('exec_hi', 0x01010101)
        k.buffer_load_dword(a(255), v(vL16), s(S_WS, 4), s(sB0), m='offen sc1')
        k.buffer_load_dword(a(255), v(vL16), s(S_WS, 4), s(sB0), m='offen offset:1024 sc1')
        k.s_mov_b64('exec', -1)
        self.vtag('bg', 2)

    def code_pf(self, ahead=0, n=1):
        k = self.k
        if self.opt.get('nocpf'): return
        lb = k.newlabel('Lpf')
        k.label(lb)
        for i in range(n):
            k.s_add_u32(s(6), s(sPFO), f'{lb}-Lstart+{ahead + i*16384}')
            k.s_min_u32(s(6), s(6), 'Lcode_end-Lstart-4')
            k.s_load_dword(s(sJUNK), s(S_CODE, 2), s(6))

    def cs_dma(self, typ, lds):
        k = self.k
        k.s_mul_i32(s(sB0), s(sH), 10752); k.s_mul_i32(s(3), s(sW), 3072); k.s_add_u32(s(sB0), s(sB0), s(3))
        k.s_add_u32(s(sB0), s(sB0), CSP + typ*172032)
        k.s_add_u32('m0', s(3), lds)
        for i in range(3):
            k.buffer_load_dwordx4(v(vL16), s(S_WS, 4), s(sB0), m=f'offen offset:{1024*i} sc1 lds')
        self.vtag('cs', 3)

    def cs_ops(self, typ, lds, R, A, segs=(0, 1, 2)):
        k = self.k
        ops = [lambda: k.v_lshlrev_b32(v(A), 2, v(vLANE)), lambda: k.v_add_u32(v(A), lds, v(A))]
        for seg in segs:
            g = (1, 2, 0)[seg]
            for half in range(2):
                def rd(seg=seg, half=half):
                    for i in range(7*half, 7*half+7):
                        k.ds_read_b32(v(R+i), v(A), m=f'offset:{(seg*28 + 2*i)*128}')
                    self.ltag(f'cs{seg}{half}', 7)
                ops += [rd] + [lambda: None]*5
            ops += [lambda seg=seg: self.lwait(f'cs{seg}1')]
            for i in range(1, 14): ops.append(lambda i=i: k.v_add_f32(v(R), v(R), v(R+i)))
            ops += [lambda: k.v_mov_b32(v(R+1), v(R)), lambda: k.v_permlane32_swap_b32(v(R), v(R+1)), lambda: k.v_add_f32(v(R), v(R), v(R+1)),
                    lambda: k.v_cmp_gt_u32('vcc', 448, v(vL14)), lambda: k.v_sub_f32(v(R), 0, v(R)), lambda: k.v_cndmask_b32(v(R), 0, v(R), 'vcc'), lambda: self.rbf(R+1, R),
                    lambda: k.v_sub_f32(v(R+2), v(R), v(R+1)),
                    lambda g=g: k.v_cvt_pk_bf16_f32(v(vCS + 3*typ + g), v(R+1), v(R+2))]
        return ops

    def stats_finish(self, s1, s2):
        k = self.k
        t = 58
        self.xhalf('v_add_f32', s1, t); self.xhalf('v_add_f32', s2, t)
        k.v_mul_f32(v(s1), f32(1.0/448), v(s1))
        k.v_mul_f32(v(s2), f32(1.0/448), v(s2))
        k.v_fma_f32(v(s2), '-'+v(s1), v(s1), v(s2))
        k.v_max_f32(v(s2), 0, v(s2))
        k.v_cvt_pk_bf16_f32(v(vMB), v(s1), v(s1))
        self.rbf(s2, s2)
        k.v_add_f32(v(s2), f32(1e-5), v(s2))
        self.rbf(s2, s2)
        k.v_sqrt_f32(v(s2), v(s2))
        self.rbf(s2, s2)
        k.v_rcp_f32(v(vRINV), v(s2))
        k.ds_write_b32(v(vRVW), v(vRINV))

    def mean_steps(self, typ):
        k = self.k
        xm, wk, wv = 112, 116, 120
        k.v_mov_b32(v(xm), v(vMB)); k.v_mov_b32(v(wk), v(vCS+3*typ+1)); k.v_mov_b32(v(wv), v(vCS+3*typ+2))
        for i in range(1, 4):
            k.v_mov_b32(v(xm+i), 0); k.v_mov_b32(v(wk+i), 0); k.v_mov_b32(v(wv+i), 0)
        self.mfma(vAK, v(wk, 4), v(xm, 4), v(vAK, 16))
        self.mfma(vAV, v(xm, 4), v(wv, 4), v(vAV, 16))
        for q in range(4):
            k.ds_read_b128(v(128+4*q, 4), v(vRVR), m=f'offset:{32*q}')
        self.rv = 128

    def stats_ops(self, ST):
        k = self.k
        s1, s2, t = 60, 61, 58
        ops = [
            lambda: k.v_pk_add_f32(v(s1, 2), v(ST, 2), v(ST+2, 2)),
            lambda: k.v_mov_b32(v(t), v(s1)), lambda: k.v_mov_b32(v(t+1), v(s2)),
            lambda: k.v_permlane32_swap_b32(v(s1), v(t)), lambda: k.v_permlane32_swap_b32(v(s2), v(t+1)),
            lambda: k.v_add_f32(v(s1), v(s1), v(t)), lambda: k.v_add_f32(v(s2), v(s2), v(t+1)),
            lambda: k.v_mul_f32(v(s1), f32(1.0/448), v(s1)), lambda: k.v_mul_f32(v(s2), f32(1.0/448), v(s2)),
            lambda: k.v_fma_f32(v(s2), '-'+v(s1), v(s1), v(s2)),
            lambda: k.v_max_f32(v(s2), 0, v(s2)),
            lambda: k.v_cvt_pk_bf16_f32(v(vMB), v(s1), v(s1)),
            lambda: self.rbf(s2, s2),
            lambda: k.v_add_f32(v(s2), f32(1e-5), v(s2)),
            lambda: self.rbf(s2, s2),
            lambda: k.v_sqrt_f32(v(s2), v(s2)),
            lambda: self.rbf(s2, s2),
            lambda: k.v_rcp_f32(v(vRINV), v(s2)),
        ]
        return ops

    def load_gemm_kv(self, L):
        k = self.k
        typ = L & 1
        assert not self.bg
        ST = 96
        CH = 63
        SPOS = self.opt.get('spos', 17)
        A0 = self.opt.get('a0', 4)
        AH = self.opt.get('ah', 10)
        k.s_add_u32(s(sT1), s(sXT), XB[L-1])
        seq = []
        for st in range(28):
            if st == SPOS: seq += [('st', ST, 28672)]
            seq.append((f'x{st}', vXF+4*st, 1024*st))
        def ld(i):
            tag, reg, off = seq[i]
            self.ws_ld(reg, vL16, sT1, off); self.vtag(tag)
        D = 3
        def rd(st):
            b = vWF + (st % 4)*8
            k.ds_read_b128(v(b, 4), v(vL16), m=f'offset:{L_WK + st*1024}')
            k.ds_read_b128(v(b+4, 4), v(vL16), m=f'offset:{L_WV + st*1024}')
            self.ltag(f'w{st}', 2)
        k.v_mov_b32(v(60), 0); k.v_mov_b32(v(61), 0)
        k.s_mov_b32(s(sTRY), 0)
        k.s_waitcnt('vmcnt(4) lgkmcnt(0)')
        k.s_barrier()
        lst = k.newlabel('Lst')
        k.s_cmp_lg_u32(s(sW), 0); k.s_cbranch_scc1(lst)
        for i in range(1, 4): k.ds_read_b64(v(124+2*i, 2), v(124), m=f'offset:{512*i}')
        k.s_add_u32(s(sT2), s(sXT_P), XB[L-1])
        k.s_waitcnt('lgkmcnt(0)')
        k.v_pk_add_f32(v(120, 2), v(120, 2), v(126, 2)); k.v_pk_add_f32(v(128, 2), v(128, 2), v(130, 2))
        k.v_pk_add_f32(v(120, 2), v(120, 2), v(128, 2))
        k.v_mov_b32(v(124), v(120)); k.v_mov_b32(v(125), v(121))
        k.v_permlane32_swap_b32(v(120), v(124)); k.v_permlane32_swap_b32(v(121), v(125))
        k.v_pk_add_f32(v(120, 2), v(120, 2), v(124, 2))
        self.sanitize(120, 2)
        def st2(fl):
            k.s_mov_b32('exec_hi', 0)
            self.ws_st(120, vSST, sT2, 0, n=2, flags=fl)
            k.s_mov_b32('exec_hi', -1)
        self.local_stores(st2)
        k.label(lst)
        self.code_pf(1024)
        lg, lok = k.newlabel('Lg'), k.newlabel('Lgok')
        first = [True]
        k.label(lg)
        self.nohi(); self.vq = []
        k.s_mov_b64('exec', 0xffff)
        self.ws_ld(60, vSLD, sT1, 0, n=2)
        k.s_mov_b64('exec', -1)
        for i in range(A0): ld(i)
        k.s_add_u32(s(sTRY), s(sTRY), 1)
        k.s_cmp_ge_u32(s(sTRY), MAXTRY)
        k.s_cselect_b32(s(sT6), 1 << (4*L), 0)
        k.s_or_b32(s(sERR), s(sERR), s(sT6))
        k.s_waitcnt(f'vmcnt({A0})')
        k.v_max_u32(v(62), v(60), v(61))
        k.v_cmp_eq_u32('vcc', -1, v(62))
        k.s_cmp_eq_u64('vcc', 0)
        k.s_cselect_b32(s(sT7), 1, s(sT6))
        k.s_cmp_eq_u32(s(sT7), 0)
        k.s_cbranch_scc1(lg)
        self.stamp(f'L{L} x seen')
        self.lq = []
        for i in range(A0, AH): ld(i)
        for st in range(D): rd(st)
        nxt = AH
        self.vwait(f'x{A0-1}')
        self.check(range(vXF, vXF + 4*A0))
        k.s_cselect_b32(s(sT7), 1, s(sT6))
        k.s_cmp_eq_u32(s(sT7), 0)
        k.s_cbranch_scc1(lg)
        k.v_mov_b32(v(CH), 0)
        fill = []
        xm, wk, wv = ST, ST+4, ST+8
        for st in range(28):
            self.vwait(f'x{st}')
            self.lwait(f'w{st}')
            b = vWF + (st % 4)*8
            xr = vXF + 4*st
            x = v(xr, 4)
            self.mfma(vAK, v(b, 4), x, v(vAK, 16) if st else 0)
            if st >= A0:
                k.v_max3_u32(v(CH), v(xr), v(xr+1), v(CH)); k.v_max3_u32(v(CH), v(xr+2), v(xr+3), v(CH))
            for _ in range(2):
                if fill: fill.pop(0)()
            self.mfma(vAV, x, v(b+4, 4), v(vAV, 16) if st else 0)
            if st + D < 28: rd(st + D)
            for _ in range(self.opt.get('lps', 2) if st < 8 else 1):
                if nxt < len(seq): ld(nxt); nxt += 1
            for _ in range(3):
                if fill: fill.pop(0)()
            if st == SPOS:
                ls1, ls2 = k.newlabel('Lsr'), k.newlabel('Lsb')
                k.v_max3_u32(v(62), v(ST), v(ST+1), v(ST+2)); k.v_max_u32(v(62), v(ST+3), v(62))
                k.v_cmp_eq_u32('vcc', -1, v(62))
                k.s_cmp_eq_u64('vcc', 0)
                k.br('s_cbranch_scc0', ls1)
                k.label(ls2)
                def cold_s():
                    k.label(ls1)
                    if self.ts: k.s_add_u32(s(sERR), s(sERR), 1 << 22)
                    k.s_add_u32(s(sT2), s(sT1), 28672)
                    k.buffer_load_dwordx4(v(ST, 4), v(vL16), s(S_WS, 4), s(sT2), m='offen sc1')
                    k.s_add_u32(s(sTRY), s(sTRY), 1)
                    k.s_cmp_ge_u32(s(sTRY), MAXTRY); k.s_cselect_b32(s(sT6), 8 << (4*L), 0); k.s_or_b32(s(sERR), s(sERR), s(sT6))
                    k.s_waitcnt('vmcnt(0)')
                    k.v_max3_u32(v(62), v(ST), v(ST+1), v(ST+2)); k.v_max_u32(v(62), v(ST+3), v(62))
                    k.v_cmp_eq_u32('vcc', -1, v(62))
                    k.s_cmp_eq_u64('vcc', 0)
                    k.s_cselect_b32(s(sT7), 1, s(sT6))
                    k.s_cmp_eq_u32(s(sT7), 0)
                    k.s_cbranch_scc1(ls1)
                    k.s_branch(ls2)
                self.cold.append(cold_s)
                fill += self.stats_ops(ST)
                def wr():
                    k.ds_write_b32(v(vRVW), v(vRINV)); self.ltag('rw')
                fill += [wr, lambda: k.v_mov_b32(v(xm), v(vMB)), lambda: k.v_mov_b32(v(wk), v(vCS+3*typ+1)), lambda: k.v_mov_b32(v(wv), v(vCS+3*typ+2))]
                for i in range(1, 4):
                    fill += [lambda i=i: k.v_mov_b32(v(xm+i), 0), lambda i=i: k.v_mov_b32(v(wk+i), 0), lambda i=i: k.v_mov_b32(v(wv+i), 0)]
            if st == 25:
                assert not fill
                self.mfma(vAK, v(wk, 4), v(xm, 4), v(vAK, 16))
                self.mfma(vAV, v(xm, 4), v(wv, 4), v(vAV, 16))
                for q in range(4):
                    k.ds_read_b128(v(ST+4*q, 4), v(vRVR), m=f'offset:{32*q}')
                self.ltag('rv', 4)
        k.v_cmp_eq_u32('vcc', -1, v(CH))
        k.s_cmp_eq_u64('vcc', 0)
        lbad = k.newlabel('Lgbad')
        k.br('s_cbranch_scc0', lbad)
        k.label(lok)
        def cold_b():
            k.label(lbad)
            k.s_nop(15)
            k.s_waitcnt('lgkmcnt(0)')
            k.v_mov_b32(v(60), 0); k.v_mov_b32(v(61), 0)
            k.s_add_u32(s(sTRY), s(sTRY), 8)
            if self.ts: k.s_add_u32(s(sERR), s(sERR), 1 << 20)
            k.s_cmp_lt_u32(s(sTRY), MAXTRY)
            k.s_cbranch_scc1(lg)
            k.s_or_b32(s(sERR), s(sERR), 8 << (4*L))
            k.s_branch(lok)
        self.cold.append(cold_b)
        self.vq = []; self.lq = []
        self.rv = ST

    def gemm_q(self, typ, raw, hooks={}, fill=None, f0=8):
        k = self.k
        D = 6
        def rd(st):
            k.ds_read_b128(v(vWF + (st % 8)*4, 4), v(vWQ), m=f'offset:{st*1024}'); self.ltag(f'w{st}')
        self.lq = []
        for st in range(D): rd(st)
        xm, wm = 120, 124
        for st in range(28):
            self.lwait(f'w{st}')
            b = vWF + (st % 8)*4
            self.mfma(vAQ, v(b, 4), v(vXF+4*st, 4), v(vAQ, 16) if st else 0)
            if st + D < 28: rd(st + D)
            if st in hooks: hooks[st]()
            if fill and st >= f0:
                for _ in range(4):
                    if fill: fill.pop(0)()
            if st == 24:
                k.v_mov_b32(v(128), v(vMB)); k.v_mov_b32(v(132), v(vCS+3*typ))
            if st in (25, 26, 27):
                i = st - 24
                k.v_mov_b32(v(128+i), 0); k.v_mov_b32(v(132+i), 0)
        assert not fill
        self.mfma(vAQ, v(132, 4), v(128, 4), v(vAQ, 16))

    def scale_pack(self, acc, mul_lo, mul_hi=None):
        k = self.k
        for i in range(8):
            mreg = mul_hi if (mul_hi is not None and i >= 6) else mul_lo
            assert mreg % 2 == 0
            k.v_pk_mul_f32(v(acc+2*i, 2), v(acc+2*i, 2), v(mreg, 2), m='op_sel_hi:[1,0]')
        for i in range(8):
            k.v_cvt_pk_bf16_f32(v(acc+i), v(acc+2*i), v(acc+2*i+1))

    def pack(self, acc):
        for i in range(8):
            self.k.v_cvt_pk_bf16_f32(v(acc+i), v(acc+2*i), v(acc+2*i+1))

    def epi_v(self):
        k = self.k
        rv = self.rv
        k.s_waitcnt('lgkmcnt(0)')
        for i in range(8):
            k.v_pk_fma_f32(v(vAV+2*i, 2), v(vAV+2*i, 2), v(rv+2*i, 2), v(vONE, 2), m='op_sel_hi:[1,1,0]')
        for i in range(8):
            k.v_cvt_pk_bf16_f32(v(vAV+i), v(vAV+2*i), v(vAV+2*i+1))

    def sanitize(self, base, n):
        for i in range(n):
            self.k.v_min_u32(v(base+i), -2, v(base+i))

    def feature_mfma(self, frag, P):
        self.mfma(P, v(vWPHI, 4), v(frag, 4), 0)
        self.mfma(P, v(vWPHI+4, 4), v(frag+4, 4), v(P, 16))

    def feature(self, P, E, every=1, n=1, late=None, wr=None):
        k = self.k
        cnt = [0]
        def tk():
            cnt[0] += 1
            if cnt[0] % every == 0: self.tick(n)
        mx, mn, t0, t1 = 58, 60, 62, 63
        c = 57
        k.v_mul_f32(v(c), f32(LOG2E), v(vRINV))
        k.v_max3_f32(v(mx), v(P), v(P+1), v(P+2)); k.v_min3_f32(v(mn), v(P), v(P+1), v(P+2))
        for i in range(3, 11, 2):
            k.v_max3_f32(v(mx), v(P+i), v(P+i+1), v(mx)); k.v_min3_f32(v(mn), v(P+i), v(P+i+1), v(mn))
        k.v_max3_f32(v(t0), v(P+12), v(P+13), v(P+14)); k.v_min3_f32(v(t1), v(P+12), v(P+13), v(P+14))
        k.v_max_f32(v(t0), v(t0), v(P+15)); k.v_min_f32(v(t1), v(t1), v(P+15))
        k.v_sub_f32(v(t0), v(t0), v(vBIG)); k.v_add_f32(v(t1), v(t1), v(vBIG))
        k.v_max3_f32(v(mx), v(P+11), v(t0), v(mx)); k.v_min3_f32(v(mn), v(P+11), v(t1), v(mn))
        tk()
        k.v_mov_b32(v(t0), v(mx)); k.v_mov_b32(v(t1), v(mn))
        k.v_permlane32_swap_b32(v(mx), v(t0)); k.v_permlane32_swap_b32(v(mn), v(t1))
        k.v_max_f32(v(mx), v(mx), v(t0)); k.v_min_f32(v(mn), v(mn), v(t1))
        k.v_mul_f32(v(mx), v(c), v(mx)); k.v_mul_f32(v(mn), v(c), v(mn))
        k.v_add_f32(v(mx+1), v(mx), v(vBIG)); k.v_sub_f32(v(mn+1), v(mn), v(vBIG))
        for i in range(0, 16, 2):
            o = 1 if i >= 12 else 0
            k.v_pk_fma_f32(v(E+i, 2), v(P+i, 2), v(56, 2), v(mn, 2), m=f'op_sel:[0,1,{o}] op_sel_hi:[1,1,{o}] neg_lo:[1,0,0] neg_hi:[1,0,0]')
            k.v_pk_fma_f32(v(P+i, 2), v(P+i, 2), v(56, 2), v(mx, 2), m=f'op_sel:[0,1,{o}] op_sel_hi:[1,1,{o}] neg_lo:[0,0,1] neg_hi:[0,0,1]')
            if i % 8 == 6: tk()
        for i in range(16):
            k.v_exp_f32(v(E+i), v(E+i)); k.v_exp_f32(v(P+i), v(P+i))
            if i % 4 == 3: tk()
        if late: late()
        for X, sm in ((P, mx), (E, mn)):
            k.v_pk_add_f32(v(sm, 2), v(X, 2), v(X+2, 2))
            for i in range(4, 16, 2): k.v_pk_add_f32(v(sm, 2), v(sm, 2), v(X+i, 2))
            k.v_add_f32(v(sm), v(sm), v(sm+1))
        tk()
        k.v_mov_b32(v(t0), v(mx)); k.v_mov_b32(v(t1), v(mn))
        k.v_permlane32_swap_b32(v(mx), v(t0)); k.v_permlane32_swap_b32(v(mn), v(t1))
        k.v_add_f32(v(mx), v(mx), v(t0)); k.v_add_f32(v(mn), v(mn), v(t1))
        k.v_rcp_f32(v(mx), v(mx)); k.v_rcp_f32(v(mn), v(mn))
        self.scale_pack(P, mx)
        if wr: wr(0, P)
        self.scale_pack(E, mn)
        if wr: wr(1, E)

    def resets(self, L, z=124, t1=sT1, t2=sT2):
        k = self.k
        if L >= 3 or self.opt.get('abl_r', 0) & 1: return
        for i in range(4): k.v_mov_b32(v(z+i), -1)
        bufs = [XB[L], OB[L+1]]
        if True:
            if L == 0: bufs.append(XB[1])
            if L == 1: bufs = bufs[1:]
        def st(fl):
            for b_ in bufs:
                k.s_add_u32(s(t1), s(sOT_P), b_)
                self.ws_st(z, vL16, t1, 0, flags=fl); self.ws_st(z, vL16, t1, 1024, flags=fl)
        self.local_stores(st)

    def bg_reset_kvh3(self):
        k = self.k
        z = 108
        def f0():
            for i in range(4): k.v_mov_b32(v(z+i), -1)
        for i in range(4):
            def f(i=i):
                k.s_add_u32(s(sB0), s(sKVH_P), KVH[3])
                k.buffer_store_dwordx4(v(z, 4), v(vL16), s(S_WS, 4), s(sB0), m=f'offen offset:{1024*i} sc1')
            self.bg.append(f)
        return f0

    def o_tail(self, L, acc, eps):
        k = self.k
        d0, d1 = 58, 60
        k.v_mov_b32(v(d0), v(acc+12)); k.v_mov_b32(v(d1), v(acc+12))
        k.s_add_u32(s(sT1), s(sOT_P), OB[L])
        k.v_permlane32_swap_b32(v(d0), v(d1))
        if eps: k.v_add_f32(v(d1), f32(1e-6), v(d1))
        k.v_rcp_f32(v(d1), v(d1))
        self.scale_pack(acc, d1)
        def st(fl):
            self.ws_st(acc, vL16, sT1, 0, flags=fl); self.ws_st(acc+4, vL16, sT1, 1024, flags=fl)
        self.local_stores(st)

    def bg_reset(self, sb, add, off, z):
        k = self.k
        def f():
            if off == 0: k.s_add_u32(s(sB2), s(sb), add)
            k.buffer_store_dwordx4(v(z, 4), v(vL16), s(S_WS, 4), s(sB2), m=f'offen offset:{off} sc1')
            self.vtag('bg')
        f.gap = 120
        return f

    def layer_A(self, L):
        k = self.k
        self.stamp(f'L{L} kv gemm')
        if L == 2:
            self.vq = []
            if not self.opt.get('qo'): self.bg_wpk(0, 14, 21, tag='wq')
            self.burst(self.opt.get('bq', 5))
            for f in self.bg: f.gap = 90
            if not self.opt.get('abl_r', 0) & 2:
                self.bg += [self.bg_reset(sKVH_P, KVH[3], 1024*i, 72) for i in range(4)]
            if not self.opt.get('f2'): self.bgon(100 if self.opt.get('qo') else 400)
        sa = self.opt.get('s0a') if L == 0 else self.opt.get('s2a')
        kf = L == 0 and self.opt.get('kf')
        if not kf:
            self.pack(vAK)
            P, E = 112, 128
            self.feature_mfma(vAK, P)
            if L == 2:
                for i in range(4): k.v_mov_b32(v(72+i), -1)
            self.epi_v()
            sa = self.opt.get('s0a') if L == 0 else self.opt.get('s2a')
            if L == 0: self.burst(self.opt.get('bf', 5))
            k.ds_write_b128(v(vVOW), v(vAV, 4)); k.ds_write_b128(v(vVOW), v(vAV+4, 4), m='offset:1024')
            def wr(sg, X):
                for q in range(4):
                    k.ds_write_b64(v(vPHW), v(X+2*q, 2), m=f'offset:{sg*PHI_SIGN + q*16}')
            self.feature(P, E, wr=wr)
            self.bgoff()
            if L == 0:
                self.vwait('wq'); self.vwait('st')
                self.burst(self.opt.get('bb2', 5))
                self.quad_issue(58, stage=1, both=True)
            if L == 2:
                self.drain()
                self.vwait('wq')
        k.s_waitcnt('lgkmcnt(0)')
        k.s_barrier()
        self.stamp(f'L{L} phi_k')
        if L == 0: self.flag_post(2, 92)
        if L == 0:
            wo_rest = self.bg; self.bg = []
            self.bg_wpk(1, 0, 14)
            wb = self.bg; self.bg = []
            while wo_rest or wb:
                self.bg += wo_rest[:2]; wo_rest = wo_rest[2:]
                if wb:
                    f = wb.pop(0); f.gap = self.ghit; self.bg.append(f)
        lq = k.newlabel('Lq')
        k.s_cmp_ge_u32(s(sW), 2); k.s_cbranch_scc1(lq)
        A0, ACC = 112, 96
        B0 = [64, 68, 72, 76, 80, 84, 88, 92]
        k.v_add_u32(v(55), L_VOWN, v(vL16))
        def rdkv(idx):
            u, j = idx >> 1, idx & 1
            for jj in range(2):
                k.ds_read_b64_tr_b16(v(A0+4*idx+2*jj, 2), v(vPHR), m=f'offset:{(u*8+4*j+2*jj)*264}')
            k.ds_read_b128(v(B0[idx], 4), v(55), m=f'offset:{u*2048+j*1024}')
        for idx in range(5): rdkv(idx)
        k.s_add_u32(s(sT1), s(sKVP_P), KVP[L])
        for idx in range(8):
            k.s_waitcnt(f'lgkmcnt({3*min(4, 7-idx)})')
            self.mfma(ACC, v(A0+4*idx, 4), v(B0[idx], 4), v(ACC, 16) if idx else 0)
            if idx + 5 < 8: rdkv(idx + 5)
        for i in range(8): k.v_cvt_pk_bf16_f32(v(64+i), v(ACC+2*i), v(ACC+2*i+1))
        self.nohi()
        self.ws_st(64, vL16, sT1, 0, flags='sc1'); self.ws_st(68, vL16, sT1, 1024, flags='sc1')
        if L == 0:
            lq2 = k.newlabel('Lq')
            k.s_waitcnt('vmcnt(2)')
            k.s_branch(lq2)
            k.label(lq)
            k.s_waitcnt('vmcnt(1)')
            k.s_cmp_eq_u32(s(sW), 3); k.s_cbranch_scc1(lq2)
            k.s_waitcnt('vmcnt(0)')
            k.label(lq2)
        else:
            k.label(lq)
        self.stamp(f'L{L} kvp pub')
        if L == 0:
            assert not any(f in self.bg for f in self.rs0)
            self.vq = []
            if True:
                k.s_lshr_b32(s(6), s(sH), 2); k.s_lshl_b32(s(6), s(6), 9); k.s_add_u32(s(6), s(6), FLG + 2048)
                self.quad_wait(58, both=True)
            k.s_mul_i32(s(sT1), s(sW), 4096 - 128); k.s_add_u32(s(sT1), s(sT1), (L_RINV - L_RINV0) & 0xffffffff)
            k.v_add_u32(v(vRVW), s(sT1), v(vRVW)); k.v_add_u32(v(vRVR), s(sT1), v(vRVR))
        pw = L == 0 and self.opt.get('pw')
        if pw:
            wo = [f for f in self.bg if getattr(f, 'wo', False)]
            rest = [f for f in self.bg if not getattr(f, 'wo', False)]
            if pw == 2:
                k.s_waitcnt('vmcnt(0)'); self.stamp('pre wo')
                for f in wo: f()
                k.s_waitcnt('vmcnt(0)'); self.stamp('wo done')
                self.bg = rest
            else:
                for f in wo: f.gap = 24
                self.bg = wo
        if not pw == 1: self.resets(L)
        if not (L == 0 and sa): self.bg_wpk(1, 0, 14)
        nb1 = self.opt.get('b1', 6)
        if sa:
            if L == 0 and self.opt.get('f0'):
                for f in self.bg: f.gap = self.opt.get('g0', 60)
            if L == 2 and self.opt.get('g2'):
                for f in self.bg: f.gap = self.opt.get('g2')
            self.burst(self.opt.get('bp', 3)); self.bgon()
        G = 144
        k.s_lshl_b32(s(sT1), s(sH), 16); k.s_lshl_b32(s(sT2), s(sOM), 6); k.s_add_u32(s(sT1), s(sT1), s(sT2))
        k.s_add_u32(s(sT1), s(sT1), KVP[L])
        k.v_lshrrev_b32(v(59), 2, v(vLANE)); k.v_lshlrev_b32(v(59), 12, v(59))
        k.v_and_b32(v(58), 3, v(vLANE)); k.v_lshl_add_u32(v(59), v(58), 4, v(59))
        h1 = lambda: self.ws_ld(G, 59, sT1, 0)
        H1 = self.opt.get('h1', 22)
        if pw == 1:
            def endwo():
                self.bgoff(); self.drain(); self.resets(L, z=84, t1=sT4); h1(); self.bg = rest
            self.gemm_q(0, raw=False, hooks={27: endwo})
        else:
          qfill = None
          if L == 0:
              qfill = self.cs_ops(0, self.L_CT, 72, 55, segs=(2,))
              for i in range(8):
                  qfill += [lambda i=i: k.v_accvgpr_read_b32(v(vXRES+2*i+1), a(128+i)), lambda i=i: k.v_lshlrev_b32(v(vXRES+2*i), 16, v(vXRES+2*i+1)),
                            lambda i=i: k.v_and_b32(v(vXRES+2*i+1), '0xffff0000', v(vXRES+2*i+1))]
              def zp():
                  k.s_mov_b32('exec_lo', 0)
                  for i in range(12, 16): k.v_mov_b32(v(vXRES+i), 0)
                  k.s_mov_b32('exec_lo', -1)
              qfill.append(zp)
          self.gemm_q(0, raw=False, fill=qfill, f0=0, hooks=({(self.opt.get('off0', 16) if L == 0 else self.opt.get('off2', 16)): self.bgoff, H1: h1} if sa else {(8 if L == 0 else 2): lambda: self.burst(nb1), H1: h1}))
        k.v_lshrrev_b32(v(60), 4, v(vLANE)); k.v_lshlrev_b32(v(60), 2, v(60)); k.v_lshl_add_u32(v(G+8), v(58), 4, v(60))
        k.v_mov_b32(v(G+10), '0x3f80'); k.v_mov_b32(v(G+11), 1.0)
        k.v_mov_b32(v(G+4), 0); k.v_mov_b32(v(G+5), 0)
        self.pack(vAQ)
        PQ, EQ = 64, 80
        self.feature_mfma(vAQ, PQ)
        self.stamp(f'L{L} q gemm')
        self.poll(h1, range(G, G+4), 2 << (4*L), first_wait=0, sleep=1)
        self.stamp(f'L{L} kvp got')
        k.v_permlane32_swap_b32(v(G), v(G+2)); k.v_permlane32_swap_b32(v(G+1), v(G+3))
        k.v_permlane16_swap_b32(v(G), v(G+1)); k.v_permlane16_swap_b32(v(G+2), v(G+3))
        for i in range(4):
            k.v_dot2_f32_bf16(v(G+4), v(G+i), v(G+10), v(G+4)); k.v_dot2_f32_bf16(v(G+5), v(G+i), v(G+11), v(G+5))
        k.s_lshl_b32(s(sT1), s(sH), 12); k.s_add_u32(s(sT1), s(sT1), KVR[L]); k.s_add_u32(s(sT2), s(sT2), s(sT1))
        for rot in (4, 8):
            for i in (4, 5):
                k.v_add_f32_dpp(v(G+i), v(G+i), v(G+i), m=f'row_ror:{rot} row_mask:0xf bank_mask:0xf')
        k.v_cvt_pk_bf16_f32(v(G+4), v(G+4), v(G+5))
        self.sanitize(G+4, 1)
        k.s_mov_b32('exec_lo', 0x000f000f); k.s_mov_b32('exec_hi', 0x000f000f)
        k.buffer_store_dword(v(G+4), v(G+8), s(S_WS, 4), s(sT2), m='offen sc1')
        k.s_mov_b64('exec', -1)
        self.stamp(f'L{L} kvr pub')
        if kf:
            for i in range(8):
                k.v_lshlrev_b32(v(vXRES+2*i), 16, v(vXRES+8+i)); k.v_and_b32(v(vXRES+2*i+1), '0xffff0000', v(vXRES+8+i))
            k.s_mov_b32('exec_lo', 0)
            for i in range(12, 16): k.v_mov_b32(v(vXRES+i), 0)
            k.s_mov_b32('exec_lo', -1)
        k.s_barrier()
        if sa:
            if L == 0 and kf and kf >= 2:
                for i in range(4): k.v_mov_b32(v(176+i), -1)
                for i in range(4): self.bg_reset(sKVH_P, KVH[1], 1024*i, 176)()
                self.bg_reset(97, KVP[2], 0, 176)()
            if L == 0: self.cs_dma(1, L_KVL)
            if L == 0 and self.opt.get('fl', 0) & 1: self.fill(XB[0])
            if L == 0 and self.opt.get('fl', 0) & 4: self.fill(OB[0])
            self.bg_wpk(1, 14, 21)
            self.burst(self.opt.get('bf2', 5) if L else self.opt.get('bf0', 3))
            if not self.opt.get('nfq'): self.bgon()
            self.feature(PQ, EQ)
            self.bgoff()
            while any(getattr(f, 'wo', False) for f in self.bg): self.bg.pop(0)()
        else:
            rest = self.bg; self.bg = []
            self.bg_wpk(1, 14, 21)
            self.bg = rest[:7-nb1] + self.bg[:4] + rest[7-nb1:] + self.bg[4:]
            if L == 0:
                self.cs_dma(1, L_KVL)
                self.touch_half(OPK + OPT)
            self.burst(11 - nb1)
            self.feature(PQ, EQ)
        if self.opt.get('cpf2'): self.code_pf(512)
        if L == 0:
            self.vq = []
            self.flag_issue(2, 160)
        self.stamp(f'L{L} phi_q')
        def issue():
            for i in range(4): self.ws_ld(128+4*i, vL16, sT1, 1024*i)
        self.poll(issue, range(128, 144), 2 << (4*L), sleep=1)
        self.stamp(f'L{L} kvr got')
        ACC = 96
        for i, B in enumerate((PQ, PQ+4, EQ, EQ+4)):
            self.mfma(ACC, v(128+4*i, 4), v(B, 4), v(ACC, 16) if i else 0)
        self.o_tail(L, ACC, True)
        if L == 0:
            self.vq = []
            self.flag_wait(2, 160)
        self.stamp(f'L{L} o pub')

    def layer_B(self, L):
        k = self.k
        self.stamp(f'L{L} kv gemm')
        s3 = L == 1 and self.opt.get('kf', 0) >= 2
        if s3:
            self.vq = []
            self.quad_issue(112, stage=3, both=True)
        self.nohi()
        k.s_add_u32(s(sT1), s(sKVH_P), KVH[L])
        self.scale_pack(vAK, vRINV)
        for i, rg in enumerate((vAK, vAK+4)): self.ws_st(rg, vL16, sT1, 1024*i, flags='sc1')
        self.epi_v()
        for i, rg in enumerate((vAV, vAV+4)): self.ws_st(rg, vL16, sT1, 2048+1024*i, flags='sc1')
        self.stamp(f'L{L} kvh pub')
        if L == 3 and self.opt.get('wb'):
            lwb = k.newlabel('Lwb')
            k.s_and_b32(s(3), s(sPFO), 0xf80); k.s_cmp_lg_u32(s(3), 0x180); k.s_cbranch_scc1(lwb)
            k.buffer_wbl2(m='sc1')
            k.label(lwb)
        if s3:
            self.vtag('pub', 4)
            self.quad_wait(112, both=True)
        if self.opt.get('early_reset'): self.resets(L)
        for i, rg in enumerate((vAK, vAK+4, vAV, vAV+4)):
            k.ds_write_b128(v(vKVL), v(rg, 4), m=f'offset:{8*4096 + 1024*i}')
        k.s_lshl_b32(s(sT1), s(sR), 1); k.s_add_u32(s(sT1), s(sT1), s(sW))
        k.s_add_u32(s(sT2), s(sKVH_C), KVH[L])
        k.s_cmp_lt_u32(s(sT1), 4); k.s_cselect_b32(s(sT1), 0x7000000, s(sT2))
        k.s_add_u32(s(sT2), s(sT1), 4096)
        k.s_lshl_b32(s(sT3), s(sW), 13); k.s_add_u32(s(sT3), s(sT3), L_KVL)
        def hdma(f0):
            def f():
                for j, so in ((0, sT1), (1, sT2)):
                    k.s_add_u32('m0', s(sT3), j*4096)
                    for fr in (f0, f0+1):
                        k.buffer_load_dwordx4(v(vL16), s(S_WS, 4), s(so), m=f'offen offset:{fr*1024} ' + ('nt sc1 lds' if self.opt.get('hnt') else 'sc1 lds'))
            return f
        def hread(f0, R):
            for j in range(2):
                for i in range(2):
                    k.ds_read_b128(v(R + 8*j + 4*i, 4), v(vHW), m=f'offset:{j*4096 + (f0+i)*1024}')
        def hcheck(f0, R, wait):
            lp, lo, lr = k.newlabel('Lhp'), k.newlabel('Lho'), k.newlabel('Lhr')
            k.s_mov_b32(s(sTRY), 0)
            if wait is not None:
                k.s_waitcnt(f'vmcnt({wait})')
                hread(f0, R)
            k.label(lp)
            k.s_waitcnt('lgkmcnt(0)')
            self.check(range(R, R+16))
            k.s_cbranch_scc1(lo)
            if self.ts: k.s_add_u32(s(sERR), s(sERR), 1 << 16)
            k.s_add_u32(s(sTRY), s(sTRY), 1)
            k.s_cmp_ge_u32(s(sTRY), MAXTRY); k.s_cselect_b32(s(sT6), 2 << (4*L), 0); k.s_or_b32(s(sERR), s(sERR), s(sT6))
            k.s_cmp_lg_u32(s(sT6), 0); k.s_cbranch_scc1(lo)
            k.s_sleep(1)
            hdma(f0)()
            if f0 == 0: hdma(2)()
            k.s_waitcnt('vmcnt(4)' if f0 == 0 else 'vmcnt(0)')
            hread(f0, R)
            k.s_branch(lp)
            k.label(lo)
        SR = [144, 112, 128, 176, 192, 208, 224, 240]
        S0, S8 = 144, 160
        NEG = 57
        M = 88
        mx = 58
        fill = [lambda: k.v_mov_b32(v(NEG), f32(-BIGF)), lambda: k.v_mov_b32(v(60), 0xffff), lambda: k.v_mov_b32(v(61), '0xffff0000')]
        for r in range(0, 16, 2):
            fill += [lambda r=r: k.v_cmp_le_i32(s(sC0, 2), (r & 3) + 8*(r >> 2), v(vII)),
                     lambda r=r: k.v_cmp_le_i32(s(sP0, 2), ((r+1) & 3) + 8*((r+1) >> 2), v(vII)),
                     lambda r=r: k.v_mov_b32(v(mx), f32(-BIGF)) if r == 0 else (k.v_or_b32(v(M + r//2 - 1), v(62), v(63))),
                     lambda r=r: k.v_cndmask_b32(v(S8+r), v(NEG), 0, s(sC0, 2)), lambda r=r: k.v_cndmask_b32(v(S8+r+1), v(NEG), 0, s(sP0, 2)),
                     lambda r=r: k.v_cndmask_b32(v(S0+r), 0, v(NEG), s(sC0, 2)), lambda r=r: k.v_cndmask_b32(v(S0+r+1), 0, v(NEG), s(sP0, 2)),
                     lambda r=r: k.v_cndmask_b32(v(62), 0, v(60), s(sC0, 2)), lambda r=r: k.v_cndmask_b32(v(63), 0, v(61), s(sP0, 2))]
        fill += [lambda: k.v_or_b32(v(M + 7), v(62), v(63)), lambda: k.v_mov_b32(v(mx+1), f32(-BIGF)),
                 lambda: k.v_mul_f32(v(62), f32(28**-0.5 * LOG2E), v(vRINV))]
        NQ = self.opt.get('woq', 0) if L == 1 else 0
        hooks = {self.hk: hdma(0), self.hv: hdma(2)}
        if NQ:
            self.bg_wo(1, 0, NQ)
            wl = self.bg; self.bg = []
            for i, f in enumerate(wl): hooks[1 + i*(self.hk - 3)//len(wl) if len(wl) <= 8 else 1 + i] = f
        self.gemm_q(1, raw=False, hooks=hooks, fill=fill)
        assert not fill
        self.scale_pack(vAQ, 62)
        k.s_mov_b32('exec_lo', 0)
        k.v_mov_b32(v(vAQ+6), 0x3f80)
        k.s_mov_b32('exec_lo', -1)
        self.mfma(S8, v(vAK, 4), v(vAQ, 4), v(S8, 16))
        self.mfma(S8, v(vAK+4, 4), v(vAQ+4, 4), v(S8, 16))
        self.stamp(f'L{L} q')
        if self.opt.get('ackst'):
            k.s_waitcnt('vmcnt(8)'); self.stamp(f'L{L} acks')
            k.s_waitcnt('vmcnt(4)'); self.stamp(f'L{L} K landed')
        hcheck(0, 176, 4)
        lmk = k.newlabel('Lmk')
        k.s_cmp_lg_u32(s(sT1), 0x7000000); k.s_cbranch_scc1(lmk)
        k.v_mov_b32(v(62), 0xff61)
        k.s_mov_b32('exec_lo', 0)
        k.ds_write_b32(v(vHW), v(62), m='offset:1032'); k.ds_write_b32(v(vHW), v(62), m=f'offset:{4096+1032}')
        k.s_mov_b32('exec_lo', -1)
        k.s_waitcnt('lgkmcnt(0)')
        k.label(lmk)
        k.s_barrier()
        self.stamp(f'L{L} halo got')
        KB = 64
        def kb(t): return KB + (t % 3)*8
        def rdk(t):
            k.ds_read_b128(v(kb(t), 4), v(vKVL), m=f'offset:{t*4096}')
            k.ds_read_b128(v(kb(t)+4, 4), v(vKVL), m=f'offset:{t*4096+1024}')
            self.ltag(f'k{t}', 2)
        def rdv(t):
            k.ds_read_b128(v(kb(t), 4), v(vKVL), m=f'offset:{t*4096+2048}')
            k.ds_read_b128(v(kb(t)+4, 4), v(vKVL), m=f'offset:{t*4096+3072}')
            self.ltag(f'v{t}', 2)
        def maxtile(S):
            return [lambda i=i: k.v_max3_f32(v(mx + ((i >> 1) & 1)), v(S+i), v(S+i+1), v(mx + ((i >> 1) & 1))) for i in range(0, 16, 2)]
        def merge():
            return [lambda r=r: k.v_max_f32(v(S0+r), v(S0+r), v(S8+r)) for r in range(16)]
        self.lq = []
        for t in range(3): rdk(t)
        if L == 3 and self.opt.get('cl', 0) & 4:
            for b_ in (XB[1], OB[0]):
                k.s_add_u32(s(sB0), s(sOT_P), b_)
                for o_ in (0, 1024): k.buffer_store_dwordx4(v(24, 4), v(vL16), s(S_WS, 4), s(sB0), m=f'offen offset:{o_} sc1')
            self.cl4 = 4
        if not self.opt.get('early_reset'): self.resets(L, z=104, t1=sT4, t2=sT5)
        self.vq = []
        if L == 1:
            if self.opt.get('fl', 0) & 2: self.fill(XB[1])
            if self.opt.get('fl', 0) & 8: self.fill(OB[1])
            self.bg_wpk(0, 0, 14)
            if self.opt.get('s1a'):
                ne = self.opt.get('wae', 5)
                late = self.bg[ne:]; self.bg = self.bg[:ne]
                self.bg_wo(1, NQ, 4)
                self.bg += late
                if self.opt.get('qo'): self.bg_wpk(0, 14, 21)
                self.bgon()
            else:
                self.burst(7)
                late = self.bg; self.bg = []
                self.bg_wo(1, 0, 4)
                for f in self.bg: f.gap = 64
                self.bg += late
        def smfma(fast):
            for t in range(8):
                self.lwait(f'k{t}')
                self.mfma(SR[t], v(kb(t), 4), v(vAQ, 4), v(S0, 16) if t == 0 else 0)
                for _ in range(6):
                    if fast: fast.pop(0)()
                self.mfma(SR[t], v(kb(t)+4, 4), v(vAQ+4, 4), v(SR[t], 16))
                if t + 3 < 8: rdk(t + 3)
                if fast is not None:
                    for _ in range(5):
                        if fast: fast.pop(0)()
                    if t == 1: fast += merge() + maxtile(S0)
                    if t >= 2: fast += maxtile(SR[t-1])
        fast = []
        smfma(fast)
        fast += maxtile(SR[7])
        while fast: fast.pop(0)()
        k.v_max_f32(v(mx), v(mx), v(mx+1))
        self.xhalf('v_max_f32', mx, 60)
        k.v_sub_f32(v(mx), 0, v(mx))
        V8 = S8 + 8
        P8 = S8
        ACC = 96
        pend = []
        for t in range(8):
            S = SR[t]
            for i in range(8): k.v_pk_add_f32(v(S+2*i, 2), v(S+2*i, 2), v(mx, 2), m='op_sel_hi:[1,0]')
            for i in range(16):
                k.v_exp_f32(v(S+i), v(S+i))
                if i % 4 == 1 and pend: pend.pop(0)()
                if i % 4 == 3: self.tick()
            if t == 0:
                self.bgoff()
                k.s_waitcnt(f'vmcnt({len(self.vq) + getattr(self, "cl4", 0)})')
                hread(2, 64)
            for i in range(8): k.v_cvt_pk_bf16_f32(v(S+i), v(S+2*i), v(S+2*i+1))
            if t == 0:
                for i in range(8):
                    k.v_and_b32(v(P8+i), v(S+i), v(M+i)); k.v_xor_b32(v(S+i), v(S+i), v(P8+i))
                self.bgoff()
                hcheck(2, 64, None)
                k.s_barrier()
                self.stamp(f'L{L} V ok')
                if L == 3 and self.opt.get('cl', 0) & 1:
                    for b_ in (XB[1], OB[0]):
                        k.s_add_u32(s(sB0), s(sOT_P), b_)
                        for o_ in (0, 1024): k.buffer_store_dwordx4(v(24, 4), v(vL16), s(S_WS, 4), s(sB0), m=f'offen offset:{o_} sc1')
                self.burst(4)
                self.bgon()
                self.lq = []
                for tt in range(3): rdv(tt)
                k.ds_read_b128(v(V8, 4), v(vKVL), m=f'offset:{8*4096+2048}')
                k.ds_read_b128(v(V8+4, 4), v(vKVL), m=f'offset:{8*4096+3072}')
                self.ltag('v8', 2)
            def m1(t=t, S=S):
                self.lwait(f'v{t}')
                self.mfma(ACC, v(kb(t), 4), v(S, 4), v(ACC, 16) if t else 0)
            def m2(t=t, S=S):
                self.mfma(ACC, v(kb(t)+4, 4), v(S+4, 4), v(ACC, 16))
                if t + 3 < 8: rdv(t + 3)
            pend += [m1, m2]
            if t == 0:
                def m3():
                    self.lwait('v8')
                    self.mfma(ACC, v(V8, 4), v(P8, 4), v(ACC, 16))
                pend += [m3, lambda: self.mfma(ACC, v(V8+4, 4), v(P8+4, 4), v(ACC, 16))]
        while pend: pend.pop(0)()
        self.bgoff()
        while any(getattr(f, 'wo', False) for f in self.bg): self.bg.pop(0)()
        self.o_tail(L, ACC, False)
        self.stamp(f'L{L} o pub')

    def outproj(self, L):
        k = self.k
        typ = L & 1
        G = 144
        assert not any(getattr(f, 'wo', False) for f in self.bg)
        if L < 3: self.code_pf(1024)
        k.s_add_u32(s(sT1), s(sOT_C), OB[L])
        k.s_add_u32(s(sT2), s(sT1), 4096)
        k.s_mov_b32(s(sTRY), 0)
        lp = k.newlabel('Lop')
        OW = self.opt.get('ow', 0)
        OS = self.opt.get('os', -1)
        if OS >= 0:
            k.v_lshlrev_b32(v(59), 11, v(vLANE)); k.v_mov_b32(v(60), 0)
        k.label(lp)
        if OS >= 0:
            k.s_mov_b64('exec', 15)
            self.ws_ld(60, 59, sT1, 2044, n=1)
            k.s_mov_b64('exec', -1)
            for i in range(OS): self.ws_ld(G+4*i, vL16, sT2 if i >= 4 else sT1, 1024*(i & 3))
            k.s_add_u32(s(sTRY), s(sTRY), 1)
            k.s_cmp_ge_u32(s(sTRY), MAXTRY)
            k.s_cselect_b32(s(sT6), 4 << (4*L), 0)
            k.s_waitcnt(f'vmcnt({OS})')
            k.v_cmp_eq_u32('vcc', -1, v(60))
            k.s_cmp_eq_u64('vcc', 0)
            k.s_cselect_b32(s(sT7), 1, s(sT6))
            k.s_cmp_eq_u32(s(sT7), 0)
            k.s_cbranch_scc1(lp)
        for i in range(max(OS, 0), 8): self.ws_ld(G+4*i, vL16, sT2 if i >= 4 else sT1, 1024*(i & 3))
        k.s_add_u32(s(sTRY), s(sTRY), 1)
        k.s_cmp_ge_u32(s(sTRY), MAXTRY)
        k.s_cselect_b32(s(sT6), 4 << (4*L), 0)
        k.s_or_b32(s(sERR), s(sERR), s(sT6))
        for i in range(8):
            if OW or i % 2 == 0: k.s_waitcnt(f'vmcnt({7-i if OW else 6-i})')
            if OW: k.ds_write_b128(v(vGW), v(G+4*i, 4), m=f'offset:{1024*i}')
            if i == 0:
                k.v_max3_u32(v(62), v(G), v(G+1), v(G+2)); k.v_max_u32(v(62), v(G+3), v(62))
            else:
                k.v_max3_u32(v(62), v(G+4*i), v(G+4*i+1), v(62)); k.v_max3_u32(v(62), v(G+4*i+2), v(G+4*i+3), v(62))
        k.v_cmp_eq_u32('vcc', -1, v(62))
        k.s_cmp_eq_u64('vcc', 0)
        k.s_cselect_b32(s(sT7), 1, s(sT6))
        k.s_cmp_eq_u32(s(sT7), 0)
        k.s_cbranch_scc1(lp)
        self.stamp(f'L{L} o got')
        NPRE = self.opt.get('npre', 3 if OW else 6)
        for i in range(8):
            if not OW: k.ds_write_b128(v(vGW), v(G+4*i, 4), m=f'offset:{1024*i}')
            if i < NPRE: self.mfma(vXRES, a(typ*128+4*i, 4), v(G+4*i, 4), v(vXRES, 16))
        k.s_waitcnt('lgkmcnt(0)')
        k.s_barrier()
        def breg(f): return (64 if f < 8 else 176 - 32) + 4*f
        def rdo(f):
            k.ds_read_b128(v(breg(f), 4), v((vG1, vG2, vG3)[f >> 3]), m=f'offset:{1024*(f & 7)}')
            self.ltag(f'o{f}')
        D = 8
        self.lq = []
        fill = self.cs_ops(1, L_KVL, 240, 55) if L == 0 else []
        for f in range(4): rdo(f)
        for i in range(NPRE, 8):
            self.mfma(vXRES, a(typ*128+4*i, 4), v(G+4*i, 4), v(vXRES, 16))
        for f in range(4, D): rdo(f)
        if L == 0 and self.opt.get('kf', 0) >= 2: self.flag_post(3, 60)
        if L == 0: self.touch_half(OPK + OPT)
        if L == 3 and self.opt.get('cl', 0) & 2:
            k.s_add_u32(s(sB0), s(sOT_P), XB[0])
            for o_ in (0, 1024): k.buffer_store_dwordx4(v(24, 4), v(vL16), s(S_WS, 4), s(sB0), m=f'offen offset:{o_} sc1')
        self.burst(3)
        for f in self.bg: f.gap = min(90, 700 // len(self.bg))
        self.bg_next = 0
        self.bgon()
        for f in range(24):
            self.lwait(f'o{f}')
            self.mfma(vXRES, a(typ*128+32+4*f, 4), v(breg(f), 4), v(vXRES, 16))
            if f + D < 24: rdo(f + D)
            for _ in range(5):
                if fill: fill.pop(0)()
        assert not fill
        self.bgoff()
        PK = 112
        last = L == self.nlayers - 1
        if not last:
            self.drain()
            k.s_add_u32(s(sT1), s(sXT_P), XB[L])
            k.v_mov_b32(v(122), '0x3f803f80'); k.v_mov_b32(v(120), 0); k.v_mov_b32(v(121), 0)
        for i in range(8): k.v_cvt_pk_bf16_f32(v(PK+i), v(vXRES+2*i), v(vXRES+2*i+1))
        if last:
            for q in range(3):
                k.buffer_store_dwordx2(v(PK+2*q, 2), v(vOUT), s(S_OUT, 4), 0, m=f'offen offset:{16*q}')
            k.s_mov_b32('exec_hi', 0)
            k.buffer_store_dwordx2(v(PK+6, 2), v(vOUT), s(S_OUT, 4), 0, m='offen offset:48')
            k.s_mov_b32('exec_hi', -1)
            self.stamp(f'L{L} out')
            return
        def st(fl):
            for q in range(3): self.ws_st(PK+2*q, vXST, sT1, 512*q, n=2, flags=fl)
            k.s_mov_b32('exec_hi', 0)
            self.ws_st(PK+6, vXST, sT1, 512*3, n=2, flags=fl)
            k.s_mov_b32('exec_hi', -1)
        self.local_stores(st)
        s1, s2 = 120, 121
        for i in range(8):
            k.v_dot2_f32_bf16(v(s1), v(PK+i), v(122), v(s1)); k.v_dot2_f32_bf16(v(s2), v(PK+i), v(PK+i), v(s2))
        k.s_lshl_b32(s(sT2), s(sW), 9); k.s_add_u32(s(sT2), s(sT2), L_STAT)
        k.v_lshl_add_u32(v(124), v(vLANE), 3, s(sT2))
        k.ds_write_b64(v(124), v(s1, 2))
        for i in range(8):
            k.v_lshlrev_b32(v(vXRES+2*i), 16, v(PK+i)); k.v_and_b32(v(vXRES+2*i+1), '0xffff0000', v(PK+i))
        self.stamp(f'L{L} x pub')

    def build(self):
        k = self.k
        self.prologue()
        for L in range(self.nlayers):
            if L > 0: self.load_gemm_kv(L)
            if L & 1: self.layer_B(L)
            else: self.layer_A(L)
            self.outproj(L)
        if self.ts:
            k.s_memrealtime(s(sTS, 2)); k.s_waitcnt('lgkmcnt(0)')
            k.v_writelane_b32(v(vNEGB), s(90), 59); k.v_writelane_b32(v(vNEGB), s(sTS), 60); k.v_writelane_b32(v(vNEGB), s(92), 61)
            k.v_writelane_b32(v(vNEGB), s(sERR), 63)
            k.v_writelane_b32(v(vNEGB), s(sMODE), 62)
            k.v_lshlrev_b32(v(60), 2, v(vLANE))
            k.buffer_store_dword(v(vNEGB), v(60), s(S_WS, 4), s(sTSO), m='offen')
        k.label('Lend')
        k.s_endpgm()
        self.bgoff()
        while self.cold: self.cold.pop(0)()
        k.label('Lcode_end')
        body = k.finish()
        hdr = open('cdna_kernels/' + NAME + '.s.ref').read().split('; Override launch')[0]
        return hdr + f"""; Generated by the author's own script (gen/gen.py + gen/asmlib.py); no compiler output.
; One persistent launch: 256 workgroups (one per CU) x 4 waves run all four layers.
;   workgroup = (row block r of 128 tokens, head h) for LN+QKV GEMM / attention core, and
;               (32-token tile, 112-column group) for the output projection + residual.
;   LayerNorm is applied algebraically: (x W - mean * colsum(W)) * rstd, statistics travel with x.
;   Hand-offs between workgroups go through d_ws: buffers are reset to a sentinel in this launch and consumers
;   verify every dword; start-up steps are ordered by flags that carry a launch-unique tag (posted in d_debug).
;   Row blocks whose 16 workgroups really sit on one XCD (checked at run time) exchange through that L2 with plain
;   stores, otherwise write-through (sc1) stores are used.  All spins are bounded.
; @launch grid=(256,1,1) block=(256,1,1) lds={LDS_BYTES}
.amdgcn_target "amdgcn-amd-amdhsa--gfx950"
.text
.globl {NAME}_kernel
.p2align 8
.type {NAME}_kernel,@function
{NAME}_kernel:
{body}.section .rodata,"a"
.p2align 6
.amdhsa_kernel {NAME}_kernel
  .amdhsa_next_free_vgpr 512
  .amdhsa_next_free_sgpr 102
  .amdhsa_accum_offset 256
  .amdhsa_group_segment_fixed_size 0
  .amdhsa_kernarg_size 80
  .amdhsa_user_sgpr_count 2
  .amdhsa_user_sgpr_kernarg_segment_ptr 1
  .amdhsa_system_sgpr_workgroup_id_x 1
.end_amdhsa_kernel
"""

if __name__ == '__main__':
    import argparse
    ap = argparse.ArgumentParser()
    ap.add_argument('-o', default='cdna_kernels/' + NAME + '.s')
    ap.add_argument('--ts', action='store_true')
    ap.add_argument('--slow', action='store_true')
    ap.add_argument('--noalias', action='store_true')
    ap.add_argument('--tlb', action='store_true')
    ap.add_argument('--spin', default=None)
    ap.add_argument('--opt', action='append', default=[])
    ap.add_argument('--gmiss', type=int, default=250)
    ap.add_argument('--ghit', type=int, default=90)
    ap.add_argument('--hk', type=int, default=20)
    ap.add_argument('--hv', type=int, default=27)
    ap.add_argument('--layers', type=int, default=4)
    args = ap.parse_args()
    g = Gen(ts=args.ts, force_slow=args.slow, nlayers=args.layers, alias=not args.noalias, tlb=args.tlb, hk=args.hk, hv=args.hv, gmiss=args.gmiss, ghit=args.ghit, opt={o.split('=')[0]: (int(o.split('=')[1]) if '=' in o else 1) for o in args.opt})
    if args.spin: g.spin_at, g.spin_t = args.spin.split(':')[0], int(args.spin.split(':')[1])
    src = g.build()
    if not g.opt.get('noalign'):
        from alignpass import align
        src, nw, nn = align(src, g.opt.get('minrun', 2), g.opt.get('noprun', 4))
        print('aligned: widened', nw, 'nops', nn)
    open(args.o, 'w').write(src)
    if args.ts:
        open(args.o + '.tsnames', 'w').write('\n'.join(getattr(g, 'tsnames', [])))
    print('instructions', g.k.nins, 'bytes of source', len(src))
```
